```python
import torch

def _softmax(x, axis=-1):
    return torch.softmax(x, dim=axis)
def _gelu(x):
    return torch.nn.functional.gelu(x, approximate="tanh")
def _silu(x):
    return torch.nn.functional.silu(x)
def _sigmoid(x):
    return torch.sigmoid(x)
def _layernorm(x, axis=-1, eps=1e-5):
    m = x.mean(dim=axis, keepdim=True)
    v = x.var(dim=axis, keepdim=True, unbiased=False)
    return (x - m) / torch.sqrt(v + eps)
def _scatter_add(tgt, idx, src, axis=0):
    return tgt.clone().index_add_(axis, idx, src)
def _segment_sum(src, seg, n):
    out = torch.zeros((n,) + src.shape[1:], dtype=src.dtype)
    return out.index_add_(0, seg, src)
def _pad(x, pw):
    flat = tuple(v for pair in reversed(pw) for v in pair)
    return torch.nn.functional.pad(x, flat)

kernel_name = 'standalone__convnext_block__vision'

def setup_inputs():

    _w = (lambda a: (lambda t: t.to(torch.bfloat16) if t.is_floating_point() else t)(torch.as_tensor(a)))
    H = W = 512
    C = 192
    return {
        "x": _w((lambda *s: torch.randn(*s, dtype=torch.bfloat16) * 0.05)(1, H, W, C)),
        "dw": _w((lambda *s: torch.randn(*s, dtype=torch.bfloat16) * 0.05)(7, 7, C)),
        "w1": _w((lambda *s: torch.randn(*s, dtype=torch.bfloat16) * 0.05)(C, 4 * C)),
        "w2": _w((lambda *s: torch.randn(*s, dtype=torch.bfloat16) * 0.05)(4 * C, C)),
    }

def reference(x, dw, w1, w2):
    B, H, W, C = x.shape
    pad = 3
    xp = _pad(x, ((0,0),(pad,pad),(pad,pad),(0,0)))
    out = torch.zeros_like(x)
    for i in range(7):
        for j in range(7):
            out = out + xp[:, i:i+H, j:j+W, :] * dw[i, j][None, None, None, :]
    h = _layernorm(out, axis=-1)
    return x + _gelu(h @ w1) @ w2
```

```python
import struct, math
def f2u(x):
    return struct.unpack("<I", struct.pack("<f", x))[0]
class Asm:
    def __init__(self):
        self.L = []
    def __call__(self, s):
        for line in s.strip("\n").split("\n"):
            self.L.append(line)
    def label(self, s):
        self.L.append(s + ":")
    def text(self):
        return "\n".join(self.L) + "\n"
def vr(a, n=1):
    return f"v{a}" if n == 1 else f"v[{a}:{a+n-1}]"
def sr(a, n=1):
    return f"s{a}" if n == 1 else f"s[{a}:{a+n-1}]"
K_Z = 2.0 * math.sqrt(2.0 / math.pi) * math.log2(math.e)
GS = (0.044715 * K_Z) ** (1.0 / 3.0)
GA = K_Z / GS
def kdesc(name, vgpr, sgpr, accum=None):
    accum = accum or ((vgpr + 3) // 4 * 4)
    return f""".section .rodata,"a"
.p2align 6
.amdhsa_kernel {name}
  .amdhsa_next_free_vgpr {vgpr}
  .amdhsa_next_free_sgpr {sgpr}
  .amdhsa_accum_offset {accum}
  .amdhsa_group_segment_fixed_size 0
  .amdhsa_kernarg_size 56
  .amdhsa_user_sgpr_count 2
  .amdhsa_user_sgpr_kernarg_segment_ptr 1
  .amdhsa_system_sgpr_workgroup_id_x 1
.end_amdhsa_kernel
"""
def kstart(name):
    return f""".text
.globl {name}
.p2align 8
.type {name},@function
{name}:"""
```

```python
from asmlib import *
import mlpcore as C
from mlpcore import R, ACC, ACCreg, Hf, WFr, Core, BLK, NBLK, CFG
from k_prep2 import TBL_OFF, TBL_BYTES
import numpy as np
TB = [0, 16384]
SB = [32768, 32768 + 58464]
OS = 9744; CS = 1216; PLANE = 608
XCH = 49152; XPS = 400
STATS = 151680
IDOFF = STATS + 8192
LDS_BYTES = IDOFF + 2048
assert SB[1] + 58464 <= STATS and XCH + 102512 <= STATS and LDS_BYTES <= 163840
V_LANE = 0
V_SW = [1, 2]
V_TMP = 3
V_PX = [6, 7]
V_B = [8, 9]
V_T = 10
V_IDX = 11
V_XW = [12, 13]
V_XR = [14, 15]
V_GA = [24, 26]; V_GB = [25, 27]
V_SWC = [28, 29]
AF = [32, 40]
XR = [48, 80]
PT = [112, 120]
def Dreg(k, i):
    if k < 2: return ('a', 48 + 48 * k + 4 * i)
    return ('v', 160 + 48 * (k - 2) + 4 * i)
BF = [144, 160, 176]
def Xf(blk, s):
    r = 160 + 48 * blk + 4 * s; return f"a[{r}:{r+3}]"
S_X = 8; S_OUT = 12; S_TB = 16
S_W = 20; S_I = 21; S_T0 = 28; S_T1 = 29; S_PXO = 30; S_PXN = 31; S_G0 = 32; S_LO = 33; S_HI = 34
S_TX = 64; S_TY = 65; S_TM = 66; S_TG = 67; S_EPS = 68; S_INV = 69
NPX = 512 * 512
STAMP_OFF = 300 << 20
H_OFF = 1 << 20
OPT = dict(dumph=0, prof=0)
COLS = [0, 1, 8, 9, 2, 3, 10, 11]
def stamp(a):
    if not OPT['prof']: return
    a(f"""  s_memtime s[42:43]
  s_memrealtime s[62:63]
  s_waitcnt lgkmcnt(0)
  v_mov_b32 v{V_TMP}, s42
  v_mov_b32 v16, s40
  s_add_u32 s40, s40, 4
  buffer_store_dword v{V_TMP}, v16, s[44:47], 0 offen
  v_mov_b32 v{V_TMP}, s62
  s_nop 0
  buffer_store_dword v{V_TMP}, v16, s[44:47], 0 offen offset:128""")
def tile_coords(a):
    a(f"""  s_and_b32 s{S_T0}, s2, 7
  s_lshl_b32 s{S_T0}, s{S_T0}, 3
  s_lshr_b32 s{S_T1}, s2, 3
  s_and_b32 s{S_TX}, s{S_T1}, 7
  s_add_u32 s{S_TX}, s{S_TX}, s{S_T0}
  s_lshr_b32 s{S_T1}, s{S_T1}, 3
  s_lshl_b32 s{S_TY}, s{S_I}, 2
  s_add_u32 s{S_TY}, s{S_TY}, s{S_T1}          ; ty = 4*i + (c>>3)
  s_lshl_b32 s{S_T0}, s{S_TY}, 14              ; y0*512 = ty*32*512
  s_lshl_b32 s{S_T1}, s{S_TX}, 3
  s_add_u32 s{S_T0}, s{S_T0}, s{S_T1}
  s_mul_i32 s{S_PXN}, s{S_T0}, 384""")
def global_bases(a):
    for r in range(2):
        a(f"""  ; task t = {256*r} + w*64 + lane (dup if >= 456)
  s_lshl_b32 s{S_T0}, s{S_W}, 6
  s_add_u32 s{S_T0}, s{S_T0}, {256*r}
  v_add_u32 v16, s{S_T0}, v{V_LANE}
  v_subrev_u32 v17, 256, v16
  v_cmp_gt_u32 vcc, 456, v16
  s_mov_b32 s{S_T1}, {(2**32 + 5)//6}
  v_cndmask_b32 v16, v17, v16, vcc
  v_mul_hi_u32 v17, v16, s{S_T1}               ; ru = t/6
  v_mul_u32_u24 v18, 6, v17
  v_sub_u32 v18, v16, v18                      ; o
  v_lshrrev_b32 v19, 1, v17                    ; row
  v_and_b32 v20, 1, v17                        ; u
  ; y = y0 - 3 + row ; x = x0 - 4 + 4u
  s_lshl_b32 s{S_T0}, s{S_TY}, 5
  s_sub_u32 s{S_T0}, s{S_T0}, 3
  v_add_u32 v21, s{S_T0}, v19                  ; y
  s_lshl_b32 s{S_T1}, s{S_TX}, 3
  s_sub_u32 s{S_T1}, s{S_T1}, 4
  v_lshl_add_u32 v22, v20, 2, s{S_T1}
  v_lshl_add_u32 v23, v21, 9, v22              ; y*512 + x
  s_movk_i32 s{S_T0}, 384
  v_mul_lo_u32 v23, v23, s{S_T0}
  v_lshl_add_u32 v23, v18, 4, v23              ; + o*16
  v_mov_b32 v{V_TMP}, 0x80000000
  s_movk_i32 s{S_T0}, 512
  v_cmp_gt_u32 vcc, s{S_T0}, v21               ; y valid
  v_cmp_gt_u32 s[70:71], s{S_T0}, v22
  v_add_u32 v22, 8, v22
  v_cmp_gt_u32 s[72:73], s{S_T0}, v22
  s_nop 0
  s_and_b64 s[70:71], s[70:71], vcc
  s_and_b64 s[72:73], s[72:73], vcc
  s_nop 1
  v_cndmask_b32 v{V_GA[r]}, v{V_TMP}, v23, s[70:71]
  v_add_u32 v23, {8*384}, v23
  v_cndmask_b32 v{V_GB[r]}, v{V_TMP}, v23, s[72:73]""")
def x_loads(a, k, r):
    for i, col in enumerate(COLS):
        base = V_GA[r] if col < 8 else V_GB[r]
        off = (col & 7) * 384 + k * 96
        a(f"  buffer_load_dwordx4 {vr(XR[r]+4*i,4)}, v{base}, s[{S_X}:{S_X+3}], 0 offen offset:{off}")
def stage_round(a, k, r):
    for d in range(4):
        T = PT[d & 1]
        for p in range(4):
            x0 = XR[r] + 4 * (2 * p) + d; x1 = XR[r] + 4 * (2 * p + 1) + d
            a(f"  v_perm_b32 v{T+p}, v{x1}, v{x0}, s{S_LO}")
        for p in range(4):
            x0 = XR[r] + 4 * (2 * p) + d; x1 = XR[r] + 4 * (2 * p + 1) + d
            a(f"  v_perm_b32 v{T+4+p}, v{x1}, v{x0}, s{S_HI}")
        a(f"  ds_write_b128 v{V_SWC[r]}, {vr(T,4)} offset:{(2*d)*CS}")
        a(f"  ds_write_b128 v{V_SWC[r]}, {vr(T+4,4)} offset:{(2*d+1)*CS}")
def table_dma(a, k):
    a(f"""  s_add_u32 s{S_TM}, s{S_W}, {TB[k&1]//4096}
  s_lshl_b32 s{S_TM}, s{S_TM}, 12
  s_lshl_b32 s{S_TG}, s{S_W}, 12
  s_add_u32 s{S_TG}, s{S_TG}, {k*12288}
  s_mov_b32 m0, s{S_TM}
  s_nop 0""")
    for q in range(4):
        a(f"  buffer_load_dwordx4 v{R.V_L16}, s[{S_TB}:{S_TB+3}], s{S_TG} offen offset:{1024*q} lds")
def conv_chunk(a, k):
    def chan_off(i): j, e = i >> 2, i & 3; return j * 2 * OS + e * CS
    def tab_off(i): j, e = i >> 2, i & 3; return TB[k & 1] + j * 4096 + e * 256
    def rdA(i):
        A = AF[i & 1]
        return [f"  ds_read_b32 v{A}, v{V_T} offset:{tab_off(i)}", f"  ds_read_b32 v{A+4}, v{V_T} offset:{tab_off(i)+128}"]
    def rdB(i):
        B = BF[i % 3]
        return [f"  ds_read_b128 a[{B+4*q}:{B+4*q+3}], v{V_B[k&1]} offset:{chan_off(i)+32*q}" for q in range(4)]
    for t in rdA(0) + rdB(0) + rdB(1): a(t)
    for i in range(12):
        A = AF[i & 1]; B = BF[i % 3]
        kind, D = Dreg(k, i)
        Dt = f"{kind}[{D}:{D+3}]"
        nxtA = rdA(i + 1) if i + 1 < 12 else []
        nxtB = rdB(i + 2) if i + 2 < 12 else []
        a(f"  s_waitcnt lgkmcnt({4 if i + 1 < 12 else 0})")
        for t in nxtA: a(t)
        for h in range(2):
            for g in range(3):
                a(f"  v_mov_b32_dpp v{A+4*h+1+g}, v{A+4*h} row_ror:{4*(g+1)} row_mask:0xf bank_mask:0xf")
            rb = nxtB[2*h:2*h+2]
            for t in rb: a(t)
            if len(rb) < 2: a("  s_nop 1")
            a(f"  v_smfmac_f32_16x16x64_bf16 {Dt}, {vr(A+4*h,4)}, a[{B+8*h}:{B+8*h+7}], v{V_IDX}")
def zero_D(a):
    for r in range(16, 20): a(f"  v_mov_b32 v{r}, 0")
    a("  s_nop 1")
    for base in range(48, 144, 16):
        a(f"  v_mfma_f32_32x32x16_bf16 a[{base}:{base+15}], v[16:19], v[16:19], 0")
    for base in range(160, 256, 16):
        a(f"  v_mfma_f32_32x32x16_bf16 v[{base}:{base+15}], v[16:19], v[16:19], 0")
def Darch(k, i):
    if k >= 2: return 160 + 48 * (k - 2) + 4 * i
    return 48 + 48 * k + 4 * i
def ln_phase(a, wdma):
    a("  s_nop 7")
    for r in range(96): a(f"  v_accvgpr_read_b32 v{48+r}, a{48+r}")
    for r in range(16, 24): a(f"  v_mov_b32 v{r}, 0")
    for k in range(4):
        for i in range(12):
            D = Darch(k, i)
            a(f"  v_pk_add_f32 v[16:17], v[16:17], v[{D}:{D+1}]")
            a(f"  v_pk_add_f32 v[18:19], v[18:19], v[{D+2}:{D+3}]")
            a(f"  v_pk_fma_f32 v[20:21], v[{D}:{D+1}], v[{D}:{D+1}], v[20:21]")
            a(f"  v_pk_fma_f32 v[22:23], v[{D+2}:{D+3}], v[{D+2}:{D+3}], v[22:23]")
    a(f"""  s_lshl_b32 s{S_T0}, s{S_W}, 11
  s_add_u32 s{S_T0}, s{S_T0}, {STATS}
  v_add_u32 v24, s{S_T0}, v{R.V_L16}
  v_add_u32 v25, {STATS}, v{R.V_L16}
  ds_write_b128 v24, v[16:19]
  ds_write_b128 v24, v[20:23] offset:1024
  s_waitcnt lgkmcnt(0)
  s_barrier""")
    wdma()
    for w in range(4):
        a(f"  ds_read_b128 v[{144+4*w}:{147+4*w}], v25 offset:{2048*w}")
    for w in range(4):
        a(f"  ds_read_b128 v[{28+4*w}:{31+4*w}], v25 offset:{2048*w+1024}")
    a("  s_waitcnt lgkmcnt(4)")
    a("""  v_pk_add_f32 v[144:145], v[144:145], v[148:149]
  v_pk_add_f32 v[146:147], v[146:147], v[150:151]
  v_pk_add_f32 v[152:153], v[152:153], v[156:157]
  v_pk_add_f32 v[154:155], v[154:155], v[158:159]
  v_pk_add_f32 v[144:145], v[144:145], v[152:153]
  v_pk_add_f32 v[146:147], v[146:147], v[154:155]
  s_waitcnt lgkmcnt(0)
  v_pk_add_f32 v[28:29], v[28:29], v[32:33]
  v_pk_add_f32 v[30:31], v[30:31], v[34:35]
  v_pk_add_f32 v[36:37], v[36:37], v[40:41]
  v_pk_add_f32 v[38:39], v[38:39], v[42:43]
  v_pk_add_f32 v[28:29], v[28:29], v[36:37]
  v_pk_add_f32 v[30:31], v[30:31], v[38:39]""")
    for r in range(4):
        a(f"  v_mul_f32 v{16+r}, s{S_INV}, v{144+r}")
    for r in range(4):
        a(f"  v_mul_f32 v{28+r}, s{S_INV}, v{28+r}")
    for r in range(4):
        a(f"  v_fma_f32 v{28+r}, -v{16+r}, v{16+r}, v{28+r}")
    for r in range(4):
        a(f"  v_max_f32 v{28+r}, 0, v{28+r}")
    for r in range(4):
        a(f"  v_add_f32 v{28+r}, s{S_EPS}, v{28+r}")
    for r in range(4):
        a(f"  v_rsq_f32 v{20+r}, v{28+r}")
    a("  s_nop 0")
    for r in range(4):
        a(f"  v_mul_f32 v{20+r}, s{R.S_S}, v{20+r}")
    for r in range(4):
        a(f"  v_mul_f32 v{24+r}, -v{16+r}, v{20+r}" .replace("v_mul_f32 v", "v_mul_f32_e64 v"))
    cnt = 0
    for k in range(4):
        for j in range(3):
            Ds = [Darch(k, 4 * j + e) for e in range(4)]
            for D in Ds:
                a(f"  v_pk_fma_f32 v[{D}:{D+1}], v[{D}:{D+1}], v[20:21], v[24:25]")
                a(f"  v_pk_fma_f32 v[{D+2}:{D+3}], v[{D+2}:{D+3}], v[22:23], v[26:27]")
            for r in range(4):
                T = 32 + 2 * (cnt % 8); cnt += 1
                a(f"  v_cvt_pk_bf16_f32 v{T}, v{Ds[0]+r}, v{Ds[1]+r}")
                a(f"  v_cvt_pk_bf16_f32 v{T+1}, v{Ds[2]+r}, v{Ds[3]+r}")
                a(f"  ds_write_b64 v{V_XW[r>>1]}, v[{T}:{T+1}] offset:{(r&1)*8*XPS + 96*k + 32*j}")
def w_dma_start(a):
    S_G0 = 32
    for blk in range(2):
        for half, cnt in ((0, 4), (1, 2)):
            a(f"  s_add_u32 s{R.S_G}, s{S_G0}, {blk*BLK + 4096*half}\n  s_mov_b32 m0, s{R.S_M[2*blk+half]}\n  s_nop 0")
            for p in range(cnt):
                a(f"  buffer_load_dwordx4 v{R.V_L16}, s[{R.S_WS}:{R.S_WS+3}], s{R.S_G} offen offset:{1024*p} lds")
    a(f"  s_add_u32 s{R.S_G}, s{S_G0}, {2*BLK}\n  s_add_u32 s{R.S_G2}, s{S_G0}, {2*BLK+4096}")
def phase_c(a):
    zero_D(a)
    vm = {0: (40, 40, 44), 1: (8, 8, None), 2: (12, 12, 16), 3: (12, 4, 0)}
    for k in range(4):
        for r in range(2):
            a(f"  v_add_u32 v{V_SWC[r]}, {SB[k&1]-SB[0]}, v{V_SW[r]}")
        for r in range(2):
            a(f"  s_waitcnt vmcnt({vm[k][r]})")
            stage_round(a, k, r)
            if k < 3: x_loads(a, k + 1, r)
        if vm[k][2] is not None: a(f"  s_waitcnt vmcnt({vm[k][2]}) lgkmcnt(0)")
        else: a("  s_waitcnt lgkmcnt(0)")
        a("  s_barrier")
        if k in (1, 2): table_dma(a, k + 1)
        stamp(a)
        conv_chunk(a, k)
        stamp(a)
    ln_phase(a, lambda: w_dma_start(a))
    a("  s_waitcnt vmcnt(6) lgkmcnt(0)\n  s_barrier")
    for i in range(CFG['D']): a(C.ds_text(i, 0, i))
    for s in range(12):
        for blk in range(2):
            a(f"  ds_read_b128 {Hf(blk,s)}, v{V_XR[blk]} offset:{32*s}")
    a("  s_waitcnt lgkmcnt(0)")
def epilogue(a):
    tmp = [16, 20, 24 + 4, 32]
    tmp = [16, 20, 28, 32]
    cnt = 0
    for blk in range(2):
        for s in range(12):
            b = s >> 1
            kind, r0 = ACCreg(blk, b); r0 += 8 * (s & 1)
            p = tmp[cnt % 4]; cnt += 1
            if kind == 'a':
                q = 36 + 8 * (cnt % 1)
                for e in range(8): a(f"  v_accvgpr_read_b32 v{q+e}, a{r0+e}")
                r0 = q
            a(f"""  v_cvt_pk_bf16_f32 v{p}, v{r0}, v{r0+1}
  v_cvt_pk_bf16_f32 v{p+1}, v{r0+2}, v{r0+3}
  v_cvt_pk_bf16_f32 v{p+2}, v{r0+4}, v{r0+5}
  v_cvt_pk_bf16_f32 v{p+3}, v{r0+6}, v{r0+7}
  s_nop 1
  v_permlane32_swap_b32 v{p}, v{p+2}
  v_permlane32_swap_b32 v{p+1}, v{p+3}
  buffer_store_dwordx4 {vr(p,4)}, v{V_PX[blk]}, s[{S_OUT}:{S_OUT+3}], s{S_PXO} offen offset:{32*s}""")
def gen_fused(a, name="fused_kernel", nwg=256):
    CFG['accinit'] = 1
    a(kstart(name))
    h16 = lambda x: int(np.float16(x).view(np.uint16))
    a(f"""
  s_cmp_ge_u32 s2, {nwg}
  s_cbranch_scc1 {name}_done
  s_load_dwordx2 s[48:49], s[0:1], 0       ; x
  s_load_dwordx2 s[50:51], s[0:1], 32      ; out
  s_load_dwordx2 s[38:39], s[0:1], 48      ; ws
  v_lshrrev_b32 v1, 6, v0
  v_and_b32 v{V_LANE}, 63, v0
  s_nop 0
  v_readfirstlane_b32 s{S_W}, v1
  v_lshlrev_b32 v{R.V_L16}, 4, v{V_LANE}
  v_add_u32 v{R.V_L16B}, {2*BLK}, v{R.V_L16}
  v_and_b32 v16, 31, v{V_LANE}             ; n
  v_lshrrev_b32 v17, 5, v{V_LANE}          ; hf
  v_lshrrev_b32 v18, 3, v16
  v_and_b32 v19, 7, v16
  s_lshl_b32 s{S_T0}, s{S_W}, 3
  v_add_u32 v18, s{S_T0}, v18
  v_lshl_add_u32 v20, v18, 9, v19
  s_movk_i32 s{S_T1}, 384
  v_mul_lo_u32 v20, v20, s{S_T1}
  v_lshl_add_u32 v{V_PX[0]}, v17, 4, v20
  v_add_u32 v{V_PX[1]}, {4*512*384}, v{V_PX[0]}
  v_lshl_add_u32 v20, v18, 3, v19
  s_movk_i32 s{S_T1}, {XPS}
  v_mul_lo_u32 v20, v20, s{S_T1}
  v_lshrrev_b32 v21, 2, v18                ; row>>2
  v_add_u32 v21, v21, v17                  ; + hf
  v_lshl_add_u32 v20, v21, 4, v20
  v_add_u32 v{V_XR[0]}, {XCH}, v20
  v_add_u32 v{V_XR[1]}, {XCH + 32*XPS + 16}, v20
  v_lshlrev_b32 v18, 3, v17
  v_sub_u32 v18, v16, v18                  ; m - 8hf
""")
    for d in range(4):
        for (base, reg) in ((0, 24), (16, 28)):
            a(f"""  v_cmp_eq_u32 vcc, {base+2*d}, v18
  v_mov_b32 v19, 0x3f80
  s_nop 1
  v_cndmask_b32 v20, 0, v19, vcc
  v_cmp_eq_u32 vcc, {base+2*d+1}, v18
  v_mov_b32 v19, 0x3f800000
  s_nop 1
  v_cndmask_b32 v21, 0, v19, vcc
  v_or_b32 v{reg+d}, v20, v21""")
    a(f"""  v_add_u32 v20, {IDOFF}, v{R.V_L16}
  ds_write_b128 v20, v[24:27]
  ds_write_b128 v20, v[28:31] offset:1024
  v_and_b32 v16, 15, v{V_LANE}             ; nh
  v_lshrrev_b32 v17, 4, v{V_LANE}          ; q
  v_lshrrev_b32 v18, 1, v17
  v_mul_u32_u24 v18, {PLANE}, v18
  v_lshl_add_u32 v18, v16, 5, v18
  v_and_b32 v19, 1, v17
  v_lshl_add_u32 v18, v19, 4, v18
  s_lshr_b32 s{S_T0}, s{S_W}, 1
  s_mul_i32 s{S_T0}, s{S_T0}, {OS}
  s_and_b32 s{S_T1}, s{S_W}, 1
  s_mul_i32 s{S_T1}, s{S_T1}, {4*CS}
  s_add_u32 s{S_T0}, s{S_T0}, s{S_T1}
  s_add_u32 s{S_T0}, s{S_T0}, {SB[0]}
  v_add_u32 v{V_B[0]}, s{S_T0}, v18
  v_add_u32 v{V_B[1]}, {SB[1]-SB[0]}, v{V_B[0]}
  v_and_b32 v18, 1, v16                    ; mh
  v_bfe_u32 v19, v16, 1, 1                 ; par
  v_lshrrev_b32 v20, 2, v16                ; k'
  v_sub_u32 v21, v17, v18
  v_add_u32 v21, 1, v21
  v_lshlrev_b32 v21, 5, v21
  v_lshl_add_u32 v21, v19, 4, v21
  v_sub_u32 v22, 0, v20
  v_and_b32 v22, 3, v22
  v_lshl_add_u32 v21, v22, 2, v21
  s_lshr_b32 s{S_T0}, s{S_W}, 1
  s_lshl_b32 s{S_T0}, s{S_T0}, 11
  s_and_b32 s{S_T1}, s{S_W}, 1
  s_lshl_b32 s{S_T1}, s{S_T1}, 10
  s_add_u32 s{S_T0}, s{S_T0}, s{S_T1}
  v_add_u32 v{V_T}, s{S_T0}, v21
  v_lshlrev_b32 v21, 1, v20                ; 2k'
  v_add_u32 v22, 1, v21                    ; O: 2k'+1
  v_cmp_eq_u32 vcc, 0, v20
  v_mov_b32 v23, 8
  s_nop 1
  v_cndmask_b32 v21, v21, v23, vcc         ; E
  v_cmp_eq_u32 vcc, 1, v19
  s_nop 1
  v_cndmask_b32 v21, v22, v21, vcc         ; s
  v_mov_b32 v{V_IDX}, 0x4444
""")
    for g in range(4):
        a(f"""  v_cmp_le_u32 vcc, {2*g+2}, v21
  v_mov_b32 v22, {0xA << (4*g)}
  s_nop 1
  v_cndmask_b32 v22, 0, v22, vcc
  v_or_b32 v{V_IDX}, v{V_IDX}, v22""")
    a(f"""
  v_lshlrev_b32 v18, 4, v16                ; 2nh*8
  v_lshlrev_b32 v19, 1, v17                ; 2q'
  v_lshrrev_b32 v20, 1, v16                ; row>>2
  v_lshlrev_b32 v20, 4, v20
  s_lshr_b32 s{S_T0}, s{S_W}, 1
  s_lshl_b32 s{S_T0}, s{S_T0}, 4
  s_and_b32 s{S_T1}, s{S_W}, 1
  s_lshl_b32 s{S_T1}, s{S_T1}, 3
  s_add_u32 s{S_T0}, s{S_T0}, s{S_T1}
  s_add_u32 s{S_T0}, s{S_T0}, {XCH}
  v_add_u32 v20, s{S_T0}, v20
  s_movk_i32 s{S_T1}, {XPS}
  v_add_u32 v21, v18, v19
  v_mul_lo_u32 v21, v21, s{S_T1}
  v_add_u32 v{V_XW[0]}, v21, v20
  v_add_u32 v19, 7, v19
  v_and_b32 v19, 7, v19
  v_add_u32 v21, v18, v19
  v_mul_lo_u32 v21, v21, s{S_T1}
  v_add_u32 v{V_XW[1]}, v21, v20
""")
    for r in range(2):
        a(f"""  s_lshl_b32 s{S_T0}, s{S_W}, 6
  s_add_u32 s{S_T0}, s{S_T0}, {256*r}
  v_add_u32 v16, s{S_T0}, v{V_LANE}
  v_subrev_u32 v17, 256, v16
  v_cmp_gt_u32 vcc, 456, v16
  s_mov_b32 s{S_T1}, {(2**32 + 5)//6}
  v_cndmask_b32 v16, v17, v16, vcc
  v_mul_hi_u32 v17, v16, s{S_T1}               ; ru
  v_mul_u32_u24 v18, 6, v17
  v_sub_u32 v18, v16, v18                      ; o
  v_lshrrev_b32 v19, 1, v17                    ; row
  v_and_b32 v20, 1, v17                        ; u
  v_mul_u32_u24 v18, {OS}, v18
  v_and_b32 v21, 1, v19
  v_mul_u32_u24 v21, {PLANE}, v21
  v_lshrrev_b32 v19, 1, v19
  v_lshl_add_u32 v21, v19, 5, v21
  v_lshl_add_u32 v21, v20, 4, v21
  v_add_u32 v21, v21, v18
  v_add_u32 v{V_SW[r]}, {SB[0]}, v21""")
    a(f"""
  s_waitcnt lgkmcnt(0)
  s_mov_b32 s{R.S_WS}, s38
  s_and_b32 s{R.S_WS+1}, s39, 0xffff
  s_mov_b32 s{R.S_WS+2}, {NBLK*BLK}
  s_mov_b32 s{R.S_WS+3}, 0x20000
  s_add_u32 s{S_TB}, s38, {TBL_OFF}
  s_addc_u32 s{S_TB+1}, s39, 0
  s_and_b32 s{S_TB+1}, s{S_TB+1}, 0xffff
  s_mov_b32 s{S_TB+2}, {TBL_BYTES}
  s_mov_b32 s{S_TB+3}, 0x20000
  s_mov_b32 s{S_X}, s48
  s_and_b32 s{S_X+1}, s49, 0xffff
  s_mov_b32 s{S_X+2}, {NPX*384}
  s_mov_b32 s{S_X+3}, 0x20000
  s_mov_b32 s{S_OUT}, s50
  s_and_b32 s{S_OUT+1}, s51, 0xffff
  s_mov_b32 s{S_OUT+2}, {NPX*384}
  s_mov_b32 s{S_OUT+3}, 0x20000
  s_mov_b32 s{R.S_NA}, {hex(f2u(-GA))}
  s_mov_b32 s{R.S_S}, {hex(f2u(GS))}
  s_mov_b32 s{R.S_NAH}, {hex(h16(-GA) | (h16(-GA) << 16))}
  s_mov_b32 s{R.S_SH}, {hex(h16(GS) | (h16(GS) << 16))}
  s_mov_b32 s{S_LO}, 0x05040100
  s_mov_b32 s{S_HI}, 0x07060302
  s_mov_b32 s{S_EPS}, {hex(f2u(1e-5))}
  s_mov_b32 s{S_INV}, {hex(f2u(1.0/192))}
  s_mul_i32 s{S_G0}, s{S_W}, 6144
""")
    for s in range(3):
        a(f"  s_add_u32 s{R.S_M[2*s]}, s{S_G0}, {s*BLK}")
        a(f"  s_add_u32 s{R.S_M[2*s+1]}, s{S_G0}, {s*BLK + 4096}")
    if OPT['prof'] or OPT['dumph']:
        a(f"""  s_add_u32 s44, s38, {STAMP_OFF}
  s_addc_u32 s45, s39, 0
  s_and_b32 s45, s45, 0xffff
  s_mov_b32 s46, {256*8*64*4}
  s_mov_b32 s47, 0x20000
  s_lshl_b32 s40, s2, 3
  s_add_u32 s40, s40, s{S_W}
  s_lshl_b32 s40, s40, 8
  s_add_u32 s52, s38, {H_OFF}
  s_addc_u32 s53, s39, 0
  s_and_b32 s53, s53, 0xffff
  s_mov_b32 s54, {NPX*384}
  s_mov_b32 s55, 0x20000""")
    a(f"  s_mov_b32 s{S_I}, 0")
    tile_coords(a)
    global_bases(a)
    x_loads(a, 0, 0); x_loads(a, 0, 1)
    table_dma(a, 0); table_dma(a, 1)
    a("  s_waitcnt vmcnt(0)")
    a(f"{name}_tile:")
    a(f"  s_mov_b32 s{S_PXO}, s{S_PXN}")
    stamp(a)
    phase_c(a)
    stamp(a)
    if OPT['dumph']:
        for blk in range(2):
            for s in range(12):
                a(f"  buffer_store_dwordx4 {Hf(blk,s)}, v{V_PX[blk]}, s[52:55], s{S_PXO} offen offset:{32*s}")
        a("  s_waitcnt vmcnt(6)" if False else "  s_waitcnt vmcnt(0)")
    core = Core(a)
    core.extra[0] = [(f"  buffer_load_dwordx4 {Xf(blk,s)}, v{V_PX[blk]}, s[{S_X}:{S_X+3}], s{S_PXO} offen offset:{32*s}", 8) for s in range(12) for blk in range(2)]
    core.vmwait[0] = 24
    core.emit(0, 1); core.emit(1, 2)
    emit_loop(a, core, name)
    stamp(a)
    a("  s_waitcnt lgkmcnt(0)")
    for s in range(12):
        for blk in range(2):
            b = s >> 1
            a(f"  v_mfma_f32_32x32x16_bf16 {ACC(blk,b)}, {vr(20 if s&1 else 16,4)}, {Xf(blk,s)}, {ACC(blk,b)}")
    a(f"""  s_add_u32 s{S_I}, s{S_I}, 1
  s_cmp_ge_u32 s{S_I}, 4
  s_cbranch_scc1 {name}_last""")
    tile_coords(a)
    global_bases(a)
    x_loads(a, 0, 0); x_loads(a, 0, 1)
    a("  s_barrier")
    table_dma(a, 0); table_dma(a, 1)
    a("  s_nop 7")
    epilogue(a)
    stamp(a)
    a(f"  s_branch {name}_tile")
    a(f"{name}_last:")
    a("  s_nop 15")
    epilogue(a)
    a(f"""  s_waitcnt vmcnt(0)
{name}_done:
  s_endpgm
""")
    a(kdesc(name, 512, 80, 256))
def emit_loop(a, self, name):
    a(f"  s_mov_b32 s{R.S_CNT}, 4")
    k0 = self.k; p0 = list(self.pending)
    a(".p2align 6")
    a(f"{name}_loop:")
    a(f"  s_sub_u32 s{R.S_CNT}, s{R.S_CNT}, 1")
    self.emit(2, 3); self.emit(3, 4); self.emit(4, 5)
    ks = self.k; ps = list(self.pending)
    ch, Pf = self.plan(5, 6)
    head = ch[:Pf]
    for L in head:
        for t in L: a(t)
    a(f"  s_cmp_eq_u32 s{R.S_CNT}, 0")
    a(f"  s_cbranch_scc1 {name}_exit")
    for L in ch[Pf:]:
        for t in L: a(t)
    self.emit(6, 7); self.emit(7, 8)
    assert self.k == k0 and self.pending == p0, (self.k, k0)
    a(f"  s_branch {name}_loop")
    a(f"{name}_exit:")
    self.k = ks; self.pending = ps
    ch, Pf = self.plan(23, 24)
    assert ch[:Pf] == head
    for L in ch[Pf:]:
        for t in L: a(t)
    self.emit(24, 25)
    a(f"  v_add_u32 v{V_TMP}, {IDOFF}, v{R.V_L16}")
    a(f"  ds_read_b128 v[16:19], v{V_TMP}")
    a(f"  ds_read_b128 v[20:23], v{V_TMP} offset:1024")
    self.emit(25, None)
    for tx, c in self.pending:
        for t in tx: a(t)
    self.pending = []
```

```python
from asmlib import *
NBLK = 26
BLK = 24576
TBL_OFF = 655360
TBL_BYTES = 192 * 256
def gen_prep(a, name="prep_kernel"):
    nw1 = NBLK * 24 // 4
    nwg = nw1 + 48
    a(kstart(name))
    a(f"""
  s_cmp_ge_u32 s2, {nwg}
  s_cbranch_scc1 {name}_done
  s_load_dwordx2 s[40:41], s[0:1], 8       ; dw
  s_load_dwordx4 s[4:7], s[0:1], 16        ; w1, w2
  s_load_dwordx2 s[8:9], s[0:1], 48        ; ws
  v_lshrrev_b32 v1, 6, v0
  v_and_b32 v2, 63, v0                     ; lane
  s_nop 0
  v_readfirstlane_b32 s3, v1
  s_cmp_ge_u32 s2, {nw1}
  s_cbranch_scc1 {name}_table
  s_lshl_b32 s10, s2, 2
  s_nop 2
  s_add_u32 s10, s10, s3
  s_mov_b32 s11, {(2**32 + 23)//24}
  s_mul_hi_u32 s12, s10, s11               ; j = F/24
  s_mul_i32 s13, s12, 24
  s_sub_u32 s13, s10, s13                  ; f
  v_and_b32 v3, 31, v2                     ; m
  v_lshrrev_b32 v4, 5, v2                  ; hf
  s_waitcnt lgkmcnt(0)
  s_mov_b32 s16, s4
  s_and_b32 s17, s5, 0xffff
  s_mov_b32 s18, {192*768*2}
  s_mov_b32 s19, 0x20000
  s_mov_b32 s20, s6
  s_and_b32 s21, s7, 0xffff
  s_mov_b32 s22, {192*768*2}
  s_mov_b32 s23, 0x20000
  s_mov_b32 s24, s8
  s_and_b32 s25, s9, 0xffff
  s_mov_b32 s26, {NBLK*BLK}
  s_mov_b32 s27, 0x20000
  v_mov_b32 v8, 0
  v_mov_b32 v9, 0
  v_mov_b32 v10, 0
  v_mov_b32 v11, 0
  s_cmp_ge_u32 s13, 12
  s_cbranch_scc1 {name}_w2
  s_cmp_ge_u32 s12, 24
  s_cbranch_scc1 {name}_store
  s_lshl_b32 s14, s13, 4                   ; 16*s
  v_lshlrev_b32 v5, 3, v4                  ; 8*hf
  v_add_u32 v5, s14, v5                    ; k0
  s_movk_i32 s15, 1536
  v_mul_lo_u32 v5, v5, s15                 ; k0*768*2
  s_lshl_b32 s14, s12, 6                   ; 32*j*2
  v_lshlrev_b32 v6, 1, v3
  v_add3_u32 v5, v5, v6, s14
""")
    for e in range(8):
        a(f"  s_movk_i32 s28, {e*1536}\n  buffer_load_ushort v{12+e}, v5, s[16:19], s28 offen")
    a(f"""
  s_branch {name}_pack
{name}_w2:
  s_cmp_ge_u32 s13, 18
  s_cselect_b32 s14, 1, 2                  ; chunk = j - s14
  s_cselect_b32 s15, 0, 16                 ; 16*t
  s_cselect_b32 s29, 18, 12
  s_sub_u32 s29, s13, s29                  ; b
  s_sub_i32 s30, s12, s14                  ; chunk
  s_cmp_lt_i32 s30, 0
  s_cbranch_scc1 {name}_store
  s_cmp_ge_i32 s30, 24
  s_cbranch_scc1 {name}_store
  s_lshl_b32 s30, s30, 5
  s_add_u32 s30, s30, s15                  ; 32*c+16*t
  v_lshlrev_b32 v5, 2, v4                  ; 4*hf
  v_add_u32 v5, s30, v5
  s_movk_i32 s15, 384
  v_mul_lo_u32 v5, v5, s15
  s_lshl_b32 s14, s29, 6                   ; 32*b*2
  v_lshlrev_b32 v6, 1, v3
  v_add3_u32 v5, v5, v6, s14
""")
    for e in range(8):
        d = (8 * (e >> 2) + (e & 3)) * 384
        a(f"  s_movk_i32 s28, {d}\n  buffer_load_ushort v{12+e}, v5, s[20:23], s28 offen")
    a(f"""
{name}_pack:
  s_waitcnt vmcnt(0)
  v_lshl_or_b32 v8, v13, 16, v12
  v_lshl_or_b32 v9, v15, 16, v14
  v_lshl_or_b32 v10, v17, 16, v16
  v_lshl_or_b32 v11, v19, 16, v18
{name}_store:
  v_lshlrev_b32 v7, 4, v2
  s_lshl_b32 s14, s10, 10
  buffer_store_dwordx4 v[8:11], v7, s[24:27], s14 offen
  s_waitcnt vmcnt(0)
  s_endpgm
{name}_table:
  s_sub_u32 s10, s2, {nw1}
  s_lshl_b32 s10, s10, 2
  s_add_u32 s10, s10, s3                   ; c
  v_lshrrev_b32 v3, 3, v2
  v_bfe_u32 v4, v2, 2, 1                   ; par: 0 = O, 1 = E
  v_and_b32 v5, 3, v2                      ; i
  v_lshlrev_b32 v6, 1, v5
  v_add_u32 v6, v6, v4
  v_subrev_u32 v6, 1, v6                   ; t0 in -1..7
  v_add_u32 v7, 1, v6                      ; t1
  v_subrev_u32 v3, 1, v3
  s_waitcnt lgkmcnt(0)
  s_mov_b32 s16, s40
  s_and_b32 s17, s41, 0xffff
  s_mov_b32 s18, {49*192*2}
  s_mov_b32 s19, 0x20000
  s_add_u32 s24, s8, {TBL_OFF}
  s_addc_u32 s25, s9, 0
  s_and_b32 s25, s25, 0xffff
  s_mov_b32 s26, {TBL_BYTES}
  s_mov_b32 s27, 0x20000
  s_lshl_b32 s14, s10, 1                   ; c*2
  s_movk_i32 s15, 384
  v_mov_b32 v12, 0x7ffffff0
""")
    for (t, dst, res) in ((6, 8, 10), (7, 9, 11)):
        a(f"""  v_mul_u32_u24 v13, 7, v3
  v_add_u32 v13, v13, v{t}
  v_mul_lo_u32 v13, v13, s15
  v_add_u32 v13, s14, v13
  v_cmp_gt_u32 vcc, 7, v3
  v_cmp_gt_u32 s[30:31], 7, v{t}
  s_nop 1
  s_and_b64 vcc, vcc, s[30:31]
  s_nop 1
  v_cndmask_b32 v{dst}, v12, v13, vcc
  buffer_load_ushort v{res}, v{dst}, s[16:19], 0 offen""")
    a(f"""  s_waitcnt vmcnt(0)
  v_lshl_or_b32 v10, v11, 16, v10
  v_lshlrev_b32 v7, 2, v2
  s_lshl_b32 s14, s10, 8
  buffer_store_dword v10, v7, s[24:27], s14 offen
  s_waitcnt vmcnt(0)
{name}_done:
  s_endpgm
""")
    a(kdesc(name, 32, 48))
    return nwg
```

```python
from asmlib import *
BLK = 24576
NBLK = 26
CFG = dict(D=3, NF=4, nogelu=0, nobar=0, nods=0, nodma=0, gelu='f32', dsc=12, dmac=14, gap=32, accinit=0)
class R:
    V_L16 = 5; V_L16B = 4
    T = 16
    G0 = [24, 28]
    G1 = [[32, 36], [40, 44]]
    S = [[48, 64], [80, 96]]
    WF0 = 144
    S_WS = 4
    S_NA = 25; S_S = 26; S_CNT = 27
    S_G = 22; S_G2 = 23
    S_M = [56, 57, 58, 59, 60, 61]
    S_NAH = 36; S_SH = 37
    RING = 0
def ACC(blk, b):
    i = blk * 6 + b
    return f"v[{112+16*i}:{112+16*i+15}]" if i < 9 else f"a[{16*(i-9)}:{16*(i-9)+15}]"
def ACCreg(blk, b):
    i = blk * 6 + b
    return ('v', 112 + 16 * i) if i < 9 else ('a', 16 * (i - 9))
def Hf(blk, s): r = 48 + 48 * blk + 4 * s; return f"a[{r}:{r+3}]"
def WFr(k): r = R.WF0 + 4 * k; return f"a[{r}:{r+3}]"
def gelu_pair(x0, x1, t0, t1, g):
    if CFG['gelu'] == 'f32':
        return [
            (f"  v_fma_f32 v{t0}, -v{x0}, v{x0}, s{R.S_NA}", 4),
            (f"  v_fma_f32 v{t1}, -v{x1}, v{x1}, s{R.S_NA}", 4),
            (f"  v_mul_f32 v{t0}, v{t0}, v{x0}", 4),
            (f"  v_mul_f32 v{t1}, v{t1}, v{x1}", 4),
            (f"  v_exp_f32 v{t0}, v{t0}", 8),
            (f"  v_exp_f32 v{t1}, v{t1}", 8),
            (f"  v_fma_f32 v{t0}, v{t0}, s{R.S_S}, s{R.S_S}", 4),
            (f"  v_fma_f32 v{t1}, v{t1}, s{R.S_S}, s{R.S_S}", 4),
            (f"  v_rcp_f32 v{t0}, v{t0}", 8),
            (f"  v_rcp_f32 v{t1}, v{t1}", 8),
            (f"  v_mul_f32 v{t0}, v{x0}, v{t0}", 4),
            (f"  v_mul_f32 v{t1}, v{x1}, v{t1}", 4),
            (f"  v_cvt_pk_bf16_f32 v{g}, v{t0}, v{t1}", 4),
        ]
    else:
        return [
            (f"  v_cvt_pk_f16_f32 v{t0}, v{x0}, v{x1}", 4),
            (f"  v_pk_fma_f16 v{t1}, v{t0}, v{t0}, s{R.S_NAH} neg_lo:[1,0,0] neg_hi:[1,0,0]", 4),
            (f"  v_pk_mul_f16 v{t1}, v{t1}, v{t0}", 4),
            (f"  v_exp_f16_sdwa v{t0}, v{t1} dst_sel:WORD_0 dst_unused:UNUSED_PRESERVE src0_sel:WORD_0", 8),
            (f"  v_exp_f16_sdwa v{t0}, v{t1} dst_sel:WORD_1 dst_unused:UNUSED_PRESERVE src0_sel:WORD_1", 8),
            (f"  v_pk_fma_f16 v{t0}, v{t0}, s{R.S_SH}, s{R.S_SH}", 4),
            (f"  v_rcp_f16_sdwa v{t1}, v{t0} dst_sel:WORD_0 dst_unused:UNUSED_PRESERVE src0_sel:WORD_0", 8),
            (f"  v_rcp_f16_sdwa v{t1}, v{t0} dst_sel:WORD_1 dst_unused:UNUSED_PRESERVE src0_sel:WORD_1", 8),
            (f"  v_fma_mix_f32 v{t0}, v{x0}, v{t1}, 0 op_sel_hi:[0,1,0]", 4),
            (f"  v_fma_mix_f32 v{t1}, v{x1}, v{t1}, 0 op_sel:[0,1,0] op_sel_hi:[0,1,0]", 4),
            (f"  v_cvt_pk_bf16_f32 v{g}, v{t0}, v{t1}", 4),
        ]
def gelu_chains(buf, els, Gdst):
    out = []
    for pi in range(0, len(els), 2):
        for blk in range(2):
            Sr = R.S[buf][blk]
            slot = (len(out)) % 4
            t0 = R.T + 2 * slot
            ops = gelu_pair(Sr + els[pi], Sr + els[pi + 1], t0, t0 + 1, Gdst[blk] + pi // 2)
            if CFG['gelu'] == 'f32':
                deps = [[], [], [0], [1], [2], [3], [4], [5], [6], [7], [8], [9], [10, 11]]
            else:
                deps = [[], [0], [1], [2], [2, 3], [4], [5], [5, 6], [7], [7, 8], [8, 9]]
            out.append([(t, c, d) for (t, c), d in zip(ops, deps)])
    return out
class Chains:
    def __init__(self, chains):
        self.ch = chains; self.done = [[None] * len(c) for c in chains]; self.n = 0
        self.first = 0
    def remaining(self):
        return sum(c for ci, ch in enumerate(self.ch) for oi, (t, c, d) in enumerate(ch) if self.done[ci][oi] is None)
    def chain_done(self, ci): return all(x is not None for x in self.done[ci])
    def ready(self):
        r = []
        while self.first < len(self.ch) and self.chain_done(self.first): self.first += 1
        for ci in range(self.first, min(len(self.ch), self.first + 4)):
            for oi, (t, c, d) in enumerate(self.ch[ci]):
                if self.done[ci][oi] is not None: continue
                if all(self.done[ci][x] is not None and self.n - self.done[ci][x] >= 2 for x in d):
                    r.append((ci, oi, c))
        return r
    def take(self, ci, oi):
        self.done[ci][oi] = self.n; self.n += 1
        return self.ch[ci][oi][0], self.ch[ci][oi][1]
    def tick(self): self.n += 1
    def upto_done(self, k): return all(self.chain_done(c) for c in range(min(k, len(self.ch))))
def iter_frags(j):
    L = []
    if j < 24:
        for s in range(12):
            mk = []
            for blk in range(2):
                Sd = vr(R.S[j & 1][blk], 16); c = "0" if s == 0 else Sd
                mk.append(lambda wf, Sd=Sd, c=c, h=Hf(blk, s): f"  v_mfma_f32_32x32x16_bf16 {Sd}, {wf}, {h}, {c}")
            L.append((s, 1, mk))
    if 2 <= j <= 25:
        for b in range(6):
            mk = [(lambda wf, ac=ACC(blk, b), g=vr(R.G1[(j - 2) & 1][blk], 4): f"  v_mfma_f32_32x32x16_bf16 {ac}, {wf}, {g}, {ac}") for blk in range(2)]
            L.append((12 + b, 2, mk))
    if 1 <= j <= 24:
        for b in range(6):
            mk = [(lambda wf, ac=ACC(blk, b), g=vr(R.G0[blk], 4), c0=(j == 1 and CFG['accinit']): f"  v_mfma_f32_32x32x16_bf16 {ac}, {wf}, {g}, {'0' if c0 else ac}") for blk in range(2)]
            L.append((18 + b, 3, mk))
    return L
def ds_text(kb, j, fidx):
    off = R.RING + (j % 3) * BLK + fidx * 1024
    if off + 0 <= 65535 - 0 and (j % 3) < 2:
        return f"  ds_read_b128 {WFr(kb)}, v{R.V_L16} offset:{off}"
    return f"  ds_read_b128 {WFr(kb)}, v{R.V_L16B} offset:{off - (R.RING + 2*BLK)}"
def dma_ops(jb):
    if jb >= NBLK: return []
    s = jb % 3
    def dma(off, sg):
        return "  s_nop 0" if CFG['nodma'] else f"  buffer_load_dwordx4 v{R.V_L16}, s[{R.S_WS}:{R.S_WS+3}], s{sg} offen offset:{off} lds"
    c = CFG['dmac'] - 8
    return [
        ([f"  s_mov_b32 m0, s{R.S_M[2*s]}"], 0),
        ([dma(0, R.S_G)], c), ([dma(1024, R.S_G)], c), ([dma(2048, R.S_G)], c), ([dma(3072, R.S_G)], c),
        ([f"  s_mov_b32 m0, s{R.S_M[2*s+1]}"], 0),
        ([dma(0, R.S_G2)], c), ([dma(1024, R.S_G2)], c),
        ([f"  s_add_u32 s{R.S_G}, s{R.S_G}, {BLK}"], 0),
        ([f"  s_add_u32 s{R.S_G2}, s{R.S_G2}, {BLK}"], 0),
    ]
class Core:
    def __init__(self, a):
        self.a = a; self.k = 0; self.pending = []
        self.vmwait = {}
        self.extra = {}
    def plan(self, j, jn):
        D = CFG['D']; NF = CFG['NF']
        F = iter_frags(j); Fn = iter_frags(jn) if jn is not None else []
        nf = len(F); n = 2 * nf
        Pf = max(0, nf - D)
        chains = []
        nva = 0
        if 1 <= j <= 24 and not CFG['nogelu']:
            buf = (j - 1) & 1
            va = gelu_chains(buf, list(range(0, 8)), R.G0); vb = gelu_chains(buf, list(range(8, 16)), R.G1[buf])
            chains = va + vb; nva = len(va)
        slots = []
        pend = list(self.pending)
        sync_at = None
        for fi in range(nf):
            t = fi + D
            pre = []
            if fi == Pf:
                for tx, c in pend: pre += tx
                pend = []
                if not CFG['nobar']: pre += [f"  s_waitcnt vmcnt({self.vmwait.get(j, 0)})", "  s_barrier"]
                pend = dma_ops(j + 2)
            rd = []
            if not CFG['nods']:
                if t < nf: rd = [ds_text((self.k + t) % NF, j, F[t][0])]
                elif jn is not None: rd = [ds_text((self.k + t) % NF, j + 1, Fn[t - nf][0])]
            slots.append((pre, rd, CFG['dsc'] if rd else 8))
            if not CFG['nods'] and fi % 2 == 1:
                slots.append(([], [f"  s_waitcnt lgkmcnt({D-2})"], 8))
            elif pend:
                tx, c = pend.pop(0)
                slots.append(([], tx, 8 + c))
            else:
                slots.append(([], [], 8))
        self.pending = pend
        ex = list(self.extra.get(j, []))
        gi = 0
        while ex:
            per = -(-len(ex) // max(1, (2 * Pf - gi)))
            pre_, tx_, c_ = slots[gi]
            add_ = ex[:per]; ex = ex[per:]
            slots[gi] = (pre_, list(tx_) + [t for t, _ in add_], c_ + sum(c for _, c in add_))
            gi += 1
        G = CFG['gap']
        fixed = [s[2] + 4 * len(s[0]) for s in slots]
        base = [slots[i][2] for i in range(n)]
        for i in range(1, n): base[i - 1] += 4 * len(slots[i][0])
        sched = [[] for _ in range(n)]
        CH = Chains(chains)
        first3 = next((2 * i for i, f in enumerate(F) if f[1] == 3), None)
        carry = 0.0
        for i in range(n):
            tcur = base[i]
            CH.tick()
            cap = sum(max(0, G - base[q]) for q in range(i, n))
            excess = CH.remaining() - cap
            if excess > 0: carry += excess * 1.0 / (n - i)
            while True:
                rdy = CH.ready()
                if not rdy:
                    if CH.remaining() > 0 and (i == n - 1 or (first3 is not None and i >= first3 - 2 and not CH.upto_done(nva))):
                        sched[i].append(("  s_nop 0", 4)); CH.tick(); tcur += 4; continue
                    break
                must = i == n - 1 or (first3 is not None and i >= first3 - 2 and not CH.upto_done(nva))
                need = G - tcur
                pick = None
                fit = [r for r in rdy if r[2] <= need]
                if fit:
                    pick = fit[0]
                    if need == 8:
                        ex = [r for r in fit if r[2] == 8]
                        pl = [r for r in rdy if r[2] == 4]
                        if ex and len(pl) < 2: pick = ex[0]
                elif must:
                    pick = rdy[0]
                else:
                    over = [(r, tcur + r[2] - max(G, tcur)) for r in rdy]
                    over.sort(key=lambda x: x[1])
                    if need > 0 and excess > 0:
                        pick = over[0][0]; carry -= over[0][1]
                    elif over[0][1] <= carry:
                        pick = over[0][0]; carry -= over[0][1]
                if pick is None: break
                tx, c = CH.take(pick[0], pick[1])
                sched[i].append((tx, c)); tcur += c
        assert CH.remaining() == 0
        chunks = []
        for fi, (fidx, grp, mk) in enumerate(F):
            kb = (self.k + fi) % NF
            L = []
            pre, rd, _ = slots[2 * fi]
            L += pre
            if j == 24 and grp == 3 and F[fi - 1][1] == 2: L.append("  s_nop 1")
            L.append(mk[0](WFr(kb))); L += rd
            L += [t for t, _ in sched[2 * fi]]
            L.append(mk[1](WFr(kb))); L += slots[2 * fi + 1][1]
            L += [t for t, _ in sched[2 * fi + 1]]
            chunks.append(L)
        self.k = (self.k + nf) % NF
        return chunks, Pf
    def emit(self, j, jn):
        ch, Pf = self.plan(j, jn)
        if j == 1: self.a("  s_nop 11")
        for L in ch:
            for t in L: self.a(t)
    def emit_tile(self, name):
        a = self.a
        self.emit(0, 1); self.emit(1, 2)
        a(f"  s_mov_b32 s{R.S_CNT}, 4")
        k0 = self.k; p0 = list(self.pending)
        a(".p2align 6")
        a(f"{name}_loop:")
        a(f"  s_sub_u32 s{R.S_CNT}, s{R.S_CNT}, 1")
        self.emit(2, 3); self.emit(3, 4); self.emit(4, 5)
        ks = self.k; ps = list(self.pending)
        ch, Pf = self.plan(5, 6)
        for L in ch[:Pf]:
            for t in L: a(t)
        a(f"  s_cmp_eq_u32 s{R.S_CNT}, 0")
        a(f"  s_cbranch_scc1 {name}_exit")
        for L in ch[Pf:]:
            for t in L: a(t)
        self.emit(6, 7); self.emit(7, 8)
        assert self.k == k0 and self.pending == p0, (self.k, k0)
        a(f"  s_branch {name}_loop")
        a(f"{name}_exit:")
        self.k = ks; self.pending = ps
        ch, Pf = self.plan(23, 24)
        for L in ch[Pf:]:
            for t in L: a(t)
        self.emit(24, 25); self.emit(25, None)
        for tx, c in self.pending:
            for t in tx: a(t)
        self.pending = []
```

```python
import sys
from asmlib import *
from k_prep2 import gen_prep
import mlpcore, k_fused
for arg in sys.argv[2:]:
    if '=' in arg:
        k, v = arg.split('=')
        if k in mlpcore.CFG: mlpcore.CFG[k] = v if k in ('gelu',) else int(v)
        else: k_fused.OPT[k] = int(v)
body = Asm()
n0 = gen_prep(body)
k_fused.gen_fused(body)
out = f"""; generated by dev/buildf.py
; @launch kernel=prep_kernel grid=({n0},1,1) block=(256,1,1) lds=0
; @launch kernel=fused_kernel grid=(256,1,1) block=(256,1,1) lds={k_fused.LDS_BYTES}
.amdgcn_target "amdgcn-amd-amdhsa--gfx950"
""" + body.text()
open(sys.argv[1], "w").write(out)
```

```python
from asmlib import *
import mlpcore as C
from mlpcore import R, ACC, ACCreg, Hf, WFr, Core, BLK, NBLK, CFG
from k_prep2 import TBL_OFF, TBL_BYTES
import numpy as np
TB = [0, 16384]
SB = [32768, 32768 + 58464]
OS = 9744; CS = 1216; PLANE = 608
XCH = 49152; XPS = 400
STATS = 151680
IDOFF = STATS + 8192
PATOFF = IDOFF + 2048
PFSCR = PATOFF + 1536
LDS_BYTES = PFSCR + 256
XA = 73728; XB = 122880; XC = 49152
assert SB[1] + 58464 <= STATS and XCH + 102512 <= STATS and LDS_BYTES <= 163840
V_LANE = 0
V_SW = [1, 2]
V_TMP = 3
V_PX = [6, 7]
V_B = [8, 9]
V_T = 10
V_IDX = 11
V_XW = [12, 13]
V_XR = [14, 15]
V_GA = [24, 26]; V_GB = [25, 27]
V_SWC = [28, 29]
AF = [32, 40]
XR = [48, 80]
PT = [32, 40]
DBASE = [112, 160, 208, 48]
def Dreg(k, i):
    return ('v', DBASE[k] + 4 * i)
BF = [48, 64, 80]
PARK = 160
S_ST = [78, 79, 80, 81]
def Xf(blk, s):
    r = 160 + 48 * blk + 4 * s; return f"a[{r}:{r+3}]"
S_X = 8; S_OUT = 12; S_TB = 16
S_W = 20; S_I = 21; S_T0 = 28; S_T1 = 29; S_PXO = 30; S_PXN = 31; S_G0 = 32; S_LO = 33; S_HI = 34
S_TX = 64; S_TY = 65; S_TM = 66; S_TG = 67; S_EPS = 68; S_INV = 69
NPX = 512 * 512
STAMP_OFF = 300 << 20
H_OFF = 1 << 20
OPT = dict(dumph=0, prof=0, pf=1, st=3, sbud=70, cbud=32, stc=20, nhi=1, stnt=0, xnt=0, pfn=1, nox=0, nopark=0, sst=11, spf=0, nhs=2, st3=1, hprog=1, samex=0)
COLS = [0, 1, 8, 9, 2, 3, 10, 11]
S_PXP = 74
S_PF = 75
V_PFA = 3
class VM:
    def __init__(self): self.ops = []
    def add(self, tag, n=1): self.ops += [tag] * n
    def after(self, tag):
        i = max(k for k, t in enumerate(self.ops) if t == tag)
        return len(self.ops) - 1 - i
vm = VM()
def stamp(a):
    if not OPT['prof']: return
    a(f"""  s_memtime s[42:43]
  s_memrealtime s[62:63]
  s_waitcnt lgkmcnt(0)
  v_mov_b32 v{V_TMP}, s42
  s_nop 0
  buffer_store_dword v{V_TMP}, off, s[44:47], s40
  s_nop 1
  v_mov_b32 v{V_TMP}, s62
  s_nop 0
  buffer_store_dword v{V_TMP}, off, s[44:47], s40 offset:256
  s_add_u32 s40, s40, 4""")
def tile_coords(a):
    a(f"""  s_and_b32 s{S_T0}, s2, 7
  s_lshl_b32 s{S_T0}, s{S_T0}, 3
  s_lshr_b32 s{S_T1}, s2, 3
  s_and_b32 s{S_TX}, s{S_T1}, 7
  s_add_u32 s{S_TX}, s{S_TX}, s{S_T0}
  s_lshr_b32 s{S_T1}, s{S_T1}, 3
  s_lshl_b32 s{S_TY}, s{S_I}, 2
  s_add_u32 s{S_TY}, s{S_TY}, s{S_T1}          ; ty = 4*i + (c>>3)
  s_lshl_b32 s{S_T0}, s{S_TY}, 14              ; y0*512 = ty*32*512
  s_lshl_b32 s{S_T1}, s{S_TX}, 3
  s_add_u32 s{S_T0}, s{S_T0}, s{S_T1}
  s_mul_i32 s{S_PXN}, s{S_T0}, 384""")
def global_bases_lines(t):
    L = []
    if OPT['samex']: L += [f"  s_mov_b32 s{S_TX}, 5", f"  s_mov_b32 s{S_TY}, 5"]
    for r in range(2):
        L += f"""  s_lshl_b32 s{S_T0}, s{S_W}, 6
  s_add_u32 s{S_T0}, s{S_T0}, {256*r}
  v_add_u32 v{t}, s{S_T0}, v{V_LANE}
  v_cmp_gt_u32 vcc, 456, v{t}
  v_subrev_u32 v{t+1}, 256, v{t}
  s_mov_b32 s{S_T1}, {(2**32 + 5)//6}
  v_cndmask_b32 v{t}, v{t+1}, v{t}, vcc
  v_mul_hi_u32 v{t+1}, v{t}, s{S_T1}
  v_mul_u32_u24 v{t+2}, 6, v{t+1}
  v_sub_u32 v{t+2}, v{t}, v{t+2}
  v_lshrrev_b32 v{t+3}, 1, v{t+1}
  v_and_b32 v{t+4}, 1, v{t+1}
  s_lshl_b32 s{S_T0}, s{S_TY}, 5
  s_sub_u32 s{S_T0}, s{S_T0}, 3
  v_add_u32 v{t+5}, s{S_T0}, v{t+3}
  s_lshl_b32 s{S_T1}, s{S_TX}, 3
  s_sub_u32 s{S_T1}, s{S_T1}, 4
  v_lshl_add_u32 v{t+6}, v{t+4}, 2, s{S_T1}
  v_lshl_add_u32 v{t+7}, v{t+5}, 9, v{t+6}
  s_movk_i32 s{S_T0}, 384
  v_mul_lo_u32 v{t+7}, v{t+7}, s{S_T0}
  v_lshl_add_u32 v{t+7}, v{t+2}, 4, v{t+7}
  v_mov_b32 v{t+8}, 0x80000000
  s_movk_i32 s{S_T0}, 512
  v_cmp_gt_u32 vcc, s{S_T0}, v{t+5}
  v_cmp_gt_u32 s[70:71], s{S_T0}, v{t+6}
  v_add_u32 v{t+6}, 8, v{t+6}
  v_cmp_gt_u32 s[72:73], s{S_T0}, v{t+6}
  s_nop 0
  s_and_b64 s[70:71], s[70:71], vcc
  s_and_b64 s[72:73], s[72:73], vcc
  s_nop 1
  v_cndmask_b32 v{V_GA[r]}, v{t+8}, v{t+7}, s[70:71]
  v_add_u32 v{t+7}, {8*384}, v{t+7}
  v_cndmask_b32 v{V_GB[r]}, v{t+8}, v{t+7}, s[72:73]""".split("\n")
    return L
def global_bases(a, t=128):
    for l in global_bases_lines(t): a(l)
def x_load_line(k, r, i):
    col = COLS[i]
    base = V_GA[r] if col < 8 else V_GB[r]
    off = (col & 7) * 384 + k * 96
    return f"  buffer_load_dwordx4 {vr(XR[r]+4*i,4)}, v{base}, s[{S_X}:{S_X+3}], 0 offen offset:{off}"
class Fill:
    def __init__(self, a): self.a = a; self.hi = []; self.lo = []
    def push(self, lines, cost, tag=None, hi=False): (self.hi if hi else self.lo).append((lines, cost, tag))
    def emit1(self, g):
        for l in g[0]: self.a(l)
        if g[2] is not None: vm.add(g[2])
    def pop(self, budget, nhi=1):
        n = 0
        while self.hi and n < nhi:
            g = self.hi.pop(0); self.emit1(g); budget -= g[1]; n += 1
        while self.lo and budget >= self.lo[0][1] * 0.6:
            g = self.lo.pop(0); self.emit1(g); budget -= g[1]
    def flush(self, hi=True, lo=True, n=None):
        if hi:
            while self.hi: self.emit1(self.hi.pop(0))
        if lo:
            c = 0
            while self.lo and (n is None or c < n): self.emit1(self.lo.pop(0)); c += 1
def x_loads(a, k, r):
    for i, col in enumerate(COLS):
        base = V_GA[r] if col < 8 else V_GB[r]
        off = (col & 7) * 384 + k * 96
        a(f"  buffer_load_dwordx4 {vr(XR[r]+4*i,4)}, v{base}, s[{S_X}:{S_X+3}], 0 offen offset:{off}")
    vm.add(('x', k, r), 8)
def stage_round(a, k, r, hook=None):
    for d in range(4):
        if hook: hook(d)
        T = PT[d & 1]
        for p in range(4):
            x0 = XR[r] + 4 * (2 * p) + d; x1 = XR[r] + 4 * (2 * p + 1) + d
            a(f"  v_perm_b32 v{T+p}, v{x1}, v{x0}, s{S_LO}")
        for p in range(4):
            x0 = XR[r] + 4 * (2 * p) + d; x1 = XR[r] + 4 * (2 * p + 1) + d
            a(f"  v_perm_b32 v{T+4+p}, v{x1}, v{x0}, s{S_HI}")
        a(f"  ds_write_b128 v{V_SWC[r]}, {vr(T,4)} offset:{(2*d)*CS}")
        a(f"  ds_write_b128 v{V_SWC[r]}, {vr(T+4,4)} offset:{(2*d+1)*CS}")
def table_dma(a, k):
    a(f"""  s_add_u32 s{S_TM}, s{S_W}, {TB[k&1]//4096}
  s_lshl_b32 s{S_TM}, s{S_TM}, 12
  s_lshl_b32 s{S_TG}, s{S_W}, 12
  s_add_u32 s{S_TG}, s{S_TG}, {k*12288}
  s_mov_b32 m0, s{S_TM}
  s_nop 0""")
    for q in range(4):
        a(f"  buffer_load_dwordx4 v{R.V_L16}, s[{S_TB}:{S_TB+3}], s{S_TG} offen offset:{1024*q} lds")
    vm.add(('t', k), 4)
def conv_chunk(a, k, hook=None):
    def chan_off(i): j, e = i >> 2, i & 3; return j * 2 * OS + e * CS
    def tab_off(i): j, e = i >> 2, i & 3; return TB[k & 1] + j * 4096 + e * 256
    def rdA(i):
        A = AF[i & 1]
        return [f"  ds_read_b32 v{A}, v{V_T} offset:{tab_off(i)}", f"  ds_read_b32 v{A+4}, v{V_T} offset:{tab_off(i)+128}"]
    def rdB(i):
        B = BF[i % 3]
        return [f"  ds_read_b128 a[{B+4*q}:{B+4*q+3}], v{V_B[k&1]} offset:{chan_off(i)+32*q}" for q in range(4)]
    for t in rdA(0) + rdB(0) + rdB(1): a(t)
    for i in range(12):
        A = AF[i & 1]; B = BF[i % 3]
        kind, D = Dreg(k, i)
        Dt = f"{kind}[{D}:{D+3}]"
        nxtA = rdA(i + 1) if i + 1 < 12 else []
        nxtB = rdB(i + 2) if i + 2 < 12 else []
        extra = self_extra[0]
        a(f"  s_waitcnt lgkmcnt({(4 if i + 1 < 12 else 0) + extra})")
        for t in nxtA: a(t)
        for h in range(2):
            for g in range(3):
                a(f"  v_mov_b32_dpp v{A+4*h+1+g}, v{A+4*h} row_ror:{4*(g+1)} row_mask:0xf bank_mask:0xf")
            rb = nxtB[2*h:2*h+2]
            for t in rb: a(t)
            if len(rb) < 2: a("  s_nop 1")
            a(f"  v_smfmac_f32_16x16x64_bf16 {Dt}, {vr(A+4*h,4)}, a[{B+8*h}:{B+8*h+7}], v{V_IDX}")
        n = hook(i) if hook else 0
        self_extra[0] = n or 0
    self_extra[0] = 0
self_extra = [0]
def zero_D(a, k):
    L = [f"  v_mov_b32 v{r}, 0" for r in range(44, 48)] + ["  s_nop 1"]
    for base in range(DBASE[k], DBASE[k] + 48, 16):
        L.append(f"  v_mfma_f32_32x32x16_bf16 v[{base}:{base+15}], v[44:47], v[44:47], 0")
    for l in L: a(l)
def Darch(k, i): return DBASE[k] + 4 * i
def stats_lines(k, i):
    D = Darch(k, i)
    return [f"  v_pk_add_f32 v[16:17], v[16:17], v[{D}:{D+1}]", f"  v_pk_add_f32 v[18:19], v[18:19], v[{D+2}:{D+3}]",
            f"  v_pk_fma_f32 v[20:21], v[{D}:{D+1}], v[{D}:{D+1}], v[20:21]", f"  v_pk_fma_f32 v[22:23], v[{D+2}:{D+3}], v[{D+2}:{D+3}], v[22:23]"]
def move_lines(k, i):
    D = Darch(k, i); A = Dreg(k, i)[1]
    return [f"  v_accvgpr_read_b32 v{D+e}, a{A+e}" for e in range(4)]
def ln_phase(a, wdma, done3):
    a("  s_nop 7")
    for i in range(done3, 12):
        for l in stats_lines(3, i): a(l)
    a(f"""  s_lshl_b32 s{S_T0}, s{S_W}, 11
  s_add_u32 s{S_T0}, s{S_T0}, {STATS}
  v_add_u32 v24, s{S_T0}, v{R.V_L16}
  v_add_u32 v25, {STATS}, v{R.V_L16}
  ds_write_b128 v24, v[16:19]
  ds_write_b128 v24, v[20:23] offset:1024
  s_waitcnt lgkmcnt(0)
  s_barrier""")
    for w in range(4):
        a(f"  ds_read_b128 v[{96+4*w}:{99+4*w}], v25 offset:{2048*w}")
    for w in range(4):
        a(f"  ds_read_b128 v[{28+4*w}:{31+4*w}], v25 offset:{2048*w+1024}")
    wl = Asm(); wdma(wl); wl = [l for l in wl.L]
    for l in wl[:8]: a(l)
    wl = wl[8:]
    a("  s_waitcnt lgkmcnt(4)")
    a("""  v_pk_add_f32 v[96:97], v[96:97], v[100:101]
  v_pk_add_f32 v[98:99], v[98:99], v[102:103]
  v_pk_add_f32 v[104:105], v[104:105], v[108:109]
  v_pk_add_f32 v[106:107], v[106:107], v[110:111]
  v_pk_add_f32 v[96:97], v[96:97], v[104:105]
  v_pk_add_f32 v[98:99], v[98:99], v[106:107]
  s_waitcnt lgkmcnt(0)
  v_pk_add_f32 v[28:29], v[28:29], v[32:33]
  v_pk_add_f32 v[30:31], v[30:31], v[34:35]
  v_pk_add_f32 v[36:37], v[36:37], v[40:41]
  v_pk_add_f32 v[38:39], v[38:39], v[42:43]
  v_pk_add_f32 v[28:29], v[28:29], v[36:37]
  v_pk_add_f32 v[30:31], v[30:31], v[38:39]""")
    for r in range(4):
        a(f"  v_mul_f32 v{16+r}, s{S_INV}, v{96+r}")
    for r in range(4):
        a(f"  v_mul_f32 v{28+r}, s{S_INV}, v{28+r}")
    for r in range(4):
        a(f"  v_fma_f32 v{28+r}, -v{16+r}, v{16+r}, v{28+r}")
    for r in range(4):
        a(f"  v_max_f32 v{28+r}, 0, v{28+r}")
    for r in range(4):
        a(f"  v_add_f32 v{28+r}, s{S_EPS}, v{28+r}")
    for r in range(4):
        a(f"  v_rsq_f32 v{20+r}, v{28+r}")
    a("  s_nop 0")
    for r in range(4):
        a(f"  v_mul_f32 v{20+r}, s{R.S_S}, v{20+r}")
    for r in range(4):
        a(f"  v_mul_f32 v{24+r}, -v{16+r}, v{20+r}" .replace("v_mul_f32 v", "v_mul_f32_e64 v"))
    cnt = 0
    for k in range(4):
        for j in range(3):
            Ds = [Darch(k, 4 * j + e) for e in range(4)]
            for D in Ds:
                a(f"  v_pk_fma_f32 v[{D}:{D+1}], v[{D}:{D+1}], v[20:21], v[24:25]")
                a(f"  v_pk_fma_f32 v[{D+2}:{D+3}], v[{D+2}:{D+3}], v[22:23], v[26:27]")
            for r in range(4):
                T = 32 + 2 * (cnt % 8); cnt += 1
                a(f"  v_cvt_pk_bf16_f32 v{T}, v{Ds[0]+r}, v{Ds[1]+r}")
                a(f"  v_cvt_pk_bf16_f32 v{T+1}, v{Ds[2]+r}, v{Ds[3]+r}")
                a(f"  ds_write_b64 v{V_XW[r>>1]}, v[{T}:{T+1}] offset:{(r&1)*8*XPS + 96*k + 32*j}")
            n = 0
            while wl and n < 3:
                l = wl.pop(0); a(l); n += 1
                while wl and l.startswith("  s_") : l = wl.pop(0); a(l)
    for l in wl: a(l)
def w_dma_start(a):
    S_G0 = 32
    for blk in range(2):
        for half, cnt in ((0, 4), (1, 2)):
            a(f"  s_add_u32 s{R.S_G}, s{S_G0}, {blk*BLK + 4096*half}\n  s_mov_b32 m0, s{R.S_M[2*blk+half]}\n  s_nop 0")
            for p in range(cnt):
                a(f"  buffer_load_dwordx4 v{R.V_L16}, s[{R.S_WS}:{R.S_WS+3}], s{R.S_G} offen offset:{1024*p} lds")
    a(f"  s_add_u32 s{R.S_G}, s{S_G0}, {2*BLK}\n  s_add_u32 s{R.S_G2}, s{S_G0}, {2*BLK+4096}")
def stage_substeps(k, r, pts):
    out = []
    for d in range(4):
        for h in range(2):
            T = pts[(2 * d + h) % len(pts)]
            L = []
            for p in range(4):
                x0 = XR[r] + 4 * (2 * p) + d; x1 = XR[r] + 4 * (2 * p + 1) + d
                L.append(f"  v_perm_b32 v{T+p}, v{x1}, v{x0}, s{S_HI if h else S_LO}")
            L.append(f"  ds_write_b128 v{V_SWC[r]}, {vr(T,4)} offset:{(2*d+h)*CS}")
            out.append(L)
    return out
def phase_c(a):
    F = Fill(a)
    for g in range(24):
        L, c = park_group(g); F.push(L if not OPT['nopark'] else ["  s_nop 0 ; cvt"] * 8, c)
    for k in range(4):
        for r in range(2):
            a(f"  v_add_u32 v{V_SWC[r]}, {SB[k&1]-SB[0]}, v{V_SW[r]}")
        for r in range(2):
            if r == 0: F.flush(hi=True, lo=False)
            a(f"  s_waitcnt vmcnt({vm.after(('x', k, r))})")
            stage_round(a, k, r, lambda d: F.pop(OPT['sbud'], OPT['nhs'] if r == 1 else 0))
            if k < 3:
                for i in range(8): F.push([x_load_line(k + 1, r, i) if not OPT['nox'] else "  s_nop 0"], 12, ('x', k + 1, r), hi=True)
        if k < 3:
            parked = 24 - sum(1 for g in F.lo if 'cvt' in ''.join(g[0]))
            need = (6 * (k + 1) if k < 2 else 24) - parked
            while need > 0:
                g = F.lo.pop(0); F.emit1(g)
                if 'cvt' in ''.join(g[0]): need -= 1
        zero_D(a, k)
        a(f"  s_waitcnt vmcnt({vm.after(('t', k))}) lgkmcnt(0)")
        a("  s_barrier")
        if k in (1, 2): table_dma(a, k + 1)
        if k == 2:
            F.push([f"  v_mov_b32 v{r}, 0" for r in range(16, 24)], 32)
            for i in range(12): F.push(stats_lines(0, i), OPT['stc']); F.push(stats_lines(1, i), OPT['stc'])
        if k == 3:
            for i in range(12): F.push(stats_lines(2, i), OPT['stc'])
        stamp(a)
        def hook(i, k=k):
            if k == 3 and i >= 3 and OPT['st3']:
                for l in stats_lines(3, i - 3): a(l)
            F.pop(OPT['cbud'], OPT['nhi']); return 0
        conv_chunk(a, k, hook)
        stamp(a)
    F.flush()
    ln_phase(a, lambda x: w_dma_start(x), 9 if OPT['st3'] else 0)
    a("  s_waitcnt vmcnt(6) lgkmcnt(0)\n  s_barrier")
    for i in range(CFG['D']): a(C.ds_text(i, 0, i))
    for s in range(12):
        for blk in range(2):
            a(f"  ds_read_b128 {Hf(blk,s)}, v{V_XR[blk]} offset:{32*s}")
    a(f"  s_waitcnt lgkmcnt({15 if OPT['hprog'] else 0})")
EPI_ORDER = [(0, s_) for s_ in range(12)] + [(1, s_) for s_ in range(12)]
def quad(blk, sI): return PARK + 4 * (blk * 12 + sI)
def epi_cvt(blk, sI, p, bounce):
    b = sI >> 1
    kind, r0 = ACCreg(blk, b); r0 += 8 * (sI & 1)
    L = []
    if kind == 'a':
        for e in range(8): L.append(f"  v_accvgpr_read_b32 v{bounce+e}, a{r0+e}")
        r0 = bounce
    L += [f"  v_cvt_pk_bf16_f32 v{p}, v{r0}, v{r0+1}", f"  v_cvt_pk_bf16_f32 v{p+1}, v{r0+2}, v{r0+3}",
          f"  v_cvt_pk_bf16_f32 v{p+2}, v{r0+4}, v{r0+5}", f"  v_cvt_pk_bf16_f32 v{p+3}, v{r0+6}, v{r0+7}"]
    return L
def park_group(g):
    blk, sI = EPI_ORDER[g]
    kind, _ = ACCreg(blk, sI >> 1)
    p = 16 if kind == 'a' else 16 + 4 * (g & 1)
    L = epi_cvt(blk, sI, p, 16)
    q = quad(blk, sI)
    L += [f"  v_accvgpr_write_b32 a{q+e}, v{p+e}" for e in range(4)]
    return L, (32 + (32 if kind == 'a' else 0))
def store_parked(i, spx):
    blk, sI = i // 12, i % 12
    q = quad(blk, sI)
    return f"  buffer_store_dwordx4 a[{q}:{q+3}], v{V_PX[blk]}, s[{S_OUT}:{S_OUT+3}], s{spx} offen offset:{32*sI}{' nt' if OPT['stnt'] else ''}"
class Epi:
    def __init__(self, a): self.a = a; self.g = 0
    def emit(self, n=1):
        pass
def epilogue(a):
    for g in range(24):
        blk, sI = g // 12, g % 12
        p = 16 + 4 * (g & 1)
        for t in epi_cvt(blk, sI, p, 40): a(t)
        a(f"  buffer_store_dwordx4 {vr(p,4)}, v{V_PX[blk]}, s[{S_OUT}:{S_OUT+3}], s{S_PXO} offen offset:{32*sI}")
def gen_fused(a, name="fused_kernel", nwg=256):
    CFG['accinit'] = 1
    a(kstart(name))
    h16 = lambda x: int(np.float16(x).view(np.uint16))
    a(f"""
  s_cmp_ge_u32 s2, {nwg}
  s_cbranch_scc1 {name}_done
  s_load_dwordx2 s[48:49], s[0:1], 0       ; x
  s_load_dwordx2 s[50:51], s[0:1], 32      ; out
  s_load_dwordx2 s[38:39], s[0:1], 48      ; ws
  v_lshrrev_b32 v1, 6, v0
  v_and_b32 v{V_LANE}, 63, v0
  s_nop 0
  v_readfirstlane_b32 s{S_W}, v1
  v_lshlrev_b32 v{R.V_L16}, 4, v{V_LANE}
""")
    a(f"""
  s_waitcnt lgkmcnt(0)
  s_mov_b32 s{R.S_WS}, s38
  s_and_b32 s{R.S_WS+1}, s39, 0xffff
  s_mov_b32 s{R.S_WS+2}, {NBLK*BLK}
  s_mov_b32 s{R.S_WS+3}, 0x20000
  s_add_u32 s{S_TB}, s38, {TBL_OFF}
  s_addc_u32 s{S_TB+1}, s39, 0
  s_and_b32 s{S_TB+1}, s{S_TB+1}, 0xffff
  s_mov_b32 s{S_TB+2}, {TBL_BYTES}
  s_mov_b32 s{S_TB+3}, 0x20000
  s_mov_b32 s{S_X}, s48
  s_and_b32 s{S_X+1}, s49, 0xffff
  s_mov_b32 s{S_X+2}, {NPX*384}
  s_mov_b32 s{S_X+3}, 0x20000
  s_mov_b32 s{S_OUT}, s50
  s_and_b32 s{S_OUT+1}, s51, 0xffff
  s_mov_b32 s{S_OUT+2}, {NPX*384}
  s_mov_b32 s{S_OUT+3}, 0x20000
  s_mov_b32 s{R.S_NA}, {hex(f2u(-GA))}
  s_mov_b32 s{R.S_S}, {hex(f2u(GS))}
  s_mov_b32 s{R.S_NAH}, {hex(h16(-GA) | (h16(-GA) << 16))}
  s_mov_b32 s{R.S_SH}, {hex(h16(GS) | (h16(GS) << 16))}
  s_mov_b32 s{S_LO}, 0x05040100
  s_mov_b32 s{S_HI}, 0x07060302
  s_mov_b32 s{S_EPS}, {hex(f2u(1e-5))}
  s_mov_b32 s{S_INV}, {hex(f2u(1.0/192))}
  s_mul_i32 s{S_G0}, s{S_W}, 6144
""")
    for s in range(3):
        a(f"  s_add_u32 s{R.S_M[2*s]}, s{S_G0}, {s*BLK}")
        a(f"  s_add_u32 s{R.S_M[2*s+1]}, s{S_G0}, {s*BLK + 4096}")
    if OPT['prof'] or OPT['dumph']:
        a(f"""  s_add_u32 s44, s38, {STAMP_OFF}
  s_addc_u32 s45, s39, 0
  s_and_b32 s45, s45, 0xffff
  s_mov_b32 s46, {256*4*512}
  s_mov_b32 s47, 0x20000
  s_lshl_b32 s40, s2, 2
  s_add_u32 s40, s40, s{S_W}
  s_lshl_b32 s40, s40, 9
  s_add_u32 s52, s38, {H_OFF}
  s_addc_u32 s53, s39, 0
  s_and_b32 s53, s53, 0xffff
  s_mov_b32 s54, {NPX*384}
  s_mov_b32 s55, 0x20000""")
    stamp(a)
    a(f"  s_mov_b32 s{S_I}, 0")
    tile_coords(a)
    global_bases(a)
    x_loads(a, 0, 0); x_loads(a, 0, 1)
    table_dma(a, 0); table_dma(a, 1)
    npf = 0
    if OPT['spf']:
        a(f"""  s_lshl_b32 s{S_T0}, s{S_TY}, 5
  s_sub_u32 s{S_T0}, s{S_T0}, 3
  s_max_i32 s{S_T0}, s{S_T0}, 0
  s_add_u32 s{S_T0}, s{S_T0}, s{S_W}
  s_lshl_b32 s{S_T0}, s{S_T0}, 9
  s_lshl_b32 s{S_T1}, s{S_TX}, 3
  s_sub_u32 s{S_T1}, s{S_T1}, 4
  s_max_i32 s{S_T1}, s{S_T1}, 0
  s_add_u32 s{S_T0}, s{S_T0}, s{S_T1}
  s_mul_i32 s{S_PF}, s{S_T0}, 384
  v_min_u32 v{V_TMP}, 47, v{V_LANE}
  v_lshlrev_b32 v{V_TMP}, 7, v{V_TMP}
  s_mov_b32 m0, {PFSCR}
  s_lshr_b32 s{S_T0}, s2, 3
  s_lshl_b32 s{S_T0}, s{S_T0}, 2
  s_add_u32 s{S_T0}, s{S_T0}, s{S_W}
  s_mul_i32 s{S_T0}, s{S_T0}, 5120
  v_lshlrev_b32 v16, 6, v{V_LANE}
  buffer_load_dword v16, s[{R.S_WS}:{R.S_WS+3}], s{S_T0} offen lds
  buffer_load_dword v16, s[{R.S_WS}:{R.S_WS+3}], s{S_T0} offen offset:1024 lds""")
        npf = 2
        for idx in range(20):
            a(f"  buffer_load_dword v{V_TMP}, s[{S_X}:{S_X+3}], s{S_PF} offen offset:{64*(idx&1)} lds")
            if idx & 1: a(f"  s_add_u32 s{S_PF}, s{S_PF}, {4*512*384}")
            npf += 1
    a(f"""
  v_add_u32 v{R.V_L16B}, {2*BLK}, v{R.V_L16}
  v_and_b32 v16, 31, v{V_LANE}             ; n
  v_lshrrev_b32 v17, 5, v{V_LANE}          ; hf
  v_lshrrev_b32 v18, 3, v16
  v_and_b32 v19, 7, v16
  s_lshl_b32 s{S_T0}, s{S_W}, 3
  v_add_u32 v18, s{S_T0}, v18
  v_lshl_add_u32 v20, v18, 9, v19
  s_movk_i32 s{S_T1}, 384
  v_mul_lo_u32 v20, v20, s{S_T1}
  v_lshl_add_u32 v{V_PX[0]}, v17, 4, v20
  v_add_u32 v{V_PX[1]}, {4*512*384}, v{V_PX[0]}
  v_lshl_add_u32 v20, v18, 3, v19
  s_movk_i32 s{S_T1}, {XPS}
  v_mul_lo_u32 v20, v20, s{S_T1}
  v_lshrrev_b32 v21, 2, v18                ; row>>2
  v_add_u32 v21, v21, v17                  ; + hf
  v_lshl_add_u32 v20, v21, 4, v20
  v_add_u32 v{V_XR[0]}, {XCH}, v20
  v_add_u32 v{V_XR[1]}, {XCH + 32*XPS + 16}, v20
  v_and_b32 v18, 0x13, v16
  v_bfe_u32 v19, v16, 2, 1
  v_lshl_or_b32 v18, v19, 3, v18
  v_bfe_u32 v19, v16, 3, 1
  v_lshl_or_b32 v18, v19, 2, v18
  v_lshlrev_b32 v19, 3, v17
  v_sub_u32 v18, v18, v19                  ; c(m) - 8hf
""")
    for d in range(4):
        for (base, reg) in ((0, 112), (16, 116)):
            a(f"""  v_cmp_eq_u32 vcc, {base+2*d}, v18
  v_mov_b32 v19, 0x3f80
  s_nop 1
  v_cndmask_b32 v20, 0, v19, vcc
  v_cmp_eq_u32 vcc, {base+2*d+1}, v18
  v_mov_b32 v19, 0x3f800000
  s_nop 1
  v_cndmask_b32 v21, 0, v19, vcc
  v_or_b32 v{reg+d}, v20, v21""")
    a(f"""  v_add_u32 v20, {IDOFF}, v{R.V_L16}
  ds_write_b128 v20, v[112:115]
  ds_write_b128 v20, v[116:119] offset:1024
  ; X-DMA address patterns (per q' = 0..2): U = 64q'+lane, col = U/24, u' = U%24, u = u' ^ (col>>1), off = col*384 + u*16
  v_lshlrev_b32 v22, 2, v{V_LANE}
  v_add_u32 v22, {PATOFF}, v22
@XPAT@
  v_and_b32 v16, 15, v{V_LANE}             ; nh
  v_lshrrev_b32 v17, 4, v{V_LANE}          ; q
  v_lshrrev_b32 v18, 1, v17
  v_mul_u32_u24 v18, {PLANE}, v18
  v_lshl_add_u32 v18, v16, 5, v18
  v_and_b32 v19, 1, v17
  v_lshl_add_u32 v18, v19, 4, v18
  s_lshr_b32 s{S_T0}, s{S_W}, 1
  s_mul_i32 s{S_T0}, s{S_T0}, {OS}
  s_and_b32 s{S_T1}, s{S_W}, 1
  s_mul_i32 s{S_T1}, s{S_T1}, {4*CS}
  s_add_u32 s{S_T0}, s{S_T0}, s{S_T1}
  s_add_u32 s{S_T0}, s{S_T0}, {SB[0]}
  v_add_u32 v{V_B[0]}, s{S_T0}, v18
  v_add_u32 v{V_B[1]}, {SB[1]-SB[0]}, v{V_B[0]}
  v_and_b32 v18, 1, v16                    ; mh
  v_bfe_u32 v19, v16, 1, 1                 ; par
  v_lshrrev_b32 v20, 2, v16                ; k'
  v_sub_u32 v21, v17, v18
  v_add_u32 v21, 1, v21
  v_lshlrev_b32 v21, 5, v21
  v_lshl_add_u32 v21, v19, 4, v21
  v_sub_u32 v22, 0, v20
  v_and_b32 v22, 3, v22
  v_lshl_add_u32 v21, v22, 2, v21
  s_lshr_b32 s{S_T0}, s{S_W}, 1
  s_lshl_b32 s{S_T0}, s{S_T0}, 11
  s_and_b32 s{S_T1}, s{S_W}, 1
  s_lshl_b32 s{S_T1}, s{S_T1}, 10
  s_add_u32 s{S_T0}, s{S_T0}, s{S_T1}
  v_add_u32 v{V_T}, s{S_T0}, v21
  v_lshlrev_b32 v21, 1, v20                ; 2k'
  v_add_u32 v22, 1, v21                    ; O: 2k'+1
  v_cmp_eq_u32 vcc, 0, v20
  v_mov_b32 v23, 8
  s_nop 1
  v_cndmask_b32 v21, v21, v23, vcc         ; E
  v_cmp_eq_u32 vcc, 1, v19
  s_nop 1
  v_cndmask_b32 v21, v22, v21, vcc         ; s
  v_mov_b32 v{V_IDX}, 0x4444
""")
    for g in range(4):
        a(f"""  v_cmp_le_u32 vcc, {2*g+2}, v21
  v_mov_b32 v22, {0xA << (4*g)}
  s_nop 1
  v_cndmask_b32 v22, 0, v22, vcc
  v_or_b32 v{V_IDX}, v{V_IDX}, v22""")
    a(f"""
  v_lshlrev_b32 v18, 4, v16                ; 2nh*8
  v_lshlrev_b32 v19, 1, v17                ; 2q'
  v_lshrrev_b32 v20, 1, v16                ; row>>2
  v_lshlrev_b32 v20, 4, v20
  s_lshr_b32 s{S_T0}, s{S_W}, 1
  s_lshl_b32 s{S_T0}, s{S_T0}, 4
  s_and_b32 s{S_T1}, s{S_W}, 1
  s_lshl_b32 s{S_T1}, s{S_T1}, 3
  s_add_u32 s{S_T0}, s{S_T0}, s{S_T1}
  s_add_u32 s{S_T0}, s{S_T0}, {XCH}
  v_add_u32 v20, s{S_T0}, v20
  s_movk_i32 s{S_T1}, {XPS}
  v_add_u32 v21, v18, v19
  v_mul_lo_u32 v21, v21, s{S_T1}
  v_add_u32 v{V_XW[0]}, v21, v20
  v_add_u32 v19, 7, v19
  v_and_b32 v19, 7, v19
  v_add_u32 v21, v18, v19
  v_mul_lo_u32 v21, v21, s{S_T1}
  v_add_u32 v{V_XW[1]}, v21, v20
""")
    pat = ""
    for q in range(3):
        pat += f"""  v_add_u32 v16, {64*q}, v{V_LANE}
  s_mov_b32 s{S_T1}, {(2**32 + 23)//24}
  v_mul_hi_u32 v17, v16, s{S_T1}
  v_mul_u32_u24 v18, 24, v17
  v_sub_u32 v18, v16, v18
  v_lshrrev_b32 v19, 1, v17
  v_xor_b32 v18, v18, v19
  v_mul_u32_u24 v17, 384, v17
  v_lshl_add_u32 v17, v18, 4, v17
  ds_write_b32 v22, v17 offset:{256*q}
  v_xor_b32 v17, 64, v17
  ds_write_b32 v22, v17 offset:{256*(3+q)}
"""
    for i_, l_ in enumerate(a.L):
        if l_ == "@XPAT@": a.L[i_] = pat.rstrip("\n")
    for r in range(2):
        a(f"""  s_lshl_b32 s{S_T0}, s{S_W}, 6
  s_add_u32 s{S_T0}, s{S_T0}, {256*r}
  v_add_u32 v16, s{S_T0}, v{V_LANE}
  v_cmp_gt_u32 vcc, 456, v16
  v_subrev_u32 v17, 256, v16
  s_mov_b32 s{S_T1}, {(2**32 + 5)//6}
  v_cndmask_b32 v16, v17, v16, vcc
  v_mul_hi_u32 v17, v16, s{S_T1}               ; ru
  v_mul_u32_u24 v18, 6, v17
  v_sub_u32 v18, v16, v18                      ; o
  v_lshrrev_b32 v19, 1, v17                    ; row
  v_and_b32 v20, 1, v17                        ; u
  v_mul_u32_u24 v18, {OS}, v18
  v_and_b32 v21, 1, v19
  v_mul_u32_u24 v21, {PLANE}, v21
  v_lshrrev_b32 v19, 1, v19
  v_lshl_add_u32 v21, v19, 5, v21
  v_lshl_add_u32 v21, v20, 4, v21
  v_add_u32 v21, v21, v18
  v_add_u32 v{V_SW[r]}, {SB[0]}, v21""")
    a(f"  s_waitcnt vmcnt({npf})")
    a(f"  s_mov_b32 s{S_PXP}, 0x80000000")
    a(f"{name}_tile:")
    a(f"  s_mov_b32 s{S_PXO}, s{S_PXN}")
    stamp(a)
    phase_c(a)
    stamp(a)
    if OPT['dumph']:
        for blk in range(2):
            for s in range(12):
                a(f"  buffer_store_dwordx4 {Hf(blk,s)}, v{V_PX[blk]}, s[52:55], s{S_PXO} offen offset:{32*s}")
        a("  s_waitcnt vmcnt(6)" if False else "  s_waitcnt vmcnt(0)")
    core = Core(a)
    a(f"  s_add_u32 s{S_I}, s{S_I}, 1")
    tile_coords(a)
    a(f"""  s_lshl_b32 s{S_T0}, s{S_TY}, 5
  s_sub_u32 s{S_T0}, s{S_T0}, 3
  s_max_i32 s{S_T0}, s{S_T0}, 0
  s_add_u32 s{S_T0}, s{S_T0}, s{S_W}
  s_lshl_b32 s{S_T0}, s{S_T0}, 9
  s_lshl_b32 s{S_T1}, s{S_TX}, 3
  s_sub_u32 s{S_T1}, s{S_T1}, 4
  s_max_i32 s{S_T1}, s{S_T1}, 0
  s_add_u32 s{S_T0}, s{S_T0}, s{S_T1}
  s_mul_i32 s{S_PF}, s{S_T0}, 384
  s_cmp_ge_u32 s{S_I}, 4
  s_cselect_b32 s{S_PF}, 0x80000000, s{S_PF}""")
    ex0 = [(f"  v_lshlrev_b32 v46, 2, v{V_LANE}", 4), (f"  v_add_u32 v46, {PATOFF}, v46", 4)]
    ex0 += [(f"  ds_read_b32 v{40+q}, v46 offset:{256*q}", 8) for q in range(6)]
    ex0 += [(f"  v_min_u32 v{V_TMP}, 47, v{V_LANE}", 4), (f"  v_lshlrev_b32 v{V_TMP}, 7, v{V_TMP}", 4)]
    core.extra[0] = ex0
    ex1 = []
    S_XR = 76; S_XM = 77
    ex1.append((f"  s_lshl_b32 s{S_XR}, s{S_W}, 3", 4))
    ex1.append((f"  s_mul_i32 s{S_XR}, s{S_XR}, {512*384}", 4))
    ex1.append((f"  s_add_u32 s{S_XR}, s{S_XR}, s{S_PXO}", 4))
    ex1.append((f"  s_mul_i32 s{S_XM}, s{S_W}, 12288", 4))
    ex1.append((f"  s_add_u32 m0, s{S_XM}, {XA}", 4))
    for row in range(7):
        if row == 4:
            ex1.append((f"  s_mul_i32 s{S_XM}, s{S_W}, 9216", 4))
            ex1.append((f"  s_add_u32 m0, s{S_XM}, {XB}", 4))
        for q in range(3):
            ex1.append((f"  buffer_load_dwordx4 v{40+q+3*(row&1)}, s[{S_X}:{S_X+3}], s{S_XR} offen{' nt' if OPT['xnt'] else ''} lds", 10))
            ex1.append((f"  s_add_u32 m0, m0, 1024", 4))
        ex1.append((f"  s_add_u32 s{S_XR}, s{S_XR}, {512*384}", 4))
    core.extra[1] = ex1
    core.fast_flush = {0}
    core.vmwait[0] = 0
    core.vmwait[1] = 21
    stplan = {}
    if OPT['st'] == 1:
        for q in range(22): stplan[q + 1] = [q]
        stplan[23] = [22, 23]
    elif OPT['st'] == 2:
        for g in range(6): stplan[1 + 4 * g] = [4 * g + e for e in range(4)]
    elif OPT['st'] == 3:
        for g in range(12): stplan[1 + 2 * g] = [2 * g, 2 * g + 1]
    for j in range(1, 24):
        ops = []; nv = 0
        for q in stplan.get(j, []):
            ops.append(([store_parked(q, S_PXP)], 6)); nv += 1
        if OPT['pf'] and j < 23:
            pfn = OPT['pfn']; first = 23 - -(-20 // pfn)
            if j >= first:
                for e in range(pfn):
                    idx = (j - first) * pfn + e
                    if idx >= 20: break
                    t = [f"  buffer_load_dword v{V_TMP}, s[{S_X}:{S_X+3}], s{S_PF} offen offset:{64 * (idx & 1)} lds"]
                    if e == 0: t = [f"  s_mov_b32 m0, {PFSCR}", "  s_nop 0"] + t
                    if idx & 1: t.append(f"  s_add_u32 s{S_PF}, s{S_PF}, {4*512*384}")
                    ops.append((t, 14 if e == 0 else 8)); nv += 1
        core.pend_extra[j] = ops
        core.vmwait[j + 1] = nv
    core.extra[24] = [(f"  v_lshlrev_b32 v51, 2, v{V_LANE}", 4), (f"  v_add_u32 v51, {PATOFF}, v51", 4)] + \
                     [(f"  ds_read_b32 v{48+q}, v51 offset:{256*(3+q)}", 8) for q in range(3)]
    p24 = [([f"  s_lshl_b32 s{S_XR}, s{S_W}, 3", f"  s_add_u32 s{S_XR}, s{S_XR}, 7", f"  s_mul_i32 s{S_XR}, s{S_XR}, {512*384}",
             f"  s_add_u32 s{S_XR}, s{S_XR}, s{S_PXO}", f"  s_mul_i32 s{S_XM}, s{S_W}, 3072", f"  s_add_u32 m0, s{S_XM}, {XC}", "  s_nop 0"], 24)]
    for q in range(3):
        p24.append(([f"  buffer_load_dwordx4 v{48+q}, s[{S_X}:{S_X+3}], s{S_XR} offen lds", "  s_add_u32 m0, m0, 1024"], 10))
    core.pend_extra[24] = p24
    core.fast_flush.add(24)
    core.emit(0, 1); core.emit(1, 2)
    if OPT['prof'] >= 2:
        a(f"  v_mov_b32 v47, v{V_TMP}"); stamp(a); a(f"  v_mov_b32 v{V_TMP}, v47")
    for j in range(2, 24): core.emit(j, j + 1)
    if OPT['prof'] >= 2: stamp(a)
    core.emit(24, 25)
    if OPT['prof'] >= 2: stamp(a)
    emit_tail(a, core)
    stamp(a)
    a(f"""  s_cmp_ge_u32 s{S_I}, 4
  s_cbranch_scc1 {name}_last""")
    a("  s_barrier")
    table_dma(a, 0); table_dma(a, 1)
    a(f"  s_mov_b32 s{S_PXP}, s{S_PXO}")
    stamp(a)
    a(f"  s_branch {name}_tile")
    a(f"{name}_last:")
    a("  s_nop 15")
    epilogue(a)
    stamp(a)
    a("  s_waitcnt vmcnt(0)")
    stamp(a)
    a(f"""  s_waitcnt vmcnt(0)
{name}_done:
  s_endpgm
""")
    a(kdesc(name, 512, 96, 256))
def emit_loop(a, self, name):
    for j in range(2, 25): self.emit(j, j + 1)
def emit_tail(a, core):
    ch, Pf = core.plan(25, None)
    main = [l for c in ch for l in c]
    for tx, c in core.pending: main += tx
    core.pending = []
    S_T2 = 83; S_T3 = 84
    f = []
    f += [f"  v_add_u32 v{V_TMP}, {IDOFF}, v{R.V_L16}", f"  ds_read_b128 v[16:19], v{V_TMP}", f"  ds_read_b128 v[20:23], v{V_TMP} offset:1024"]
    f += f"""  v_and_b32 v96, 31, v{V_LANE}
  v_lshrrev_b32 v97, 5, v{V_LANE}
  v_bfe_u32 v98, v96, 1, 3
  v_xor_b32 v97, v97, v98
  v_lshlrev_b32 v97, 4, v97
  v_mul_u32_u24 v98, 384, v96
  v_add_u32 v97, v97, v98
  s_mul_i32 s{S_T2}, s{S_W}, 12288
  s_add_u32 s{S_T2}, s{S_T2}, {XA}
  v_add_u32 v32, s{S_T2}, v97
  s_mul_i32 s{S_T2}, s{S_W}, 9216
  s_add_u32 s{S_T2}, s{S_T2}, {XB}
  s_mul_i32 s{S_T3}, s{S_W}, 3072
  s_add_u32 s{S_T3}, s{S_T3}, {XC - 24*384}
  v_mov_b32 v98, s{S_T2}
  v_mov_b32 v99, s{S_T3}
  v_cmp_gt_u32 vcc, 24, v96
  v_xor_b32 v33, 32, v32
  v_xor_b32 v34, 64, v32
  v_cndmask_b32 v98, v99, v98, vcc
  v_xor_b32 v35, 96, v32
  v_add_u32 v36, v98, v97
  v_xor_b32 v37, 32, v36
  v_xor_b32 v38, 64, v36
  v_xor_b32 v39, 96, v36""".split("\n")
    f += [f"  ds_read_b128 {Xf(0,sI)}, v{32+(sI&3)} offset:{128*(sI>>2)}" for sI in range(12)]
    f.append("@X0")
    f += global_bases_lines(96)
    f += [x_load_line(0, 0, i) for i in range(8)]
    f += [x_load_line(0, 1, i) for i in range(8)]
    f.append("  s_waitcnt vmcnt(16)")
    f += [f"  ds_read_b128 {Xf(1,sI)}, v{36+(sI&3)} offset:{128*(sI>>2)}" for sI in range(12)]
    f.append("@X1")
    res = [[f"  v_mfma_f32_32x32x16_bf16 {ACC(blk,sI>>1)}, {vr(20 if sI&1 else 16,4)}, {Xf(blk,sI)}, {ACC(blk,sI>>1)}" for sI in range(12)] for blk in range(2)]
    fi = [0]
    def fill(budget, stop=None):
        while fi[0] < len(f) and (budget > 0 or stop):
            l = f[fi[0]]
            if l.startswith("@"):
                fi[0] += 1
                if stop == l: return
                continue
            a(l); fi[0] += 1
            budget -= 12 if ("ds_read" in l or "buffer_" in l) else 4
    def passed(tag): return fi[0] > f.index(tag)
    for l in main:
        a(l)
        if "v_mfma" in l: fill(24)
    if not passed("@X0"): fill(0, "@X0")
    a("  s_waitcnt lgkmcnt(0)")
    for l in res[0]:
        a(l); fill(24) if not passed("@X1") else None
    if not passed("@X1"): fill(0, "@X1")
    a("  s_waitcnt lgkmcnt(0)")
    for l in res[1]: a(l)
    vm.ops.clear(); vm.add(('x', 0, 0), 8); vm.add(('x', 0, 1), 8)
```

```python
from asmlib import *
NBLK = 26
BLK = 24576
TBL_OFF = 655360
TBL_BYTES = 192 * 256
def gen_prep(a, name="prep_kernel"):
    nw1 = NBLK * 24 // 4
    nwg = nw1 + 48
    a(kstart(name))
    a(f"""
  s_cmp_ge_u32 s2, {nwg}
  s_cbranch_scc1 {name}_done
  s_load_dwordx2 s[40:41], s[0:1], 8       ; dw
  s_load_dwordx4 s[4:7], s[0:1], 16        ; w1, w2
  s_load_dwordx2 s[8:9], s[0:1], 48        ; ws
  v_lshrrev_b32 v1, 6, v0
  v_and_b32 v2, 63, v0                     ; lane
  s_nop 0
  v_readfirstlane_b32 s3, v1
  s_cmp_ge_u32 s2, {nw1}
  s_cbranch_scc1 {name}_table
  s_lshl_b32 s10, s2, 2
  s_nop 2
  s_add_u32 s10, s10, s3
  s_mov_b32 s11, {(2**32 + 23)//24}
  s_mul_hi_u32 s12, s10, s11               ; j = F/24
  s_mul_i32 s13, s12, 24
  s_sub_u32 s13, s10, s13                  ; f
  v_and_b32 v3, 31, v2                     ; m
  v_lshrrev_b32 v4, 5, v2                  ; hf
  s_waitcnt lgkmcnt(0)
  s_mov_b32 s16, s4
  s_and_b32 s17, s5, 0xffff
  s_mov_b32 s18, {192*768*2}
  s_mov_b32 s19, 0x20000
  s_mov_b32 s20, s6
  s_and_b32 s21, s7, 0xffff
  s_mov_b32 s22, {192*768*2}
  s_mov_b32 s23, 0x20000
  s_mov_b32 s24, s8
  s_and_b32 s25, s9, 0xffff
  s_mov_b32 s26, {NBLK*BLK}
  s_mov_b32 s27, 0x20000
  v_mov_b32 v8, 0
  v_mov_b32 v9, 0
  v_mov_b32 v10, 0
  v_mov_b32 v11, 0
  s_cmp_ge_u32 s13, 12
  s_cbranch_scc1 {name}_w2
  s_cmp_ge_u32 s12, 24
  s_cbranch_scc1 {name}_store
  s_lshl_b32 s14, s13, 4                   ; 16*s
  v_lshlrev_b32 v5, 3, v4                  ; 8*hf
  v_add_u32 v5, s14, v5                    ; k0
  s_movk_i32 s15, 1536
  v_mul_lo_u32 v5, v5, s15                 ; k0*768*2
  s_lshl_b32 s14, s12, 6                   ; 32*j*2
  v_lshlrev_b32 v6, 1, v3
  v_add3_u32 v5, v5, v6, s14
""")
    for e in range(8):
        a(f"  s_movk_i32 s28, {e*1536}\n  buffer_load_ushort v{12+e}, v5, s[16:19], s28 offen")
    a(f"""
  s_branch {name}_pack
{name}_w2:
  s_cmp_ge_u32 s13, 18
  s_cselect_b32 s14, 1, 2                  ; chunk = j - s14
  s_cselect_b32 s15, 0, 16                 ; 16*t
  s_cselect_b32 s29, 18, 12
  s_sub_u32 s29, s13, s29                  ; b
  s_sub_i32 s30, s12, s14                  ; chunk
  s_cmp_lt_i32 s30, 0
  s_cbranch_scc1 {name}_store
  s_cmp_ge_i32 s30, 24
  s_cbranch_scc1 {name}_store
  s_lshl_b32 s30, s30, 5
  s_add_u32 s30, s30, s15                  ; 32*c+16*t
  v_lshlrev_b32 v5, 2, v4                  ; 4*hf
  v_add_u32 v5, s30, v5
  s_movk_i32 s15, 384
  v_mul_lo_u32 v5, v5, s15
  s_lshl_b32 s14, s29, 6                   ; 32*b*2
  v_and_b32 v6, 0x13, v3
  v_bfe_u32 v20, v3, 2, 1
  v_lshl_or_b32 v6, v20, 3, v6
  v_bfe_u32 v20, v3, 3, 1
  v_lshl_or_b32 v6, v20, 2, v6
  v_lshlrev_b32 v6, 1, v6
  v_add3_u32 v5, v5, v6, s14
""")
    for e in range(8):
        d = (8 * (e >> 2) + (e & 3)) * 384
        a(f"  s_movk_i32 s28, {d}\n  buffer_load_ushort v{12+e}, v5, s[20:23], s28 offen")
    a(f"""
{name}_pack:
  s_waitcnt vmcnt(0)
  v_lshl_or_b32 v8, v13, 16, v12
  v_lshl_or_b32 v9, v15, 16, v14
  v_lshl_or_b32 v10, v17, 16, v16
  v_lshl_or_b32 v11, v19, 16, v18
{name}_store:
  v_lshlrev_b32 v7, 4, v2
  s_lshl_b32 s14, s10, 10
  buffer_store_dwordx4 v[8:11], v7, s[24:27], s14 offen
  s_waitcnt vmcnt(0)
  s_endpgm
{name}_table:
  s_sub_u32 s10, s2, {nw1}
  s_lshl_b32 s10, s10, 2
  s_add_u32 s10, s10, s3                   ; c
  v_lshrrev_b32 v3, 3, v2
  v_bfe_u32 v4, v2, 2, 1                   ; par: 0 = O, 1 = E
  v_and_b32 v5, 3, v2                      ; i
  v_lshlrev_b32 v6, 1, v5
  v_add_u32 v6, v6, v4
  v_subrev_u32 v6, 1, v6                   ; t0 in -1..7
  v_add_u32 v7, 1, v6                      ; t1
  v_subrev_u32 v3, 1, v3
  s_waitcnt lgkmcnt(0)
  s_mov_b32 s16, s40
  s_and_b32 s17, s41, 0xffff
  s_mov_b32 s18, {49*192*2}
  s_mov_b32 s19, 0x20000
  s_add_u32 s24, s8, {TBL_OFF}
  s_addc_u32 s25, s9, 0
  s_and_b32 s25, s25, 0xffff
  s_mov_b32 s26, {TBL_BYTES}
  s_mov_b32 s27, 0x20000
  s_lshl_b32 s14, s10, 1                   ; c*2
  s_movk_i32 s15, 384
  v_mov_b32 v12, 0x7ffffff0
""")
    for (t, dst, res) in ((6, 8, 10), (7, 9, 11)):
        a(f"""  v_mul_u32_u24 v13, 7, v3
  v_add_u32 v13, v13, v{t}
  v_mul_lo_u32 v13, v13, s15
  v_add_u32 v13, s14, v13
  v_cmp_gt_u32 vcc, 7, v3
  v_cmp_gt_u32 s[30:31], 7, v{t}
  s_nop 1
  s_and_b64 vcc, vcc, s[30:31]
  s_nop 1
  v_cndmask_b32 v{dst}, v12, v13, vcc
  buffer_load_ushort v{res}, v{dst}, s[16:19], 0 offen""")
    a(f"""  s_waitcnt vmcnt(0)
  v_lshl_or_b32 v10, v11, 16, v10
  v_lshlrev_b32 v7, 2, v2
  s_lshl_b32 s14, s10, 8
  buffer_store_dword v10, v7, s[24:27], s14 offen
  s_waitcnt vmcnt(0)
{name}_done:
  s_endpgm
""")
    a(kdesc(name, 32, 48))
    return nwg
```

```python
from asmlib import *
BLK = 24576
NBLK = 26
CFG = dict(D=3, NF=4, nogelu=0, nobar=0, nods=0, nodma=0, gelu='f32', dsc=12, dmac=14, gap=32, accinit=0)
class R:
    V_L16 = 5; V_L16B = 4
    T = 16
    G0 = [24, 28]
    G1 = [[32, 36], [40, 44]]
    S = [[48, 64], [80, 96]]
    WF0 = 144
    S_WS = 4
    S_NA = 25; S_S = 26; S_CNT = 27
    S_G = 22; S_G2 = 23
    S_M = [56, 57, 58, 59, 60, 61]
    S_NAH = 36; S_SH = 37
    RING = 0
def ACC(blk, b):
    i = blk * 6 + b
    return f"v[{112+16*i}:{112+16*i+15}]" if i < 9 else f"a[{16*(i-9)}:{16*(i-9)+15}]"
def ACCreg(blk, b):
    i = blk * 6 + b
    return ('v', 112 + 16 * i) if i < 9 else ('a', 16 * (i - 9))
def Hf(blk, s): r = 48 + 48 * blk + 4 * s; return f"a[{r}:{r+3}]"
def WFr(k): r = R.WF0 + 4 * k; return f"a[{r}:{r+3}]"
def gelu_pair(x0, x1, t0, t1, g):
    if CFG['gelu'] == 'f32':
        return [
            (f"  v_fma_f32 v{t0}, -v{x0}, v{x0}, s{R.S_NA}", 4),
            (f"  v_fma_f32 v{t1}, -v{x1}, v{x1}, s{R.S_NA}", 4),
            (f"  v_mul_f32 v{t0}, v{t0}, v{x0}", 4),
            (f"  v_mul_f32 v{t1}, v{t1}, v{x1}", 4),
            (f"  v_exp_f32 v{t0}, v{t0}", 8),
            (f"  v_exp_f32 v{t1}, v{t1}", 8),
            (f"  v_fma_f32 v{t0}, v{t0}, s{R.S_S}, s{R.S_S}", 4),
            (f"  v_fma_f32 v{t1}, v{t1}, s{R.S_S}, s{R.S_S}", 4),
            (f"  v_rcp_f32 v{t0}, v{t0}", 8),
            (f"  v_rcp_f32 v{t1}, v{t1}", 8),
            (f"  v_mul_f32 v{t0}, v{x0}, v{t0}", 4),
            (f"  v_mul_f32 v{t1}, v{x1}, v{t1}", 4),
            (f"  v_cvt_pk_bf16_f32 v{g}, v{t0}, v{t1}", 4),
        ]
    else:
        return [
            (f"  v_cvt_pk_f16_f32 v{t0}, v{x0}, v{x1}", 4),
            (f"  v_pk_fma_f16 v{t1}, v{t0}, v{t0}, s{R.S_NAH} neg_lo:[1,0,0] neg_hi:[1,0,0]", 4),
            (f"  v_pk_mul_f16 v{t1}, v{t1}, v{t0}", 4),
            (f"  v_exp_f16_sdwa v{t0}, v{t1} dst_sel:WORD_0 dst_unused:UNUSED_PRESERVE src0_sel:WORD_0", 8),
            (f"  v_exp_f16_sdwa v{t0}, v{t1} dst_sel:WORD_1 dst_unused:UNUSED_PRESERVE src0_sel:WORD_1", 8),
            (f"  v_pk_fma_f16 v{t0}, v{t0}, s{R.S_SH}, s{R.S_SH}", 4),
            (f"  v_rcp_f16_sdwa v{t1}, v{t0} dst_sel:WORD_0 dst_unused:UNUSED_PRESERVE src0_sel:WORD_0", 8),
            (f"  v_rcp_f16_sdwa v{t1}, v{t0} dst_sel:WORD_1 dst_unused:UNUSED_PRESERVE src0_sel:WORD_1", 8),
            (f"  v_fma_mix_f32 v{t0}, v{x0}, v{t1}, 0 op_sel_hi:[0,1,0]", 4),
            (f"  v_fma_mix_f32 v{t1}, v{x1}, v{t1}, 0 op_sel:[0,1,0] op_sel_hi:[0,1,0]", 4),
            (f"  v_cvt_pk_bf16_f32 v{g}, v{t0}, v{t1}", 4),
        ]
def gelu_chains(buf, els, Gdst):
    out = []
    for pi in range(0, len(els), 2):
        for blk in range(2):
            Sr = R.S[buf][blk]
            slot = (len(out)) % 4
            t0 = R.T + 2 * slot
            ops = gelu_pair(Sr + els[pi], Sr + els[pi + 1], t0, t0 + 1, Gdst[blk] + pi // 2)
            if CFG['gelu'] == 'f32':
                deps = [[], [], [0], [1], [2], [3], [4], [5], [6], [7], [8], [9], [10, 11]]
            else:
                deps = [[], [0], [1], [2], [2, 3], [4], [5], [5, 6], [7], [7, 8], [8, 9]]
            out.append([(t, c, d) for (t, c), d in zip(ops, deps)])
    return out
class Chains:
    def __init__(self, chains):
        self.ch = chains; self.done = [[None] * len(c) for c in chains]; self.n = 0
        self.first = 0
    def remaining(self):
        return sum(c for ci, ch in enumerate(self.ch) for oi, (t, c, d) in enumerate(ch) if self.done[ci][oi] is None)
    def chain_done(self, ci): return all(x is not None for x in self.done[ci])
    def ready(self):
        r = []
        while self.first < len(self.ch) and self.chain_done(self.first): self.first += 1
        for ci in range(self.first, min(len(self.ch), self.first + 4)):
            for oi, (t, c, d) in enumerate(self.ch[ci]):
                if self.done[ci][oi] is not None: continue
                if all(self.done[ci][x] is not None and self.n - self.done[ci][x] >= 2 for x in d):
                    r.append((ci, oi, c))
        return r
    def take(self, ci, oi):
        self.done[ci][oi] = self.n; self.n += 1
        return self.ch[ci][oi][0], self.ch[ci][oi][1]
    def tick(self): self.n += 1
    def upto_done(self, k): return all(self.chain_done(c) for c in range(min(k, len(self.ch))))
def iter_frags(j):
    L = []
    if j < 24:
        for s in range(12):
            mk = []
            for blk in range(2):
                Sd = vr(R.S[j & 1][blk], 16); c = "0" if s == 0 else Sd
                mk.append(lambda wf, Sd=Sd, c=c, h=Hf(blk, s): f"  v_mfma_f32_32x32x16_bf16 {Sd}, {wf}, {h}, {c}")
            L.append((s, 1, mk))
    if 2 <= j <= 25:
        for b in range(6):
            mk = [(lambda wf, ac=ACC(blk, b), g=vr(R.G1[(j - 2) & 1][blk], 4): f"  v_mfma_f32_32x32x16_bf16 {ac}, {wf}, {g}, {ac}") for blk in range(2)]
            L.append((12 + b, 2, mk))
    if 1 <= j <= 24:
        for b in range(6):
            mk = [(lambda wf, ac=ACC(blk, b), g=vr(R.G0[blk], 4), c0=(j == 1 and CFG['accinit']): f"  v_mfma_f32_32x32x16_bf16 {ac}, {wf}, {g}, {'0' if c0 else ac}") for blk in range(2)]
            L.append((18 + b, 3, mk))
    return L
def ds_text(kb, j, fidx):
    off = R.RING + (j % 3) * BLK + fidx * 1024
    if off + 0 <= 65535 - 0 and (j % 3) < 2:
        return f"  ds_read_b128 {WFr(kb)}, v{R.V_L16} offset:{off}"
    return f"  ds_read_b128 {WFr(kb)}, v{R.V_L16B} offset:{off - (R.RING + 2*BLK)}"
def dma_ops(jb):
    if jb >= NBLK: return []
    s = jb % 3
    def dma(off, sg):
        return "  s_nop 0" if CFG['nodma'] else f"  buffer_load_dwordx4 v{R.V_L16}, s[{R.S_WS}:{R.S_WS+3}], s{sg} offen offset:{off} lds"
    c = CFG['dmac'] - 8
    return [
        ([f"  s_mov_b32 m0, s{R.S_M[2*s]}", "  s_nop 0", dma(0, R.S_G)], c + 8),
        ([dma(1024, R.S_G)], c), ([dma(2048, R.S_G)], c), ([dma(3072, R.S_G)], c),
        ([f"  s_mov_b32 m0, s{R.S_M[2*s+1]}", f"  s_add_u32 s{R.S_G}, s{R.S_G}, {BLK}", dma(0, R.S_G2)], c + 8),
        ([dma(1024, R.S_G2)], c),
        ([f"  s_add_u32 s{R.S_G2}, s{R.S_G2}, {BLK}"], 0),
    ]
class Core:
    def __init__(self, a):
        self.a = a; self.k = 0; self.pending = []
        self.over = 0
        self.fast_flush = set()
        self.pend_extra = {}
        self.vmwait = {}
        self.extra = {}
    def plan(self, j, jn):
        D = CFG['D']; NF = CFG['NF']
        F = iter_frags(j); Fn = iter_frags(jn) if jn is not None else []
        nf = len(F); n = 2 * nf
        Pf = max(0, nf - D)
        chains = []
        nva = 0
        if 1 <= j <= 24 and not CFG['nogelu']:
            buf = (j - 1) & 1
            va = gelu_chains(buf, list(range(0, 8)), R.G0); vb = gelu_chains(buf, list(range(8, 16)), R.G1[buf])
            chains = va + vb; nva = len(va)
        slots = []
        pend = list(self.pending)
        sync_at = None
        for fi in range(nf):
            t = fi + D
            pre = []
            if fi == Pf:
                for tx, c in pend: pre += tx
                pend = []
                if not CFG['nobar']: pre += [f"  s_waitcnt vmcnt({self.vmwait.get(j, 0)})", "  s_barrier"]
                pend = dma_ops(j + 2) + list(self.pend_extra.get(j, []))
            rd = []
            if not CFG['nods']:
                if t < nf: rd = [ds_text((self.k + t) % NF, j, F[t][0])]
                elif jn is not None: rd = [ds_text((self.k + t) % NF, j + 1, Fn[t - nf][0])]
            slots.append((pre, rd, CFG['dsc'] if rd else 8))
            if not CFG['nods'] and fi % 2 == 1:
                if len(pend) > self.over:
                    tx, c = pend.pop(0)
                    slots.append(([], [f"  s_waitcnt lgkmcnt({D-2})"] + list(tx), 12 + c))
                else:
                    slots.append(([], [f"  s_waitcnt lgkmcnt({D-2})"], 8))
            elif pend:
                tx, c = pend.pop(0)
                tx = list(tx)
                if j in self.fast_flush and fi >= Pf:
                    while pend:
                        t2, c2 = pend.pop(0); tx += t2; c += c2 + 4
                slots.append(([], tx, 8 + c))
            else:
                slots.append(([], [], 8))
        self.pending = pend
        ex = list(self.extra.get(j, []))
        gi = 0
        while ex:
            per = -(-len(ex) // max(1, (2 * Pf - gi)))
            pre_, tx_, c_ = slots[gi]
            add_ = ex[:per]; ex = ex[per:]
            slots[gi] = (pre_, list(tx_) + [t for t, _ in add_], c_ + sum(c for _, c in add_))
            gi += 1
        G = CFG['gap']
        fixed = [s[2] + 4 * len(s[0]) for s in slots]
        base = [slots[i][2] for i in range(n)]
        for i in range(1, n): base[i - 1] += 4 * len(slots[i][0])
        sched = [[] for _ in range(n)]
        CH = Chains(chains)
        first3 = next((2 * i for i, f in enumerate(F) if f[1] == 3), None)
        carry = 0.0
        for i in range(n):
            tcur = base[i]
            CH.tick()
            cap = sum(max(0, G - base[q]) for q in range(i, n))
            excess = CH.remaining() - cap
            if excess > 0: carry += excess * 1.0 / (n - i)
            while True:
                rdy = CH.ready()
                if not rdy:
                    if CH.remaining() > 0 and (i == n - 1 or (first3 is not None and i >= first3 - 2 and not CH.upto_done(nva))):
                        sched[i].append(("  s_nop 0", 4)); CH.tick(); tcur += 4; continue
                    break
                must = i == n - 1 or (first3 is not None and i >= first3 - 2 and not CH.upto_done(nva))
                need = G - tcur
                pick = None
                fit = [r for r in rdy if r[2] <= need]
                if fit:
                    pick = fit[0]
                    if need == 8:
                        ex = [r for r in fit if r[2] == 8]
                        pl = [r for r in rdy if r[2] == 4]
                        if ex and len(pl) < 2: pick = ex[0]
                elif must:
                    pick = rdy[0]
                else:
                    over = [(r, tcur + r[2] - max(G, tcur)) for r in rdy]
                    over.sort(key=lambda x: x[1])
                    if need > 0 and excess > 0:
                        pick = over[0][0]; carry -= over[0][1]
                    elif over[0][1] <= carry:
                        pick = over[0][0]; carry -= over[0][1]
                if pick is None: break
                tx, c = CH.take(pick[0], pick[1])
                sched[i].append((tx, c)); tcur += c
        assert CH.remaining() == 0
        chunks = []
        for fi, (fidx, grp, mk) in enumerate(F):
            kb = (self.k + fi) % NF
            L = []
            pre, rd, _ = slots[2 * fi]
            L += pre
            if j == 24 and grp == 3 and F[fi - 1][1] == 2: L.append("  s_nop 1")
            L.append(mk[0](WFr(kb))); L += rd
            L += [t for t, _ in sched[2 * fi]]
            L.append(mk[1](WFr(kb))); L += slots[2 * fi + 1][1]
            L += [t for t, _ in sched[2 * fi + 1]]
            chunks.append(L)
        self.k = (self.k + nf) % NF
        return chunks, Pf
    def emit(self, j, jn):
        ch, Pf = self.plan(j, jn)
        if j == 1: self.a("  s_nop 11")
        for L in ch:
            for t in L: self.a(t)
    def emit_tile(self, name):
        a = self.a
        self.emit(0, 1); self.emit(1, 2)
        a(f"  s_mov_b32 s{R.S_CNT}, 4")
        k0 = self.k; p0 = list(self.pending)
        a(".p2align 6")
        a(f"{name}_loop:")
        a(f"  s_sub_u32 s{R.S_CNT}, s{R.S_CNT}, 1")
        self.emit(2, 3); self.emit(3, 4); self.emit(4, 5)
        ks = self.k; ps = list(self.pending)
        ch, Pf = self.plan(5, 6)
        for L in ch[:Pf]:
            for t in L: a(t)
        a(f"  s_cmp_eq_u32 s{R.S_CNT}, 0")
        a(f"  s_cbranch_scc1 {name}_exit")
        for L in ch[Pf:]:
            for t in L: a(t)
        self.emit(6, 7); self.emit(7, 8)
        assert self.k == k0 and self.pending == p0, (self.k, k0)
        a(f"  s_branch {name}_loop")
        a(f"{name}_exit:")
        self.k = ks; self.pending = ps
        ch, Pf = self.plan(23, 24)
        for L in ch[Pf:]:
            for t in L: a(t)
        self.emit(24, 25); self.emit(25, None)
        for tx, c in self.pending:
            for t in tx: a(t)
        self.pending = []
```

```python
from asmlib import *
import mlpcore as C
from mlpcore import R, ACC, ACCreg, Hf, WFr, Core, BLK, NBLK, CFG
from k_prep2 import TBL_OFF, TBL_BYTES
import numpy as np
TB = [0, 17408]
OS = 9744; CS = 1216; PLANE = 608
SB = 34816
SDUMMY = SB + 8 * OS
XCH = 49152; XPS = 416
STATS = 24576
IDOFF = 159872
PFSCR = IDOFF + 2048
LDS_BYTES = PFSCR + 256
assert SDUMMY + 1024 + 7 * CS + 16 <= IDOFF and XCH + 106736 <= IDOFF and LDS_BYTES <= 163840
V_LANE = 0
V_SW = [1, 2, 9]
V_TMP = 3
V_PX = [6, 7]
V_B = 8
V_T = 10
V_IDX = 11
V_XW = [12, 13]
V_XR = [14, 15]
V_GA = [24, 26, 30]; V_GB = [25, 27, 31]
AF = [32, 40]
XR = [48, 80]
XA2 = 96
PT = [32, 40]
def Darch(k, i):
    idx = 16 * k + i
    return 112 + 4 * idx if idx < 36 else 48 + 4 * (idx - 36)
def Dreg(k, i): return ('v', Darch(k, i))
BF = [48, 64, 80]
PARK = 160
S_ST = [78, 79, 80, 81]
def Xf(blk, s):
    r = 160 + 48 * blk + 4 * s; return f"a[{r}:{r+3}]"
S_X = 8; S_OUT = 12; S_TB = 16
S_W = 20; S_I = 21; S_T0 = 28; S_T1 = 29; S_PXO = 30; S_PXN = 31; S_G0 = 32; S_LO = 33; S_HI = 34
S_TX = 64; S_TY = 65; S_TM = 66; S_TG = 67; S_EPS = 68; S_INV = 69
NPX = 512 * 512
STAMP_OFF = 300 << 20
H_OFF = 1 << 20
OPT = dict(dumph=0, prof=0, pf=1, st=3, sbud=70, cbud=20, stc=20, nhi=2, stnt=0, xnt=0, pfn=1, nox=0, nopark=0, sst=11, spf=0, nhs=2, st3=1, hprog=1, samex=0, pfh=0, pfs=1, w1late=0, xg=2)
COLS = [0, 1, 8, 9, 2, 3, 10, 11]
S_PXP = 74
S_PF = 75
V_PFA = 3
class VM:
    def __init__(self): self.ops = []
    def add(self, tag, n=1): self.ops += [tag] * n
    def after(self, tag):
        i = max(k for k, t in enumerate(self.ops) if t == tag)
        return len(self.ops) - 1 - i
vm = VM()
def stamp(a):
    if not OPT['prof']: return
    a(f"""  s_memtime s[42:43]
  s_memrealtime s[62:63]
  s_waitcnt lgkmcnt(0)
  v_mov_b32 v{V_TMP}, s42
  s_nop 0
  buffer_store_dword v{V_TMP}, off, s[44:47], s40
  s_nop 1
  v_mov_b32 v{V_TMP}, s62
  s_nop 0
  buffer_store_dword v{V_TMP}, off, s[44:47], s40 offset:256
  s_add_u32 s40, s40, 4""")
def tile_coords(a):
    a(f"""  s_and_b32 s{S_T0}, s2, 7
  s_lshl_b32 s{S_T0}, s{S_T0}, 3
  s_lshr_b32 s{S_T1}, s2, 3
  s_and_b32 s{S_TX}, s{S_T1}, 7
  s_add_u32 s{S_TX}, s{S_TX}, s{S_T0}
  s_lshr_b32 s{S_T1}, s{S_T1}, 3
  s_lshl_b32 s{S_TY}, s{S_I}, 2
  s_add_u32 s{S_TY}, s{S_TY}, s{S_T1}          ; ty = 4*i + (c>>3)
  s_lshl_b32 s{S_T0}, s{S_TY}, 14              ; y0*512 = ty*32*512
  s_lshl_b32 s{S_T1}, s{S_TX}, 3
  s_add_u32 s{S_T0}, s{S_T0}, s{S_T1}
  s_mul_i32 s{S_PXN}, s{S_T0}, 384""")
def global_bases_lines(t):
    L = []
    if OPT['samex']: L += [f"  s_mov_b32 s{S_TX}, 5", f"  s_mov_b32 s{S_TY}, 5"]
    L += f"""  s_lshl_b32 s88, s{S_TY}, 5
  s_sub_u32 s88, s88, 3
  s_lshl_b32 s89, s{S_TX}, 3
  s_sub_u32 s89, s89, 4
  s_lshl_b32 s90, s{S_W}, 2
  s_add_u32 s88, s88, s90
  s_movk_i32 s90, 384
  s_movk_i32 s91, 512
  v_lshrrev_b32 v{t}, 4, v{V_LANE}
  v_bfe_u32 v{t+1}, v{V_LANE}, 3, 1
  v_and_b32 v{t+2}, 7, v{V_LANE}
  v_lshl_add_u32 v{t+1}, v{t+1}, 2, s89
  v_add_u32 v{t}, s88, v{t}
  v_add_u32 v{t+3}, 8, v{t+1}
  v_cmp_gt_u32 s[70:71], s91, v{t+1}
  v_cmp_gt_u32 s[72:73], s91, v{t+3}
  v_lshl_add_u32 v{t+3}, v{t}, 9, v{t+1}
  v_mul_lo_u32 v{t+3}, v{t+3}, s90
  v_lshl_add_u32 v{t+3}, v{t+2}, 4, v{t+3}
  v_mov_b32 v{t+4}, 0x80000000""".split("\n")
    for r in range(3):
        if r > 0:
            L += [f"  v_add_u32 v{t}, 16, v{t}", f"  v_add_u32 v{t+3}, {16*512*384}, v{t+3}"]
        L += [f"  v_cmp_gt_u32 vcc, s91, v{t}"]
        if r == 2:
            L += [f"  v_lshrrev_b32 v{t+5}, 4, v{V_LANE}", f"  s_lshl_b32 s86, s{S_W}, 2", f"  v_add_u32 v{t+5}, s86, v{t+5}",
                  f"  v_cmp_gt_u32 s[86:87], 6, v{t+5}", "  s_nop 0", "  s_and_b64 vcc, vcc, s[86:87]"]
        L += [f"  v_add_u32 v{t+6}, {8*384}, v{t+3}",
              "  s_and_b64 s[92:93], s[70:71], vcc",
              "  s_and_b64 s[94:95], s[72:73], vcc",
              "  s_nop 1",
              f"  v_cndmask_b32 v{V_GA[r]}, v{t+4}, v{t+3}, s[92:93]",
              f"  v_cndmask_b32 v{V_GB[r]}, v{t+4}, v{t+6}, s[94:95]"]
    return L
def global_bases(a, t=128):
    for l in global_bases_lines(t): a(l)
def x_load_line(k, r, i):
    col = COLS[i]
    base = V_GA[r] if col < 8 else V_GB[r]
    off = (col & 7) * 384 + k * 128
    dst = vr(XR[r] + 4 * i, 4) if r < 2 else f"a[{XA2+4*i}:{XA2+4*i+3}]"
    return f"  buffer_load_dwordx4 {dst}, v{base}, s[{S_X}:{S_X+3}], 0 offen offset:{off}"
class Fill:
    def __init__(self, a): self.a = a; self.hi = []; self.lo = []
    def push(self, lines, cost, tag=None, hi=False): (self.hi if hi else self.lo).append((lines, cost, tag))
    def emit1(self, g):
        for l in g[0]: self.a(l)
        if g[2] is not None: vm.add(g[2])
    def pop(self, budget, nhi=1):
        n = 0
        while self.hi and n < nhi:
            g = self.hi.pop(0); self.emit1(g); budget -= g[1]; n += 1
        while self.lo and budget >= self.lo[0][1] * 0.6:
            g = self.lo.pop(0); self.emit1(g); budget -= g[1]
    def flush(self, hi=True, lo=True, n=None):
        if hi:
            while self.hi: self.emit1(self.hi.pop(0))
        if lo:
            c = 0
            while self.lo and (n is None or c < n): self.emit1(self.lo.pop(0)); c += 1
def x_loads(a, k, r):
    for i in range(8): a(x_load_line(k, r, i))
    vm.add(('x', k, r), 8)
def stage_round(a, k, r, hook=None):
    src = XR[r] if r < 2 else XR[0]
    if r == 2:
        for e in range(32): a(f"  v_accvgpr_read_b32 v{XR[0]+e}, a{XA2+e}")
    for d in range(4):
        if hook: hook(d)
        T = PT[d & 1]
        for p in range(4):
            x0 = src + 4 * (2 * p) + d; x1 = src + 4 * (2 * p + 1) + d
            a(f"  v_perm_b32 v{T+p}, v{x1}, v{x0}, s{S_LO}")
        for p in range(4):
            x0 = src + 4 * (2 * p) + d; x1 = src + 4 * (2 * p + 1) + d
            a(f"  v_perm_b32 v{T+4+p}, v{x1}, v{x0}, s{S_HI}")
        a(f"  ds_write_b128 v{V_SW[r]}, {vr(T,4)} offset:{(2*d)*CS}")
        a(f"  ds_write_b128 v{V_SW[r]}, {vr(T+4,4)} offset:{(2*d+1)*CS}")
def table_dma(a, k):
    a(f"""  s_lshl_b32 s{S_TM}, s{S_W}, 12
  s_add_u32 s{S_TG}, s{S_TM}, {k*16384}
  s_add_u32 m0, s{S_TM}, {TB[k&1]}
  s_nop 0""")
    for q in range(4):
        a(f"  buffer_load_dwordx4 v{R.V_L16}, s[{S_TB}:{S_TB+3}], s{S_TG} offen offset:{1024*q} lds")
    a(f"""  s_mov_b32 m0, {TB[k&1] + 16384}
  s_mov_b32 s{S_TG}, {(k+1)*16384}
  buffer_load_dwordx4 v{R.V_L16}, s[{S_TB}:{S_TB+3}], s{S_TG} offen lds""")
    vm.add(('t', k), 5)
NCH = 16
def conv_chunk(a, k, hook=None):
    def chan_off(i): j, e = i >> 3, i & 7; return j * OS + e * CS
    def tab_off(i): j, e = i >> 3, i & 7; return TB[k & 1] + j * 2048 + e * 256
    def rdA(i):
        A = AF[i & 1]
        return [f"  ds_read_b32 v{A}, v{V_T} offset:{tab_off(i)}", f"  ds_read_b32 v{A+4}, v{V_T} offset:{tab_off(i)+128}"]
    def rdB(i):
        B = BF[i % 3]
        return [f"  ds_read_b128 a[{B+4*q}:{B+4*q+3}], v{V_B} offset:{chan_off(i)+32*q}" for q in range(4)]
    for t in rdA(0) + rdB(0) + rdB(1): a(t)
    for i in range(NCH):
        A = AF[i & 1]; B = BF[i % 3]
        kind, D = Dreg(k, i)
        Dt = f"{kind}[{D}:{D+3}]"
        nxtA = rdA(i + 1) if i + 1 < NCH else []
        nxtB = rdB(i + 2) if i + 2 < NCH else []
        a(f"  s_waitcnt lgkmcnt({4 if i + 1 < NCH else 0})")
        for t in nxtA: a(t)
        for h in range(2):
            for g in range(3):
                a(f"  v_mov_b32_dpp v{A+4*h+1+g}, v{A+4*h} row_ror:{4*(g+1)} row_mask:0xf bank_mask:0xf")
            rb = nxtB[2*h:2*h+2]
            for t in rb: a(t)
            if len(rb) < 2: a("  s_nop 1")
            a(f"  v_smfmac_f32_16x16x64_bf16 {Dt}, {vr(A+4*h,4)}, a[{B+8*h}:{B+8*h+7}], v{V_IDX}")
        if hook: hook(i)
def zero_D(a, k):
    L = [f"  v_mov_b32 v{r}, 0" for r in range(44, 48)] + ["  s_nop 1"]
    for q in range(4):
        base = Darch(k, 4 * q)
        L.append(f"  v_mfma_f32_32x32x16_bf16 v[{base}:{base+15}], v[44:47], v[44:47], 0")
    for l in L: a(l)
def stats_lines(k, i):
    D = Darch(k, i)
    return [f"  v_pk_add_f32 v[16:17], v[16:17], v[{D}:{D+1}]", f"  v_pk_add_f32 v[18:19], v[18:19], v[{D+2}:{D+3}]",
            f"  v_pk_fma_f32 v[20:21], v[{D}:{D+1}], v[{D}:{D+1}], v[20:21]", f"  v_pk_fma_f32 v[22:23], v[{D+2}:{D+3}], v[{D+2}:{D+3}], v[22:23]"]
def move_lines(k, i):
    D = Darch(k, i); A = Dreg(k, i)[1]
    return [f"  v_accvgpr_read_b32 v{D+e}, a{A+e}" for e in range(4)]
def ln_phase(a, wdma, done3):
    a("  s_nop 7")
    for i in range(done3, NCH):
        for l in stats_lines(2, i): a(l)
    a(f"""  s_lshl_b32 s{S_T0}, s{S_W}, 11
  s_add_u32 s{S_T0}, s{S_T0}, {STATS}
  v_add_u32 v24, s{S_T0}, v{R.V_L16}
  v_add_u32 v25, {STATS}, v{R.V_L16}
  ds_write_b128 v24, v[16:19]
  ds_write_b128 v24, v[20:23] offset:1024
  s_waitcnt lgkmcnt(0)
  s_barrier""")
    for w in range(4):
        a(f"  ds_read_b128 v[{96+4*w}:{99+4*w}], v25 offset:{2048*w}")
    for w in range(4):
        a(f"  ds_read_b128 v[{28+4*w}:{31+4*w}], v25 offset:{2048*w+1024}")
    wl = Asm(); wdma(wl); wl = [l for l in wl.L]
    for l in wl[:8]: a(l)
    wl = wl[8:]
    a("  s_waitcnt lgkmcnt(4)")
    a("""  v_pk_add_f32 v[96:97], v[96:97], v[100:101]
  v_pk_add_f32 v[98:99], v[98:99], v[102:103]
  v_pk_add_f32 v[104:105], v[104:105], v[108:109]
  v_pk_add_f32 v[106:107], v[106:107], v[110:111]
  v_pk_add_f32 v[96:97], v[96:97], v[104:105]
  v_pk_add_f32 v[98:99], v[98:99], v[106:107]
  s_waitcnt lgkmcnt(0)
  v_pk_add_f32 v[28:29], v[28:29], v[32:33]
  v_pk_add_f32 v[30:31], v[30:31], v[34:35]
  v_pk_add_f32 v[36:37], v[36:37], v[40:41]
  v_pk_add_f32 v[38:39], v[38:39], v[42:43]
  v_pk_add_f32 v[28:29], v[28:29], v[36:37]
  v_pk_add_f32 v[30:31], v[30:31], v[38:39]""")
    for r in range(4):
        a(f"  v_mul_f32 v{16+r}, s{S_INV}, v{96+r}")
    for r in range(4):
        a(f"  v_mul_f32 v{28+r}, s{S_INV}, v{28+r}")
    for r in range(4):
        a(f"  v_fma_f32 v{28+r}, -v{16+r}, v{16+r}, v{28+r}")
    for r in range(4):
        a(f"  v_max_f32 v{28+r}, 0, v{28+r}")
    for r in range(4):
        a(f"  v_add_f32 v{28+r}, s{S_EPS}, v{28+r}")
    for r in range(4):
        a(f"  v_rsq_f32 v{20+r}, v{28+r}")
    a("  s_nop 0")
    for r in range(4):
        a(f"  v_mul_f32 v{20+r}, s{R.S_S}, v{20+r}")
    for r in range(4):
        a(f"  v_mul_f32 v{24+r}, -v{16+r}, v{20+r}" .replace("v_mul_f32 v", "v_mul_f32_e64 v"))
    cnt = 0
    for k in range(3):
        for j in range(2):
            Ds = [Darch(k, 8 * j + e) for e in range(8)]
            for D in Ds:
                a(f"  v_pk_fma_f32 v[{D}:{D+1}], v[{D}:{D+1}], v[20:21], v[24:25]")
                a(f"  v_pk_fma_f32 v[{D+2}:{D+3}], v[{D+2}:{D+3}], v[22:23], v[26:27]")
            for r in range(4):
                T = 32 + 4 * (cnt % 4); cnt += 1
                for e in range(4):
                    a(f"  v_cvt_pk_bf16_f32 v{T+e}, v{Ds[2*e]+r}, v{Ds[2*e+1]+r}")
                a(f"  ds_write_b128 v{V_XW[r>>1]}, v[{T}:{T+3}] offset:{(r&1)*8*XPS + 128*k + 16*j}")
                n = 0
                while wl and n < 1:
                    l = wl.pop(0); a(l); n += 1
                    while wl and l.startswith("  s_"): l = wl.pop(0); a(l)
    for l in wl: a(l)
def w_dma_block(a, blk):
    S_G0 = 32
    for half, cnt in ((0, 4), (1, 2)):
        a(f"  s_add_u32 s{R.S_G}, s{S_G0}, {blk*BLK + 4096*half}\n  s_mov_b32 m0, s{R.S_M[2*blk+half]}\n  s_nop 0")
        for p in range(cnt):
            a(f"  buffer_load_dwordx4 v{R.V_L16}, s[{R.S_WS}:{R.S_WS+3}], s{R.S_G} offen offset:{1024*p} lds")
    if blk == 1: a(f"  s_add_u32 s{R.S_G}, s{S_G0}, {2*BLK}\n  s_add_u32 s{R.S_G2}, s{S_G0}, {2*BLK+4096}")
def phase_c(a):
    F = Fill(a)
    for g in range(24):
        L, c = park_group(g); F.push(L if not OPT['nopark'] else ["  s_nop 0 ; cvt"] * 8, c)
    need_by = [8, 16, 24]
    for k in range(3):
        for r in range(3):
            if r == 0: F.flush(hi=True, lo=False)
            a(f"  s_waitcnt vmcnt({vm.after(('x', k, r))})")
            stage_round(a, k, r, lambda d: F.pop(OPT['sbud'], OPT['nhs'] if r == 2 else 0))
            if k < 2 and OPT['nox']:
                vm.add(('x', k + 1, r))
            if k < 2 and not OPT['nox']:
                if r == 1:
                    for i in range(8): F.push([x_load_line(k + 1, 1, i)], 12, ('x', k + 1, 1), hi=True)
                if r == 2:
                    F.hi = [([x_load_line(k + 1, 0, i)], 12, ('x', k + 1, 0)) for i in range(8)] + F.hi
                    for i in range(8): F.push([x_load_line(k + 1, 2, i)], 12, ('x', k + 1, 2), hi=True)
        parked = 24 - sum(1 for g in F.lo if 'cvt' in ''.join(g[0]))
        need = need_by[k] - parked
        while need > 0:
            g = F.lo.pop(0); F.emit1(g)
            if 'cvt' in ''.join(g[0]): need -= 1
        zero_D(a, k)
        a(f"  s_waitcnt vmcnt({vm.after(('t', k))}) lgkmcnt(0)")
        a("  s_barrier")
        if k == 1: table_dma(a, 2)
        if k == 1:
            F.flush(hi=False, lo=True)
            F.push([f"  v_mov_b32 v{r}, 0" for r in range(16, 24)], 32)
            for i in range(NCH): F.push(stats_lines(0, i), OPT['stc'])
        if k == 2:
            for i in range(NCH): F.push(stats_lines(1, i), OPT['stc'])
        stamp(a)
        def hook(i, k=k):
            if k == 2 and i >= 3 and OPT['st3']:
                for l in stats_lines(2, i - 3): a(l)
            F.pop(OPT['cbud'], OPT['nhi'])
        conv_chunk(a, k, hook)
        if k < 2: a("  s_barrier")
        stamp(a)
    F.flush()
    ln_phase(a, lambda x: w_dma_block(x, 0), NCH - 3 if OPT['st3'] else 0)
    a("  s_waitcnt vmcnt(0) lgkmcnt(0)\n  s_barrier")
    if not OPT['w1late']: w_dma_block(a, 1)
    for i in range(CFG['D']): a(C.ds_text(i, 0, i))
    for s in range(12):
        for blk in range(2):
            a(f"  ds_read_b128 {Hf(blk,s)}, v{V_XR[blk]} offset:{32*s}")
    a(f"  s_waitcnt lgkmcnt({15 if OPT['hprog'] else 0})")
EPI_ORDER = [(0, s_) for s_ in range(12)] + [(1, s_) for s_ in range(12)]
def quad(blk, sI): return PARK + 4 * (blk * 12 + sI)
def epi_cvt(blk, sI, p, bounce):
    b = sI >> 1
    kind, r0 = ACCreg(blk, b); r0 += 8 * (sI & 1)
    L = []
    if kind == 'a':
        for e in range(8): L.append(f"  v_accvgpr_read_b32 v{bounce+e}, a{r0+e}")
        r0 = bounce
    L += [f"  v_cvt_pk_bf16_f32 v{p}, v{r0}, v{r0+1}", f"  v_cvt_pk_bf16_f32 v{p+1}, v{r0+2}, v{r0+3}",
          f"  v_cvt_pk_bf16_f32 v{p+2}, v{r0+4}, v{r0+5}", f"  v_cvt_pk_bf16_f32 v{p+3}, v{r0+6}, v{r0+7}"]
    return L
def park_group(g):
    blk, sI = EPI_ORDER[g]
    kind, _ = ACCreg(blk, sI >> 1)
    p = 16 if kind == 'a' else 16 + 4 * (g & 1)
    L = epi_cvt(blk, sI, p, 16)
    q = quad(blk, sI)
    L += [f"  v_accvgpr_write_b32 a{q+e}, v{p+e}" for e in range(4)]
    return L, (32 + (32 if kind == 'a' else 0))
def store_parked(i, spx):
    blk, sI = i // 12, i % 12
    q = quad(blk, sI)
    return f"  buffer_store_dwordx4 a[{q}:{q+3}], v{V_PX[blk]}, s[{S_OUT}:{S_OUT+3}], s{spx} offen offset:{32*sI}{' nt' if OPT['stnt'] else ''}"
class Epi:
    def __init__(self, a): self.a = a; self.g = 0
    def emit(self, n=1):
        pass
def epilogue(a):
    for g in range(24):
        blk, sI = g // 12, g % 12
        p = 16 + 4 * (g & 1)
        for t in epi_cvt(blk, sI, p, 40): a(t)
        a(f"  buffer_store_dwordx4 {vr(p,4)}, v{V_PX[blk]}, s[{S_OUT}:{S_OUT+3}], s{S_PXO} offen offset:{32*sI}")
def gen_fused(a, name="fused_kernel", nwg=256):
    CFG['accinit'] = 1
    a(kstart(name))
    h16 = lambda x: int(np.float16(x).view(np.uint16))
    a(f"""
  s_cmp_ge_u32 s2, {nwg}
  s_cbranch_scc1 {name}_done
  s_load_dwordx2 s[48:49], s[0:1], 0       ; x
  s_load_dwordx2 s[50:51], s[0:1], 32      ; out
  s_load_dwordx2 s[38:39], s[0:1], 48      ; ws
  v_lshrrev_b32 v1, 6, v0
  v_and_b32 v{V_LANE}, 63, v0
  s_nop 0
  v_readfirstlane_b32 s{S_W}, v1
  v_lshlrev_b32 v{R.V_L16}, 4, v{V_LANE}
""")
    a(f"""
  s_waitcnt lgkmcnt(0)
  s_mov_b32 s{R.S_WS}, s38
  s_and_b32 s{R.S_WS+1}, s39, 0xffff
  s_mov_b32 s{R.S_WS+2}, {NBLK*BLK}
  s_mov_b32 s{R.S_WS+3}, 0x20000
  s_add_u32 s{S_TB}, s38, {TBL_OFF}
  s_addc_u32 s{S_TB+1}, s39, 0
  s_and_b32 s{S_TB+1}, s{S_TB+1}, 0xffff
  s_mov_b32 s{S_TB+2}, {TBL_BYTES}
  s_mov_b32 s{S_TB+3}, 0x20000
  s_mov_b32 s{S_X}, s48
  s_and_b32 s{S_X+1}, s49, 0xffff
  s_mov_b32 s{S_X+2}, {NPX*384}
  s_mov_b32 s{S_X+3}, 0x20000
  s_mov_b32 s{S_OUT}, s50
  s_and_b32 s{S_OUT+1}, s51, 0xffff
  s_mov_b32 s{S_OUT+2}, {NPX*384}
  s_mov_b32 s{S_OUT+3}, 0x20000
  s_mov_b32 s{R.S_NA}, {hex(f2u(-GA))}
  s_mov_b32 s{R.S_S}, {hex(f2u(GS))}
  s_mov_b32 s{R.S_NAH}, {hex(h16(-GA) | (h16(-GA) << 16))}
  s_mov_b32 s{R.S_SH}, {hex(h16(GS) | (h16(GS) << 16))}
  s_mov_b32 s{S_LO}, 0x05040100
  s_mov_b32 s{S_HI}, 0x07060302
  s_mov_b32 s{S_EPS}, {hex(f2u(1e-5))}
  s_mov_b32 s{S_INV}, {hex(f2u(1.0/192))}
  s_mul_i32 s{S_G0}, s{S_W}, 6144
""")
    for s in range(3):
        a(f"  s_add_u32 s{R.S_M[2*s]}, s{S_G0}, {s*BLK}")
        a(f"  s_add_u32 s{R.S_M[2*s+1]}, s{S_G0}, {s*BLK + 4096}")
    if OPT['prof'] or OPT['dumph']:
        a(f"""  s_add_u32 s44, s38, {STAMP_OFF}
  s_addc_u32 s45, s39, 0
  s_and_b32 s45, s45, 0xffff
  s_mov_b32 s46, {256*4*512}
  s_mov_b32 s47, 0x20000
  s_lshl_b32 s40, s2, 2
  s_add_u32 s40, s40, s{S_W}
  s_lshl_b32 s40, s40, 9
  s_add_u32 s52, s38, {H_OFF}
  s_addc_u32 s53, s39, 0
  s_and_b32 s53, s53, 0xffff
  s_mov_b32 s54, {NPX*384}
  s_mov_b32 s55, 0x20000""")
    stamp(a)
    a(f"  s_mov_b32 s{S_I}, 0")
    tile_coords(a)
    global_bases(a)
    x_loads(a, 0, 0); x_loads(a, 0, 1); x_loads(a, 0, 2)
    table_dma(a, 0); table_dma(a, 1)
    npf = 0
    if OPT['spf']:
        a(f"""  s_lshl_b32 s{S_T0}, s{S_TY}, 5
  s_sub_u32 s{S_T0}, s{S_T0}, 3
  s_max_i32 s{S_T0}, s{S_T0}, 0
  s_add_u32 s{S_T0}, s{S_T0}, s{S_W}
  s_lshl_b32 s{S_T0}, s{S_T0}, 9
  s_lshl_b32 s{S_T1}, s{S_TX}, 3
  s_sub_u32 s{S_T1}, s{S_T1}, 4
  s_max_i32 s{S_T1}, s{S_T1}, 0
  s_add_u32 s{S_T0}, s{S_T0}, s{S_T1}
  s_mul_i32 s{S_PF}, s{S_T0}, 384
  v_min_u32 v{V_TMP}, 47, v{V_LANE}
  v_lshlrev_b32 v{V_TMP}, 7, v{V_TMP}
  s_mov_b32 m0, {PFSCR}
  s_lshr_b32 s{S_T0}, s2, 3
  s_lshl_b32 s{S_T0}, s{S_T0}, 2
  s_add_u32 s{S_T0}, s{S_T0}, s{S_W}
  s_mul_i32 s{S_T0}, s{S_T0}, 5120
  v_lshlrev_b32 v16, 6, v{V_LANE}
  buffer_load_dword v16, s[{R.S_WS}:{R.S_WS+3}], s{S_T0} offen lds
  buffer_load_dword v16, s[{R.S_WS}:{R.S_WS+3}], s{S_T0} offen offset:1024 lds""")
        npf = 2
        for idx in range(20):
            a(f"  buffer_load_dword v{V_TMP}, s[{S_X}:{S_X+3}], s{S_PF} offen offset:{64*(idx&1)} lds")
            if idx & 1: a(f"  s_add_u32 s{S_PF}, s{S_PF}, {4*512*384}")
            npf += 1
    a(f"""
  v_add_u32 v{R.V_L16B}, {2*BLK}, v{R.V_L16}
  v_and_b32 v16, 31, v{V_LANE}             ; n
  v_lshrrev_b32 v17, 5, v{V_LANE}          ; hf
  v_lshrrev_b32 v18, 3, v16
  v_and_b32 v19, 7, v16
  s_lshl_b32 s{S_T0}, s{S_W}, 3
  v_add_u32 v18, s{S_T0}, v18
  v_lshl_add_u32 v20, v18, 9, v19
  s_movk_i32 s{S_T1}, 384
  v_mul_lo_u32 v20, v20, s{S_T1}
  v_lshl_add_u32 v{V_PX[0]}, v17, 4, v20
  v_add_u32 v{V_PX[1]}, {4*512*384}, v{V_PX[0]}
  v_lshl_add_u32 v20, v18, 3, v19
  s_movk_i32 s{S_T1}, {XPS}
  v_mul_lo_u32 v20, v20, s{S_T1}
  v_lshrrev_b32 v21, 1, v18                ; row>>1
  v_add_u32 v21, v21, v17                  ; + hf
  v_lshl_add_u32 v20, v21, 4, v20
  v_add_u32 v{V_XR[0]}, {XCH}, v20
  v_add_u32 v{V_XR[1]}, {XCH + 32*XPS + 32}, v20
  v_and_b32 v18, 0x13, v16
  v_bfe_u32 v19, v16, 2, 1
  v_lshl_or_b32 v18, v19, 3, v18
  v_bfe_u32 v19, v16, 3, 1
  v_lshl_or_b32 v18, v19, 2, v18
  v_lshlrev_b32 v19, 3, v17
  v_sub_u32 v18, v18, v19                  ; c(m) - 8hf
""")
    for d in range(4):
        for (base, reg) in ((0, 112), (16, 116)):
            a(f"""  v_cmp_eq_u32 vcc, {base+2*d}, v18
  v_mov_b32 v19, 0x3f80
  s_nop 1
  v_cndmask_b32 v20, 0, v19, vcc
  v_cmp_eq_u32 vcc, {base+2*d+1}, v18
  v_mov_b32 v19, 0x3f800000
  s_nop 1
  v_cndmask_b32 v21, 0, v19, vcc
  v_or_b32 v{reg+d}, v20, v21""")
    a(f"""  v_add_u32 v20, {IDOFF}, v{R.V_L16}
  ds_write_b128 v20, v[112:115]
  ds_write_b128 v20, v[116:119] offset:1024
  v_and_b32 v16, 15, v{V_LANE}             ; nh
  v_lshrrev_b32 v17, 4, v{V_LANE}          ; q
  v_lshrrev_b32 v18, 1, v17
  v_mul_u32_u24 v18, {PLANE}, v18
  v_lshl_add_u32 v18, v16, 5, v18
  v_and_b32 v19, 1, v17
  v_lshl_add_u32 v18, v19, 4, v18
  s_mul_i32 s{S_T0}, s{S_W}, {2*OS}
  s_add_u32 s{S_T0}, s{S_T0}, {SB}
  v_add_u32 v{V_B}, s{S_T0}, v18
  v_and_b32 v18, 1, v16                    ; mh
  v_bfe_u32 v19, v16, 1, 1                 ; par
  v_lshrrev_b32 v20, 2, v16                ; k'
  v_sub_u32 v21, v17, v18
  v_add_u32 v21, 1, v21
  v_lshlrev_b32 v21, 5, v21
  v_lshl_add_u32 v21, v19, 4, v21
  v_sub_u32 v22, 0, v20
  v_and_b32 v22, 3, v22
  v_lshl_add_u32 v21, v22, 2, v21
  s_lshl_b32 s{S_T0}, s{S_W}, 12
  v_add_u32 v{V_T}, s{S_T0}, v21
  v_lshlrev_b32 v21, 1, v20                ; 2k'
  v_add_u32 v22, 1, v21                    ; O: 2k'+1
  v_cmp_eq_u32 vcc, 0, v20
  v_mov_b32 v23, 8
  s_nop 1
  v_cndmask_b32 v21, v21, v23, vcc         ; E
  v_cmp_eq_u32 vcc, 1, v19
  s_nop 1
  v_cndmask_b32 v21, v22, v21, vcc         ; s
  v_mov_b32 v{V_IDX}, 0x4444
""")
    for g in range(4):
        a(f"""  v_cmp_le_u32 vcc, {2*g+2}, v21
  v_mov_b32 v22, {0xA << (4*g)}
  s_nop 1
  v_cndmask_b32 v22, 0, v22, vcc
  v_or_b32 v{V_IDX}, v{V_IDX}, v22""")
    a(f"""
  v_lshlrev_b32 v18, 4, v16                ; 2nh*8
  v_lshlrev_b32 v19, 1, v17                ; 2q'
  v_lshlrev_b32 v20, 4, v16
  s_lshl_b32 s{S_T0}, s{S_W}, 5
  s_add_u32 s{S_T0}, s{S_T0}, {XCH}
  v_add_u32 v20, s{S_T0}, v20
  s_movk_i32 s{S_T1}, {XPS}
  v_add_u32 v21, v18, v19
  v_mul_lo_u32 v21, v21, s{S_T1}
  v_add_u32 v{V_XW[0]}, v21, v20
  v_add_u32 v19, 7, v19
  v_and_b32 v19, 7, v19
  v_add_u32 v21, v18, v19
  v_mul_lo_u32 v21, v21, s{S_T1}
  v_add_u32 v{V_XW[1]}, v21, v20
""")
    for r in range(3):
        a(f"""  s_lshl_b32 s{S_T0}, s{S_W}, 6
  s_add_u32 s{S_T0}, s{S_T0}, {256*r}
  v_add_u32 v16, s{S_T0}, v{V_LANE}
  v_and_b32 v18, 7, v16                        ; o
  v_lshrrev_b32 v19, 4, v16                    ; row
  v_bfe_u32 v20, v16, 3, 1                     ; u
  v_mul_u32_u24 v18, {OS}, v18
  v_and_b32 v21, 1, v19
  v_mul_u32_u24 v21, {PLANE}, v21
  v_lshrrev_b32 v19, 1, v19
  v_lshl_add_u32 v21, v19, 5, v21
  v_lshl_add_u32 v21, v20, 4, v21
  v_add_u32 v21, v21, v18
  v_add_u32 v{V_SW[r]}, {SB}, v21""")
        if r == 2:
            a(f"""  s_movk_i32 s{S_T0}, 608
  v_cmp_gt_u32 vcc, s{S_T0}, v16
  v_add_u32 v17, {SDUMMY}, v{R.V_L16}
  s_nop 1
  v_cndmask_b32 v{V_SW[r]}, v17, v{V_SW[r]}, vcc""")
    a(f"  s_waitcnt vmcnt({npf})")
    a(f"  s_mov_b32 s{S_PXP}, 0x80000000")
    a(f"{name}_tile:")
    a(f"  s_mov_b32 s{S_PXO}, s{S_PXN}")
    stamp(a)
    phase_c(a)
    stamp(a)
    if OPT['dumph']:
        for blk in range(2):
            for s in range(12):
                a(f"  buffer_store_dwordx4 {Hf(blk,s)}, v{V_PX[blk]}, s[52:55], s{S_PXO} offen offset:{32*s}")
        a("  s_waitcnt vmcnt(6)" if False else "  s_waitcnt vmcnt(0)")
    core = Core(a)
    tc = Asm()
    tc(f"  s_add_u32 s{S_I}, s{S_I}, 1")
    tile_coords(tc)
    tc(f"""  s_lshl_b32 s{S_T0}, s{S_TY}, 5
  s_sub_u32 s{S_T0}, s{S_T0}, 3
  s_max_i32 s{S_T0}, s{S_T0}, 0
  s_add_u32 s{S_T0}, s{S_T0}, s{S_W}
  s_lshl_b32 s{S_T0}, s{S_T0}, 9
  s_lshl_b32 s{S_T1}, s{S_TX}, 3
  s_sub_u32 s{S_T1}, s{S_T1}, 4
  s_max_i32 s{S_T1}, s{S_T1}, 0
  s_add_u32 s{S_T0}, s{S_T0}, s{S_T1}
  s_mul_i32 s{S_PF}, s{S_T0}, 384
  s_cmp_ge_u32 s{S_I}, 4
  s_cselect_b32 s{S_PF}, 0x80000000, s{S_PF}""")
    tcl = [(l, 4) for l in tc.L]
    ex0 = [(f"  v_min_u32 v{V_TMP}, 47, v{V_LANE}", 4), (f"  v_lshlrev_b32 v{V_TMP}, 7, v{V_TMP}", 4)]
    if OPT['w1late']:
        wl = Asm(); w_dma_block(wl, 1)
        ex0 = [(l, 10 if 'buffer' in l else 4) for l in wl.L] + ex0
    ex0 = ex0 + tcl[:-2] + [(tcl[-2][0] + "\n" + tcl[-1][0], 8)]
    core.extra[0] = ex0
    core.fast_flush = {0}
    core.vmwait[0] = 0
    core.vmwait[1] = 0
    stplan = {}; xplan = {}
    xg = OPT['xg']
    if xg == 4:
        for g in range(6):
            stplan[1 + 4 * g] = [4 * g + e for e in range(4)]
            xplan[2 + 4 * g] = [4 * g + e for e in range(4)]
    elif xg == 2:
        for g in range(12): stplan[1 + g] = [2 * g, 2 * g + 1]
        for g in range(12): xplan[[2, 4, 6, 8, 10, 12, 14, 16, 18, 20, 21, 22][g]] = [2 * g, 2 * g + 1]
    elif xg == 1:
        for g in range(12): stplan[1 + g] = [2 * g, 2 * g + 1]
        for q in range(24): xplan.setdefault(2 + (q * 21) // 24, []).append(q)
    for j in range(1, 24):
        ops = []; nv = 0
        for q in stplan.get(j, []):
            ops.append(([store_parked(q, S_PXP)], 6)); nv += 1
        for q in xplan.get(j, []):
            blk, sI = q // 12, q % 12
            ops.append(([f"  buffer_load_dwordx4 {Xf(blk,sI)}, v{V_PX[blk]}, s[{S_X}:{S_X+3}], s{S_PXO} offen offset:{32*sI}"], 6)); nv += 1
        if OPT['pf'] and j < 23:
            npf_ = 20 if OPT['pfh'] else 10
            step = OPT['pfs']; first = 23 - npf_ * step
            if j >= first and (j - first) % step == 0:
                idx = (j - first) // step
                t = [f"  s_mov_b32 m0, {PFSCR}", "  s_nop 0", f"  buffer_load_dword v{V_TMP}, s[{S_X}:{S_X+3}], s{S_PF} offen offset:{64 * (idx & 1) if OPT['pfh'] else 0} lds"]
                if (idx & 1) or not OPT['pfh']: t.append(f"  s_add_u32 s{S_PF}, s{S_PF}, {4*512*384}")
                ops.append((t, 14)); nv += 1
        core.pend_extra[j] = ops
        core.vmwait[j + 1] = nv
    core.extra[23] = []
    core.extra[24] = [(f"  v_add_u32 v56, {IDOFF}, v{R.V_L16}", 4), (f"  ds_read_b128 v[48:51], v56", 8), (f"  ds_read_b128 v[52:55], v56 offset:1024", 8)]
    ps = []
    for blk in range(2):
        for sI in range(12):
            ps.append((f"  v_mfma_f32_32x32x16_bf16 {ACC(blk,sI>>1)}, {vr(52 if sI&1 else 48,4)}, {Xf(blk,sI)}, {ACC(blk,sI>>1)}", []))
    core.pseudo[24] = ps
    core.extra_first.add(24)
    core.no_barrier.add(25)
    core.vmwait[24] = 0
    core.emit(0, 1); core.emit(1, 2)
    if OPT['prof'] >= 2:
        a(f"  v_mov_b32 v47, v{V_TMP}"); stamp(a); a(f"  v_mov_b32 v{V_TMP}, v47")
    for j in range(2, 24): core.emit(j, j + 1)
    if OPT['prof'] >= 2: stamp(a)
    core.emit(24, 25)
    if OPT['prof'] >= 2: stamp(a)
    emit_tail(a, core)
    stamp(a)
    a(f"""  s_cmp_ge_u32 s{S_I}, 4
  s_cbranch_scc1 {name}_last""")
    a("  s_barrier")
    table_dma(a, 0); table_dma(a, 1)
    a(f"  s_mov_b32 s{S_PXP}, s{S_PXO}")
    stamp(a)
    a(f"  s_branch {name}_tile")
    a(f"{name}_last:")
    a("  s_nop 15")
    epilogue(a)
    stamp(a)
    a("  s_waitcnt vmcnt(0)")
    stamp(a)
    a(f"""  s_waitcnt vmcnt(0)
{name}_done:
  s_endpgm
""")
    a(kdesc(name, 512, 100, 256))
def emit_loop(a, self, name):
    for j in range(2, 25): self.emit(j, j + 1)
def emit_tail(a, core):
    ch, Pf = core.plan(25, None)
    main = [l for c in ch for l in c]
    for tx, c in core.pending: main += tx
    core.pending = []
    f = []
    f += global_bases_lines(96)
    f += [x_load_line(0, 0, i) for i in range(8)]
    f += [x_load_line(0, 1, i) for i in range(8)]
    f += [x_load_line(0, 2, i) for i in range(8)]
    fi = 0
    nm = sum(1 for l in main if "v_mfma" in l); per = -(-len(f) // nm)
    for l in main:
        a(l)
        if "v_mfma" in l:
            for _ in range(per):
                if fi < len(f): a(f[fi]); fi += 1
    while fi < len(f): a(f[fi]); fi += 1
    vm.ops.clear(); vm.add(('x', 0, 0), 8); vm.add(('x', 0, 1), 8); vm.add(('x', 0, 2), 8)
```

```python
from asmlib import *
BLK = 24576
NBLK = 26
CFG = dict(D=3, NF=4, nogelu=0, nobar=0, nods=0, nodma=0, gelu='f32', dsc=12, dmac=14, gap=32, accinit=0)
class R:
    V_L16 = 5; V_L16B = 4
    T = 16
    G0 = [24, 28]
    G1 = [[32, 36], [40, 44]]
    S = [[48, 64], [80, 96]]
    WF0 = 144
    S_WS = 4
    S_NA = 25; S_S = 26; S_CNT = 27
    S_G = 22; S_G2 = 23
    S_M = [56, 57, 58, 59, 60, 61]
    S_NAH = 36; S_SH = 37; S_D = 85
    RING = 0
def ACC(blk, b):
    i = blk * 6 + b
    return f"v[{112+16*i}:{112+16*i+15}]" if i < 9 else f"a[{16*(i-9)}:{16*(i-9)+15}]"
def ACCreg(blk, b):
    i = blk * 6 + b
    return ('v', 112 + 16 * i) if i < 9 else ('a', 16 * (i - 9))
def Hf(blk, s): r = 48 + 48 * blk + 4 * s; return f"a[{r}:{r+3}]"
def WFr(k): r = R.WF0 + 4 * k; return f"a[{r}:{r+3}]"
def gelu_pair(x0, x1, t0, t1, g):
    if CFG['gelu'] == 'f32':
        return [
            (f"  v_fma_f32 v{t0}, -v{x0}, v{x0}, s{R.S_NA}", 4),
            (f"  v_fma_f32 v{t1}, -v{x1}, v{x1}, s{R.S_NA}", 4),
            (f"  v_mul_f32 v{t0}, v{t0}, v{x0}", 4),
            (f"  v_mul_f32 v{t1}, v{t1}, v{x1}", 4),
            (f"  v_exp_f32 v{t0}, v{t0}", 8),
            (f"  v_exp_f32 v{t1}, v{t1}", 8),
            (f"  v_fma_f32 v{t0}, v{t0}, s{R.S_D}, s{R.S_D}", 4),
            (f"  v_fma_f32 v{t1}, v{t1}, s{R.S_D}, s{R.S_D}", 4),
            (f"  v_rcp_f32 v{t0}, v{t0}", 8),
            (f"  v_rcp_f32 v{t1}, v{t1}", 8),
            (f"  v_mul_f32 v{t0}, v{x0}, v{t0}", 4),
            (f"  v_mul_f32 v{t1}, v{x1}, v{t1}", 4),
            (f"  v_cvt_pk_bf16_f32 v{g}, v{t0}, v{t1}", 4),
        ]
    else:
        return [
            (f"  v_cvt_pk_f16_f32 v{t0}, v{x0}, v{x1}", 4),
            (f"  v_pk_fma_f16 v{t1}, v{t0}, v{t0}, s{R.S_NAH} neg_lo:[1,0,0] neg_hi:[1,0,0]", 4),
            (f"  v_pk_mul_f16 v{t1}, v{t1}, v{t0}", 4),
            (f"  v_exp_f16_sdwa v{t0}, v{t1} dst_sel:WORD_0 dst_unused:UNUSED_PRESERVE src0_sel:WORD_0", 8),
            (f"  v_exp_f16_sdwa v{t0}, v{t1} dst_sel:WORD_1 dst_unused:UNUSED_PRESERVE src0_sel:WORD_1", 8),
            (f"  v_pk_fma_f16 v{t0}, v{t0}, s{R.S_SH}, s{R.S_SH}", 4),
            (f"  v_rcp_f16_sdwa v{t1}, v{t0} dst_sel:WORD_0 dst_unused:UNUSED_PRESERVE src0_sel:WORD_0", 8),
            (f"  v_rcp_f16_sdwa v{t1}, v{t0} dst_sel:WORD_1 dst_unused:UNUSED_PRESERVE src0_sel:WORD_1", 8),
            (f"  v_fma_mix_f32 v{t0}, v{x0}, v{t1}, 0 op_sel_hi:[0,1,0]", 4),
            (f"  v_fma_mix_f32 v{t1}, v{x1}, v{t1}, 0 op_sel:[0,1,0] op_sel_hi:[0,1,0]", 4),
            (f"  v_cvt_pk_bf16_f32 v{g}, v{t0}, v{t1}", 4),
        ]
def gelu_chains(buf, els, Gdst):
    out = []
    for pi in range(0, len(els), 2):
        for blk in range(2):
            Sr = R.S[buf][blk]
            slot = (len(out)) % 4
            t0 = R.T + 2 * slot
            ops = gelu_pair(Sr + els[pi], Sr + els[pi + 1], t0, t0 + 1, Gdst[blk] + pi // 2)
            if CFG['gelu'] == 'f32':
                deps = [[], [], [0], [1], [2], [3], [4], [5], [6], [7], [8], [9], [10, 11]]
            else:
                deps = [[], [0], [1], [2], [2, 3], [4], [5], [5, 6], [7], [7, 8], [8, 9]]
            out.append([(t, c, d) for (t, c), d in zip(ops, deps)])
    return out
class Chains:
    def __init__(self, chains):
        self.ch = chains; self.done = [[None] * len(c) for c in chains]; self.n = 0
        self.first = 0
    def remaining(self):
        return sum(c for ci, ch in enumerate(self.ch) for oi, (t, c, d) in enumerate(ch) if self.done[ci][oi] is None)
    def chain_done(self, ci): return all(x is not None for x in self.done[ci])
    def ready(self):
        r = []
        while self.first < len(self.ch) and self.chain_done(self.first): self.first += 1
        for ci in range(self.first, min(len(self.ch), self.first + 4)):
            for oi, (t, c, d) in enumerate(self.ch[ci]):
                if self.done[ci][oi] is not None: continue
                if all(self.done[ci][x] is not None and self.n - self.done[ci][x] >= 2 for x in d):
                    r.append((ci, oi, c))
        return r
    def take(self, ci, oi):
        self.done[ci][oi] = self.n; self.n += 1
        return self.ch[ci][oi][0], self.ch[ci][oi][1]
    def tick(self): self.n += 1
    def upto_done(self, k): return all(self.chain_done(c) for c in range(min(k, len(self.ch))))
def iter_frags(j):
    L = []
    if j < 24:
        for s in range(12):
            mk = []
            for blk in range(2):
                Sd = vr(R.S[j & 1][blk], 16); c = "0" if s == 0 else Sd
                mk.append(lambda wf, Sd=Sd, c=c, h=Hf(blk, s): f"  v_mfma_f32_32x32x16_bf16 {Sd}, {wf}, {h}, {c}")
            L.append((s, 1, mk))
    if 2 <= j <= 25:
        for b in range(6):
            mk = [(lambda wf, ac=ACC(blk, b), g=vr(R.G1[(j - 2) & 1][blk], 4): f"  v_mfma_f32_32x32x16_bf16 {ac}, {wf}, {g}, {ac}") for blk in range(2)]
            L.append((12 + b, 2, mk))
    if 1 <= j <= 24:
        for b in range(6):
            mk = [(lambda wf, ac=ACC(blk, b), g=vr(R.G0[blk], 4), c0=(j == 1 and CFG['accinit']): f"  v_mfma_f32_32x32x16_bf16 {ac}, {wf}, {g}, {'0' if c0 else ac}") for blk in range(2)]
            L.append((18 + b, 3, mk))
    return L
def ds_text(kb, j, fidx):
    off = R.RING + (j % 3) * BLK + fidx * 1024
    if off + 0 <= 65535 - 0 and (j % 3) < 2:
        return f"  ds_read_b128 {WFr(kb)}, v{R.V_L16} offset:{off}"
    return f"  ds_read_b128 {WFr(kb)}, v{R.V_L16B} offset:{off - (R.RING + 2*BLK)}"
def dma_ops(jb):
    if jb >= NBLK: return []
    s = jb % 3
    def dma(off, sg):
        return "  s_nop 0" if CFG['nodma'] else f"  buffer_load_dwordx4 v{R.V_L16}, s[{R.S_WS}:{R.S_WS+3}], s{sg} offen offset:{off} lds"
    c = CFG['dmac'] - 8
    return [
        ([f"  s_mov_b32 m0, s{R.S_M[2*s]}", "  s_nop 0", dma(0, R.S_G)], c + 8),
        ([dma(1024, R.S_G)], c), ([dma(2048, R.S_G)], c), ([dma(3072, R.S_G)], c),
        ([f"  s_mov_b32 m0, s{R.S_M[2*s+1]}", f"  s_add_u32 s{R.S_G}, s{R.S_G}, {BLK}", dma(0, R.S_G2)], c + 8),
        ([dma(1024, R.S_G2)], c),
        ([f"  s_add_u32 s{R.S_G2}, s{R.S_G2}, {BLK}"], 0),
    ]
class Core:
    def __init__(self, a):
        self.a = a; self.k = 0; self.pending = []
        self.over = 0
        self.no_barrier = set()
        self.extra_first = set()
        self.pseudo = {}
        self.fast_flush = set()
        self.pend_extra = {}
        self.vmwait = {}
        self.extra = {}
    def plan(self, j, jn):
        D = CFG['D']; NF = CFG['NF']
        F = iter_frags(j); Fn = iter_frags(jn) if jn is not None else []
        nf = len(F); n = 2 * nf
        Pf = max(0, nf - D)
        chains = []
        nva = 0
        if 1 <= j <= 24 and not CFG['nogelu']:
            buf = (j - 1) & 1
            va = gelu_chains(buf, list(range(0, 8)), R.G0); vb = gelu_chains(buf, list(range(8, 16)), R.G1[buf])
            chains = va + vb; nva = len(va)
        slots = []
        pend = list(self.pending)
        sync_at = None
        for fi in range(nf):
            t = fi + D
            pre = []
            if fi == Pf:
                for tx, c in pend: pre += tx
                pend = []
                if not CFG['nobar'] and j not in self.no_barrier: pre += [f"  s_waitcnt vmcnt({self.vmwait.get(j, 0)})", "  s_barrier"]
                pend = dma_ops(j + 2) + list(self.pend_extra.get(j, []))
            rd = []
            if not CFG['nods']:
                if t < nf: rd = [ds_text((self.k + t) % NF, j, F[t][0])]
                elif jn is not None: rd = [ds_text((self.k + t) % NF, j + 1, Fn[t - nf][0])]
            slots.append((pre, rd, CFG['dsc'] if rd else 8))
            if not CFG['nods'] and fi % 2 == 1:
                if len(pend) > self.over:
                    tx, c = pend.pop(0)
                    slots.append(([], [f"  s_waitcnt lgkmcnt({D-2})"] + list(tx), 12 + c))
                else:
                    slots.append(([], [f"  s_waitcnt lgkmcnt({D-2})"], 8))
            elif pend:
                tx, c = pend.pop(0)
                tx = list(tx)
                if j in self.fast_flush and fi >= Pf:
                    while pend:
                        t2, c2 = pend.pop(0); tx += t2; c += c2 + 4
                slots.append(([], tx, 8 + c))
            else:
                slots.append(([], [], 8))
        self.pending = pend
        ex = list(self.extra.get(j, []))
        gi = 0
        while ex:
            per = -(-len(ex) // max(1, (2 * Pf - gi))) if j not in self.extra_first else len(ex)
            pre_, tx_, c_ = slots[gi]
            add_ = ex[:per]; ex = ex[per:]
            slots[gi] = (pre_, list(tx_) + [t for t, _ in add_], c_ + sum(c for _, c in add_))
            gi += 1
        mtext = []; mslots = []; mgrp = []; fragend = []
        ps = list(self.pseudo.get(j, []))
        cnts = [0] * nf
        if ps:
            for q in range(len(ps)): cnts[2 + (q * (nf - 2)) // len(ps)] += 1
        for fi, (fidx, grp, mk) in enumerate(F):
            kb = (self.k + fi) % NF
            mtext.append(mk[0](WFr(kb))); mslots.append(slots[2 * fi]); mgrp.append(grp)
            mtext.append(mk[1](WFr(kb))); mslots.append(slots[2 * fi + 1]); mgrp.append(grp)
            for _ in range(cnts[fi]):
                if ps:
                    t_, pre_ = ps.pop(0)
                    mtext.append(t_); mslots.append((pre_, [], 8)); mgrp.append(0)
            fragend.append(len(mtext))
        assert not ps
        n = len(mtext); slots = mslots
        G = CFG['gap']
        base = [slots[i][2] for i in range(n)]
        for i in range(1, n): base[i - 1] += 4 * len(slots[i][0])
        sched = [[] for _ in range(n)]
        CH = Chains(chains)
        first3 = next((i for i in range(n) if mgrp[i] == 3), None)
        carry = 0.0
        for i in range(n):
            tcur = base[i]
            CH.tick()
            cap = sum(max(0, G - base[q]) for q in range(i, n))
            excess = CH.remaining() - cap
            if excess > 0: carry += excess * 1.0 / (n - i)
            while True:
                rdy = CH.ready()
                if not rdy:
                    if CH.remaining() > 0 and (i == n - 1 or (first3 is not None and i >= first3 - 2 and not CH.upto_done(nva))):
                        sched[i].append(("  s_nop 0", 4)); CH.tick(); tcur += 4; continue
                    break
                must = i == n - 1 or (first3 is not None and i >= first3 - 2 and not CH.upto_done(nva))
                need = G - tcur
                pick = None
                fit = [r for r in rdy if r[2] <= need]
                if fit:
                    pick = fit[0]
                    if need == 8:
                        ex = [r for r in fit if r[2] == 8]
                        pl = [r for r in rdy if r[2] == 4]
                        if ex and len(pl) < 2: pick = ex[0]
                elif must:
                    pick = rdy[0]
                else:
                    over = [(r, tcur + r[2] - max(G, tcur)) for r in rdy]
                    over.sort(key=lambda x: x[1])
                    if need > 0 and excess > 0:
                        pick = over[0][0]; carry -= over[0][1]
                    elif over[0][1] <= carry:
                        pick = over[0][0]; carry -= over[0][1]
                if pick is None: break
                tx, c = CH.take(pick[0], pick[1])
                sched[i].append((tx, c)); tcur += c
        assert CH.remaining() == 0
        chunks = []
        m0 = 0
        for fi in range(nf):
            L = []
            for m in range(m0, fragend[fi]):
                L += slots[m][0]
                if j == 24 and m == first3: L.append("  s_nop 1")
                L.append(mtext[m]); L += slots[m][1]
                L += [t for t, _ in sched[m]]
            m0 = fragend[fi]
            chunks.append(L)
        self.k = (self.k + nf) % NF
        return chunks, Pf
    def emit(self, j, jn):
        ch, Pf = self.plan(j, jn)
        if j == 1: self.a("  s_nop 11")
        for L in ch:
            for t in L: self.a(t)
    def emit_tile(self, name):
        a = self.a
        self.emit(0, 1); self.emit(1, 2)
        a(f"  s_mov_b32 s{R.S_CNT}, 4")
        k0 = self.k; p0 = list(self.pending)
        a(".p2align 6")
        a(f"{name}_loop:")
        a(f"  s_sub_u32 s{R.S_CNT}, s{R.S_CNT}, 1")
        self.emit(2, 3); self.emit(3, 4); self.emit(4, 5)
        ks = self.k; ps = list(self.pending)
        ch, Pf = self.plan(5, 6)
        for L in ch[:Pf]:
            for t in L: a(t)
        a(f"  s_cmp_eq_u32 s{R.S_CNT}, 0")
        a(f"  s_cbranch_scc1 {name}_exit")
        for L in ch[Pf:]:
            for t in L: a(t)
        self.emit(6, 7); self.emit(7, 8)
        assert self.k == k0 and self.pending == p0, (self.k, k0)
        a(f"  s_branch {name}_loop")
        a(f"{name}_exit:")
        self.k = ks; self.pending = ps
        ch, Pf = self.plan(23, 24)
        for L in ch[Pf:]:
            for t in L: a(t)
        self.emit(24, 25); self.emit(25, None)
        for tx, c in self.pending:
            for t in tx: a(t)
        self.pending = []
```

```python
from asmlib import *
import mlpcore as C
from mlpcore import R, ACC, ACCreg, Hf, WFr, Core, BLK, NBLK, CFG
from k_prep2 import TBL_OFF, TBL_BYTES
import numpy as np
TB = [0, 17408]
OS = 9744; CS = 1216; PLANE = 608
SB = 34816
SDUMMY = SB + 8 * OS
XCH = 49152; XPS = 416
STATS = 24576
IDOFF = 159872
PFSCR = IDOFF + 2048
LDS_BYTES = PFSCR + 256
assert SDUMMY + 1024 + 7 * CS + 16 <= IDOFF and XCH + 106736 <= IDOFF and LDS_BYTES <= 163840
V_LANE = 0
V_SW = [1, 2, 9]
V_TMP = 3
V_PX = [6, 7]
V_B = 8
V_T = 10
V_IDX = 11
V_XW = [12, 13]
V_XR = [14, 15]
V_GA = [24, 26, 30]; V_GB = [25, 27, 31]
AF = [32, 40]
XR = [48, 80]
XA2 = 96
PT = [32, 40]
def Darch(k, i):
    idx = 16 * k + i
    return 112 + 4 * idx if idx < 36 else 48 + 4 * (idx - 36)
def Dreg(k, i): return ('v', Darch(k, i))
BF = [48, 64, 80]
PARK = 160
S_ST = [78, 79, 80, 81]
def Xf(blk, s):
    r = 160 + 48 * blk + 4 * s; return f"a[{r}:{r+3}]"
S_X = 8; S_OUT = 12; S_TB = 16
S_W = 20; S_I = 21; S_T0 = 28; S_T1 = 29; S_PXO = 30; S_PXN = 31; S_G0 = 32; S_LO = 33; S_HI = 34
S_TX = 64; S_TY = 65; S_TM = 66; S_TG = 67; S_EPS = 68; S_INV = 69
NPX = 512 * 512
STAMP_OFF = 300 << 20
H_OFF = 1 << 20
OPT = dict(dumph=0, prof=0, pf=1, st=3, sbud=70, cbud=20, stc=20, nhi=2, stnt=0, xnt=0, pfn=1, nox=0, nopark=0, sst=11, spf=0, nhs=2, st3=1, hprog=1, samex=0, pfh=0, pfs=1, w1late=0, xg=2, pff=2, xf=0, bias=0)
COLS = [0, 1, 8, 9, 2, 3, 10, 11]
S_PXP = 74
S_PF = 75
V_PFA = 3
class VM:
    def __init__(self): self.ops = []
    def add(self, tag, n=1): self.ops += [tag] * n
    def after(self, tag):
        i = max(k for k, t in enumerate(self.ops) if t == tag)
        return len(self.ops) - 1 - i
vm = VM()
def stamp(a):
    if not OPT['prof']: return
    a(f"""  s_memtime s[42:43]
  s_memrealtime s[62:63]
  s_waitcnt lgkmcnt(0)
  v_mov_b32 v{V_TMP}, s42
  s_nop 0
  buffer_store_dword v{V_TMP}, off, s[44:47], s40
  s_nop 1
  v_mov_b32 v{V_TMP}, s62
  s_nop 0
  buffer_store_dword v{V_TMP}, off, s[44:47], s40 offset:256
  s_add_u32 s40, s40, 4""")
def tile_coords(a):
    a(f"""  s_and_b32 s{S_T0}, s2, 7
  s_lshl_b32 s{S_T0}, s{S_T0}, 3
  s_lshr_b32 s{S_T1}, s2, 3
  s_and_b32 s{S_TX}, s{S_T1}, 7
  s_add_u32 s{S_TX}, s{S_TX}, s{S_T0}
  s_lshr_b32 s{S_T1}, s{S_T1}, 3
  s_lshl_b32 s{S_TY}, s{S_I}, 2
  s_add_u32 s{S_TY}, s{S_TY}, s{S_T1}          ; ty = 4*i + (c>>3)
  s_lshl_b32 s{S_T0}, s{S_TY}, 14              ; y0*512 = ty*32*512
  s_lshl_b32 s{S_T1}, s{S_TX}, 3
  s_add_u32 s{S_T0}, s{S_T0}, s{S_T1}
  s_mul_i32 s{S_PXN}, s{S_T0}, 384""")
def global_bases_lines(t):
    L = []
    if OPT['samex']: L += [f"  s_mov_b32 s{S_TX}, 5", f"  s_mov_b32 s{S_TY}, 5"]
    L += f"""  s_lshl_b32 s88, s{S_TY}, 5
  s_sub_u32 s88, s88, 3
  s_lshl_b32 s89, s{S_TX}, 3
  s_sub_u32 s89, s89, 4
  s_lshl_b32 s90, s{S_W}, 2
  s_add_u32 s88, s88, s90
  s_movk_i32 s90, 384
  s_movk_i32 s91, 512
  v_lshrrev_b32 v{t}, 4, v{V_LANE}
  v_bfe_u32 v{t+1}, v{V_LANE}, 3, 1
  v_and_b32 v{t+2}, 7, v{V_LANE}
  v_lshl_add_u32 v{t+1}, v{t+1}, 2, s89
  v_add_u32 v{t}, s88, v{t}
  v_add_u32 v{t+3}, 8, v{t+1}
  v_cmp_gt_u32 s[70:71], s91, v{t+1}
  v_cmp_gt_u32 s[72:73], s91, v{t+3}
  v_lshl_add_u32 v{t+3}, v{t}, 9, v{t+1}
  v_mul_lo_u32 v{t+3}, v{t+3}, s90
  v_lshl_add_u32 v{t+3}, v{t+2}, 4, v{t+3}
  v_mov_b32 v{t+4}, 0x80000000""".split("\n")
    for r in range(3):
        if r > 0:
            L += [f"  v_add_u32 v{t}, 16, v{t}", f"  v_add_u32 v{t+3}, {16*512*384}, v{t+3}"]
        L += [f"  v_cmp_gt_u32 vcc, s91, v{t}"]
        if r == 2:
            L += [f"  v_lshrrev_b32 v{t+5}, 4, v{V_LANE}", f"  s_lshl_b32 s86, s{S_W}, 2", f"  v_add_u32 v{t+5}, s86, v{t+5}",
                  f"  v_cmp_gt_u32 s[86:87], 6, v{t+5}", "  s_nop 0", "  s_and_b64 vcc, vcc, s[86:87]"]
        L += [f"  v_add_u32 v{t+6}, {8*384}, v{t+3}",
              "  s_and_b64 s[92:93], s[70:71], vcc",
              "  s_and_b64 s[94:95], s[72:73], vcc",
              "  s_nop 1",
              f"  v_cndmask_b32 v{V_GA[r]}, v{t+4}, v{t+3}, s[92:93]",
              f"  v_cndmask_b32 v{V_GB[r]}, v{t+4}, v{t+6}, s[94:95]"]
    return L
def global_bases(a, t=128):
    for l in global_bases_lines(t): a(l)
def x_load_line(k, r, i):
    col = COLS[i]
    base = V_GA[r] if col < 8 else V_GB[r]
    off = (col & 7) * 384 + k * 128
    dst = vr(XR[r] + 4 * i, 4) if r < 2 else f"a[{XA2+4*i}:{XA2+4*i+3}]"
    return f"  buffer_load_dwordx4 {dst}, v{base}, s[{S_X}:{S_X+3}], 0 offen offset:{off}"
class Fill:
    def __init__(self, a): self.a = a; self.hi = []; self.lo = []
    def push(self, lines, cost, tag=None, hi=False): (self.hi if hi else self.lo).append((lines, cost, tag))
    def emit1(self, g):
        for l in g[0]: self.a(l)
        if g[2] is not None: vm.add(g[2])
    def pop(self, budget, nhi=1):
        n = 0
        while self.hi and n < nhi:
            g = self.hi.pop(0); self.emit1(g); budget -= g[1]; n += 1
        while self.lo and budget >= self.lo[0][1] * 0.6:
            g = self.lo.pop(0); self.emit1(g); budget -= g[1]
    def flush(self, hi=True, lo=True, n=None):
        if hi:
            while self.hi: self.emit1(self.hi.pop(0))
        if lo:
            c = 0
            while self.lo and (n is None or c < n): self.emit1(self.lo.pop(0)); c += 1
def x_loads(a, k, r):
    for i in range(8): a(x_load_line(k, r, i))
    vm.add(('x', k, r), 8)
def stage_round(a, k, r, hook=None):
    src = XR[r] if r < 2 else XR[0]
    if r == 2:
        for e in range(32): a(f"  v_accvgpr_read_b32 v{XR[0]+e}, a{XA2+e}")
    for d in range(4):
        if hook: hook(d)
        T = PT[d & 1]
        for p in range(4):
            x0 = src + 4 * (2 * p) + d; x1 = src + 4 * (2 * p + 1) + d
            a(f"  v_perm_b32 v{T+p}, v{x1}, v{x0}, s{S_LO}")
        for p in range(4):
            x0 = src + 4 * (2 * p) + d; x1 = src + 4 * (2 * p + 1) + d
            a(f"  v_perm_b32 v{T+4+p}, v{x1}, v{x0}, s{S_HI}")
        a(f"  ds_write_b128 v{V_SW[r]}, {vr(T,4)} offset:{(2*d)*CS}")
        a(f"  ds_write_b128 v{V_SW[r]}, {vr(T+4,4)} offset:{(2*d+1)*CS}")
def table_dma(a, k):
    a(f"""  s_lshl_b32 s{S_TM}, s{S_W}, 12
  s_add_u32 s{S_TG}, s{S_TM}, {k*16384}
  s_add_u32 m0, s{S_TM}, {TB[k&1]}
  s_nop 0""")
    for q in range(4):
        a(f"  buffer_load_dwordx4 v{R.V_L16}, s[{S_TB}:{S_TB+3}], s{S_TG} offen offset:{1024*q} lds")
    a(f"""  s_mov_b32 m0, {TB[k&1] + 16384}
  s_mov_b32 s{S_TG}, {(k+1)*16384}
  buffer_load_dwordx4 v{R.V_L16}, s[{S_TB}:{S_TB+3}], s{S_TG} offen lds""")
    vm.add(('t', k), 5)
NCH = 16
def conv_chunk(a, k, hook=None):
    def chan_off(i): j, e = i >> 3, i & 7; return j * OS + e * CS
    def tab_off(i): j, e = i >> 3, i & 7; return TB[k & 1] + j * 2048 + e * 256
    def rdA(i):
        A = AF[i & 1]
        return [f"  ds_read_b32 v{A}, v{V_T} offset:{tab_off(i)}", f"  ds_read_b32 v{A+4}, v{V_T} offset:{tab_off(i)+128}"]
    def rdB(i):
        B = BF[i % 3]
        return [f"  ds_read_b128 a[{B+4*q}:{B+4*q+3}], v{V_B} offset:{chan_off(i)+32*q}" for q in range(4)]
    for t in rdA(0) + rdB(0) + rdB(1): a(t)
    for i in range(NCH):
        A = AF[i & 1]; B = BF[i % 3]
        kind, D = Dreg(k, i)
        Dt = f"{kind}[{D}:{D+3}]"
        nxtA = rdA(i + 1) if i + 1 < NCH else []
        nxtB = rdB(i + 2) if i + 2 < NCH else []
        a(f"  s_waitcnt lgkmcnt({4 if i + 1 < NCH else 0})")
        for t in nxtA: a(t)
        for h in range(2):
            for g in range(3):
                a(f"  v_mov_b32_dpp v{A+4*h+1+g}, v{A+4*h} row_ror:{4*(g+1)} row_mask:0xf bank_mask:0xf")
            rb = nxtB[2*h:2*h+2]
            for t in rb: a(t)
            if len(rb) < 2: a("  s_nop 1")
            a(f"  v_smfmac_f32_16x16x64_bf16 {Dt}, {vr(A+4*h,4)}, a[{B+8*h}:{B+8*h+7}], v{V_IDX}")
        if hook: hook(i)
def zero_D(a, k):
    L = [f"  v_mov_b32 v{r}, 0" for r in range(44, 48)] + ["  s_nop 1"]
    for q in range(4):
        base = Darch(k, 4 * q)
        L.append(f"  v_mfma_f32_32x32x16_bf16 v[{base}:{base+15}], v[44:47], v[44:47], 0")
    for l in L: a(l)
def stats_lines(k, i):
    D = Darch(k, i)
    return [f"  v_pk_add_f32 v[16:17], v[16:17], v[{D}:{D+1}]", f"  v_pk_add_f32 v[18:19], v[18:19], v[{D+2}:{D+3}]",
            f"  v_pk_fma_f32 v[20:21], v[{D}:{D+1}], v[{D}:{D+1}], v[20:21]", f"  v_pk_fma_f32 v[22:23], v[{D+2}:{D+3}], v[{D+2}:{D+3}], v[22:23]"]
def move_lines(k, i):
    D = Darch(k, i); A = Dreg(k, i)[1]
    return [f"  v_accvgpr_read_b32 v{D+e}, a{A+e}" for e in range(4)]
def ln_phase(a, wdma, done3):
    a("  s_nop 7")
    for i in range(done3, NCH):
        for l in stats_lines(2, i): a(l)
    a(f"""  s_lshl_b32 s{S_T0}, s{S_W}, 11
  s_add_u32 s{S_T0}, s{S_T0}, {STATS}
  v_add_u32 v24, s{S_T0}, v{R.V_L16}
  v_add_u32 v25, {STATS}, v{R.V_L16}
  ds_write_b128 v24, v[16:19]
  ds_write_b128 v24, v[20:23] offset:1024
  s_waitcnt lgkmcnt(0)
  s_barrier""")
    for w in range(4):
        a(f"  ds_read_b128 v[{96+4*w}:{99+4*w}], v25 offset:{2048*w}")
    for w in range(4):
        a(f"  ds_read_b128 v[{28+4*w}:{31+4*w}], v25 offset:{2048*w+1024}")
    wl = Asm(); wdma(wl); wl = [l for l in wl.L]
    for l in wl[:8]: a(l)
    wl = wl[8:]
    a("  s_waitcnt lgkmcnt(4)")
    a("""  v_pk_add_f32 v[96:97], v[96:97], v[100:101]
  v_pk_add_f32 v[98:99], v[98:99], v[102:103]
  v_pk_add_f32 v[104:105], v[104:105], v[108:109]
  v_pk_add_f32 v[106:107], v[106:107], v[110:111]
  v_pk_add_f32 v[96:97], v[96:97], v[104:105]
  v_pk_add_f32 v[98:99], v[98:99], v[106:107]
  s_waitcnt lgkmcnt(0)
  v_pk_add_f32 v[28:29], v[28:29], v[32:33]
  v_pk_add_f32 v[30:31], v[30:31], v[34:35]
  v_pk_add_f32 v[36:37], v[36:37], v[40:41]
  v_pk_add_f32 v[38:39], v[38:39], v[42:43]
  v_pk_add_f32 v[28:29], v[28:29], v[36:37]
  v_pk_add_f32 v[30:31], v[30:31], v[38:39]""")
    for r in range(4):
        a(f"  v_mul_f32 v{16+r}, s{S_INV}, v{96+r}")
    for r in range(4):
        a(f"  v_mul_f32 v{28+r}, s{S_INV}, v{28+r}")
    for r in range(4):
        a(f"  v_fma_f32 v{28+r}, -v{16+r}, v{16+r}, v{28+r}")
    for r in range(4):
        a(f"  v_max_f32 v{28+r}, 0, v{28+r}")
    for r in range(4):
        a(f"  v_add_f32 v{28+r}, s{S_EPS}, v{28+r}")
    for r in range(4):
        a(f"  v_rsq_f32 v{20+r}, v{28+r}")
    a("  s_nop 0")
    for r in range(4):
        a(f"  v_mul_f32 v{20+r}, s{R.S_S}, v{20+r}")
    for r in range(4):
        a(f"  v_mul_f32 v{24+r}, -v{16+r}, v{20+r}" .replace("v_mul_f32 v", "v_mul_f32_e64 v"))
    cnt = 0
    for k in range(3):
        for j in range(2):
            Ds = [Darch(k, 8 * j + e) for e in range(8)]
            for D in Ds:
                a(f"  v_pk_fma_f32 v[{D}:{D+1}], v[{D}:{D+1}], v[20:21], v[24:25]")
                a(f"  v_pk_fma_f32 v[{D+2}:{D+3}], v[{D+2}:{D+3}], v[22:23], v[26:27]")
            for r in range(4):
                T = 32 + 4 * (cnt % 4); cnt += 1
                for e in range(4):
                    a(f"  v_cvt_pk_bf16_f32 v{T+e}, v{Ds[2*e]+r}, v{Ds[2*e+1]+r}")
                a(f"  ds_write_b128 v{V_XW[r>>1]}, v[{T}:{T+3}] offset:{(r&1)*8*XPS + 128*k + 16*j}")
                n = 0
                while wl and n < 1:
                    l = wl.pop(0); a(l); n += 1
                    while wl and l.startswith("  s_"): l = wl.pop(0); a(l)
    for l in wl: a(l)
def w_dma_block(a, blk):
    S_G0 = 32
    for half, cnt in ((0, 4), (1, 2)):
        a(f"  s_add_u32 s{R.S_G}, s{S_G0}, {blk*BLK + 4096*half}\n  s_mov_b32 m0, s{R.S_M[2*blk+half]}\n  s_nop 0")
        for p in range(cnt):
            a(f"  buffer_load_dwordx4 v{R.V_L16}, s[{R.S_WS}:{R.S_WS+3}], s{R.S_G} offen offset:{1024*p} lds")
    if blk == 1: a(f"  s_add_u32 s{R.S_G}, s{S_G0}, {2*BLK}\n  s_add_u32 s{R.S_G2}, s{S_G0}, {2*BLK+4096}")
def phase_c(a):
    F = Fill(a)
    for g in range(24):
        L, c = park_group(g); F.push(L if not OPT['nopark'] else ["  s_nop 0 ; cvt"] * 8, c)
    need_by = [8, 16, 24]
    for k in range(3):
        for r in range(3):
            if r == 0: F.flush(hi=True, lo=False)
            a(f"  s_waitcnt vmcnt({vm.after(('x', k, r))})")
            stage_round(a, k, r, lambda d: F.pop(OPT['sbud'], OPT['nhs'] if r == 2 else 0))
            if k < 2 and OPT['nox']:
                vm.add(('x', k + 1, r))
            if k < 2 and not OPT['nox']:
                if r == 1:
                    for i in range(8): F.push([x_load_line(k + 1, 1, i)], 12, ('x', k + 1, 1), hi=True)
                if r == 2:
                    F.hi = [([x_load_line(k + 1, 0, i)], 12, ('x', k + 1, 0)) for i in range(8)] + F.hi
                    for i in range(8): F.push([x_load_line(k + 1, 2, i)], 12, ('x', k + 1, 2), hi=True)
        parked = 24 - sum(1 for g in F.lo if 'cvt' in ''.join(g[0]))
        need = need_by[k] - parked
        while need > 0:
            g = F.lo.pop(0); F.emit1(g)
            if 'cvt' in ''.join(g[0]): need -= 1
        zero_D(a, k)
        a(f"  s_waitcnt vmcnt({vm.after(('t', k))}) lgkmcnt(0)")
        a("  s_barrier")
        if k == 1: table_dma(a, 2)
        if k == 1:
            F.flush(hi=False, lo=True)
            F.push([f"  v_mov_b32 v{r}, 0" for r in range(16, 24)], 32)
            for i in range(NCH): F.push(stats_lines(0, i), OPT['stc'])
        if k == 2:
            for i in range(NCH): F.push(stats_lines(1, i), OPT['stc'])
        stamp(a)
        def hook(i, k=k):
            if k == 2 and i >= 3 and OPT['st3']:
                for l in stats_lines(2, i - 3): a(l)
            F.pop(OPT['cbud'], OPT['nhi'])
        conv_chunk(a, k, hook)
        if k < 2: a("  s_barrier")
        stamp(a)
    F.flush()
    ln_phase(a, lambda x: w_dma_block(x, 0), NCH - 3 if OPT['st3'] else 0)
    a("  s_waitcnt vmcnt(0) lgkmcnt(0)\n  s_barrier")
    if not OPT['w1late']: w_dma_block(a, 1)
    for i in range(CFG['D']): a(C.ds_text(i, 0, i))
    for s in range(12):
        for blk in range(2):
            a(f"  ds_read_b128 {Hf(blk,s)}, v{V_XR[blk]} offset:{32*s}")
    a(f"  s_waitcnt lgkmcnt({15 if OPT['hprog'] else 0})")
EPI_ORDER = [(0, s_) for s_ in range(12)] + [(1, s_) for s_ in range(12)]
def quad(blk, sI): return PARK + 4 * (blk * 12 + sI)
def epi_cvt(blk, sI, p, bounce):
    b = sI >> 1
    kind, r0 = ACCreg(blk, b); r0 += 8 * (sI & 1)
    L = []
    if kind == 'a':
        for e in range(8): L.append(f"  v_accvgpr_read_b32 v{bounce+e}, a{r0+e}")
        r0 = bounce
    L += [f"  v_cvt_pk_bf16_f32 v{p}, v{r0}, v{r0+1}", f"  v_cvt_pk_bf16_f32 v{p+1}, v{r0+2}, v{r0+3}",
          f"  v_cvt_pk_bf16_f32 v{p+2}, v{r0+4}, v{r0+5}", f"  v_cvt_pk_bf16_f32 v{p+3}, v{r0+6}, v{r0+7}"]
    return L
def park_group(g):
    blk, sI = EPI_ORDER[g]
    kind, _ = ACCreg(blk, sI >> 1)
    p = 16 if kind == 'a' else 16 + 4 * (g & 1)
    L = epi_cvt(blk, sI, p, 16)
    q = quad(blk, sI)
    L += [f"  v_accvgpr_write_b32 a{q+e}, v{p+e}" for e in range(4)]
    return L, (32 + (32 if kind == 'a' else 0))
def store_parked(i, spx):
    blk, sI = i // 12, i % 12
    q = quad(blk, sI)
    return f"  buffer_store_dwordx4 a[{q}:{q+3}], v{V_PX[blk]}, s[{S_OUT}:{S_OUT+3}], s{spx} offen offset:{32*sI}{['', ' nt', ' sc1', ' sc0 sc1'][OPT['stnt']]}"
class Epi:
    def __init__(self, a): self.a = a; self.g = 0
    def emit(self, n=1):
        pass
def epilogue(a):
    for g in range(24):
        blk, sI = g // 12, g % 12
        p = 16 + 4 * (g & 1)
        for t in epi_cvt(blk, sI, p, 40): a(t)
        a(f"  buffer_store_dwordx4 {vr(p,4)}, v{V_PX[blk]}, s[{S_OUT}:{S_OUT+3}], s{S_PXO} offen offset:{32*sI}")
def gen_fused(a, name="fused_kernel", nwg=256):
    CFG['accinit'] = 1
    a(kstart(name))
    h16 = lambda x: int(np.float16(x).view(np.uint16))
    a(f"""
  s_cmp_ge_u32 s2, {nwg}
  s_cbranch_scc1 {name}_done
  s_load_dwordx2 s[48:49], s[0:1], 0       ; x
  s_load_dwordx2 s[50:51], s[0:1], 32      ; out
  s_load_dwordx2 s[38:39], s[0:1], 48      ; ws
  v_lshrrev_b32 v1, 6, v0
  v_and_b32 v{V_LANE}, 63, v0
  s_nop 0
  v_readfirstlane_b32 s{S_W}, v1
  v_lshlrev_b32 v{R.V_L16}, 4, v{V_LANE}
""")
    a(f"""
  s_waitcnt lgkmcnt(0)
  s_mov_b32 s{R.S_WS}, s38
  s_and_b32 s{R.S_WS+1}, s39, 0xffff
  s_mov_b32 s{R.S_WS+2}, {NBLK*BLK}
  s_mov_b32 s{R.S_WS+3}, 0x20000
  s_add_u32 s{S_TB}, s38, {TBL_OFF}
  s_addc_u32 s{S_TB+1}, s39, 0
  s_and_b32 s{S_TB+1}, s{S_TB+1}, 0xffff
  s_mov_b32 s{S_TB+2}, {TBL_BYTES}
  s_mov_b32 s{S_TB+3}, 0x20000
  s_mov_b32 s{S_X}, s48
  s_and_b32 s{S_X+1}, s49, 0xffff
  s_mov_b32 s{S_X+2}, {NPX*384}
  s_mov_b32 s{S_X+3}, 0x20000
  s_mov_b32 s{S_OUT}, s50
  s_and_b32 s{S_OUT+1}, s51, 0xffff
  s_mov_b32 s{S_OUT+2}, {NPX*384}
  s_mov_b32 s{S_OUT+3}, 0x20000
  s_mov_b32 s{R.S_NA}, {hex(f2u(-GA))}
  s_mov_b32 s{R.S_S}, {hex(f2u(GS))}
  s_mov_b32 s85, {hex(f2u(GS * (1.0 - OPT['bias'] / 1000.0)))}
  s_mov_b32 s{R.S_NAH}, {hex(h16(-GA) | (h16(-GA) << 16))}
  s_mov_b32 s{R.S_SH}, {hex(h16(GS) | (h16(GS) << 16))}
  s_mov_b32 s{S_LO}, 0x05040100
  s_mov_b32 s{S_HI}, 0x07060302
  s_mov_b32 s{S_EPS}, {hex(f2u(1e-5))}
  s_mov_b32 s{S_INV}, {hex(f2u(1.0/192))}
  s_mul_i32 s{S_G0}, s{S_W}, 6144
""")
    for s in range(3):
        a(f"  s_add_u32 s{R.S_M[2*s]}, s{S_G0}, {s*BLK}")
        a(f"  s_add_u32 s{R.S_M[2*s+1]}, s{S_G0}, {s*BLK + 4096}")
    if OPT['prof'] or OPT['dumph']:
        a(f"""  s_add_u32 s44, s38, {STAMP_OFF}
  s_addc_u32 s45, s39, 0
  s_and_b32 s45, s45, 0xffff
  s_mov_b32 s46, {256*4*512}
  s_mov_b32 s47, 0x20000
  s_lshl_b32 s40, s2, 2
  s_add_u32 s40, s40, s{S_W}
  s_lshl_b32 s40, s40, 9
  s_add_u32 s52, s38, {H_OFF}
  s_addc_u32 s53, s39, 0
  s_and_b32 s53, s53, 0xffff
  s_mov_b32 s54, {NPX*384}
  s_mov_b32 s55, 0x20000""")
    stamp(a)
    a(f"  s_mov_b32 s{S_I}, 0")
    tile_coords(a)
    global_bases(a)
    x_loads(a, 0, 0); x_loads(a, 0, 1); x_loads(a, 0, 2)
    table_dma(a, 0); table_dma(a, 1)
    npf = 0
    if OPT['spf']:
        a(f"""  s_lshl_b32 s{S_T0}, s{S_TY}, 5
  s_sub_u32 s{S_T0}, s{S_T0}, 3
  s_max_i32 s{S_T0}, s{S_T0}, 0
  s_add_u32 s{S_T0}, s{S_T0}, s{S_W}
  s_lshl_b32 s{S_T0}, s{S_T0}, 9
  s_lshl_b32 s{S_T1}, s{S_TX}, 3
  s_sub_u32 s{S_T1}, s{S_T1}, 4
  s_max_i32 s{S_T1}, s{S_T1}, 0
  s_add_u32 s{S_T0}, s{S_T0}, s{S_T1}
  s_mul_i32 s{S_PF}, s{S_T0}, 384
  v_min_u32 v{V_TMP}, 47, v{V_LANE}
  v_lshlrev_b32 v{V_TMP}, 7, v{V_TMP}
  s_mov_b32 m0, {PFSCR}
  s_lshr_b32 s{S_T0}, s2, 3
  s_lshl_b32 s{S_T0}, s{S_T0}, 2
  s_add_u32 s{S_T0}, s{S_T0}, s{S_W}
  s_mul_i32 s{S_T0}, s{S_T0}, 5120
  v_lshlrev_b32 v16, 6, v{V_LANE}
  buffer_load_dword v16, s[{R.S_WS}:{R.S_WS+3}], s{S_T0} offen lds
  buffer_load_dword v16, s[{R.S_WS}:{R.S_WS+3}], s{S_T0} offen offset:1024 lds""")
        npf = 2
        for idx in range(20):
            a(f"  buffer_load_dword v{V_TMP}, s[{S_X}:{S_X+3}], s{S_PF} offen offset:{64*(idx&1)} lds")
            if idx & 1: a(f"  s_add_u32 s{S_PF}, s{S_PF}, {4*512*384}")
            npf += 1
    a(f"""
  v_add_u32 v{R.V_L16B}, {2*BLK}, v{R.V_L16}
  v_and_b32 v16, 31, v{V_LANE}             ; n
  v_lshrrev_b32 v17, 5, v{V_LANE}          ; hf
  v_lshrrev_b32 v18, 3, v16
  v_and_b32 v19, 7, v16
  s_lshl_b32 s{S_T0}, s{S_W}, 3
  v_add_u32 v18, s{S_T0}, v18
  v_lshl_add_u32 v20, v18, 9, v19
  s_movk_i32 s{S_T1}, 384
  v_mul_lo_u32 v20, v20, s{S_T1}
  v_lshl_add_u32 v{V_PX[0]}, v17, 4, v20
  v_add_u32 v{V_PX[1]}, {4*512*384}, v{V_PX[0]}
  v_lshl_add_u32 v20, v18, 3, v19
  s_movk_i32 s{S_T1}, {XPS}
  v_mul_lo_u32 v20, v20, s{S_T1}
  v_lshrrev_b32 v21, 1, v18                ; row>>1
  v_add_u32 v21, v21, v17                  ; + hf
  v_lshl_add_u32 v20, v21, 4, v20
  v_add_u32 v{V_XR[0]}, {XCH}, v20
  v_add_u32 v{V_XR[1]}, {XCH + 32*XPS + 32}, v20
  v_and_b32 v18, 0x13, v16
  v_bfe_u32 v19, v16, 2, 1
  v_lshl_or_b32 v18, v19, 3, v18
  v_bfe_u32 v19, v16, 3, 1
  v_lshl_or_b32 v18, v19, 2, v18
  v_lshlrev_b32 v19, 3, v17
  v_sub_u32 v18, v18, v19                  ; c(m) - 8hf
""")
    for d in range(4):
        for (base, reg) in ((0, 112), (16, 116)):
            a(f"""  v_cmp_eq_u32 vcc, {base+2*d}, v18
  v_mov_b32 v19, 0x3f80
  s_nop 1
  v_cndmask_b32 v20, 0, v19, vcc
  v_cmp_eq_u32 vcc, {base+2*d+1}, v18
  v_mov_b32 v19, 0x3f800000
  s_nop 1
  v_cndmask_b32 v21, 0, v19, vcc
  v_or_b32 v{reg+d}, v20, v21""")
    a(f"""  v_add_u32 v20, {IDOFF}, v{R.V_L16}
  ds_write_b128 v20, v[112:115]
  ds_write_b128 v20, v[116:119] offset:1024
  v_and_b32 v16, 15, v{V_LANE}             ; nh
  v_lshrrev_b32 v17, 4, v{V_LANE}          ; q
  v_lshrrev_b32 v18, 1, v17
  v_mul_u32_u24 v18, {PLANE}, v18
  v_lshl_add_u32 v18, v16, 5, v18
  v_and_b32 v19, 1, v17
  v_lshl_add_u32 v18, v19, 4, v18
  s_mul_i32 s{S_T0}, s{S_W}, {2*OS}
  s_add_u32 s{S_T0}, s{S_T0}, {SB}
  v_add_u32 v{V_B}, s{S_T0}, v18
  v_and_b32 v18, 1, v16                    ; mh
  v_bfe_u32 v19, v16, 1, 1                 ; par
  v_lshrrev_b32 v20, 2, v16                ; k'
  v_sub_u32 v21, v17, v18
  v_add_u32 v21, 1, v21
  v_lshlrev_b32 v21, 5, v21
  v_lshl_add_u32 v21, v19, 4, v21
  v_sub_u32 v22, 0, v20
  v_and_b32 v22, 3, v22
  v_lshl_add_u32 v21, v22, 2, v21
  s_lshl_b32 s{S_T0}, s{S_W}, 12
  v_add_u32 v{V_T}, s{S_T0}, v21
  v_lshlrev_b32 v21, 1, v20                ; 2k'
  v_add_u32 v22, 1, v21                    ; O: 2k'+1
  v_cmp_eq_u32 vcc, 0, v20
  v_mov_b32 v23, 8
  s_nop 1
  v_cndmask_b32 v21, v21, v23, vcc         ; E
  v_cmp_eq_u32 vcc, 1, v19
  s_nop 1
  v_cndmask_b32 v21, v22, v21, vcc         ; s
  v_mov_b32 v{V_IDX}, 0x4444
""")
    for g in range(4):
        a(f"""  v_cmp_le_u32 vcc, {2*g+2}, v21
  v_mov_b32 v22, {0xA << (4*g)}
  s_nop 1
  v_cndmask_b32 v22, 0, v22, vcc
  v_or_b32 v{V_IDX}, v{V_IDX}, v22""")
    a(f"""
  v_lshlrev_b32 v18, 4, v16                ; 2nh*8
  v_lshlrev_b32 v19, 1, v17                ; 2q'
  v_lshlrev_b32 v20, 4, v16
  s_lshl_b32 s{S_T0}, s{S_W}, 5
  s_add_u32 s{S_T0}, s{S_T0}, {XCH}
  v_add_u32 v20, s{S_T0}, v20
  s_movk_i32 s{S_T1}, {XPS}
  v_add_u32 v21, v18, v19
  v_mul_lo_u32 v21, v21, s{S_T1}
  v_add_u32 v{V_XW[0]}, v21, v20
  v_add_u32 v19, 7, v19
  v_and_b32 v19, 7, v19
  v_add_u32 v21, v18, v19
  v_mul_lo_u32 v21, v21, s{S_T1}
  v_add_u32 v{V_XW[1]}, v21, v20
""")
    for r in range(3):
        a(f"""  s_lshl_b32 s{S_T0}, s{S_W}, 6
  s_add_u32 s{S_T0}, s{S_T0}, {256*r}
  v_add_u32 v16, s{S_T0}, v{V_LANE}
  v_and_b32 v18, 7, v16                        ; o
  v_lshrrev_b32 v19, 4, v16                    ; row
  v_bfe_u32 v20, v16, 3, 1                     ; u
  v_mul_u32_u24 v18, {OS}, v18
  v_and_b32 v21, 1, v19
  v_mul_u32_u24 v21, {PLANE}, v21
  v_lshrrev_b32 v19, 1, v19
  v_lshl_add_u32 v21, v19, 5, v21
  v_lshl_add_u32 v21, v20, 4, v21
  v_add_u32 v21, v21, v18
  v_add_u32 v{V_SW[r]}, {SB}, v21""")
        if r == 2:
            a(f"""  s_movk_i32 s{S_T0}, 608
  v_cmp_gt_u32 vcc, s{S_T0}, v16
  v_add_u32 v17, {SDUMMY}, v{R.V_L16}
  s_nop 1
  v_cndmask_b32 v{V_SW[r]}, v17, v{V_SW[r]}, vcc""")
    a(f"  s_waitcnt vmcnt({npf})")
    a(f"  s_mov_b32 s{S_PXP}, 0x80000000")
    a(f"{name}_tile:")
    a(f"  s_mov_b32 s{S_PXO}, s{S_PXN}")
    stamp(a)
    phase_c(a)
    stamp(a)
    if OPT['dumph']:
        for blk in range(2):
            for s in range(12):
                a(f"  buffer_store_dwordx4 {Hf(blk,s)}, v{V_PX[blk]}, s[52:55], s{S_PXO} offen offset:{32*s}")
        a("  s_waitcnt vmcnt(6)" if False else "  s_waitcnt vmcnt(0)")
    core = Core(a)
    tc = Asm()
    tc(f"  s_add_u32 s{S_I}, s{S_I}, 1")
    tile_coords(tc)
    tc(f"""  s_lshl_b32 s{S_T0}, s{S_TY}, 5
  s_sub_u32 s{S_T0}, s{S_T0}, 3
  s_max_i32 s{S_T0}, s{S_T0}, 0
  s_add_u32 s{S_T0}, s{S_T0}, s{S_W}
  s_lshl_b32 s{S_T0}, s{S_T0}, 9
  s_lshl_b32 s{S_T1}, s{S_TX}, 3
  s_sub_u32 s{S_T1}, s{S_T1}, 4
  s_max_i32 s{S_T1}, s{S_T1}, 0
  s_add_u32 s{S_T0}, s{S_T0}, s{S_T1}
  s_mul_i32 s{S_PF}, s{S_T0}, 384
  s_cmp_ge_u32 s{S_I}, 4
  s_cselect_b32 s{S_PF}, 0x80000000, s{S_PF}""")
    tcl = [(l, 4) for l in tc.L]
    ex0 = [(f"  v_min_u32 v{V_TMP}, 47, v{V_LANE}", 4), (f"  v_lshlrev_b32 v{V_TMP}, 7, v{V_TMP}", 4)]
    if OPT['w1late']:
        wl = Asm(); w_dma_block(wl, 1)
        ex0 = [(l, 10 if 'buffer' in l else 4) for l in wl.L] + ex0
    ex0 = ex0 + tcl[:-2] + [(tcl[-2][0] + "\n" + tcl[-1][0], 8)]
    core.extra[0] = ex0
    core.fast_flush = {0}
    core.vmwait[0] = 0
    core.vmwait[1] = 0
    stplan = {}; xplan = {}
    xg = OPT['xg']
    if xg == 4:
        for g in range(6):
            stplan[1 + 4 * g] = [4 * g + e for e in range(4)]
            xplan[2 + 4 * g] = [4 * g + e for e in range(4)]
    elif xg == 2:
        for g in range(12): stplan[1 + g] = [2 * g, 2 * g + 1]
        for g in range(12): xplan[[2, 4, 6, 8, 10, 12, 14, 16, 18, 20, 21, 22][g]] = [2 * g, 2 * g + 1]
    elif xg == 1:
        for g in range(12): stplan[1 + g] = [2 * g, 2 * g + 1]
        for q in range(24): xplan.setdefault(2 + (q * 21) // 24, []).append(q)
    for j in range(1, 24):
        ops = []; nv = 0
        for q in stplan.get(j, []):
            ops.append(([store_parked(q, S_PXP)], 6)); nv += 1
        for q in xplan.get(j, []):
            blk, sI = q // 12, q % 12
            ops.append(([f"  buffer_load_dwordx4 {Xf(blk,sI)}, v{V_PX[blk]}, s[{S_X}:{S_X+3}], s{S_PXO} offen offset:{32*sI} {['', 'nt', 'sc1', 'sc0 sc1'][OPT['xf']]}"], 6)); nv += 1
        if OPT['pf'] and j < 23:
            npf_ = 20 if OPT['pfh'] else 10
            step = OPT['pfs']; first = 23 - npf_ * step
            if j >= first and (j - first) % step == 0:
                idx = (j - first) // step
                t = [f"  s_mov_b32 m0, {PFSCR}", "  s_nop 0", f"  buffer_load_dword v{V_TMP}, s[{S_X}:{S_X+3}], s{S_PF} offen offset:{64 * (idx & 1) if OPT['pfh'] else 0} {['', 'nt', 'sc1', 'sc0 sc1'][OPT['pff']]} lds"]
                if (idx & 1) or not OPT['pfh']: t.append(f"  s_add_u32 s{S_PF}, s{S_PF}, {4*512*384}")
                ops.append((t, 14)); nv += 1
        core.pend_extra[j] = ops
        core.vmwait[j + 1] = nv
    core.extra[23] = []
    core.extra[24] = [(f"  v_add_u32 v56, {IDOFF}, v{R.V_L16}", 4), (f"  ds_read_b128 v[48:51], v56", 8), (f"  ds_read_b128 v[52:55], v56 offset:1024", 8)]
    ps = []
    for blk in range(2):
        for sI in range(12):
            ps.append((f"  v_mfma_f32_32x32x16_bf16 {ACC(blk,sI>>1)}, {vr(52 if sI&1 else 48,4)}, {Xf(blk,sI)}, {ACC(blk,sI>>1)}", []))
    core.pseudo[24] = ps
    core.extra_first.add(24)
    core.no_barrier.add(25)
    core.vmwait[24] = 0
    core.emit(0, 1); core.emit(1, 2)
    if OPT['prof'] >= 2:
        a(f"  v_mov_b32 v47, v{V_TMP}"); stamp(a); a(f"  v_mov_b32 v{V_TMP}, v47")
    for j in range(2, 24): core.emit(j, j + 1)
    if OPT['prof'] >= 2: stamp(a)
    core.emit(24, 25)
    if OPT['prof'] >= 2: stamp(a)
    emit_tail(a, core)
    stamp(a)
    a(f"""  s_cmp_ge_u32 s{S_I}, 4
  s_cbranch_scc1 {name}_last""")
    a("  s_barrier")
    table_dma(a, 0); table_dma(a, 1)
    a(f"  s_mov_b32 s{S_PXP}, s{S_PXO}")
    stamp(a)
    a(f"  s_branch {name}_tile")
    a(f"{name}_last:")
    a("  s_nop 15")
    epilogue(a)
    stamp(a)
    a("  s_waitcnt vmcnt(0)")
    stamp(a)
    a(f"""  s_waitcnt vmcnt(0)
{name}_done:
  s_endpgm
""")
    a(kdesc(name, 512, 100, 256))
def emit_loop(a, self, name):
    for j in range(2, 25): self.emit(j, j + 1)
def emit_tail(a, core):
    ch, Pf = core.plan(25, None)
    main = [l for c in ch for l in c]
    for tx, c in core.pending: main += tx
    core.pending = []
    f = []
    f += global_bases_lines(96)
    f += [x_load_line(0, 0, i) for i in range(8)]
    f += [x_load_line(0, 1, i) for i in range(8)]
    f += [x_load_line(0, 2, i) for i in range(8)]
    fi = 0
    nm = sum(1 for l in main if "v_mfma" in l); per = -(-len(f) // nm)
    for l in main:
        a(l)
        if "v_mfma" in l:
            for _ in range(per):
                if fi < len(f): a(f[fi]); fi += 1
    while fi < len(f): a(f[fi]); fi += 1
    vm.ops.clear(); vm.add(('x', 0, 0), 8); vm.add(('x', 0, 1), 8); vm.add(('x', 0, 2), 8)
```

```python
from asmlib import *
BLK = 24576
NBLK = 26
CFG = dict(D=3, NF=4, nogelu=0, nobar=0, nods=0, nodma=0, gelu='mix', dsc=12, dmac=14, gap=32, accinit=0)
class R:
    V_L16 = 5; V_L16B = 4
    T = 16
    G0 = [24, 28]
    G1 = [[32, 36], [40, 44]]
    S = [[48, 64], [80, 96]]
    WF0 = 144
    S_WS = 4
    S_NA = 25; S_S = 26; S_CNT = 27
    S_G = 22; S_G2 = 23
    S_M = [56, 57, 58, 59, 60, 61]
    S_NAH = 36; S_SH = 37; S_D = 85
    RING = 0
def ACC(blk, b):
    i = blk * 6 + b
    return f"v[{112+16*i}:{112+16*i+15}]" if i < 9 else f"a[{16*(i-9)}:{16*(i-9)+15}]"
def ACCreg(blk, b):
    i = blk * 6 + b
    return ('v', 112 + 16 * i) if i < 9 else ('a', 16 * (i - 9))
def Hf(blk, s): r = 48 + 48 * blk + 4 * s; return f"a[{r}:{r+3}]"
def WFr(k): r = R.WF0 + 4 * k; return f"a[{r}:{r+3}]"
def gelu_pair(x0, x1, t0, t1, g):
    if CFG['gelu'] == 'f32':
        return [
            (f"  v_fma_f32 v{t0}, -v{x0}, v{x0}, s{R.S_NA}", 4),
            (f"  v_fma_f32 v{t1}, -v{x1}, v{x1}, s{R.S_NA}", 4),
            (f"  v_mul_f32 v{t0}, v{t0}, v{x0}", 4),
            (f"  v_mul_f32 v{t1}, v{t1}, v{x1}", 4),
            (f"  v_exp_f32 v{t0}, v{t0}", 8),
            (f"  v_exp_f32 v{t1}, v{t1}", 8),
            (f"  v_fma_f32 v{t0}, v{t0}, s{R.S_D}, s{R.S_D}", 4),
            (f"  v_fma_f32 v{t1}, v{t1}, s{R.S_D}, s{R.S_D}", 4),
            (f"  v_rcp_f32 v{t0}, v{t0}", 8),
            (f"  v_rcp_f32 v{t1}, v{t1}", 8),
            (f"  v_mul_f32 v{t0}, v{x0}, v{t0}", 4),
            (f"  v_mul_f32 v{t1}, v{x1}, v{t1}", 4),
            (f"  v_cvt_pk_bf16_f32 v{g}, v{t0}, v{t1}", 4),
        ]
    else:
        return [
            (f"  v_cvt_pk_f16_f32 v{t0}, v{x0}, v{x1}", 4),
            (f"  v_pk_fma_f16 v{t1}, v{t0}, v{t0}, s{R.S_NAH} neg_lo:[1,0,0] neg_hi:[1,0,0]", 4),
            (f"  v_pk_mul_f16 v{t1}, v{t1}, v{t0}", 4),
            (f"  v_exp_f16_sdwa v{t0}, v{t1} dst_sel:WORD_0 dst_unused:UNUSED_PRESERVE src0_sel:WORD_0", 8),
            (f"  v_exp_f16_sdwa v{t0}, v{t1} dst_sel:WORD_1 dst_unused:UNUSED_PRESERVE src0_sel:WORD_1", 8),
            (f"  v_pk_fma_f16 v{t0}, v{t0}, s{R.S_SH}, s{R.S_SH}", 4),
            (f"  v_rcp_f16_sdwa v{t1}, v{t0} dst_sel:WORD_0 dst_unused:UNUSED_PRESERVE src0_sel:WORD_0", 8),
            (f"  v_rcp_f16_sdwa v{t1}, v{t0} dst_sel:WORD_1 dst_unused:UNUSED_PRESERVE src0_sel:WORD_1", 8),
            (f"  v_fma_mix_f32 v{t0}, v{x0}, v{t1}, 0 op_sel_hi:[0,1,0]", 4),
            (f"  v_fma_mix_f32 v{t1}, v{x1}, v{t1}, 0 op_sel:[0,1,0] op_sel_hi:[0,1,0]", 4),
            (f"  v_cvt_pk_bf16_f32 v{g}, v{t0}, v{t1}", 4),
        ]
def gelu_chains(buf, els, Gdst):
    out = []
    for pi in range(0, len(els), 2):
        for blk in range(2):
            Sr = R.S[buf][blk]
            slot = (len(out)) % 4
            t0 = R.T + 2 * slot
            ops = gelu_pair(Sr + els[pi], Sr + els[pi + 1], t0, t0 + 1, Gdst[blk] + pi // 2)
            if CFG['gelu'] == 'f32':
                deps = [[], [], [0], [1], [2], [3], [4], [5], [6], [7], [8], [9], [10, 11]]
            else:
                deps = [[], [0], [1], [2], [2, 3], [4], [5], [5, 6], [7], [7, 8], [8, 9]]
            out.append([(t, c, d) for (t, c), d in zip(ops, deps)])
    return out
class Chains:
    def __init__(self, chains):
        self.ch = chains; self.done = [[None] * len(c) for c in chains]; self.n = 0
        self.first = 0
    def remaining(self):
        return sum(c for ci, ch in enumerate(self.ch) for oi, (t, c, d) in enumerate(ch) if self.done[ci][oi] is None)
    def chain_done(self, ci): return all(x is not None for x in self.done[ci])
    def ready(self):
        r = []
        while self.first < len(self.ch) and self.chain_done(self.first): self.first += 1
        for ci in range(self.first, min(len(self.ch), self.first + 4)):
            for oi, (t, c, d) in enumerate(self.ch[ci]):
                if self.done[ci][oi] is not None: continue
                if all(self.done[ci][x] is not None and self.n - self.done[ci][x] >= 2 for x in d):
                    r.append((ci, oi, c))
        return r
    def take(self, ci, oi):
        self.done[ci][oi] = self.n; self.n += 1
        return self.ch[ci][oi][0], self.ch[ci][oi][1]
    def tick(self): self.n += 1
    def upto_done(self, k): return all(self.chain_done(c) for c in range(min(k, len(self.ch))))
def iter_frags(j):
    L = []
    if j < 24:
        for s in range(12):
            mk = []
            for blk in range(2):
                Sd = vr(R.S[j & 1][blk], 16); c = "0" if s == 0 else Sd
                mk.append(lambda wf, Sd=Sd, c=c, h=Hf(blk, s): f"  v_mfma_f32_32x32x16_bf16 {Sd}, {wf}, {h}, {c}")
            L.append((s, 1, mk))
    if 2 <= j <= 25:
        for b in range(6):
            mk = [(lambda wf, ac=ACC(blk, b), g=vr(R.G1[(j - 2) & 1][blk], 4): f"  v_mfma_f32_32x32x16_bf16 {ac}, {wf}, {g}, {ac}") for blk in range(2)]
            L.append((12 + b, 2, mk))
    if 1 <= j <= 24:
        for b in range(6):
            mk = [(lambda wf, ac=ACC(blk, b), g=vr(R.G0[blk], 4), c0=(j == 1 and CFG['accinit']): f"  v_mfma_f32_32x32x16_bf16 {ac}, {wf}, {g}, {'0' if c0 else ac}") for blk in range(2)]
            L.append((18 + b, 3, mk))
    return L
def ds_text(kb, j, fidx):
    off = R.RING + (j % 3) * BLK + fidx * 1024
    if off + 0 <= 65535 - 0 and (j % 3) < 2:
        return f"  ds_read_b128 {WFr(kb)}, v{R.V_L16} offset:{off}"
    return f"  ds_read_b128 {WFr(kb)}, v{R.V_L16B} offset:{off - (R.RING + 2*BLK)}"
def dma_ops(jb):
    if jb >= NBLK: return []
    s = jb % 3
    def dma(off, sg):
        return "  s_nop 0" if CFG['nodma'] else f"  buffer_load_dwordx4 v{R.V_L16}, s[{R.S_WS}:{R.S_WS+3}], s{sg} offen offset:{off} lds"
    c = CFG['dmac'] - 8
    return [
        ([f"  s_mov_b32 m0, s{R.S_M[2*s]}", "  s_nop 0", dma(0, R.S_G)], c + 8),
        ([dma(1024, R.S_G)], c), ([dma(2048, R.S_G)], c), ([dma(3072, R.S_G)], c),
        ([f"  s_mov_b32 m0, s{R.S_M[2*s+1]}", f"  s_add_u32 s{R.S_G}, s{R.S_G}, {BLK}", dma(0, R.S_G2)], c + 8),
        ([dma(1024, R.S_G2)], c),
        ([f"  s_add_u32 s{R.S_G2}, s{R.S_G2}, {BLK}"], 0),
    ]
class Core:
    def __init__(self, a):
        self.a = a; self.k = 0; self.pending = []
        self.over = 0
        self.no_barrier = set()
        self.extra_first = set()
        self.pseudo = {}
        self.fast_flush = set()
        self.pend_extra = {}
        self.vmwait = {}
        self.extra = {}
    def plan(self, j, jn):
        D = CFG['D']; NF = CFG['NF']
        F = iter_frags(j); Fn = iter_frags(jn) if jn is not None else []
        nf = len(F); n = 2 * nf
        Pf = max(0, nf - D)
        chains = []
        nva = 0
        if 1 <= j <= 24 and not CFG['nogelu']:
            buf = (j - 1) & 1
            va = gelu_chains(buf, list(range(0, 8)), R.G0); vb = gelu_chains(buf, list(range(8, 16)), R.G1[buf])
            chains = va + vb; nva = len(va)
        slots = []
        pend = list(self.pending)
        sync_at = None
        for fi in range(nf):
            t = fi + D
            pre = []
            if fi == Pf:
                for tx, c in pend: pre += tx
                pend = []
                if not CFG['nobar'] and j not in self.no_barrier: pre += [f"  s_waitcnt vmcnt({self.vmwait.get(j, 0)})", "  s_barrier"]
                pend = dma_ops(j + 2) + list(self.pend_extra.get(j, []))
            rd = []
            if not CFG['nods']:
                if t < nf: rd = [ds_text((self.k + t) % NF, j, F[t][0])]
                elif jn is not None: rd = [ds_text((self.k + t) % NF, j + 1, Fn[t - nf][0])]
            slots.append((pre, rd, CFG['dsc'] if rd else 8))
            if not CFG['nods'] and fi % 2 == 1:
                if len(pend) > self.over:
                    tx, c = pend.pop(0)
                    slots.append(([], [f"  s_waitcnt lgkmcnt({D-2})"] + list(tx), 12 + c))
                else:
                    slots.append(([], [f"  s_waitcnt lgkmcnt({D-2})"], 8))
            elif pend:
                tx, c = pend.pop(0)
                tx = list(tx)
                if j in self.fast_flush and fi >= Pf:
                    while pend:
                        t2, c2 = pend.pop(0); tx += t2; c += c2 + 4
                slots.append(([], tx, 8 + c))
            else:
                slots.append(([], [], 8))
        self.pending = pend
        ex = list(self.extra.get(j, []))
        gi = 0
        while ex:
            per = -(-len(ex) // max(1, (2 * Pf - gi))) if j not in self.extra_first else len(ex)
            pre_, tx_, c_ = slots[gi]
            add_ = ex[:per]; ex = ex[per:]
            slots[gi] = (pre_, list(tx_) + [t for t, _ in add_], c_ + sum(c for _, c in add_))
            gi += 1
        mtext = []; mslots = []; mgrp = []; fragend = []
        ps = list(self.pseudo.get(j, []))
        cnts = [0] * nf
        if ps:
            for q in range(len(ps)): cnts[2 + (q * (nf - 2)) // len(ps)] += 1
        for fi, (fidx, grp, mk) in enumerate(F):
            kb = (self.k + fi) % NF
            mtext.append(mk[0](WFr(kb))); mslots.append(slots[2 * fi]); mgrp.append(grp)
            mtext.append(mk[1](WFr(kb))); mslots.append(slots[2 * fi + 1]); mgrp.append(grp)
            for _ in range(cnts[fi]):
                if ps:
                    t_, pre_ = ps.pop(0)
                    mtext.append(t_); mslots.append((pre_, [], 8)); mgrp.append(0)
            fragend.append(len(mtext))
        assert not ps
        n = len(mtext); slots = mslots
        G = CFG['gap']
        base = [slots[i][2] for i in range(n)]
        for i in range(1, n): base[i - 1] += 4 * len(slots[i][0])
        sched = [[] for _ in range(n)]
        CH = Chains(chains)
        first3 = next((i for i in range(n) if mgrp[i] == 3), None)
        carry = 0.0
        for i in range(n):
            tcur = base[i]
            CH.tick()
            cap = sum(max(0, G - base[q]) for q in range(i, n))
            excess = CH.remaining() - cap
            if excess > 0: carry += excess * 1.0 / (n - i)
            while True:
                rdy = CH.ready()
                if not rdy:
                    if CH.remaining() > 0 and (i == n - 1 or (first3 is not None and i >= first3 - 2 and not CH.upto_done(nva))):
                        sched[i].append(("  s_nop 0", 4)); CH.tick(); tcur += 4; continue
                    break
                must = i == n - 1 or (first3 is not None and i >= first3 - 2 and not CH.upto_done(nva))
                need = G - tcur
                pick = None
                fit = [r for r in rdy if r[2] <= need]
                if fit:
                    pick = fit[0]
                    if need == 8:
                        ex = [r for r in fit if r[2] == 8]
                        pl = [r for r in rdy if r[2] == 4]
                        if ex and len(pl) < 2: pick = ex[0]
                elif must:
                    pick = rdy[0]
                else:
                    over = [(r, tcur + r[2] - max(G, tcur)) for r in rdy]
                    over.sort(key=lambda x: x[1])
                    if need > 0 and excess > 0:
                        pick = over[0][0]; carry -= over[0][1]
                    elif over[0][1] <= carry:
                        pick = over[0][0]; carry -= over[0][1]
                if pick is None: break
                tx, c = CH.take(pick[0], pick[1])
                sched[i].append((tx, c)); tcur += c
        assert CH.remaining() == 0
        chunks = []
        m0 = 0
        for fi in range(nf):
            L = []
            for m in range(m0, fragend[fi]):
                L += slots[m][0]
                if j == 24 and m == first3: L.append("  s_nop 1")
                L.append(mtext[m]); L += slots[m][1]
                L += [t for t, _ in sched[m]]
            m0 = fragend[fi]
            chunks.append(L)
        self.k = (self.k + nf) % NF
        return chunks, Pf
    def emit(self, j, jn):
        ch, Pf = self.plan(j, jn)
        if j == 1: self.a("  s_nop 11")
        for L in ch:
            for t in L: self.a(t)
    def emit_tile(self, name):
        a = self.a
        self.emit(0, 1); self.emit(1, 2)
        a(f"  s_mov_b32 s{R.S_CNT}, 4")
        k0 = self.k; p0 = list(self.pending)
        a(".p2align 6")
        a(f"{name}_loop:")
        a(f"  s_sub_u32 s{R.S_CNT}, s{R.S_CNT}, 1")
        self.emit(2, 3); self.emit(3, 4); self.emit(4, 5)
        ks = self.k; ps = list(self.pending)
        ch, Pf = self.plan(5, 6)
        for L in ch[:Pf]:
            for t in L: a(t)
        a(f"  s_cmp_eq_u32 s{R.S_CNT}, 0")
        a(f"  s_cbranch_scc1 {name}_exit")
        for L in ch[Pf:]:
            for t in L: a(t)
        self.emit(6, 7); self.emit(7, 8)
        assert self.k == k0 and self.pending == p0, (self.k, k0)
        a(f"  s_branch {name}_loop")
        a(f"{name}_exit:")
        self.k = ks; self.pending = ps
        ch, Pf = self.plan(23, 24)
        for L in ch[Pf:]:
            for t in L: a(t)
        self.emit(24, 25); self.emit(25, None)
        for tx, c in self.pending:
            for t in tx: a(t)
        self.pending = []
```

```python
from asmlib import *
import mlpcore as C
from mlpcore import R, ACC, ACCreg, Hf, WFr, Core, BLK, NBLK, CFG
from k_prep2 import TBL_OFF, TBL_BYTES
import numpy as np
TB = [122880, 140288]
OS = 9744; CS = 1216; PLANE = 608
SB = 34816
SDUMMY = SB + 8 * OS
XCH = 49152; XPS = 416
STATS = 24576
IDOFF = 159872
PFSCR = IDOFF + 2048
LDS_BYTES = PFSCR + 256
assert SDUMMY + 1024 + 7 * CS + 16 <= IDOFF and XCH + 106736 <= IDOFF and LDS_BYTES <= 163840
V_LANE = 0
V_SW = [1, 2, 9]
V_TMP = 3
V_PX = [6, 7]
V_B = 8
V_T = 10
V_IDX = 11
V_XW = [12, 13]
V_XR = [14, 15]
V_GA = [24, 26, 30]; V_GB = [25, 27, 31]
AF = [32, 40]
XR = [48, 80]
XA2 = 96
PT = [32, 40]
def Darch(k, i):
    idx = 16 * k + i
    return 112 + 4 * idx if idx < 36 else 48 + 4 * (idx - 36)
def Dreg(k, i): return ('v', Darch(k, i))
BF = [48, 64, 80]
PARK = 160
S_ST = [78, 79, 80, 81]
def Xf(blk, s):
    r = 160 + 48 * blk + 4 * s; return f"a[{r}:{r+3}]"
S_X = 8; S_OUT = 12; S_TB = 16
S_W = 20; S_I = 21; S_T0 = 28; S_T1 = 29; S_PXO = 30; S_PXN = 31; S_G0 = 32; S_LO = 33; S_HI = 34
S_TX = 64; S_TY = 65; S_TM = 66; S_TG = 67; S_EPS = 68; S_INV = 69
NPX = 512 * 512
STAMP_OFF = 300 << 20
H_OFF = 1 << 20
OPT = dict(dumph=0, prof=0, pf=1, st=3, sbud=70, cbud=20, stc=20, nhi=2, stnt=0, xnt=0, pfn=1, nox=0, nopark=0, sst=11, spf=0, nhs=2, st3=1, hprog=1, samex=0, pfh=0, pfs=1, w1late=0, xg=2, pff=2, xf=0, bias=0)
COLS = [0, 1, 8, 9, 2, 3, 10, 11]
S_PXP = 74
S_PF = 75
V_PFA = 3
class VM:
    def __init__(self): self.ops = []
    def add(self, tag, n=1): self.ops += [tag] * n
    def after(self, tag):
        i = max(k for k, t in enumerate(self.ops) if t == tag)
        return len(self.ops) - 1 - i
vm = VM()
def stamp(a):
    if not OPT['prof']: return
    a(f"""  s_memtime s[42:43]
  s_memrealtime s[62:63]
  s_waitcnt lgkmcnt(0)
  v_mov_b32 v{V_TMP}, s42
  s_nop 0
  buffer_store_dword v{V_TMP}, off, s[44:47], s40
  s_nop 1
  v_mov_b32 v{V_TMP}, s62
  s_nop 0
  buffer_store_dword v{V_TMP}, off, s[44:47], s40 offset:256
  s_add_u32 s40, s40, 4""")
def tile_coords(a):
    a(f"""  s_and_b32 s{S_T0}, s2, 7
  s_lshl_b32 s{S_T0}, s{S_T0}, 3
  s_lshr_b32 s{S_T1}, s2, 3
  s_and_b32 s{S_TX}, s{S_T1}, 7
  s_add_u32 s{S_TX}, s{S_TX}, s{S_T0}
  s_lshr_b32 s{S_T1}, s{S_T1}, 3
  s_lshl_b32 s{S_TY}, s{S_I}, 2
  s_add_u32 s{S_TY}, s{S_TY}, s{S_T1}          ; ty = 4*i + (c>>3)
  s_lshl_b32 s{S_T0}, s{S_TY}, 14              ; y0*512 = ty*32*512
  s_lshl_b32 s{S_T1}, s{S_TX}, 3
  s_add_u32 s{S_T0}, s{S_T0}, s{S_T1}
  s_mul_i32 s{S_PXN}, s{S_T0}, 384""")
def global_bases_lines(t):
    L = []
    if OPT['samex']: L += [f"  s_mov_b32 s{S_TX}, 5", f"  s_mov_b32 s{S_TY}, 5"]
    L += f"""  s_lshl_b32 s88, s{S_TY}, 5
  s_sub_u32 s88, s88, 3
  s_lshl_b32 s89, s{S_TX}, 3
  s_sub_u32 s89, s89, 4
  s_lshl_b32 s90, s{S_W}, 2
  s_add_u32 s88, s88, s90
  s_movk_i32 s90, 384
  s_movk_i32 s91, 512
  v_lshrrev_b32 v{t}, 4, v{V_LANE}
  v_bfe_u32 v{t+1}, v{V_LANE}, 3, 1
  v_and_b32 v{t+2}, 7, v{V_LANE}
  v_lshl_add_u32 v{t+1}, v{t+1}, 2, s89
  v_add_u32 v{t}, s88, v{t}
  v_add_u32 v{t+3}, 8, v{t+1}
  v_cmp_gt_u32 s[70:71], s91, v{t+1}
  v_cmp_gt_u32 s[72:73], s91, v{t+3}
  v_lshl_add_u32 v{t+3}, v{t}, 9, v{t+1}
  v_mul_lo_u32 v{t+3}, v{t+3}, s90
  v_lshl_add_u32 v{t+3}, v{t+2}, 4, v{t+3}
  v_mov_b32 v{t+4}, 0x80000000""".split("\n")
    for r in range(3):
        if r > 0:
            L += [f"  v_add_u32 v{t}, 16, v{t}", f"  v_add_u32 v{t+3}, {16*512*384}, v{t+3}"]
        L += [f"  v_cmp_gt_u32 vcc, s91, v{t}"]
        if r == 2:
            L += [f"  v_lshrrev_b32 v{t+5}, 4, v{V_LANE}", f"  s_lshl_b32 s86, s{S_W}, 2", f"  v_add_u32 v{t+5}, s86, v{t+5}",
                  f"  v_cmp_gt_u32 s[86:87], 6, v{t+5}", "  s_nop 0", "  s_and_b64 vcc, vcc, s[86:87]"]
        L += [f"  v_add_u32 v{t+6}, {8*384}, v{t+3}",
              "  s_and_b64 s[92:93], s[70:71], vcc",
              "  s_and_b64 s[94:95], s[72:73], vcc",
              "  s_nop 1",
              f"  v_cndmask_b32 v{V_GA[r]}, v{t+4}, v{t+3}, s[92:93]",
              f"  v_cndmask_b32 v{V_GB[r]}, v{t+4}, v{t+6}, s[94:95]"]
    return L
def global_bases(a, t=128):
    for l in global_bases_lines(t): a(l)
def x_load_line(k, r, i):
    col = COLS[i]
    base = V_GA[r] if col < 8 else V_GB[r]
    off = (col & 7) * 384 + k * 128
    dst = vr(XR[r] + 4 * i, 4) if r < 2 else f"a[{XA2+4*i}:{XA2+4*i+3}]"
    return f"  buffer_load_dwordx4 {dst}, v{base}, s[{S_X}:{S_X+3}], 0 offen offset:{off}"
class Fill:
    def __init__(self, a): self.a = a; self.hi = []; self.lo = []
    def push(self, lines, cost, tag=None, hi=False): (self.hi if hi else self.lo).append((lines, cost, tag))
    def emit1(self, g):
        for l in g[0]: self.a(l)
        if g[2] is not None: vm.add(g[2])
    def pop(self, budget, nhi=1):
        n = 0
        while self.hi and n < nhi:
            g = self.hi.pop(0); self.emit1(g); budget -= g[1]; n += 1
        while self.lo and budget >= self.lo[0][1] * 0.6:
            g = self.lo.pop(0); self.emit1(g); budget -= g[1]
    def flush(self, hi=True, lo=True, n=None):
        if hi:
            while self.hi: self.emit1(self.hi.pop(0))
        if lo:
            c = 0
            while self.lo and (n is None or c < n): self.emit1(self.lo.pop(0)); c += 1
def x_loads(a, k, r):
    for i in range(8): a(x_load_line(k, r, i))
    vm.add(('x', k, r), 8)
def stage_round(a, k, r, hook=None):
    src = XR[r] if r < 2 else XR[0]
    if r == 2:
        for e in range(32): a(f"  v_accvgpr_read_b32 v{XR[0]+e}, a{XA2+e}")
    for d in range(4):
        if hook: hook(d)
        T = PT[d & 1]
        for p in range(4):
            x0 = src + 4 * (2 * p) + d; x1 = src + 4 * (2 * p + 1) + d
            a(f"  v_perm_b32 v{T+p}, v{x1}, v{x0}, s{S_LO}")
        for p in range(4):
            x0 = src + 4 * (2 * p) + d; x1 = src + 4 * (2 * p + 1) + d
            a(f"  v_perm_b32 v{T+4+p}, v{x1}, v{x0}, s{S_HI}")
        a(f"  ds_write_b128 v{V_SW[r]}, {vr(T,4)} offset:{(2*d)*CS}")
        a(f"  ds_write_b128 v{V_SW[r]}, {vr(T+4,4)} offset:{(2*d+1)*CS}")
def table_dma_ops(k):
    d = lambda q: f"  buffer_load_dwordx4 v{R.V_L16}, s[{S_TB}:{S_TB+3}], s{S_TG} offen offset:{1024*q} lds"
    return [
        [f"  s_lshl_b32 s{S_TM}, s{S_W}, 12", f"  s_add_u32 s{S_TG}, s{S_TM}, {k*16384}", f"  s_add_u32 m0, s{S_TM}, {TB[k&1]}", "  s_nop 0", d(0)],
        [d(1)], [d(2)], [d(3)],
        [f"  s_mov_b32 m0, {TB[k&1] + 16384}", f"  s_mov_b32 s{S_TG}, {(k+1)*16384}", d(0)],
    ]
def table_dma(a, k):
    for g in table_dma_ops(k):
        for l in g: a(l)
    vm.add(('t', k), 5)
NCH = 16
def conv_chunk(a, k, hook=None):
    def chan_off(i): j, e = i >> 3, i & 7; return j * OS + e * CS
    def tab_off(i): j, e = i >> 3, i & 7; return TB[k & 1] - TB[0] + j * 2048 + e * 256
    def rdA(i):
        A = AF[i & 1]
        return [f"  ds_read_b32 v{A}, v{V_T} offset:{tab_off(i)}", f"  ds_read_b32 v{A+4}, v{V_T} offset:{tab_off(i)+128}"]
    def rdB(i):
        B = BF[i % 3]
        return [f"  ds_read_b128 a[{B+4*q}:{B+4*q+3}], v{V_B} offset:{chan_off(i)+32*q}" for q in range(4)]
    for t in rdA(0) + rdB(0) + rdB(1): a(t)
    for i in range(NCH):
        A = AF[i & 1]; B = BF[i % 3]
        kind, D = Dreg(k, i)
        Dt = f"{kind}[{D}:{D+3}]"
        nxtA = rdA(i + 1) if i + 1 < NCH else []
        nxtB = rdB(i + 2) if i + 2 < NCH else []
        a(f"  s_waitcnt lgkmcnt({4 if i + 1 < NCH else 0})")
        for t in nxtA: a(t)
        for h in range(2):
            for g in range(3):
                a(f"  v_mov_b32_dpp v{A+4*h+1+g}, v{A+4*h} row_ror:{4*(g+1)} row_mask:0xf bank_mask:0xf")
            rb = nxtB[2*h:2*h+2]
            for t in rb: a(t)
            if len(rb) < 2: a("  s_nop 1")
            a(f"  v_smfmac_f32_16x16x64_bf16 {Dt}, {vr(A+4*h,4)}, a[{B+8*h}:{B+8*h+7}], v{V_IDX}")
        if hook: hook(i)
def zero_D(a, k):
    L = [f"  v_mov_b32 v{r}, 0" for r in range(44, 48)] + ["  s_nop 1"]
    for q in range(4):
        base = Darch(k, 4 * q)
        L.append(f"  v_mfma_f32_32x32x16_bf16 v[{base}:{base+15}], v[44:47], v[44:47], 0")
    for l in L: a(l)
def stats_lines(k, i):
    D = Darch(k, i)
    return [f"  v_pk_add_f32 v[16:17], v[16:17], v[{D}:{D+1}]", f"  v_pk_add_f32 v[18:19], v[18:19], v[{D+2}:{D+3}]",
            f"  v_pk_fma_f32 v[20:21], v[{D}:{D+1}], v[{D}:{D+1}], v[20:21]", f"  v_pk_fma_f32 v[22:23], v[{D+2}:{D+3}], v[{D+2}:{D+3}], v[22:23]"]
def move_lines(k, i):
    D = Darch(k, i); A = Dreg(k, i)[1]
    return [f"  v_accvgpr_read_b32 v{D+e}, a{A+e}" for e in range(4)]
def ln_phase(a, wdma, done3):
    a("  s_nop 7")
    for i in range(done3, NCH):
        for l in stats_lines(2, i): a(l)
    a(f"""  s_lshl_b32 s{S_T0}, s{S_W}, 11
  s_add_u32 s{S_T0}, s{S_T0}, {STATS}
  v_add_u32 v24, s{S_T0}, v{R.V_L16}
  v_add_u32 v25, {STATS}, v{R.V_L16}
  ds_write_b128 v24, v[16:19]
  ds_write_b128 v24, v[20:23] offset:1024
  s_waitcnt lgkmcnt(0)
  s_barrier""")
    for w in range(4):
        a(f"  ds_read_b128 v[{96+4*w}:{99+4*w}], v25 offset:{2048*w}")
    for w in range(4):
        a(f"  ds_read_b128 v[{28+4*w}:{31+4*w}], v25 offset:{2048*w+1024}")
    wl = Asm(); wdma(wl); wl = [l for l in wl.L]
    for l in wl[:8]: a(l)
    wl = wl[8:]
    a("  s_waitcnt lgkmcnt(4)")
    a("""  v_pk_add_f32 v[96:97], v[96:97], v[100:101]
  v_pk_add_f32 v[98:99], v[98:99], v[102:103]
  v_pk_add_f32 v[104:105], v[104:105], v[108:109]
  v_pk_add_f32 v[106:107], v[106:107], v[110:111]
  v_pk_add_f32 v[96:97], v[96:97], v[104:105]
  v_pk_add_f32 v[98:99], v[98:99], v[106:107]
  s_waitcnt lgkmcnt(0)
  v_pk_add_f32 v[28:29], v[28:29], v[32:33]
  v_pk_add_f32 v[30:31], v[30:31], v[34:35]
  v_pk_add_f32 v[36:37], v[36:37], v[40:41]
  v_pk_add_f32 v[38:39], v[38:39], v[42:43]
  v_pk_add_f32 v[28:29], v[28:29], v[36:37]
  v_pk_add_f32 v[30:31], v[30:31], v[38:39]""")
    for r in range(4):
        a(f"  v_mul_f32 v{16+r}, s{S_INV}, v{96+r}")
    for r in range(4):
        a(f"  v_mul_f32 v{28+r}, s{S_INV}, v{28+r}")
    for r in range(4):
        a(f"  v_fma_f32 v{28+r}, -v{16+r}, v{16+r}, v{28+r}")
    for r in range(4):
        a(f"  v_max_f32 v{28+r}, 0, v{28+r}")
    for r in range(4):
        a(f"  v_add_f32 v{28+r}, s{S_EPS}, v{28+r}")
    for r in range(4):
        a(f"  v_rsq_f32 v{20+r}, v{28+r}")
    a("  s_nop 0")
    for r in range(4):
        a(f"  v_mul_f32 v{20+r}, s{R.S_S}, v{20+r}")
    for r in range(4):
        a(f"  v_mul_f32 v{24+r}, -v{16+r}, v{20+r}" .replace("v_mul_f32 v", "v_mul_f32_e64 v"))
    groups = [(k, j) for k in range(3) for j in range(2)]
    def fmas(g):
        k, j = groups[g]; L = []
        for e in range(8):
            D = Darch(k, 8 * j + e)
            L.append(f"  v_pk_fma_f32 v[{D}:{D+1}], v[{D}:{D+1}], v[20:21], v[24:25]")
            L.append(f"  v_pk_fma_f32 v[{D+2}:{D+3}], v[{D+2}:{D+3}], v[22:23], v[26:27]")
        return L
    for l in fmas(0): a(l)
    cnt = 0
    for g, (k, j) in enumerate(groups):
        Ds = [Darch(k, 8 * j + e) for e in range(8)]
        nxt = fmas(g + 1) if g + 1 < len(groups) else []
        for r in range(4):
            T = 32 + 4 * (cnt % 4); cnt += 1
            for e in range(4):
                a(f"  v_cvt_pk_bf16_f32 v{T+e}, v{Ds[2*e]+r}, v{Ds[2*e+1]+r}")
            a(f"  ds_write_b128 v{V_XW[r>>1]}, v[{T}:{T+3}] offset:{(r&1)*8*XPS + 128*k + 16*j}")
            for l in nxt[4*r:4*r+4]: a(l)
            n = 0
            while wl and n < 1:
                l = wl.pop(0); a(l); n += 1
                while wl and l.startswith("  s_"): l = wl.pop(0); a(l)
    for l in wl: a(l)
def w_dma_block(a, blk):
    S_G0 = 32
    for half, cnt in ((0, 4), (1, 2)):
        a(f"  s_add_u32 s{R.S_G}, s{S_G0}, {blk*BLK + 4096*half}\n{C.m0_set(blk, half)}\n  s_nop 0")
        for p in range(cnt):
            a(f"  buffer_load_dwordx4 v{R.V_L16}, s[{R.S_WS}:{R.S_WS+3}], s{R.S_G} offen offset:{1024*p} lds")
    if blk == 1: a(f"  s_add_u32 s{R.S_G}, s{S_G0}, {2*BLK}\n  s_add_u32 s{R.S_G2}, s{S_G0}, {2*BLK+4096}")
def phase_c(a):
    F = Fill(a)
    for g in range(24):
        L, c = park_group(g); F.push(L if not OPT['nopark'] else ["  s_nop 0 ; cvt"] * 8, c)
    need_by = [8, 16, 24]
    for k in range(3):
        for r in range(3):
            if r == 0: F.flush(hi=True, lo=False)
            a(f"  s_waitcnt vmcnt({vm.after(('x', k, r))})")
            stage_round(a, k, r, lambda d: F.pop(OPT['sbud'], OPT['nhs'] if r == 2 else 0))
            if k < 2 and OPT['nox']:
                vm.add(('x', k + 1, r))
            if k < 2 and not OPT['nox']:
                if r == 1:
                    for i in range(8): F.push([x_load_line(k + 1, 1, i)], 12, ('x', k + 1, 1), hi=True)
                if r == 2:
                    F.hi = [([x_load_line(k + 1, 0, i)], 12, ('x', k + 1, 0)) for i in range(8)] + F.hi
                    for i in range(8): F.push([x_load_line(k + 1, 2, i)], 12, ('x', k + 1, 2), hi=True)
        parked = 24 - sum(1 for g in F.lo if 'cvt' in ''.join(g[0]))
        need = need_by[k] - parked
        while need > 0:
            g = F.lo.pop(0); F.emit1(g)
            if 'cvt' in ''.join(g[0]): need -= 1
        zero_D(a, k)
        a(f"  s_waitcnt vmcnt({vm.after(('t', k))}) lgkmcnt(0)")
        a("  s_barrier")
        if k == 1: table_dma(a, 2)
        if k == 1:
            F.flush(hi=False, lo=True)
            F.push([f"  v_mov_b32 v{r}, 0" for r in range(16, 24)], 32)
            for i in range(NCH): F.push(stats_lines(0, i), OPT['stc'])
        if k == 2:
            for i in range(NCH): F.push(stats_lines(1, i), OPT['stc'])
        stamp(a)
        def hook(i, k=k):
            if k == 2 and i >= 3 and OPT['st3']:
                for l in stats_lines(2, i - 3): a(l)
            F.pop(OPT['cbud'], OPT['nhi'])
        conv_chunk(a, k, hook)
        if k < 2: a("  s_barrier")
        stamp(a)
    F.flush()
    ln_phase(a, lambda x: w_dma_block(x, 0), NCH - 3 if OPT['st3'] else 0)
    a("  s_waitcnt vmcnt(0) lgkmcnt(0)\n  s_barrier")
    if not OPT['w1late']: w_dma_block(a, 1)
    for i in range(CFG['D']): a(C.ds_text(i, 0, i))
    for s in range(12):
        for blk in range(2):
            a(f"  ds_read_b128 {Hf(blk,s)}, v{V_XR[blk]} offset:{32*s}")
    a(f"  s_waitcnt lgkmcnt({15 if OPT['hprog'] else 0})")
EPI_ORDER = [(0, s_) for s_ in range(12)] + [(1, s_) for s_ in range(12)]
def quad(blk, sI): return PARK + 4 * (blk * 12 + sI)
def epi_cvt(blk, sI, p, bounce):
    b = sI >> 1
    kind, r0 = ACCreg(blk, b); r0 += 8 * (sI & 1)
    L = []
    if kind == 'a':
        for e in range(8): L.append(f"  v_accvgpr_read_b32 v{bounce+e}, a{r0+e}")
        r0 = bounce
    L += [f"  v_cvt_pk_bf16_f32 v{p}, v{r0}, v{r0+1}", f"  v_cvt_pk_bf16_f32 v{p+1}, v{r0+2}, v{r0+3}",
          f"  v_cvt_pk_bf16_f32 v{p+2}, v{r0+4}, v{r0+5}", f"  v_cvt_pk_bf16_f32 v{p+3}, v{r0+6}, v{r0+7}"]
    return L
def park_group(g):
    blk, sI = EPI_ORDER[g]
    kind, _ = ACCreg(blk, sI >> 1)
    p = 16 if kind == 'a' else 16 + 4 * (g & 1)
    L = epi_cvt(blk, sI, p, 16)
    q = quad(blk, sI)
    L += [f"  v_accvgpr_write_b32 a{q+e}, v{p+e}" for e in range(4)]
    return L, (32 + (32 if kind == 'a' else 0))
def store_parked(i, spx):
    blk, sI = i // 12, i % 12
    q = quad(blk, sI)
    return f"  buffer_store_dwordx4 a[{q}:{q+3}], v{V_PX[blk]}, s[{S_OUT}:{S_OUT+3}], s{spx} offen offset:{32*sI}{['', ' nt', ' sc1', ' sc0 sc1'][OPT['stnt']]}"
class Epi:
    def __init__(self, a): self.a = a; self.g = 0
    def emit(self, n=1):
        pass
def epilogue(a):
    for g in range(24):
        blk, sI = g // 12, g % 12
        p = 16 + 4 * (g & 1)
        for t in epi_cvt(blk, sI, p, 40): a(t)
        a(f"  buffer_store_dwordx4 {vr(p,4)}, v{V_PX[blk]}, s[{S_OUT}:{S_OUT+3}], s{S_PXO} offen offset:{32*sI}")
def gen_fused(a, name="fused_kernel", nwg=256):
    CFG['accinit'] = 1
    a(kstart(name))
    h16 = lambda x: int(np.float16(x).view(np.uint16))
    a(f"""
  s_cmp_ge_u32 s2, {nwg}
  s_cbranch_scc1 {name}_done
  s_load_dwordx2 s[48:49], s[0:1], 0       ; x
  s_load_dwordx2 s[50:51], s[0:1], 32      ; out
  s_load_dwordx2 s[38:39], s[0:1], 48      ; ws
  v_lshrrev_b32 v1, 6, v0
  v_and_b32 v{V_LANE}, 63, v0
  s_nop 0
  v_readfirstlane_b32 s{S_W}, v1
  v_lshlrev_b32 v{R.V_L16}, 4, v{V_LANE}
""")
    a(f"""
  s_waitcnt lgkmcnt(0)
  s_mov_b32 s{R.S_WS}, s38
  s_and_b32 s{R.S_WS+1}, s39, 0xffff
  s_mov_b32 s{R.S_WS+2}, {NBLK*BLK}
  s_mov_b32 s{R.S_WS+3}, 0x20000
  s_add_u32 s{S_TB}, s38, {TBL_OFF}
  s_addc_u32 s{S_TB+1}, s39, 0
  s_and_b32 s{S_TB+1}, s{S_TB+1}, 0xffff
  s_mov_b32 s{S_TB+2}, {TBL_BYTES}
  s_mov_b32 s{S_TB+3}, 0x20000
  s_mov_b32 s{S_X}, s48
  s_and_b32 s{S_X+1}, s49, 0xffff
  s_mov_b32 s{S_X+2}, {NPX*384}
  s_mov_b32 s{S_X+3}, 0x20000
  s_mov_b32 s{S_OUT}, s50
  s_and_b32 s{S_OUT+1}, s51, 0xffff
  s_mov_b32 s{S_OUT+2}, {NPX*384}
  s_mov_b32 s{S_OUT+3}, 0x20000
  s_mov_b32 s{R.S_NA}, {hex(f2u(-GA))}
  s_mov_b32 s{R.S_S}, {hex(f2u(GS))}
  s_mov_b32 s85, {hex(f2u(GS * (1.0 - OPT['bias'] / 1000.0)))}
  s_mov_b32 s{R.S_NAH}, {hex(h16(-GA) | (h16(-GA) << 16))}
  s_mov_b32 s{R.S_SH}, {hex(h16(GS) | (h16(GS) << 16))}
  s_mov_b32 s{S_LO}, 0x05040100
  s_mov_b32 s{S_HI}, 0x07060302
  s_mov_b32 s{S_EPS}, {hex(f2u(1e-5))}
  s_mov_b32 s{S_INV}, {hex(f2u(1.0/192))}
  s_mul_i32 s{S_G0}, s{S_W}, 6144
""")
    for s in range(3):
        a(f"  s_add_u32 s{R.S_M[2*s]}, s{S_G0}, {s*BLK}")
        a(f"  s_add_u32 s{R.S_M[2*s+1]}, s{S_G0}, {s*BLK + 4096}")
    if OPT['prof'] or OPT['dumph']:
        a(f"""  s_add_u32 s44, s38, {STAMP_OFF}
  s_addc_u32 s45, s39, 0
  s_and_b32 s45, s45, 0xffff
  s_mov_b32 s46, {256*4*512}
  s_mov_b32 s47, 0x20000
  s_lshl_b32 s40, s2, 2
  s_add_u32 s40, s40, s{S_W}
  s_lshl_b32 s40, s40, 9
  s_add_u32 s52, s38, {H_OFF}
  s_addc_u32 s53, s39, 0
  s_and_b32 s53, s53, 0xffff
  s_mov_b32 s54, {NPX*384}
  s_mov_b32 s55, 0x20000""")
    stamp(a)
    a(f"  s_mov_b32 s{S_I}, 0")
    tile_coords(a)
    global_bases(a)
    table_dma(a, 0); table_dma(a, 1)
    x_loads(a, 0, 0); x_loads(a, 0, 1); x_loads(a, 0, 2)
    npf = 0
    if OPT['spf']:
        a(f"""  s_lshl_b32 s{S_T0}, s{S_TY}, 5
  s_sub_u32 s{S_T0}, s{S_T0}, 3
  s_max_i32 s{S_T0}, s{S_T0}, 0
  s_add_u32 s{S_T0}, s{S_T0}, s{S_W}
  s_lshl_b32 s{S_T0}, s{S_T0}, 9
  s_lshl_b32 s{S_T1}, s{S_TX}, 3
  s_sub_u32 s{S_T1}, s{S_T1}, 4
  s_max_i32 s{S_T1}, s{S_T1}, 0
  s_add_u32 s{S_T0}, s{S_T0}, s{S_T1}
  s_mul_i32 s{S_PF}, s{S_T0}, 384
  v_min_u32 v{V_TMP}, 47, v{V_LANE}
  v_lshlrev_b32 v{V_TMP}, 7, v{V_TMP}
  s_mov_b32 m0, {PFSCR}
  s_lshr_b32 s{S_T0}, s2, 3
  s_lshl_b32 s{S_T0}, s{S_T0}, 2
  s_add_u32 s{S_T0}, s{S_T0}, s{S_W}
  s_mul_i32 s{S_T0}, s{S_T0}, 5120
  v_lshlrev_b32 v16, 6, v{V_LANE}
  buffer_load_dword v16, s[{R.S_WS}:{R.S_WS+3}], s{S_T0} offen lds
  buffer_load_dword v16, s[{R.S_WS}:{R.S_WS+3}], s{S_T0} offen offset:1024 lds""")
        npf = 2
        for idx in range(20):
            a(f"  buffer_load_dword v{V_TMP}, s[{S_X}:{S_X+3}], s{S_PF} offen offset:{64*(idx&1)} lds")
            if idx & 1: a(f"  s_add_u32 s{S_PF}, s{S_PF}, {4*512*384}")
            npf += 1
    a(f"""
  v_add_u32 v{R.V_L16B}, {C.RB if CFG['ring5'] else 2*BLK}, v{R.V_L16}
  v_and_b32 v16, 31, v{V_LANE}             ; n
  v_lshrrev_b32 v17, 5, v{V_LANE}          ; hf
  v_lshrrev_b32 v18, 3, v16
  v_and_b32 v19, 7, v16
  s_lshl_b32 s{S_T0}, s{S_W}, 3
  v_add_u32 v18, s{S_T0}, v18
  v_lshl_add_u32 v20, v18, 9, v19
  s_movk_i32 s{S_T1}, 384
  v_mul_lo_u32 v20, v20, s{S_T1}
  v_lshl_add_u32 v{V_PX[0]}, v17, 4, v20
  v_add_u32 v{V_PX[1]}, {4*512*384}, v{V_PX[0]}
  v_lshl_add_u32 v20, v18, 3, v19
  s_movk_i32 s{S_T1}, {XPS}
  v_mul_lo_u32 v20, v20, s{S_T1}
  v_lshrrev_b32 v21, 1, v18                ; row>>1
  v_add_u32 v21, v21, v17                  ; + hf
  v_lshl_add_u32 v20, v21, 4, v20
  v_add_u32 v{V_XR[0]}, {XCH}, v20
  v_add_u32 v{V_XR[1]}, {XCH + 32*XPS + 32}, v20
  v_and_b32 v18, 0x13, v16
  v_bfe_u32 v19, v16, 2, 1
  v_lshl_or_b32 v18, v19, 3, v18
  v_bfe_u32 v19, v16, 3, 1
  v_lshl_or_b32 v18, v19, 2, v18
  v_lshlrev_b32 v19, 3, v17
  v_sub_u32 v18, v18, v19                  ; c(m) - 8hf
""")
    for d in range(4):
        for (base, reg) in ((0, 112), (16, 116)):
            a(f"""  v_cmp_eq_u32 vcc, {base+2*d}, v18
  v_mov_b32 v19, 0x3f80
  s_nop 1
  v_cndmask_b32 v20, 0, v19, vcc
  v_cmp_eq_u32 vcc, {base+2*d+1}, v18
  v_mov_b32 v19, 0x3f800000
  s_nop 1
  v_cndmask_b32 v21, 0, v19, vcc
  v_or_b32 v{reg+d}, v20, v21""")
    a(f"""  v_add_u32 v20, {IDOFF}, v{R.V_L16}
  ds_write_b128 v20, v[112:115]
  ds_write_b128 v20, v[116:119] offset:1024
  v_and_b32 v16, 15, v{V_LANE}             ; nh
  v_lshrrev_b32 v17, 4, v{V_LANE}          ; q
  v_lshrrev_b32 v18, 1, v17
  v_mul_u32_u24 v18, {PLANE}, v18
  v_lshl_add_u32 v18, v16, 5, v18
  v_and_b32 v19, 1, v17
  v_lshl_add_u32 v18, v19, 4, v18
  s_mul_i32 s{S_T0}, s{S_W}, {2*OS}
  s_add_u32 s{S_T0}, s{S_T0}, {SB}
  v_add_u32 v{V_B}, s{S_T0}, v18
  v_and_b32 v18, 1, v16                    ; mh
  v_bfe_u32 v19, v16, 1, 1                 ; par
  v_lshrrev_b32 v20, 2, v16                ; k'
  v_sub_u32 v21, v17, v18
  v_add_u32 v21, 1, v21
  v_lshlrev_b32 v21, 5, v21
  v_lshl_add_u32 v21, v19, 4, v21
  v_sub_u32 v22, 0, v20
  v_and_b32 v22, 3, v22
  v_lshl_add_u32 v21, v22, 2, v21
  s_lshl_b32 s{S_T0}, s{S_W}, 12
  s_add_u32 s{S_T0}, s{S_T0}, {TB[0]}
  v_add_u32 v{V_T}, s{S_T0}, v21
  v_lshlrev_b32 v21, 1, v20                ; 2k'
  v_add_u32 v22, 1, v21                    ; O: 2k'+1
  v_cmp_eq_u32 vcc, 0, v20
  v_mov_b32 v23, 8
  s_nop 1
  v_cndmask_b32 v21, v21, v23, vcc         ; E
  v_cmp_eq_u32 vcc, 1, v19
  s_nop 1
  v_cndmask_b32 v21, v22, v21, vcc         ; s
  v_mov_b32 v{V_IDX}, 0x4444
""")
    for g in range(4):
        a(f"""  v_cmp_le_u32 vcc, {2*g+2}, v21
  v_mov_b32 v22, {0xA << (4*g)}
  s_nop 1
  v_cndmask_b32 v22, 0, v22, vcc
  v_or_b32 v{V_IDX}, v{V_IDX}, v22""")
    a(f"""
  v_lshlrev_b32 v18, 4, v16                ; 2nh*8
  v_lshlrev_b32 v19, 1, v17                ; 2q'
  v_lshlrev_b32 v20, 4, v16
  s_lshl_b32 s{S_T0}, s{S_W}, 5
  s_add_u32 s{S_T0}, s{S_T0}, {XCH}
  v_add_u32 v20, s{S_T0}, v20
  s_movk_i32 s{S_T1}, {XPS}
  v_add_u32 v21, v18, v19
  v_mul_lo_u32 v21, v21, s{S_T1}
  v_add_u32 v{V_XW[0]}, v21, v20
  v_add_u32 v19, 7, v19
  v_and_b32 v19, 7, v19
  v_add_u32 v21, v18, v19
  v_mul_lo_u32 v21, v21, s{S_T1}
  v_add_u32 v{V_XW[1]}, v21, v20
""")
    for r in range(3):
        a(f"""  s_lshl_b32 s{S_T0}, s{S_W}, 6
  s_add_u32 s{S_T0}, s{S_T0}, {256*r}
  v_add_u32 v16, s{S_T0}, v{V_LANE}
  v_and_b32 v18, 7, v16                        ; o
  v_lshrrev_b32 v19, 4, v16                    ; row
  v_bfe_u32 v20, v16, 3, 1                     ; u
  v_mul_u32_u24 v18, {OS}, v18
  v_and_b32 v21, 1, v19
  v_mul_u32_u24 v21, {PLANE}, v21
  v_lshrrev_b32 v19, 1, v19
  v_lshl_add_u32 v21, v19, 5, v21
  v_lshl_add_u32 v21, v20, 4, v21
  v_add_u32 v21, v21, v18
  v_add_u32 v{V_SW[r]}, {SB}, v21""")
        if r == 2:
            a(f"""  s_movk_i32 s{S_T0}, 608
  v_cmp_gt_u32 vcc, s{S_T0}, v16
  v_add_u32 v17, {SDUMMY}, v{R.V_L16}
  s_nop 1
  v_cndmask_b32 v{V_SW[r]}, v17, v{V_SW[r]}, vcc""")
    a(f"  s_waitcnt vmcnt({npf})")
    a(f"  s_mov_b32 s{S_PXP}, 0x80000000")
    a(f"{name}_tile:")
    a(f"  s_mov_b32 s{S_PXO}, s{S_PXN}")
    stamp(a)
    phase_c(a)
    stamp(a)
    if OPT['dumph']:
        for blk in range(2):
            for s in range(12):
                a(f"  buffer_store_dwordx4 {Hf(blk,s)}, v{V_PX[blk]}, s[52:55], s{S_PXO} offen offset:{32*s}")
        a("  s_waitcnt vmcnt(6)" if False else "  s_waitcnt vmcnt(0)")
    core = Core(a)
    tc = Asm()
    tc(f"  s_add_u32 s{S_I}, s{S_I}, 1")
    tile_coords(tc)
    tc(f"""  s_lshl_b32 s{S_T0}, s{S_TY}, 5
  s_sub_u32 s{S_T0}, s{S_T0}, 3
  s_max_i32 s{S_T0}, s{S_T0}, 0
  s_add_u32 s{S_T0}, s{S_T0}, s{S_W}
  s_lshl_b32 s{S_T0}, s{S_T0}, 9
  s_lshl_b32 s{S_T1}, s{S_TX}, 3
  s_sub_u32 s{S_T1}, s{S_T1}, 4
  s_max_i32 s{S_T1}, s{S_T1}, 0
  s_add_u32 s{S_T0}, s{S_T0}, s{S_T1}
  s_mul_i32 s{S_PF}, s{S_T0}, 384
  s_cmp_ge_u32 s{S_I}, 4
  s_cselect_b32 s{S_PF}, 0x80000000, s{S_PF}""")
    tcl = [(l, 4) for l in tc.L]
    ex0 = [(f"  v_min_u32 v{V_TMP}, 47, v{V_LANE}", 4), (f"  v_lshlrev_b32 v{V_TMP}, 7, v{V_TMP}", 4)]
    if OPT['w1late']:
        wl = Asm(); w_dma_block(wl, 1)
        ex0 = [(l, 10 if 'buffer' in l else 4) for l in wl.L] + ex0
    ex0 = ex0 + tcl[:-2] + [(tcl[-2][0] + "\n" + tcl[-1][0], 8)]
    core.extra[0] = ex0
    core.fast_flush = {0}
    core.vmwait[0] = 0
    core.vmwait[1] = 0
    stplan = {}; xplan = {}
    xg = OPT['xg']
    if xg == 4:
        for g in range(6):
            stplan[1 + 4 * g] = [4 * g + e for e in range(4)]
            xplan[2 + 4 * g] = [4 * g + e for e in range(4)]
    elif xg == 2:
        for g in range(12): stplan[1 + g] = [2 * g, 2 * g + 1]
        for g in range(12): xplan[[2, 4, 6, 8, 10, 12, 14, 16, 18, 20, 21, 22][g]] = [2 * g, 2 * g + 1]
    elif xg == 1:
        for g in range(12): stplan[1 + g] = [2 * g, 2 * g + 1]
        for q in range(24): xplan.setdefault(2 + (q * 21) // 24, []).append(q)
    perj = {}
    for j in range(1, 24):
        ops = []; nv = 0
        for q in stplan.get(j, []):
            ops.append(([store_parked(q, S_PXP)], 6)); nv += 1
        for q in xplan.get(j, []):
            blk, sI = q // 12, q % 12
            ops.append(([f"  buffer_load_dwordx4 {Xf(blk,sI)}, v{V_PX[blk]}, s[{S_X}:{S_X+3}], s{S_PXO} offen offset:{32*sI} {['', 'nt', 'sc1', 'sc0 sc1'][OPT['xf']]}"], 6)); nv += 1
        if j in (4, 6):
            for gi_, g in enumerate(table_dma_ops(0 if j == 4 else 1)):
                ops.append((g, 6 + 4 * (len(g) - 1))); nv += 1
        if OPT['pf'] and j < 23:
            npf_ = 20 if OPT['pfh'] else 10
            step = OPT['pfs']; first = 23 - npf_ * step
            if j >= first and (j - first) % step == 0:
                idx = (j - first) // step
                t = [f"  s_mov_b32 m0, {PFSCR}", "  s_nop 0", f"  buffer_load_dword v{V_TMP}, s[{S_X}:{S_X+3}], s{S_PF} offen offset:{64 * (idx & 1) if OPT['pfh'] else 0} {['', 'nt', 'sc1', 'sc0 sc1'][OPT['pff']]} lds"]
                if (idx & 1) or not OPT['pfh']: t.append(f"  s_add_u32 s{S_PF}, s{S_PF}, {4*512*384}")
                ops.append((t, 14)); nv += 1
        perj[j] = (ops, nv)
    if CFG['ring5']:
        for j in range(1, 24, 2):
            o1, n1 = perj.get(j, ([], 0)); o2, n2 = perj.get(j + 1, ([], 0))
            core.pend_extra[j] = (o1, o2)
            core.vmwait[j + 2] = n2
    else:
        for j in range(1, 24):
            core.pend_extra[j] = perj[j][0]; core.vmwait[j + 1] = perj[j][1]
    core.extra[23] = []
    core.extra[24] = [(f"  v_add_u32 v56, {IDOFF}, v{R.V_L16}", 4), (f"  ds_read_b128 v[48:51], v56", 8), (f"  ds_read_b128 v[52:55], v56 offset:1024", 8)]
    ps = []
    for blk in range(2):
        for sI in range(12):
            ps.append((f"  v_mfma_f32_32x32x16_bf16 {ACC(blk,sI>>1)}, {vr(52 if sI&1 else 48,4)}, {Xf(blk,sI)}, {ACC(blk,sI>>1)}", []))
    if CFG['ring5']: ps[0] = (ps[0][0], ["  s_waitcnt vmcnt(0)"])
    core.pseudo[24] = ps
    core.extra_first.add(24)
    core.no_barrier.add(25)
    if not CFG['ring5']: core.vmwait[24] = 0
    core.emit(0, 1); core.emit(1, 2)
    if OPT['prof'] >= 2:
        a(f"  v_mov_b32 v47, v{V_TMP}"); stamp(a); a(f"  v_mov_b32 v{V_TMP}, v47")
    for j in range(2, 24): core.emit(j, j + 1)
    if OPT['prof'] >= 2: stamp(a)
    core.emit(24, 25)
    if OPT['prof'] >= 2: stamp(a)
    emit_tail(a, core)
    stamp(a)
    a(f"""  s_cmp_ge_u32 s{S_I}, 4
  s_cbranch_scc1 {name}_last""")
    a("  s_barrier")
    a(f"  s_mov_b32 s{S_PXP}, s{S_PXO}")
    stamp(a)
    a(f"  s_branch {name}_tile")
    a(f"{name}_last:")
    a("  s_nop 15")
    epilogue(a)
    stamp(a)
    a("  s_waitcnt vmcnt(0)")
    stamp(a)
    a(f"""  s_waitcnt vmcnt(0)
{name}_done:
  s_endpgm
""")
    a(kdesc(name, 512, 100, 256))
def emit_loop(a, self, name):
    for j in range(2, 25): self.emit(j, j + 1)
def emit_tail(a, core):
    ch, Pf = core.plan(25, None)
    main = [l for c in ch for l in c]
    for tx, c in core.pending: main += tx
    core.pending = []
    f = []
    f += global_bases_lines(96)
    f += [x_load_line(0, 0, i) for i in range(8)]
    f += [x_load_line(0, 1, i) for i in range(8)]
    f += [x_load_line(0, 2, i) for i in range(8)]
    fi = 0
    nm = sum(1 for l in main if "v_mfma" in l); per = -(-len(f) // nm)
    for l in main:
        a(l)
        if "v_mfma" in l:
            for _ in range(per):
                if fi < len(f): a(f[fi]); fi += 1
    while fi < len(f): a(f[fi]); fi += 1
    vm.ops.clear(); vm.add(('t', 0), 5); vm.add(('t', 1), 5); vm.add(('x', 0, 0), 8); vm.add(('x', 0, 1), 8); vm.add(('x', 0, 2), 8)
```

```python
from asmlib import *
BLK = 24576
NBLK = 26
CFG = dict(ring5=0, pacew=38, D=3, NF=4, nogelu=0, nobar=0, nods=0, nodma=0, gelu='mix', dsc=12, dmac=14, gap=32, accinit=0)
class R:
    V_L16 = 5; V_L16B = 4
    T = 16
    G0 = [24, 28]
    G1 = [[32, 36], [40, 44]]
    S = [[48, 64], [80, 96]]
    WF0 = 144
    S_WS = 4
    S_NA = 25; S_S = 26; S_CNT = 27
    S_G = 22; S_G2 = 23
    S_M = [56, 57, 58, 59, 60, 61]
    S_NAH = 36; S_SH = 37; S_D = 85; S_G0 = 32
    RING = 0
def ACC(blk, b):
    i = blk * 6 + b
    return f"v[{112+16*i}:{112+16*i+15}]" if i < 9 else f"a[{16*(i-9)}:{16*(i-9)+15}]"
def ACCreg(blk, b):
    i = blk * 6 + b
    return ('v', 112 + 16 * i) if i < 9 else ('a', 16 * (i - 9))
def Hf(blk, s): r = 48 + 48 * blk + 4 * s; return f"a[{r}:{r+3}]"
def WFr(k): r = R.WF0 + 4 * k; return f"a[{r}:{r+3}]"
def gelu_pair(x0, x1, t0, t1, g):
    if CFG['gelu'] == 'f32':
        return [
            (f"  v_fma_f32 v{t0}, -v{x0}, v{x0}, s{R.S_NA}", 4),
            (f"  v_fma_f32 v{t1}, -v{x1}, v{x1}, s{R.S_NA}", 4),
            (f"  v_mul_f32 v{t0}, v{t0}, v{x0}", 4),
            (f"  v_mul_f32 v{t1}, v{t1}, v{x1}", 4),
            (f"  v_exp_f32 v{t0}, v{t0}", 8),
            (f"  v_exp_f32 v{t1}, v{t1}", 8),
            (f"  v_fma_f32 v{t0}, v{t0}, s{R.S_D}, s{R.S_D}", 4),
            (f"  v_fma_f32 v{t1}, v{t1}, s{R.S_D}, s{R.S_D}", 4),
            (f"  v_rcp_f32 v{t0}, v{t0}", 8),
            (f"  v_rcp_f32 v{t1}, v{t1}", 8),
            (f"  v_mul_f32 v{t0}, v{x0}, v{t0}", 4),
            (f"  v_mul_f32 v{t1}, v{x1}, v{t1}", 4),
            (f"  v_cvt_pk_bf16_f32 v{g}, v{t0}, v{t1}", 4),
        ]
    else:
        return [
            (f"  v_cvt_pk_f16_f32 v{t0}, v{x0}, v{x1}", 4),
            (f"  v_pk_fma_f16 v{t1}, v{t0}, v{t0}, s{R.S_NAH} neg_lo:[1,0,0] neg_hi:[1,0,0]", 4),
            (f"  v_pk_mul_f16 v{t1}, v{t1}, v{t0}", 4),
            (f"  v_exp_f16_sdwa v{t0}, v{t1} dst_sel:WORD_0 dst_unused:UNUSED_PRESERVE src0_sel:WORD_0", 8),
            (f"  v_exp_f16_sdwa v{t0}, v{t1} dst_sel:WORD_1 dst_unused:UNUSED_PRESERVE src0_sel:WORD_1", 8),
            (f"  v_pk_fma_f16 v{t0}, v{t0}, s{R.S_SH}, s{R.S_SH}", 4),
            (f"  v_rcp_f16_sdwa v{t1}, v{t0} dst_sel:WORD_0 dst_unused:UNUSED_PRESERVE src0_sel:WORD_0", 8),
            (f"  v_rcp_f16_sdwa v{t1}, v{t0} dst_sel:WORD_1 dst_unused:UNUSED_PRESERVE src0_sel:WORD_1", 8),
            (f"  v_fma_mix_f32 v{t0}, v{x0}, v{t1}, 0 op_sel_hi:[0,1,0]", 4),
            (f"  v_fma_mix_f32 v{t1}, v{x1}, v{t1}, 0 op_sel:[0,1,0] op_sel_hi:[0,1,0]", 4),
            (f"  v_cvt_pk_bf16_f32 v{g}, v{t0}, v{t1}", 4),
        ]
def gelu_chains(buf, els, Gdst):
    out = []
    for pi in range(0, len(els), 2):
        for blk in range(2):
            Sr = R.S[buf][blk]
            slot = (len(out)) % 4
            t0 = R.T + 2 * slot
            ops = gelu_pair(Sr + els[pi], Sr + els[pi + 1], t0, t0 + 1, Gdst[blk] + pi // 2)
            if CFG['gelu'] == 'f32':
                deps = [[], [], [0], [1], [2], [3], [4], [5], [6], [7], [8], [9], [10, 11]]
            else:
                deps = [[], [0], [1], [2], [2, 3], [4], [5], [5, 6], [7], [7, 8], [8, 9]]
            out.append([(t, c, d) for (t, c), d in zip(ops, deps)])
    return out
class Chains:
    def __init__(self, chains):
        self.ch = chains; self.done = [[None] * len(c) for c in chains]; self.n = 0
        self.first = 0
    def remaining(self):
        return sum(c for ci, ch in enumerate(self.ch) for oi, (t, c, d) in enumerate(ch) if self.done[ci][oi] is None)
    def chain_done(self, ci): return all(x is not None for x in self.done[ci])
    def ready(self):
        r = []
        while self.first < len(self.ch) and self.chain_done(self.first): self.first += 1
        for ci in range(self.first, min(len(self.ch), self.first + 4)):
            for oi, (t, c, d) in enumerate(self.ch[ci]):
                if self.done[ci][oi] is not None: continue
                if all(self.done[ci][x] is not None and self.n - self.done[ci][x] >= 2 for x in d):
                    r.append((ci, oi, c))
        return r
    def take(self, ci, oi):
        self.done[ci][oi] = self.n; self.n += 1
        return self.ch[ci][oi][0], self.ch[ci][oi][1]
    def tick(self): self.n += 1
    def upto_done(self, k): return all(self.chain_done(c) for c in range(min(k, len(self.ch))))
def iter_frags(j):
    L = []
    if j < 24:
        for s in range(12):
            mk = []
            for blk in range(2):
                Sd = vr(R.S[j & 1][blk], 16); c = "0" if s == 0 else Sd
                mk.append(lambda wf, Sd=Sd, c=c, h=Hf(blk, s): f"  v_mfma_f32_32x32x16_bf16 {Sd}, {wf}, {h}, {c}")
            L.append((s, 1, mk))
    if 2 <= j <= 25:
        for b in range(6):
            mk = [(lambda wf, ac=ACC(blk, b), g=vr(R.G1[(j - 2) & 1][blk], 4): f"  v_mfma_f32_32x32x16_bf16 {ac}, {wf}, {g}, {ac}") for blk in range(2)]
            L.append((12 + b, 2, mk))
    if 1 <= j <= 24:
        for b in range(6):
            mk = [(lambda wf, ac=ACC(blk, b), g=vr(R.G0[blk], 4), c0=(j == 1 and CFG['accinit']): f"  v_mfma_f32_32x32x16_bf16 {ac}, {wf}, {g}, {'0' if c0 else ac}") for blk in range(2)]
            L.append((18 + b, 3, mk))
    return L
RB = 61440
def slot_of(j): return j % 5 if CFG['ring5'] else j % 3
def ds_text(kb, j, fidx):
    off = R.RING + slot_of(j) * BLK + fidx * 1024
    if CFG['ring5']:
        if off < RB: return f"  ds_read_b128 {WFr(kb)}, v{R.V_L16} offset:{off}"
        return f"  ds_read_b128 {WFr(kb)}, v{R.V_L16B} offset:{off - RB}"
    if (j % 3) < 2:
        return f"  ds_read_b128 {WFr(kb)}, v{R.V_L16} offset:{off}"
    return f"  ds_read_b128 {WFr(kb)}, v{R.V_L16B} offset:{off - (R.RING + 2*BLK)}"
def m0_set(jb, half):
    if CFG['ring5']: return f"  s_add_u32 m0, s{R.S_G0}, {R.RING + slot_of(jb) * BLK + 4096 * half}"
    return f"  s_mov_b32 m0, s{R.S_M[2*(jb%3)+half]}"
def dma_ops(jb):
    if jb >= NBLK: return []
    def dma(off, sg):
        return "  s_nop 0" if CFG['nodma'] else f"  buffer_load_dwordx4 v{R.V_L16}, s[{R.S_WS}:{R.S_WS+3}], s{sg} offen offset:{off} lds"
    c = CFG['dmac'] - 8
    return [
        ([m0_set(jb, 0), "  s_nop 0", dma(0, R.S_G)], c + 8),
        ([dma(1024, R.S_G)], c), ([dma(2048, R.S_G)], c), ([dma(3072, R.S_G)], c),
        ([m0_set(jb, 1), f"  s_add_u32 s{R.S_G}, s{R.S_G}, {BLK}", dma(0, R.S_G2)], c + 8),
        ([dma(1024, R.S_G2), f"  s_add_u32 s{R.S_G2}, s{R.S_G2}, {BLK}"], c + 4),
    ]
class Core:
    def __init__(self, a):
        self.a = a; self.k = 0; self.pending = []
        self.over = 0
        self.pace = 0.0; self.pace_acc = 0.0
        self.no_barrier = set()
        self.extra_first = set()
        self.pseudo = {}
        self.fast_flush = set()
        self.pend_extra = {}
        self.vmwait = {}
        self.extra = {}
    def plan(self, j, jn):
        D = CFG['D']; NF = CFG['NF']
        F = iter_frags(j); Fn = iter_frags(jn) if jn is not None else []
        nf = len(F); n = 2 * nf
        Pf = max(0, nf - D)
        chains = []
        nva = 0
        if 1 <= j <= 24 and not CFG['nogelu']:
            buf = (j - 1) & 1
            va = gelu_chains(buf, list(range(0, 8)), R.G0); vb = gelu_chains(buf, list(range(8, 16)), R.G1[buf])
            chains = va + vb; nva = len(va)
        slots = []
        pend = list(self.pending)
        sync_at = None
        for fi in range(nf):
            t = fi + D
            pre = []
            sync_here = fi == Pf and (not CFG['ring5'] or j == 0 or (j & 1))
            if sync_here:
                for tx, c in pend: pre += tx
                pend = []
                if not CFG['nobar'] and j not in self.no_barrier: pre += [f"  s_waitcnt vmcnt({self.vmwait.get(j, 0)})", "  s_barrier"]
                if CFG['ring5']:
                    blocks = (2, 3) if j == 0 else (j + 3, j + 4)
                    e1, e2 = self.pend_extra.get(j, ([], []))
                    pend = dma_ops(blocks[0]) + list(e1) + dma_ops(blocks[1]) + list(e2)
                    self.pace = 0.0 if j == 0 else min(2.0, CFG['pacew'] / max(1, len(pend)))
                    self.pace_acc = 0.0
                else:
                    pend = dma_ops(j + 2) + list(self.pend_extra.get(j, []))
            rd = []
            if not CFG['nods']:
                if t < nf: rd = [ds_text((self.k + t) % NF, j, F[t][0])]
                elif jn is not None: rd = [ds_text((self.k + t) % NF, j + 1, Fn[t - nf][0])]
            slots.append((pre, rd, CFG['dsc'] if rd else 8))
            can = True
            if CFG['ring5'] and self.pace > 1.0:
                self.pace_acc += 1.0
                can = self.pace_acc >= self.pace
                if can and pend: self.pace_acc -= self.pace
            if not CFG['nods'] and fi % 2 == 1:
                if len(pend) > self.over and can:
                    tx, c = pend.pop(0)
                    slots.append(([], [f"  s_waitcnt lgkmcnt({D-2})"] + list(tx), 12 + c))
                else:
                    slots.append(([], [f"  s_waitcnt lgkmcnt({D-2})"], 8))
            elif pend and can:
                tx, c = pend.pop(0)
                tx = list(tx)
                if j in self.fast_flush and fi >= Pf:
                    while pend:
                        t2, c2 = pend.pop(0); tx += t2; c += c2 + 4
                slots.append(([], tx, 8 + c))
            else:
                slots.append(([], [], 8))
        self.pending = pend
        ex = list(self.extra.get(j, []))
        gi = 0
        while ex:
            per = -(-len(ex) // max(1, (2 * Pf - gi))) if j not in self.extra_first else len(ex)
            pre_, tx_, c_ = slots[gi]
            add_ = ex[:per]; ex = ex[per:]
            slots[gi] = (pre_, list(tx_) + [t for t, _ in add_], c_ + sum(c for _, c in add_))
            gi += 1
        mtext = []; mslots = []; mgrp = []; fragend = []
        ps = list(self.pseudo.get(j, []))
        cnts = [0] * nf
        if ps:
            for q in range(len(ps)): cnts[2 + (q * (nf - 2)) // len(ps)] += 1
        for fi, (fidx, grp, mk) in enumerate(F):
            kb = (self.k + fi) % NF
            mtext.append(mk[0](WFr(kb))); mslots.append(slots[2 * fi]); mgrp.append(grp)
            mtext.append(mk[1](WFr(kb))); mslots.append(slots[2 * fi + 1]); mgrp.append(grp)
            for _ in range(cnts[fi]):
                if ps:
                    t_, pre_ = ps.pop(0)
                    mtext.append(t_); mslots.append((pre_, [], 8)); mgrp.append(0)
            fragend.append(len(mtext))
        assert not ps
        n = len(mtext); slots = mslots
        G = CFG['gap']
        base = [slots[i][2] for i in range(n)]
        for i in range(1, n): base[i - 1] += 4 * len(slots[i][0])
        sched = [[] for _ in range(n)]
        CH = Chains(chains)
        first3 = next((i for i in range(n) if mgrp[i] == 3), None)
        carry = 0.0
        for i in range(n):
            tcur = base[i]
            CH.tick()
            cap = sum(max(0, G - base[q]) for q in range(i, n))
            excess = CH.remaining() - cap
            if excess > 0: carry += excess * 1.0 / (n - i)
            while True:
                rdy = CH.ready()
                if not rdy:
                    if CH.remaining() > 0 and (i == n - 1 or (first3 is not None and i >= first3 - 2 and not CH.upto_done(nva))):
                        sched[i].append(("  s_nop 0", 4)); CH.tick(); tcur += 4; continue
                    break
                must = i == n - 1 or (first3 is not None and i >= first3 - 2 and not CH.upto_done(nva))
                need = G - tcur
                pick = None
                fit = [r for r in rdy if r[2] <= need]
                if fit:
                    pick = fit[0]
                    if need == 8:
                        ex = [r for r in fit if r[2] == 8]
                        pl = [r for r in rdy if r[2] == 4]
                        if ex and len(pl) < 2: pick = ex[0]
                elif must:
                    pick = rdy[0]
                else:
                    over = [(r, tcur + r[2] - max(G, tcur)) for r in rdy]
                    over.sort(key=lambda x: x[1])
                    if need > 0 and excess > 0:
                        pick = over[0][0]; carry -= over[0][1]
                    elif over[0][1] <= carry:
                        pick = over[0][0]; carry -= over[0][1]
                if pick is None: break
                tx, c = CH.take(pick[0], pick[1])
                sched[i].append((tx, c)); tcur += c
        assert CH.remaining() == 0
        chunks = []
        m0 = 0
        for fi in range(nf):
            L = []
            for m in range(m0, fragend[fi]):
                L += slots[m][0]
                if j == 24 and m == first3: L.append("  s_nop 1")
                L.append(mtext[m]); L += slots[m][1]
                L += [t for t, _ in sched[m]]
            m0 = fragend[fi]
            chunks.append(L)
        self.k = (self.k + nf) % NF
        return chunks, Pf
    def emit(self, j, jn):
        ch, Pf = self.plan(j, jn)
        if j == 1: self.a("  s_nop 11")
        for L in ch:
            for t in L: self.a(t)
    def emit_tile(self, name):
        a = self.a
        self.emit(0, 1); self.emit(1, 2)
        a(f"  s_mov_b32 s{R.S_CNT}, 4")
        k0 = self.k; p0 = list(self.pending)
        a(".p2align 6")
        a(f"{name}_loop:")
        a(f"  s_sub_u32 s{R.S_CNT}, s{R.S_CNT}, 1")
        self.emit(2, 3); self.emit(3, 4); self.emit(4, 5)
        ks = self.k; ps = list(self.pending)
        ch, Pf = self.plan(5, 6)
        for L in ch[:Pf]:
            for t in L: a(t)
        a(f"  s_cmp_eq_u32 s{R.S_CNT}, 0")
        a(f"  s_cbranch_scc1 {name}_exit")
        for L in ch[Pf:]:
            for t in L: a(t)
        self.emit(6, 7); self.emit(7, 8)
        assert self.k == k0 and self.pending == p0, (self.k, k0)
        a(f"  s_branch {name}_loop")
        a(f"{name}_exit:")
        self.k = ks; self.pending = ps
        ch, Pf = self.plan(23, 24)
        for L in ch[Pf:]:
            for t in L: a(t)
        self.emit(24, 25); self.emit(25, None)
        for tx, c in self.pending:
            for t in tx: a(t)
        self.pending = []
```

```python
from asmlib import *
import mlpcore as C
from mlpcore import R, ACC, ACCreg, Hf, WFr, Core, BLK, NBLK, CFG
from k_prep2 import TBL_OFF, TBL_BYTES
import numpy as np
TB = [122880, 140288]
OS = 9744; CS = 1216; PLANE = 608
SB = 34816
SDUMMY = SB + 8 * OS
XCH = 49152; XPS = 416
STATS = 24576
IDOFF = 159872
PFSCR = IDOFF + 2048
LDS_BYTES = PFSCR + 256
assert SDUMMY + 1024 + 7 * CS + 16 <= IDOFF and XCH + 106736 <= IDOFF and LDS_BYTES <= 163840
V_LANE = 0
V_SW = [1, 2, 9]
V_TMP = 3
V_PX = [6, 7]
V_B = 8
V_T = 10
V_IDX = 11
V_XW = [12, 13]
V_XR = [14, 15]
V_GA = [24, 26, 30]; V_GB = [25, 27, 31]
AF = [32, 40]
XR = [48, 80]
XA2 = 96
PT = [32, 40]
def Darch(k, i):
    idx = 16 * k + i
    return 112 + 4 * idx if idx < 36 else 48 + 4 * (idx - 36)
def Dreg(k, i): return ('v', Darch(k, i))
BF = [48, 64, 80]
PARK = 160
S_ST = [78, 79, 80, 81]
def Xf(blk, s):
    r = 160 + 48 * blk + 4 * s; return f"a[{r}:{r+3}]"
S_X = 8; S_OUT = 12; S_TB = 16
S_W = 20; S_I = 21; S_T0 = 28; S_T1 = 29; S_PXO = 30; S_PXN = 31; S_G0 = 32; S_LO = 33; S_HI = 34
S_TX = 64; S_TY = 65; S_TM = 66; S_TG = 67; S_EPS = 68; S_INV = 69
NPX = 512 * 512
STAMP_OFF = 300 << 20
H_OFF = 1 << 20
OPT = dict(dumph=0, prof=0, pf=1, st=3, sbud=70, cbud=20, stc=20, nhi=2, stnt=0, xnt=0, pfn=1, nox=0, nopark=0, sst=11, spf=0, nhs=2, st3=1, hprog=1, samex=0, pfh=0, pfs=1, w1late=0, xg=2, pff=2, xf=0, bias=0, r2late=1, linfin=1)
COLS = [0, 1, 8, 9, 2, 3, 10, 11]
S_PXP = 74
S_PF = 75
V_PFA = 3
class VM:
    def __init__(self): self.ops = []
    def add(self, tag, n=1): self.ops += [tag] * n
    def after(self, tag):
        i = max(k for k, t in enumerate(self.ops) if t == tag)
        return len(self.ops) - 1 - i
vm = VM()
def stamp(a):
    if not OPT['prof']: return
    a(f"""  s_memtime s[42:43]
  s_memrealtime s[62:63]
  s_waitcnt lgkmcnt(0)
  v_mov_b32 v{V_TMP}, s42
  s_nop 0
  buffer_store_dword v{V_TMP}, off, s[44:47], s40
  s_nop 1
  v_mov_b32 v{V_TMP}, s62
  s_nop 0
  buffer_store_dword v{V_TMP}, off, s[44:47], s40 offset:256
  s_add_u32 s40, s40, 4""")
def tile_coords(a):
    a(f"""  s_and_b32 s{S_T0}, s2, 7
  s_lshl_b32 s{S_T0}, s{S_T0}, 3
  s_lshr_b32 s{S_T1}, s2, 3
  s_and_b32 s{S_TX}, s{S_T1}, 7
  s_add_u32 s{S_TX}, s{S_TX}, s{S_T0}
  s_lshr_b32 s{S_T1}, s{S_T1}, 3
  s_lshl_b32 s{S_TY}, s{S_I}, 2
  s_add_u32 s{S_TY}, s{S_TY}, s{S_T1}          ; ty = 4*i + (c>>3)
  s_lshl_b32 s{S_T0}, s{S_TY}, 14              ; y0*512 = ty*32*512
  s_lshl_b32 s{S_T1}, s{S_TX}, 3
  s_add_u32 s{S_T0}, s{S_T0}, s{S_T1}
  s_mul_i32 s{S_PXN}, s{S_T0}, 384""")
def global_bases_lines(t):
    L = []
    if OPT['samex']: L += [f"  s_mov_b32 s{S_TX}, 5", f"  s_mov_b32 s{S_TY}, 5"]
    L += f"""  s_lshl_b32 s88, s{S_TY}, 5
  s_sub_u32 s88, s88, 3
  s_lshl_b32 s89, s{S_TX}, 3
  s_sub_u32 s89, s89, 4
  s_lshl_b32 s90, s{S_W}, 2
  s_add_u32 s88, s88, s90
  s_movk_i32 s90, 384
  s_movk_i32 s91, 512
  v_lshrrev_b32 v{t}, 4, v{V_LANE}
  v_bfe_u32 v{t+1}, v{V_LANE}, 3, 1
  v_and_b32 v{t+2}, 7, v{V_LANE}
  v_lshl_add_u32 v{t+1}, v{t+1}, 2, s89
  v_add_u32 v{t}, s88, v{t}
  v_add_u32 v{t+3}, 8, v{t+1}
  v_cmp_gt_u32 s[70:71], s91, v{t+1}
  v_cmp_gt_u32 s[72:73], s91, v{t+3}
  v_lshl_add_u32 v{t+3}, v{t}, 9, v{t+1}
  v_mul_lo_u32 v{t+3}, v{t+3}, s90
  v_lshl_add_u32 v{t+3}, v{t+2}, 4, v{t+3}
  v_mov_b32 v{t+4}, 0x80000000""".split("\n")
    for r in range(3):
        if r > 0:
            L += [f"  v_add_u32 v{t}, 16, v{t}", f"  v_add_u32 v{t+3}, {16*512*384}, v{t+3}"]
        L += [f"  v_cmp_gt_u32 vcc, s91, v{t}"]
        if r == 2:
            L += [f"  v_lshrrev_b32 v{t+5}, 4, v{V_LANE}", f"  s_lshl_b32 s86, s{S_W}, 2", f"  v_add_u32 v{t+5}, s86, v{t+5}",
                  f"  v_cmp_gt_u32 s[86:87], 6, v{t+5}", "  s_nop 0", "  s_and_b64 vcc, vcc, s[86:87]"]
        L += [f"  v_add_u32 v{t+6}, {8*384}, v{t+3}",
              "  s_and_b64 s[92:93], s[70:71], vcc",
              "  s_and_b64 s[94:95], s[72:73], vcc",
              "  s_nop 1",
              f"  v_cndmask_b32 v{V_GA[r]}, v{t+4}, v{t+3}, s[92:93]",
              f"  v_cndmask_b32 v{V_GB[r]}, v{t+4}, v{t+6}, s[94:95]"]
    return L
def global_bases(a, t=128):
    for l in global_bases_lines(t): a(l)
def x_load_line(k, r, i):
    col = COLS[i]
    base = V_GA[r] if col < 8 else V_GB[r]
    off = (col & 7) * 384 + k * 128
    dst = vr(XR[r] + 4 * i, 4) if r < 2 else f"a[{XA2+4*i}:{XA2+4*i+3}]"
    return f"  buffer_load_dwordx4 {dst}, v{base}, s[{S_X}:{S_X+3}], 0 offen offset:{off}"
class Fill:
    def __init__(self, a): self.a = a; self.hi = []; self.lo = []
    def push(self, lines, cost, tag=None, hi=False): (self.hi if hi else self.lo).append((lines, cost, tag))
    def emit1(self, g):
        for l in g[0]: self.a(l)
        if g[2] is not None: vm.add(g[2])
    def pop(self, budget, nhi=1):
        n = 0
        while self.hi and n < nhi:
            g = self.hi.pop(0); self.emit1(g); budget -= g[1]; n += 1
        while self.lo and budget >= self.lo[0][1] * 0.6:
            g = self.lo.pop(0); self.emit1(g); budget -= g[1]
    def flush(self, hi=True, lo=True, n=None):
        if hi:
            while self.hi: self.emit1(self.hi.pop(0))
        if lo:
            c = 0
            while self.lo and (n is None or c < n): self.emit1(self.lo.pop(0)); c += 1
def x_loads(a, k, r):
    for i in range(8): a(x_load_line(k, r, i))
    vm.add(('x', k, r), 8)
def stage_round(a, k, r, hook=None):
    src = XR[r] if r < 2 else XR[0]
    if r == 2:
        for e in range(32): a(f"  v_accvgpr_read_b32 v{XR[0]+e}, a{XA2+e}")
    for d in range(4):
        if hook: hook(d)
        T = PT[d & 1]
        for p in range(4):
            x0 = src + 4 * (2 * p) + d; x1 = src + 4 * (2 * p + 1) + d
            a(f"  v_perm_b32 v{T+p}, v{x1}, v{x0}, s{S_LO}")
        for p in range(4):
            x0 = src + 4 * (2 * p) + d; x1 = src + 4 * (2 * p + 1) + d
            a(f"  v_perm_b32 v{T+4+p}, v{x1}, v{x0}, s{S_HI}")
        a(f"  ds_write_b128 v{V_SW[r]}, {vr(T,4)} offset:{(2*d)*CS}")
        a(f"  ds_write_b128 v{V_SW[r]}, {vr(T+4,4)} offset:{(2*d+1)*CS}")
def table_dma_ops(k):
    d = lambda q: f"  buffer_load_dwordx4 v{R.V_L16}, s[{S_TB}:{S_TB+3}], s{S_TG} offen offset:{1024*q} lds"
    return [
        [f"  s_lshl_b32 s{S_TM}, s{S_W}, 12", f"  s_add_u32 s{S_TG}, s{S_TM}, {k*16384}", f"  s_add_u32 m0, s{S_TM}, {TB[k&1]}", "  s_nop 0", d(0)],
        [d(1)], [d(2)], [d(3)],
        [f"  s_mov_b32 m0, {TB[k&1] + 16384}", f"  s_mov_b32 s{S_TG}, {(k+1)*16384}", d(0)],
    ]
def table_dma(a, k):
    for g in table_dma_ops(k):
        for l in g: a(l)
    vm.add(('t', k), 5)
NCH = 16
def conv_chunk(a, k, hook=None):
    def chan_off(i): j, e = i >> 3, i & 7; return j * OS + e * CS
    def tab_off(i): j, e = i >> 3, i & 7; return TB[k & 1] - TB[0] + j * 2048 + e * 256
    def rdA(i):
        A = AF[i & 1]
        return [f"  ds_read_b32 v{A}, v{V_T} offset:{tab_off(i)}", f"  ds_read_b32 v{A+4}, v{V_T} offset:{tab_off(i)+128}"]
    def rdB(i):
        B = BF[i % 3]
        return [f"  ds_read_b128 a[{B+4*q}:{B+4*q+3}], v{V_B} offset:{chan_off(i)+32*q}" for q in range(4)]
    for t in rdA(0) + rdB(0) + rdB(1): a(t)
    for i in range(NCH):
        A = AF[i & 1]; B = BF[i % 3]
        kind, D = Dreg(k, i)
        Dt = f"{kind}[{D}:{D+3}]"
        nxtA = rdA(i + 1) if i + 1 < NCH else []
        nxtB = rdB(i + 2) if i + 2 < NCH else []
        a(f"  s_waitcnt lgkmcnt({4 if i + 1 < NCH else 0})")
        for t in nxtA: a(t)
        for h in range(2):
            for g in range(3):
                a(f"  v_mov_b32_dpp v{A+4*h+1+g}, v{A+4*h} row_ror:{4*(g+1)} row_mask:0xf bank_mask:0xf")
            rb = nxtB[2*h:2*h+2]
            for t in rb: a(t)
            if len(rb) < 2: a("  s_nop 1")
            a(f"  v_smfmac_f32_16x16x64_bf16 {Dt}, {vr(A+4*h,4)}, a[{B+8*h}:{B+8*h+7}], v{V_IDX}")
        if hook: hook(i)
def zero_D(a, k):
    L = [f"  v_mov_b32 v{r}, 0" for r in range(44, 48)] + ["  s_nop 1"]
    for q in range(4):
        base = Darch(k, 4 * q)
        L.append(f"  v_mfma_f32_32x32x16_bf16 v[{base}:{base+15}], v[44:47], v[44:47], 0")
    for l in L: a(l)
def stats_lines(k, i):
    D = Darch(k, i)
    return [f"  v_pk_add_f32 v[16:17], v[16:17], v[{D}:{D+1}]", f"  v_pk_add_f32 v[18:19], v[18:19], v[{D+2}:{D+3}]",
            f"  v_pk_fma_f32 v[20:21], v[{D}:{D+1}], v[{D}:{D+1}], v[20:21]", f"  v_pk_fma_f32 v[22:23], v[{D+2}:{D+3}], v[{D+2}:{D+3}], v[22:23]"]
def move_lines(k, i):
    D = Darch(k, i); A = Dreg(k, i)[1]
    return [f"  v_accvgpr_read_b32 v{D+e}, a{A+e}" for e in range(4)]
def ln_phase(a, wdma, done3):
    a("  s_nop 7")
    for i in range(done3, NCH):
        for l in stats_lines(2, i): a(l)
    a(f"""  s_lshl_b32 s{S_T0}, s{S_W}, 11
  s_add_u32 s{S_T0}, s{S_T0}, {STATS}
  v_add_u32 v24, s{S_T0}, v{R.V_L16}
  v_add_u32 v25, {STATS}, v{R.V_L16}
  ds_write_b128 v24, v[16:19]
  ds_write_b128 v24, v[20:23] offset:1024
  s_waitcnt lgkmcnt(0)
  s_barrier""")
    for w in range(4):
        a(f"  ds_read_b128 v[{96+4*w}:{99+4*w}], v25 offset:{2048*w}")
    for w in range(4):
        a(f"  ds_read_b128 v[{28+4*w}:{31+4*w}], v25 offset:{2048*w+1024}")
    wl = Asm(); wdma(wl); wl = [l for l in wl.L]
    for l in wl[:8]: a(l)
    wl = wl[8:]
    a("  s_waitcnt lgkmcnt(4)")
    a("""  v_pk_add_f32 v[96:97], v[96:97], v[100:101]
  v_pk_add_f32 v[98:99], v[98:99], v[102:103]
  v_pk_add_f32 v[104:105], v[104:105], v[108:109]
  v_pk_add_f32 v[106:107], v[106:107], v[110:111]
  v_pk_add_f32 v[96:97], v[96:97], v[104:105]
  v_pk_add_f32 v[98:99], v[98:99], v[106:107]
  s_waitcnt lgkmcnt(0)
  v_pk_add_f32 v[28:29], v[28:29], v[32:33]
  v_pk_add_f32 v[30:31], v[30:31], v[34:35]
  v_pk_add_f32 v[36:37], v[36:37], v[40:41]
  v_pk_add_f32 v[38:39], v[38:39], v[42:43]
  v_pk_add_f32 v[28:29], v[28:29], v[36:37]
  v_pk_add_f32 v[30:31], v[30:31], v[38:39]""")
    for r in range(4):
        a(f"  v_mul_f32 v{16+r}, s{S_INV}, v{96+r}")
    for r in range(4):
        a(f"  v_mul_f32 v{28+r}, s{S_INV}, v{28+r}")
    for r in range(4):
        a(f"  v_fma_f32 v{28+r}, -v{16+r}, v{16+r}, v{28+r}")
    for r in range(4):
        a(f"  v_max_f32 v{28+r}, 0, v{28+r}")
    for r in range(4):
        a(f"  v_add_f32 v{28+r}, s{S_EPS}, v{28+r}")
    for r in range(4):
        a(f"  v_rsq_f32 v{20+r}, v{28+r}")
    a("  s_nop 0")
    for r in range(4):
        a(f"  v_mul_f32 v{20+r}, s{R.S_S}, v{20+r}")
    for r in range(4):
        a(f"  v_mul_f32 v{24+r}, -v{16+r}, v{20+r}" .replace("v_mul_f32 v", "v_mul_f32_e64 v"))
    groups = [(k, j) for k in range(3) for j in range(2)]
    def fmas(g):
        k, j = groups[g]; L = []
        for e in range(8):
            D = Darch(k, 8 * j + e)
            L.append(f"  v_pk_fma_f32 v[{D}:{D+1}], v[{D}:{D+1}], v[20:21], v[24:25]")
            L.append(f"  v_pk_fma_f32 v[{D+2}:{D+3}], v[{D+2}:{D+3}], v[22:23], v[26:27]")
        return L
    for l in fmas(0): a(l)
    cnt = 0
    for g, (k, j) in enumerate(groups):
        Ds = [Darch(k, 8 * j + e) for e in range(8)]
        nxt = fmas(g + 1) if g + 1 < len(groups) else []
        for r in range(4):
            T = 32 + 4 * (cnt % 4); cnt += 1
            for e in range(4):
                a(f"  v_cvt_pk_bf16_f32 v{T+e}, v{Ds[2*e]+r}, v{Ds[2*e+1]+r}")
            a(f"  ds_write_b128 v{V_XW[r>>1]}, v[{T}:{T+3}] offset:{(r&1)*8*XPS + 128*k + 16*j}")
            for l in nxt[4*r:4*r+4]: a(l)
            n = 0
            while wl and n < 1:
                l = wl.pop(0); a(l); n += 1
                while wl and l.startswith("  s_"): l = wl.pop(0); a(l)
    for l in wl: a(l)
def w_dma_block(a, blk):
    S_G0 = 32
    for half, cnt in ((0, 4), (1, 2)):
        a(f"  s_add_u32 s{R.S_G}, s{S_G0}, {blk*BLK + 4096*half}\n{C.m0_set(blk, half)}\n  s_nop 0")
        for p in range(cnt):
            a(f"  buffer_load_dwordx4 v{R.V_L16}, s[{R.S_WS}:{R.S_WS+3}], s{R.S_G} offen offset:{1024*p} lds")
    if blk == 1: a(f"  s_add_u32 s{R.S_G}, s{S_G0}, {2*BLK}\n  s_add_u32 s{R.S_G2}, s{S_G0}, {2*BLK+4096}")
def phase_c(a):
    F = Fill(a)
    for g in range(24):
        L, c = park_group(g); F.push(L if not OPT['nopark'] else ["  s_nop 0 ; cvt"] * 8, c)
    if OPT['r2late']:
        for i in range(8): F.push([x_load_line(0, 2, i)], 12, ('x', 0, 2), hi=True)
    need_by = [8, 16, 24]
    for k in range(3):
        for r in range(3):
            late = OPT['r2late'] and k == 0
            if r == 0 and not late: F.flush(hi=True, lo=False)
            if r == 2 and late:
                for g in [g for g in F.hi if g[2] == ('x', 0, 2)]: F.emit1(g)
                F.hi = [g for g in F.hi if g[2] != ('x', 0, 2)]
            a(f"  s_waitcnt vmcnt({vm.after(('x', k, r))})")
            stage_round(a, k, r, lambda d: F.pop(OPT['sbud'], OPT['nhs'] if (r == 2 or (late and r == 0)) else 0))
            if k < 2 and OPT['nox']:
                vm.add(('x', k + 1, r))
            if k < 2 and not OPT['nox']:
                if r == 1:
                    for i in range(8): F.push([x_load_line(k + 1, 1, i)], 12, ('x', k + 1, 1), hi=True)
                if r == 2:
                    F.hi = [([x_load_line(k + 1, 0, i)], 12, ('x', k + 1, 0)) for i in range(8)] + F.hi
                    for i in range(8): F.push([x_load_line(k + 1, 2, i)], 12, ('x', k + 1, 2), hi=True)
        parked = 24 - sum(1 for g in F.lo if 'cvt' in ''.join(g[0]))
        need = need_by[k] - parked
        while need > 0:
            g = F.lo.pop(0); F.emit1(g)
            if 'cvt' in ''.join(g[0]): need -= 1
        zero_D(a, k)
        a(f"  s_waitcnt vmcnt({vm.after(('t', k))}) lgkmcnt(0)")
        a("  s_barrier")
        if k == 1: table_dma(a, 2)
        if k == 1:
            F.flush(hi=False, lo=True)
            F.push([f"  v_mov_b32 v{r}, 0" for r in range(16, 24)], 32)
            for i in range(NCH): F.push(stats_lines(0, i), OPT['stc'])
        if k == 2:
            for i in range(NCH): F.push(stats_lines(1, i), OPT['stc'])
        stamp(a)
        def hook(i, k=k):
            if k == 2 and i >= 3 and OPT['st3']:
                for l in stats_lines(2, i - 3): a(l)
            F.pop(OPT['cbud'], OPT['nhi'])
        conv_chunk(a, k, hook)
        if k < 2: a("  s_barrier")
        stamp(a)
    F.flush()
    ln_phase(a, lambda x: w_dma_block(x, 0), NCH - 3 if OPT['st3'] else 0)
    a("  s_waitcnt vmcnt(0) lgkmcnt(0)\n  s_barrier")
    if not OPT['w1late']: w_dma_block(a, 1)
    for i in range(CFG['D']): a(C.ds_text(i, 0, i))
    for s in range(12):
        for blk in range(2):
            a(f"  ds_read_b128 {Hf(blk,s)}, v{V_XR[blk]} offset:{32*s}")
    a(f"  s_waitcnt lgkmcnt({15 if OPT['hprog'] else 0})")
EPI_ORDER = [(0, s_) for s_ in range(12)] + [(1, s_) for s_ in range(12)]
def quad(blk, sI): return PARK + 4 * (blk * 12 + sI)
def epi_cvt(blk, sI, p, bounce):
    b = sI >> 1
    kind, r0 = ACCreg(blk, b); r0 += 8 * (sI & 1)
    L = []
    if kind == 'a':
        for e in range(8): L.append(f"  v_accvgpr_read_b32 v{bounce+e}, a{r0+e}")
        r0 = bounce
    L += [f"  v_cvt_pk_bf16_f32 v{p}, v{r0}, v{r0+1}", f"  v_cvt_pk_bf16_f32 v{p+1}, v{r0+2}, v{r0+3}",
          f"  v_cvt_pk_bf16_f32 v{p+2}, v{r0+4}, v{r0+5}", f"  v_cvt_pk_bf16_f32 v{p+3}, v{r0+6}, v{r0+7}"]
    return L
def park_group(g):
    blk, sI = EPI_ORDER[g]
    kind, _ = ACCreg(blk, sI >> 1)
    p = 16 if kind == 'a' else 16 + 4 * (g & 1)
    L = epi_cvt(blk, sI, p, 16)
    q = quad(blk, sI)
    L += [f"  v_accvgpr_write_b32 a{q+e}, v{p+e}" for e in range(4)]
    return L, (32 + (32 if kind == 'a' else 0))
def store_parked(i, spx):
    blk, sI = i // 12, i % 12
    q = quad(blk, sI)
    return f"  buffer_store_dwordx4 a[{q}:{q+3}], v{V_PX[blk]}, s[{S_OUT}:{S_OUT+3}], s{spx} offen offset:{32*sI}{['', ' nt', ' sc1', ' sc0 sc1'][OPT['stnt']]}"
class Epi:
    def __init__(self, a): self.a = a; self.g = 0
    def emit(self, n=1):
        pass
def epilogue(a):
    if not OPT['linfin']:
        for g in range(24):
            blk, sI = g // 12, g % 12
            p = 16 + 4 * (g & 1)
            for t in epi_cvt(blk, sI, p, 40): a(t)
            a(f"  buffer_store_dwordx4 {vr(p,4)}, v{V_PX[blk]}, s[{S_OUT}:{S_OUT+3}], s{S_PXO} offen offset:{32*sI}")
        return
    REG = 73728
    a("  s_waitcnt vmcnt(0)")
    a(f"""  s_mul_i32 s{S_T0}, s{S_W}, 12800
  s_add_u32 s{S_T0}, s{S_T0}, {REG}
  v_and_b32 v24, 31, v{V_LANE}
  v_mul_u32_u24 v24, 400, v24
  v_lshrrev_b32 v25, 5, v{V_LANE}
  v_lshl_add_u32 v24, v25, 4, v24
  v_add_u32 v24, s{S_T0}, v24
  s_mov_b32 s{S_T1}, {(2**32 + 23)//24}""")
    for q in range(3):
        a(f"""  v_add_u32 v28, {64*q}, v{V_LANE}
  v_mul_hi_u32 v29, v28, s{S_T1}
  v_add_lshl_u32 v28, v28, v29, 4
  v_add_u32 v{25+q}, s{S_T0}, v28""")
    a(f"""  s_lshl_b32 s86, s{S_W}, 3
  s_mul_i32 s86, s86, {512*384}
  s_add_u32 s86, s86, s{S_PXO}""")
    for blk in range(2):
        for sI in range(12):
            p = 32 + 4 * (sI & 3)
            for t in epi_cvt(blk, sI, p, 16): a(t)
            a(f"  ds_write_b128 v24, {vr(p,4)} offset:{32*sI}")
        a("  s_waitcnt lgkmcnt(0)")
        for q in range(12):
            a(f"  ds_read_b128 {vr(48+4*q+48*(blk&0),4)}, v{25+q%3} offset:{3200*(q//3)}")
        for q in range(12):
            a(f"  s_waitcnt lgkmcnt({11-q})")
            if q % 3 == 0 and (q or blk): a(f"  s_add_u32 s86, s86, {512*384}")
            a(f"  buffer_store_dwordx4 {vr(48+4*q,4)}, v{R.V_L16}, s[{S_OUT}:{S_OUT+3}], s86 offen offset:{1024*(q%3)}")
        if blk == 0: a("  s_nop 1")
def gen_fused(a, name="fused_kernel", nwg=256):
    CFG['accinit'] = 1
    a(kstart(name))
    h16 = lambda x: int(np.float16(x).view(np.uint16))
    a(f"""
  s_cmp_ge_u32 s2, {nwg}
  s_cbranch_scc1 {name}_done
  s_load_dwordx2 s[48:49], s[0:1], 0       ; x
  s_load_dwordx2 s[50:51], s[0:1], 32      ; out
  s_load_dwordx2 s[38:39], s[0:1], 48      ; ws
  v_lshrrev_b32 v1, 6, v0
  v_and_b32 v{V_LANE}, 63, v0
  s_nop 0
  v_readfirstlane_b32 s{S_W}, v1
  v_lshlrev_b32 v{R.V_L16}, 4, v{V_LANE}
""")
    a(f"""
  s_waitcnt lgkmcnt(0)
  s_mov_b32 s{R.S_WS}, s38
  s_and_b32 s{R.S_WS+1}, s39, 0xffff
  s_mov_b32 s{R.S_WS+2}, {NBLK*BLK}
  s_mov_b32 s{R.S_WS+3}, 0x20000
  s_add_u32 s{S_TB}, s38, {TBL_OFF}
  s_addc_u32 s{S_TB+1}, s39, 0
  s_and_b32 s{S_TB+1}, s{S_TB+1}, 0xffff
  s_mov_b32 s{S_TB+2}, {TBL_BYTES}
  s_mov_b32 s{S_TB+3}, 0x20000
  s_mov_b32 s{S_X}, s48
  s_and_b32 s{S_X+1}, s49, 0xffff
  s_mov_b32 s{S_X+2}, {NPX*384}
  s_mov_b32 s{S_X+3}, 0x20000
  s_mov_b32 s{S_OUT}, s50
  s_and_b32 s{S_OUT+1}, s51, 0xffff
  s_mov_b32 s{S_OUT+2}, {NPX*384}
  s_mov_b32 s{S_OUT+3}, 0x20000
  s_mov_b32 s{R.S_NA}, {hex(f2u(-GA))}
  s_mov_b32 s{R.S_S}, {hex(f2u(GS))}
  s_mov_b32 s85, {hex(f2u(GS * (1.0 - OPT['bias'] / 1000.0)))}
  s_mov_b32 s{R.S_NAH}, {hex(h16(-GA) | (h16(-GA) << 16))}
  s_mov_b32 s{R.S_SH}, {hex(h16(GS) | (h16(GS) << 16))}
  s_mov_b32 s{S_LO}, 0x05040100
  s_mov_b32 s{S_HI}, 0x07060302
  s_mov_b32 s{S_EPS}, {hex(f2u(1e-5))}
  s_mov_b32 s{S_INV}, {hex(f2u(1.0/192))}
  s_mul_i32 s{S_G0}, s{S_W}, 6144
""")
    for s in range(3):
        a(f"  s_add_u32 s{R.S_M[2*s]}, s{S_G0}, {s*BLK}")
        a(f"  s_add_u32 s{R.S_M[2*s+1]}, s{S_G0}, {s*BLK + 4096}")
    if OPT['prof'] or OPT['dumph']:
        a(f"""  s_add_u32 s44, s38, {STAMP_OFF}
  s_addc_u32 s45, s39, 0
  s_and_b32 s45, s45, 0xffff
  s_mov_b32 s46, {256*4*512}
  s_mov_b32 s47, 0x20000
  s_lshl_b32 s40, s2, 2
  s_add_u32 s40, s40, s{S_W}
  s_lshl_b32 s40, s40, 9
  s_add_u32 s52, s38, {H_OFF}
  s_addc_u32 s53, s39, 0
  s_and_b32 s53, s53, 0xffff
  s_mov_b32 s54, {NPX*384}
  s_mov_b32 s55, 0x20000""")
    stamp(a)
    a(f"  s_mov_b32 s{S_I}, 0")
    tile_coords(a)
    global_bases(a)
    table_dma(a, 0); table_dma(a, 1)
    x_loads(a, 0, 0); x_loads(a, 0, 1)
    if not OPT['r2late']: x_loads(a, 0, 2)
    npf = 0
    if OPT['spf']:
        a(f"""  s_lshl_b32 s{S_T0}, s{S_TY}, 5
  s_sub_u32 s{S_T0}, s{S_T0}, 3
  s_max_i32 s{S_T0}, s{S_T0}, 0
  s_add_u32 s{S_T0}, s{S_T0}, s{S_W}
  s_lshl_b32 s{S_T0}, s{S_T0}, 9
  s_lshl_b32 s{S_T1}, s{S_TX}, 3
  s_sub_u32 s{S_T1}, s{S_T1}, 4
  s_max_i32 s{S_T1}, s{S_T1}, 0
  s_add_u32 s{S_T0}, s{S_T0}, s{S_T1}
  s_mul_i32 s{S_PF}, s{S_T0}, 384
  v_min_u32 v{V_TMP}, 47, v{V_LANE}
  v_lshlrev_b32 v{V_TMP}, 7, v{V_TMP}
  s_mov_b32 m0, {PFSCR}
  s_lshr_b32 s{S_T0}, s2, 3
  s_lshl_b32 s{S_T0}, s{S_T0}, 2
  s_add_u32 s{S_T0}, s{S_T0}, s{S_W}
  s_mul_i32 s{S_T0}, s{S_T0}, 5120
  v_lshlrev_b32 v16, 6, v{V_LANE}
  buffer_load_dword v16, s[{R.S_WS}:{R.S_WS+3}], s{S_T0} offen lds
  buffer_load_dword v16, s[{R.S_WS}:{R.S_WS+3}], s{S_T0} offen offset:1024 lds""")
        npf = 2
        for idx in range(20):
            a(f"  buffer_load_dword v{V_TMP}, s[{S_X}:{S_X+3}], s{S_PF} offen offset:{64*(idx&1)} lds")
            if idx & 1: a(f"  s_add_u32 s{S_PF}, s{S_PF}, {4*512*384}")
            npf += 1
    a(f"""
  v_add_u32 v{R.V_L16B}, {C.RB if CFG['ring5'] else 2*BLK}, v{R.V_L16}
  v_and_b32 v16, 31, v{V_LANE}             ; n
  v_lshrrev_b32 v17, 5, v{V_LANE}          ; hf
  v_lshrrev_b32 v18, 3, v16
  v_and_b32 v19, 7, v16
  s_lshl_b32 s{S_T0}, s{S_W}, 3
  v_add_u32 v18, s{S_T0}, v18
  v_lshl_add_u32 v20, v18, 9, v19
  s_movk_i32 s{S_T1}, 384
  v_mul_lo_u32 v20, v20, s{S_T1}
  v_lshl_add_u32 v{V_PX[0]}, v17, 4, v20
  v_add_u32 v{V_PX[1]}, {4*512*384}, v{V_PX[0]}
  v_lshl_add_u32 v20, v18, 3, v19
  s_movk_i32 s{S_T1}, {XPS}
  v_mul_lo_u32 v20, v20, s{S_T1}
  v_lshrrev_b32 v21, 1, v18                ; row>>1
  v_add_u32 v21, v21, v17                  ; + hf
  v_lshl_add_u32 v20, v21, 4, v20
  v_add_u32 v{V_XR[0]}, {XCH}, v20
  v_add_u32 v{V_XR[1]}, {XCH + 32*XPS + 32}, v20
  v_and_b32 v18, 0x13, v16
  v_bfe_u32 v19, v16, 2, 1
  v_lshl_or_b32 v18, v19, 3, v18
  v_bfe_u32 v19, v16, 3, 1
  v_lshl_or_b32 v18, v19, 2, v18
  v_lshlrev_b32 v19, 3, v17
  v_sub_u32 v18, v18, v19                  ; c(m) - 8hf
""")
    for d in range(4):
        for (base, reg) in ((0, 112), (16, 116)):
            a(f"""  v_cmp_eq_u32 vcc, {base+2*d}, v18
  v_mov_b32 v19, 0x3f80
  s_nop 1
  v_cndmask_b32 v20, 0, v19, vcc
  v_cmp_eq_u32 vcc, {base+2*d+1}, v18
  v_mov_b32 v19, 0x3f800000
  s_nop 1
  v_cndmask_b32 v21, 0, v19, vcc
  v_or_b32 v{reg+d}, v20, v21""")
    a(f"""  v_add_u32 v20, {IDOFF}, v{R.V_L16}
  ds_write_b128 v20, v[112:115]
  ds_write_b128 v20, v[116:119] offset:1024
  v_and_b32 v16, 15, v{V_LANE}             ; nh
  v_lshrrev_b32 v17, 4, v{V_LANE}          ; q
  v_lshrrev_b32 v18, 1, v17
  v_mul_u32_u24 v18, {PLANE}, v18
  v_lshl_add_u32 v18, v16, 5, v18
  v_and_b32 v19, 1, v17
  v_lshl_add_u32 v18, v19, 4, v18
  s_mul_i32 s{S_T0}, s{S_W}, {2*OS}
  s_add_u32 s{S_T0}, s{S_T0}, {SB}
  v_add_u32 v{V_B}, s{S_T0}, v18
  v_and_b32 v18, 1, v16                    ; mh
  v_bfe_u32 v19, v16, 1, 1                 ; par
  v_lshrrev_b32 v20, 2, v16                ; k'
  v_sub_u32 v21, v17, v18
  v_add_u32 v21, 1, v21
  v_lshlrev_b32 v21, 5, v21
  v_lshl_add_u32 v21, v19, 4, v21
  v_sub_u32 v22, 0, v20
  v_and_b32 v22, 3, v22
  v_lshl_add_u32 v21, v22, 2, v21
  s_lshl_b32 s{S_T0}, s{S_W}, 12
  s_add_u32 s{S_T0}, s{S_T0}, {TB[0]}
  v_add_u32 v{V_T}, s{S_T0}, v21
  v_lshlrev_b32 v21, 1, v20                ; 2k'
  v_add_u32 v22, 1, v21                    ; O: 2k'+1
  v_cmp_eq_u32 vcc, 0, v20
  v_mov_b32 v23, 8
  s_nop 1
  v_cndmask_b32 v21, v21, v23, vcc         ; E
  v_cmp_eq_u32 vcc, 1, v19
  s_nop 1
  v_cndmask_b32 v21, v22, v21, vcc         ; s
  v_mov_b32 v{V_IDX}, 0x4444
""")
    for g in range(4):
        a(f"""  v_cmp_le_u32 vcc, {2*g+2}, v21
  v_mov_b32 v22, {0xA << (4*g)}
  s_nop 1
  v_cndmask_b32 v22, 0, v22, vcc
  v_or_b32 v{V_IDX}, v{V_IDX}, v22""")
    a(f"""
  v_lshlrev_b32 v18, 4, v16                ; 2nh*8
  v_lshlrev_b32 v19, 1, v17                ; 2q'
  v_lshlrev_b32 v20, 4, v16
  s_lshl_b32 s{S_T0}, s{S_W}, 5
  s_add_u32 s{S_T0}, s{S_T0}, {XCH}
  v_add_u32 v20, s{S_T0}, v20
  s_movk_i32 s{S_T1}, {XPS}
  v_add_u32 v21, v18, v19
  v_mul_lo_u32 v21, v21, s{S_T1}
  v_add_u32 v{V_XW[0]}, v21, v20
  v_add_u32 v19, 7, v19
  v_and_b32 v19, 7, v19
  v_add_u32 v21, v18, v19
  v_mul_lo_u32 v21, v21, s{S_T1}
  v_add_u32 v{V_XW[1]}, v21, v20
""")
    for r in range(3):
        a(f"""  s_lshl_b32 s{S_T0}, s{S_W}, 6
  s_add_u32 s{S_T0}, s{S_T0}, {256*r}
  v_add_u32 v16, s{S_T0}, v{V_LANE}
  v_and_b32 v18, 7, v16                        ; o
  v_lshrrev_b32 v19, 4, v16                    ; row
  v_bfe_u32 v20, v16, 3, 1                     ; u
  v_mul_u32_u24 v18, {OS}, v18
  v_and_b32 v21, 1, v19
  v_mul_u32_u24 v21, {PLANE}, v21
  v_lshrrev_b32 v19, 1, v19
  v_lshl_add_u32 v21, v19, 5, v21
  v_lshl_add_u32 v21, v20, 4, v21
  v_add_u32 v21, v21, v18
  v_add_u32 v{V_SW[r]}, {SB}, v21""")
        if r == 2:
            a(f"""  s_movk_i32 s{S_T0}, 608
  v_cmp_gt_u32 vcc, s{S_T0}, v16
  v_add_u32 v17, {SDUMMY}, v{R.V_L16}
  s_nop 1
  v_cndmask_b32 v{V_SW[r]}, v17, v{V_SW[r]}, vcc""")
    a(f"  s_waitcnt vmcnt({npf})")
    a(f"  s_mov_b32 s{S_PXP}, 0x80000000")
    a(f"{name}_tile:")
    a(f"  s_mov_b32 s{S_PXO}, s{S_PXN}")
    stamp(a)
    phase_c(a)
    stamp(a)
    if OPT['dumph']:
        for blk in range(2):
            for s in range(12):
                a(f"  buffer_store_dwordx4 {Hf(blk,s)}, v{V_PX[blk]}, s[52:55], s{S_PXO} offen offset:{32*s}")
        a("  s_waitcnt vmcnt(6)" if False else "  s_waitcnt vmcnt(0)")
    core = Core(a)
    tc = Asm()
    tc(f"  s_add_u32 s{S_I}, s{S_I}, 1")
    tile_coords(tc)
    tc(f"""  s_lshl_b32 s{S_T0}, s{S_TY}, 5
  s_sub_u32 s{S_T0}, s{S_T0}, 3
  s_max_i32 s{S_T0}, s{S_T0}, 0
  s_add_u32 s{S_T0}, s{S_T0}, s{S_W}
  s_lshl_b32 s{S_T0}, s{S_T0}, 9
  s_lshl_b32 s{S_T1}, s{S_TX}, 3
  s_sub_u32 s{S_T1}, s{S_T1}, 4
  s_max_i32 s{S_T1}, s{S_T1}, 0
  s_add_u32 s{S_T0}, s{S_T0}, s{S_T1}
  s_mul_i32 s{S_PF}, s{S_T0}, 384
  s_cmp_ge_u32 s{S_I}, 4
  s_cselect_b32 s{S_PF}, 0x80000000, s{S_PF}""")
    tcl = [(l, 4) for l in tc.L]
    ex0 = [(f"  v_min_u32 v{V_TMP}, 47, v{V_LANE}", 4), (f"  v_lshlrev_b32 v{V_TMP}, 7, v{V_TMP}", 4)]
    if OPT['w1late']:
        wl = Asm(); w_dma_block(wl, 1)
        ex0 = [(l, 10 if 'buffer' in l else 4) for l in wl.L] + ex0
    ex0 = ex0 + tcl[:-2] + [(tcl[-2][0] + "\n" + tcl[-1][0], 8)]
    core.extra[0] = ex0
    core.fast_flush = {0}
    core.vmwait[0] = 0
    core.vmwait[1] = 0
    stplan = {}; xplan = {}
    xg = OPT['xg']
    if xg == 4:
        for g in range(6):
            stplan[1 + 4 * g] = [4 * g + e for e in range(4)]
            xplan[2 + 4 * g] = [4 * g + e for e in range(4)]
    elif xg == 2:
        for g in range(12): stplan[1 + g] = [2 * g, 2 * g + 1]
        for g in range(12): xplan[[2, 4, 6, 8, 10, 12, 14, 16, 18, 20, 21, 22][g]] = [2 * g, 2 * g + 1]
    elif xg == 1:
        for g in range(12): stplan[1 + g] = [2 * g, 2 * g + 1]
        for q in range(24): xplan.setdefault(2 + (q * 21) // 24, []).append(q)
    perj = {}
    for j in range(1, 24):
        ops = []; nv = 0
        for q in stplan.get(j, []):
            ops.append(([store_parked(q, S_PXP)], 6)); nv += 1
        for q in xplan.get(j, []):
            blk, sI = q // 12, q % 12
            ops.append(([f"  buffer_load_dwordx4 {Xf(blk,sI)}, v{V_PX[blk]}, s[{S_X}:{S_X+3}], s{S_PXO} offen offset:{32*sI} {['', 'nt', 'sc1', 'sc0 sc1'][OPT['xf']]}"], 6)); nv += 1
        if j in (4, 6):
            for gi_, g in enumerate(table_dma_ops(0 if j == 4 else 1)):
                ops.append((g, 6 + 4 * (len(g) - 1))); nv += 1
        if OPT['pf'] and j < 23:
            npf_ = 20 if OPT['pfh'] else 10
            step = OPT['pfs']; first = 23 - npf_ * step
            if j >= first and (j - first) % step == 0:
                idx = (j - first) // step
                t = [f"  s_mov_b32 m0, {PFSCR}", "  s_nop 0", f"  buffer_load_dword v{V_TMP}, s[{S_X}:{S_X+3}], s{S_PF} offen offset:{64 * (idx & 1) if OPT['pfh'] else 0} {['', 'nt', 'sc1', 'sc0 sc1'][OPT['pff']]} lds"]
                if (idx & 1) or not OPT['pfh']: t.append(f"  s_add_u32 s{S_PF}, s{S_PF}, {4*512*384}")
                ops.append((t, 14)); nv += 1
        perj[j] = (ops, nv)
    if CFG['ring5']:
        for j in range(1, 24, 2):
            o1, n1 = perj.get(j, ([], 0)); o2, n2 = perj.get(j + 1, ([], 0))
            core.pend_extra[j] = (o1, o2)
            core.vmwait[j + 2] = n2
    else:
        for j in range(1, 24):
            core.pend_extra[j] = perj[j][0]; core.vmwait[j + 1] = perj[j][1]
    core.extra[23] = []
    core.extra[24] = [(f"  v_add_u32 v56, {IDOFF}, v{R.V_L16}", 4), (f"  ds_read_b128 v[48:51], v56", 8), (f"  ds_read_b128 v[52:55], v56 offset:1024", 8)]
    ps = []
    for blk in range(2):
        for sI in range(12):
            ps.append((f"  v_mfma_f32_32x32x16_bf16 {ACC(blk,sI>>1)}, {vr(52 if sI&1 else 48,4)}, {Xf(blk,sI)}, {ACC(blk,sI>>1)}", []))
    if CFG['ring5']: ps[0] = (ps[0][0], ["  s_waitcnt vmcnt(0)"])
    core.pseudo[24] = ps
    core.extra_first.add(24)
    core.no_barrier.add(25)
    if not CFG['ring5']: core.vmwait[24] = 0
    core.emit(0, 1); core.emit(1, 2)
    if OPT['prof'] >= 2:
        a(f"  v_mov_b32 v47, v{V_TMP}"); stamp(a); a(f"  v_mov_b32 v{V_TMP}, v47")
    for j in range(2, 24): core.emit(j, j + 1)
    if OPT['prof'] >= 2: stamp(a)
    core.emit(24, 25)
    if OPT['prof'] >= 2: stamp(a)
    emit_tail(a, core)
    stamp(a)
    a(f"""  s_cmp_ge_u32 s{S_I}, 4
  s_cbranch_scc1 {name}_last""")
    a("  s_barrier")
    a(f"  s_mov_b32 s{S_PXP}, s{S_PXO}")
    stamp(a)
    a(f"  s_branch {name}_tile")
    a(f"{name}_last:")
    a("  s_nop 15")
    epilogue(a)
    stamp(a)
    a("  s_waitcnt vmcnt(0)")
    stamp(a)
    a(f"""  s_waitcnt vmcnt(0)
{name}_done:
  s_endpgm
""")
    a(kdesc(name, 512, 100, 256))
def emit_loop(a, self, name):
    for j in range(2, 25): self.emit(j, j + 1)
def emit_tail(a, core):
    ch, Pf = core.plan(25, None)
    main = [l for c in ch for l in c]
    for tx, c in core.pending: main += tx
    core.pending = []
    f = []
    f += global_bases_lines(96)
    f += [x_load_line(0, 0, i) for i in range(8)]
    f += [x_load_line(0, 1, i) for i in range(8)]
    if not OPT['r2late']: f += [x_load_line(0, 2, i) for i in range(8)]
    fi = 0
    nm = sum(1 for l in main if "v_mfma" in l); per = -(-len(f) // nm)
    for l in main:
        a(l)
        if "v_mfma" in l:
            for _ in range(per):
                if fi < len(f): a(f[fi]); fi += 1
    while fi < len(f): a(f[fi]); fi += 1
    vm.ops.clear(); vm.add(('t', 0), 5); vm.add(('t', 1), 5); vm.add(('x', 0, 0), 8); vm.add(('x', 0, 1), 8)
    if not OPT['r2late']: vm.add(('x', 0, 2), 8)
```

```python
from asmlib import *
import mlpcore as C
from mlpcore import R, ACC, ACCreg, Hf, WFr, Core, BLK, NBLK, CFG
from k_prep2 import TBL_OFF, TBL_BYTES
import numpy as np
TB = [124928, 142336]
OS = 9744; CS = 1216; PLANE = 608
SB = 34816
SDUMMY = SB + 8 * OS
XCH = 49152; XPS = 416
STATS = 24576
IDOFF = 159872
PFSCR = IDOFF + 2048
SAVEOFF = PFSCR + 256
LDS_BYTES = SAVEOFF + 1024
TREG = 73728
assert SDUMMY + 1024 + 7 * CS + 16 <= IDOFF and XCH + 106736 <= IDOFF and LDS_BYTES <= 163840
V_LANE = 0
V_SW = [1, 2, 9]
V_TMP = 3
V_PX = [6, 7]
V_B = 8
V_T = 10
V_IDX = 11
V_XW = [12, 13]
V_XR = [14, 15]
V_GA = [24, 26, 30]; V_GB = [25, 27, 31]
AF = [32, 40]
XR = [48, 80]
XA2 = 96
PT = [32, 40]
def Darch(k, i):
    idx = 16 * k + i
    return 112 + 4 * idx if idx < 36 else 48 + 4 * (idx - 36)
def Dreg(k, i): return ('v', Darch(k, i))
BF = [48, 64, 80]
PARK = 160
S_ST = [78, 79, 80, 81]
def Xf(blk, s):
    r = 160 + 48 * blk + 4 * s; return f"a[{r}:{r+3}]"
S_X = 8; S_OUT = 12; S_TB = 16
S_W = 20; S_I = 21; S_T0 = 28; S_T1 = 29; S_PXO = 30; S_PXN = 31; S_G0 = 32; S_LO = 33; S_HI = 34
S_TX = 64; S_TY = 65; S_TM = 66; S_TG = 67; S_EPS = 68; S_INV = 69
NPX = 512 * 512
STAMP_OFF = 300 << 20
H_OFF = 1 << 20
OPT = dict(dumph=0, prof=0, pf=1, st=3, sbud=70, cbud=20, stc=20, nhi=2, stnt=0, xnt=0, pfn=1, nox=0, nopark=0, sst=11, spf=0, nhs=2, st3=1, hprog=1, samex=0, pfh=0, pfs=1, w1late=0, xg=2, pff=2, xf=0, bias=0, r2late=1, linfin=1, lin=1)
COLS = [0, 1, 8, 9, 2, 3, 10, 11]
S_PXP = 74
S_PF = 75
V_PFA = 3
class VM:
    def __init__(self): self.ops = []
    def add(self, tag, n=1): self.ops += [tag] * n
    def after(self, tag):
        i = max(k for k, t in enumerate(self.ops) if t == tag)
        return len(self.ops) - 1 - i
vm = VM()
def stamp(a):
    if not OPT['prof']: return
    a(f"""  s_memtime s[42:43]
  s_memrealtime s[62:63]
  s_waitcnt lgkmcnt(0)
  v_mov_b32 v{V_TMP}, s42
  s_nop 0
  buffer_store_dword v{V_TMP}, off, s[44:47], s40
  s_nop 1
  v_mov_b32 v{V_TMP}, s62
  s_nop 0
  buffer_store_dword v{V_TMP}, off, s[44:47], s40 offset:256
  s_add_u32 s40, s40, 4""")
def tile_coords(a):
    a(f"""  s_and_b32 s{S_T0}, s2, 7
  s_lshl_b32 s{S_T0}, s{S_T0}, 3
  s_lshr_b32 s{S_T1}, s2, 3
  s_and_b32 s{S_TX}, s{S_T1}, 7
  s_add_u32 s{S_TX}, s{S_TX}, s{S_T0}
  s_lshr_b32 s{S_T1}, s{S_T1}, 3
  s_lshl_b32 s{S_TY}, s{S_I}, 2
  s_add_u32 s{S_TY}, s{S_TY}, s{S_T1}          ; ty = 4*i + (c>>3)
  s_lshl_b32 s{S_T0}, s{S_TY}, 14              ; y0*512 = ty*32*512
  s_lshl_b32 s{S_T1}, s{S_TX}, 3
  s_add_u32 s{S_T0}, s{S_T0}, s{S_T1}
  s_mul_i32 s{S_PXN}, s{S_T0}, 384""")
def global_bases_lines(t):
    L = []
    if OPT['samex']: L += [f"  s_mov_b32 s{S_TX}, 5", f"  s_mov_b32 s{S_TY}, 5"]
    L += f"""  s_lshl_b32 s88, s{S_TY}, 5
  s_sub_u32 s88, s88, 3
  s_lshl_b32 s89, s{S_TX}, 3
  s_sub_u32 s89, s89, 4
  s_lshl_b32 s90, s{S_W}, 2
  s_add_u32 s88, s88, s90
  s_movk_i32 s90, 384
  s_movk_i32 s91, 512
  v_lshrrev_b32 v{t}, 4, v{V_LANE}
  v_bfe_u32 v{t+1}, v{V_LANE}, 3, 1
  v_and_b32 v{t+2}, 7, v{V_LANE}
  v_lshl_add_u32 v{t+1}, v{t+1}, 2, s89
  v_add_u32 v{t}, s88, v{t}
  v_add_u32 v{t+3}, 8, v{t+1}
  v_cmp_gt_u32 s[70:71], s91, v{t+1}
  v_cmp_gt_u32 s[72:73], s91, v{t+3}
  v_lshl_add_u32 v{t+3}, v{t}, 9, v{t+1}
  v_mul_lo_u32 v{t+3}, v{t+3}, s90
  v_lshl_add_u32 v{t+3}, v{t+2}, 4, v{t+3}
  v_mov_b32 v{t+4}, 0x80000000""".split("\n")
    for r in range(3):
        if r > 0:
            L += [f"  v_add_u32 v{t}, 16, v{t}", f"  v_add_u32 v{t+3}, {16*512*384}, v{t+3}"]
        L += [f"  v_cmp_gt_u32 vcc, s91, v{t}"]
        if r == 2:
            L += [f"  v_lshrrev_b32 v{t+5}, 4, v{V_LANE}", f"  s_lshl_b32 s86, s{S_W}, 2", f"  v_add_u32 v{t+5}, s86, v{t+5}",
                  f"  v_cmp_gt_u32 s[86:87], 6, v{t+5}", "  s_nop 0", "  s_and_b64 vcc, vcc, s[86:87]"]
        L += [f"  v_add_u32 v{t+6}, {8*384}, v{t+3}",
              "  s_and_b64 s[92:93], s[70:71], vcc",
              "  s_and_b64 s[94:95], s[72:73], vcc",
              "  s_nop 1",
              f"  v_cndmask_b32 v{V_GA[r]}, v{t+4}, v{t+3}, s[92:93]",
              f"  v_cndmask_b32 v{V_GB[r]}, v{t+4}, v{t+6}, s[94:95]"]
    return L
def global_bases(a, t=128):
    for l in global_bases_lines(t): a(l)
def x_load_line(k, r, i):
    col = COLS[i]
    base = V_GA[r] if col < 8 else V_GB[r]
    off = (col & 7) * 384 + k * 128
    dst = vr(XR[r] + 4 * i, 4) if r < 2 else f"a[{XA2+4*i}:{XA2+4*i+3}]"
    return f"  buffer_load_dwordx4 {dst}, v{base}, s[{S_X}:{S_X+3}], 0 offen offset:{off}"
class Fill:
    def __init__(self, a): self.a = a; self.hi = []; self.lo = []
    def push(self, lines, cost, tag=None, hi=False): (self.hi if hi else self.lo).append((lines, cost, tag))
    def emit1(self, g):
        for l in g[0]: self.a(l)
        if g[2] is not None: vm.add(g[2])
    def pop(self, budget, nhi=1):
        n = 0
        while self.hi and n < nhi:
            g = self.hi.pop(0); self.emit1(g); budget -= g[1]; n += 1
        while self.lo and budget >= self.lo[0][1] * 0.6:
            g = self.lo.pop(0); self.emit1(g); budget -= g[1]
    def flush(self, hi=True, lo=True, n=None):
        if hi:
            while self.hi: self.emit1(self.hi.pop(0))
        if lo:
            c = 0
            while self.lo and (n is None or c < n): self.emit1(self.lo.pop(0)); c += 1
def x_loads(a, k, r):
    for i in range(8): a(x_load_line(k, r, i))
    vm.add(('x', k, r), 8)
def stage_round(a, k, r, hook=None):
    src = XR[r] if r < 2 else XR[0]
    if r == 2:
        for e in range(32): a(f"  v_accvgpr_read_b32 v{XR[0]+e}, a{XA2+e}")
    for d in range(4):
        if hook: hook(d)
        T = PT[d & 1]
        for p in range(4):
            x0 = src + 4 * (2 * p) + d; x1 = src + 4 * (2 * p + 1) + d
            a(f"  v_perm_b32 v{T+p}, v{x1}, v{x0}, s{S_LO}")
        for p in range(4):
            x0 = src + 4 * (2 * p) + d; x1 = src + 4 * (2 * p + 1) + d
            a(f"  v_perm_b32 v{T+4+p}, v{x1}, v{x0}, s{S_HI}")
        a(f"  ds_write_b128 v{V_SW[r]}, {vr(T,4)} offset:{(2*d)*CS}")
        a(f"  ds_write_b128 v{V_SW[r]}, {vr(T+4,4)} offset:{(2*d+1)*CS}")
def table_dma_ops(k):
    d = lambda q: f"  buffer_load_dwordx4 v{R.V_L16}, s[{S_TB}:{S_TB+3}], s{S_TG} offen offset:{1024*q} lds"
    return [
        [f"  s_lshl_b32 s{S_TM}, s{S_W}, 12", f"  s_add_u32 s{S_TG}, s{S_TM}, {k*16384}", f"  s_add_u32 m0, s{S_TM}, {TB[k&1]}", "  s_nop 0", d(0)],
        [d(1)], [d(2)], [d(3)],
        [f"  s_mov_b32 m0, {TB[k&1] + 16384}", f"  s_mov_b32 s{S_TG}, {(k+1)*16384}", d(0)],
    ]
def table_dma(a, k):
    for g in table_dma_ops(k):
        for l in g: a(l)
    vm.add(('t', k), 5)
NCH = 16
def conv_chunk(a, k, hook=None):
    def chan_off(i): j, e = i >> 3, i & 7; return j * OS + e * CS
    def tab_off(i): j, e = i >> 3, i & 7; return TB[k & 1] - TB[0] + j * 2048 + e * 256
    def rdA(i):
        A = AF[i & 1]
        return [f"  ds_read_b32 v{A}, v{V_T} offset:{tab_off(i)}", f"  ds_read_b32 v{A+4}, v{V_T} offset:{tab_off(i)+128}"]
    def rdB(i):
        B = BF[i % 3]
        return [f"  ds_read_b128 a[{B+4*q}:{B+4*q+3}], v{V_B} offset:{chan_off(i)+32*q}" for q in range(4)]
    for t in rdA(0) + rdB(0) + rdB(1): a(t)
    for i in range(NCH):
        A = AF[i & 1]; B = BF[i % 3]
        kind, D = Dreg(k, i)
        Dt = f"{kind}[{D}:{D+3}]"
        nxtA = rdA(i + 1) if i + 1 < NCH else []
        nxtB = rdB(i + 2) if i + 2 < NCH else []
        a(f"  s_waitcnt lgkmcnt({4 if i + 1 < NCH else 0})")
        for t in nxtA: a(t)
        for h in range(2):
            for g in range(3):
                a(f"  v_mov_b32_dpp v{A+4*h+1+g}, v{A+4*h} row_ror:{4*(g+1)} row_mask:0xf bank_mask:0xf")
            rb = nxtB[2*h:2*h+2]
            for t in rb: a(t)
            if len(rb) < 2: a("  s_nop 1")
            a(f"  v_smfmac_f32_16x16x64_bf16 {Dt}, {vr(A+4*h,4)}, a[{B+8*h}:{B+8*h+7}], v{V_IDX}")
        if hook: hook(i)
def zero_D(a, k):
    L = [f"  v_mov_b32 v{r}, 0" for r in range(44, 48)] + ["  s_nop 1"]
    for q in range(4):
        base = Darch(k, 4 * q)
        L.append(f"  v_mfma_f32_32x32x16_bf16 v[{base}:{base+15}], v[44:47], v[44:47], 0")
    for l in L: a(l)
def stats_lines(k, i):
    D = Darch(k, i)
    return [f"  v_pk_add_f32 v[16:17], v[16:17], v[{D}:{D+1}]", f"  v_pk_add_f32 v[18:19], v[18:19], v[{D+2}:{D+3}]",
            f"  v_pk_fma_f32 v[20:21], v[{D}:{D+1}], v[{D}:{D+1}], v[20:21]", f"  v_pk_fma_f32 v[22:23], v[{D+2}:{D+3}], v[{D+2}:{D+3}], v[22:23]"]
def move_lines(k, i):
    D = Darch(k, i); A = Dreg(k, i)[1]
    return [f"  v_accvgpr_read_b32 v{D+e}, a{A+e}" for e in range(4)]
def ln_phase(a, wdma, done3):
    if OPT['lin']:
        a(f"""  s_lshl_b32 s{S_T0}, s{S_W}, 5
  s_mul_i32 s{S_T1}, s{S_W}, {8*8*XPS + 4*16}
  v_add_u32 v12, s{S_T0}, v12
  v_add_u32 v13, s{S_T0}, v13
  v_add_u32 v14, s{S_T1}, v14
  v_add_u32 v15, s{S_T1}, v15""")
    a("  s_nop 7")
    for i in range(done3, NCH):
        for l in stats_lines(2, i): a(l)
    a(f"""  s_lshl_b32 s{S_T0}, s{S_W}, 11
  s_add_u32 s{S_T0}, s{S_T0}, {STATS}
  v_add_u32 v24, s{S_T0}, v{R.V_L16}
  v_add_u32 v25, {STATS}, v{R.V_L16}
  ds_write_b128 v24, v[16:19]
  ds_write_b128 v24, v[20:23] offset:1024
  s_waitcnt lgkmcnt(0)
  s_barrier""")
    for w in range(4):
        a(f"  ds_read_b128 v[{96+4*w}:{99+4*w}], v25 offset:{2048*w}")
    for w in range(4):
        a(f"  ds_read_b128 v[{28+4*w}:{31+4*w}], v25 offset:{2048*w+1024}")
    wl = Asm(); wdma(wl); wl = [l for l in wl.L]
    for l in wl[:8]: a(l)
    wl = wl[8:]
    a("  s_waitcnt lgkmcnt(4)")
    a("""  v_pk_add_f32 v[96:97], v[96:97], v[100:101]
  v_pk_add_f32 v[98:99], v[98:99], v[102:103]
  v_pk_add_f32 v[104:105], v[104:105], v[108:109]
  v_pk_add_f32 v[106:107], v[106:107], v[110:111]
  v_pk_add_f32 v[96:97], v[96:97], v[104:105]
  v_pk_add_f32 v[98:99], v[98:99], v[106:107]
  s_waitcnt lgkmcnt(0)
  v_pk_add_f32 v[28:29], v[28:29], v[32:33]
  v_pk_add_f32 v[30:31], v[30:31], v[34:35]
  v_pk_add_f32 v[36:37], v[36:37], v[40:41]
  v_pk_add_f32 v[38:39], v[38:39], v[42:43]
  v_pk_add_f32 v[28:29], v[28:29], v[36:37]
  v_pk_add_f32 v[30:31], v[30:31], v[38:39]""")
    for r in range(4):
        a(f"  v_mul_f32 v{16+r}, s{S_INV}, v{96+r}")
    for r in range(4):
        a(f"  v_mul_f32 v{28+r}, s{S_INV}, v{28+r}")
    for r in range(4):
        a(f"  v_fma_f32 v{28+r}, -v{16+r}, v{16+r}, v{28+r}")
    for r in range(4):
        a(f"  v_max_f32 v{28+r}, 0, v{28+r}")
    for r in range(4):
        a(f"  v_add_f32 v{28+r}, s{S_EPS}, v{28+r}")
    for r in range(4):
        a(f"  v_rsq_f32 v{20+r}, v{28+r}")
    a("  s_nop 0")
    for r in range(4):
        a(f"  v_mul_f32 v{20+r}, s{R.S_S}, v{20+r}")
    for r in range(4):
        a(f"  v_mul_f32 v{24+r}, -v{16+r}, v{20+r}" .replace("v_mul_f32 v", "v_mul_f32_e64 v"))
    groups = [(k, j) for k in range(3) for j in range(2)]
    def fmas(g):
        k, j = groups[g]; L = []
        for e in range(8):
            D = Darch(k, 8 * j + e)
            L.append(f"  v_pk_fma_f32 v[{D}:{D+1}], v[{D}:{D+1}], v[20:21], v[24:25]")
            L.append(f"  v_pk_fma_f32 v[{D+2}:{D+3}], v[{D+2}:{D+3}], v[22:23], v[26:27]")
        return L
    for l in fmas(0): a(l)
    cnt = 0
    for g, (k, j) in enumerate(groups):
        Ds = [Darch(k, 8 * j + e) for e in range(8)]
        nxt = fmas(g + 1) if g + 1 < len(groups) else []
        for r in range(4):
            T = 32 + 4 * (cnt % 4); cnt += 1
            for e in range(4):
                a(f"  v_cvt_pk_bf16_f32 v{T+e}, v{Ds[2*e]+r}, v{Ds[2*e+1]+r}")
            a(f"  ds_write_b128 v{V_XW[r>>1]}, v[{T}:{T+3}] offset:{(r&1)*8*XPS + 128*k + 16*j}")
            for l in nxt[4*r:4*r+4]: a(l)
            n = 0
            while wl and n < 1:
                l = wl.pop(0); a(l); n += 1
                while wl and l.startswith("  s_"): l = wl.pop(0); a(l)
    for l in wl: a(l)
def w_dma_block(a, blk):
    S_G0 = 32
    for half, cnt in ((0, 4), (1, 2)):
        a(f"  s_add_u32 s{R.S_G}, s{S_G0}, {blk*BLK + 4096*half}\n{C.m0_set(blk, half)}\n  s_nop 0")
        for p in range(cnt):
            a(f"  buffer_load_dwordx4 v{R.V_L16}, s[{R.S_WS}:{R.S_WS+3}], s{R.S_G} offen offset:{1024*p} lds")
    if blk == 1: a(f"  s_add_u32 s{R.S_G}, s{S_G0}, {2*BLK}\n  s_add_u32 s{R.S_G2}, s{S_G0}, {2*BLK+4096}")
def phase_c(a):
    F = Fill(a)
    if OPT['lin']:
        a(f"  v_add_u32 v16, {SAVEOFF}, v{R.V_L16}\n  ds_read_b128 v[12:15], v16")
    for g in range(24):
        L, c = park_group(g); F.push(L if not OPT['nopark'] else ["  s_nop 0 ; cvt"] * 8, c)
    if OPT['r2late']:
        for i in range(8): F.push([x_load_line(0, 2, i)], 12, ('x', 0, 2), hi=True)
    need_by = [8, 16, 24]
    for k in range(3):
        for r in range(3):
            late = OPT['r2late'] and k == 0
            if r == 0 and not late: F.flush(hi=True, lo=False)
            if r == 2 and late:
                for g in [g for g in F.hi if g[2] == ('x', 0, 2)]: F.emit1(g)
                F.hi = [g for g in F.hi if g[2] != ('x', 0, 2)]
            a(f"  s_waitcnt vmcnt({vm.after(('x', k, r))})")
            stage_round(a, k, r, lambda d: F.pop(OPT['sbud'], OPT['nhs'] if (r == 2 or (late and r == 0)) else 0))
            if k < 2 and OPT['nox']:
                vm.add(('x', k + 1, r))
            if k < 2 and not OPT['nox']:
                if r == 1:
                    for i in range(8): F.push([x_load_line(k + 1, 1, i)], 12, ('x', k + 1, 1), hi=True)
                if r == 2:
                    F.hi = [([x_load_line(k + 1, 0, i)], 12, ('x', k + 1, 0)) for i in range(8)] + F.hi
                    for i in range(8): F.push([x_load_line(k + 1, 2, i)], 12, ('x', k + 1, 2), hi=True)
        parked = 24 - sum(1 for g in F.lo if 'cvt' in ''.join(g[0]))
        need = need_by[k] - parked
        while need > 0:
            g = F.lo.pop(0); F.emit1(g)
            if 'cvt' in ''.join(g[0]): need -= 1
        zero_D(a, k)
        a(f"  s_waitcnt vmcnt({vm.after(('t', k))}) lgkmcnt(0)")
        a("  s_barrier")
        if k == 1: table_dma(a, 2)
        if k == 1:
            F.flush(hi=False, lo=True)
            F.push([f"  v_mov_b32 v{r}, 0" for r in range(16, 24)], 32)
            for i in range(NCH): F.push(stats_lines(0, i), OPT['stc'])
        if k == 2:
            for i in range(NCH): F.push(stats_lines(1, i), OPT['stc'])
        stamp(a)
        def hook(i, k=k):
            if k == 2 and i >= 3 and OPT['st3']:
                for l in stats_lines(2, i - 3): a(l)
            F.pop(OPT['cbud'], OPT['nhi'])
        conv_chunk(a, k, hook)
        if k < 2: a("  s_barrier")
        stamp(a)
    F.flush()
    ln_phase(a, lambda x: w_dma_block(x, 0), NCH - 3 if OPT['st3'] else 0)
    a("  s_waitcnt vmcnt(0) lgkmcnt(0)\n  s_barrier")
    if not OPT['w1late']: w_dma_block(a, 1)
    for i in range(CFG['D']): a(C.ds_text(i, 0, i))
    for s in range(12):
        for blk in range(2):
            a(f"  ds_read_b128 {Hf(blk,s)}, v{V_XR[blk]} offset:{32*s}")
    a(f"  s_waitcnt lgkmcnt({15 if OPT['hprog'] else 0})")
EPI_ORDER = [(0, s_) for s_ in range(12)] + [(1, s_) for s_ in range(12)]
def quad(blk, sI): return PARK + 4 * (blk * 12 + sI)
def epi_cvt(blk, sI, p, bounce):
    b = sI >> 1
    kind, r0 = ACCreg(blk, b); r0 += 8 * (sI & 1)
    L = []
    if kind == 'a':
        for e in range(8): L.append(f"  v_accvgpr_read_b32 v{bounce+e}, a{r0+e}")
        r0 = bounce
    L += [f"  v_cvt_pk_bf16_f32 v{p}, v{r0}, v{r0+1}", f"  v_cvt_pk_bf16_f32 v{p+1}, v{r0+2}, v{r0+3}",
          f"  v_cvt_pk_bf16_f32 v{p+2}, v{r0+4}, v{r0+5}", f"  v_cvt_pk_bf16_f32 v{p+3}, v{r0+6}, v{r0+7}"]
    return L
def park_group(g):
    blk, sI = EPI_ORDER[g]
    kind, _ = ACCreg(blk, sI >> 1)
    p = 16 if kind == 'a' else 16 + 4 * (g & 1)
    L = epi_cvt(blk, sI, p, 16)
    q = quad(blk, sI)
    L += [f"  v_accvgpr_write_b32 a{q+e}, v{p+e}" for e in range(4)]
    return L, (32 + (32 if kind == 'a' else 0))
def store_parked(i, spx):
    blk, sI = i // 12, i % 12
    q = quad(blk, sI)
    return f"  buffer_store_dwordx4 a[{q}:{q+3}], v{V_PX[blk]}, s[{S_OUT}:{S_OUT+3}], s{spx} offen offset:{32*sI}{['', ' nt', ' sc1', ' sc0 sc1'][OPT['stnt']]}"
class Epi:
    def __init__(self, a): self.a = a; self.g = 0
    def emit(self, n=1):
        pass
def epilogue(a):
    if not OPT['linfin']:
        for g in range(24):
            blk, sI = g // 12, g % 12
            p = 16 + 4 * (g & 1)
            for t in epi_cvt(blk, sI, p, 40): a(t)
            a(f"  buffer_store_dwordx4 {vr(p,4)}, v{V_PX[blk]}, s[{S_OUT}:{S_OUT+3}], s{S_PXO} offen offset:{32*sI}")
        return
    REG = 73728
    a("  s_waitcnt vmcnt(0)")
    a(f"""  s_mul_i32 s{S_T0}, s{S_W}, 12800
  s_add_u32 s{S_T0}, s{S_T0}, {REG}
  v_and_b32 v24, 31, v{V_LANE}
  v_mul_u32_u24 v24, 400, v24
  v_lshrrev_b32 v25, 5, v{V_LANE}
  v_lshl_add_u32 v24, v25, 4, v24
  v_add_u32 v24, s{S_T0}, v24
  s_mov_b32 s{S_T1}, {(2**32 + 23)//24}""")
    for q in range(3):
        a(f"""  v_add_u32 v28, {64*q}, v{V_LANE}
  v_mul_hi_u32 v29, v28, s{S_T1}
  v_add_lshl_u32 v28, v28, v29, 4
  v_add_u32 v{25+q}, s{S_T0}, v28""")
    a(f"""  s_lshl_b32 s86, s{S_W}, 3
  s_mul_i32 s86, s86, {512*384}
  s_add_u32 s86, s86, s{S_PXO}""")
    for blk in range(2):
        for sI in range(12):
            p = 32 + 4 * (sI & 3)
            for t in epi_cvt(blk, sI, p, 16): a(t)
            a(f"  ds_write_b128 v24, {vr(p,4)} offset:{32*sI}")
        a("  s_waitcnt lgkmcnt(0)")
        for q in range(12):
            a(f"  ds_read_b128 {vr(48+4*q+48*(blk&0),4)}, v{25+q%3} offset:{3200*(q//3)}")
        for q in range(12):
            a(f"  s_waitcnt lgkmcnt({11-q})")
            if q % 3 == 0 and (q or blk): a(f"  s_add_u32 s86, s86, {512*384}")
            a(f"  buffer_store_dwordx4 {vr(48+4*q,4)}, v{R.V_L16}, s[{S_OUT}:{S_OUT+3}], s86 offen offset:{1024*(q%3)}")
        if blk == 0: a("  s_nop 1")
def gen_fused(a, name="fused_kernel", nwg=256):
    CFG['accinit'] = 1
    a(kstart(name))
    h16 = lambda x: int(np.float16(x).view(np.uint16))
    a(f"""
  s_cmp_ge_u32 s2, {nwg}
  s_cbranch_scc1 {name}_done
  s_load_dwordx2 s[48:49], s[0:1], 0       ; x
  s_load_dwordx2 s[50:51], s[0:1], 32      ; out
  s_load_dwordx2 s[38:39], s[0:1], 48      ; ws
  v_lshrrev_b32 v1, 6, v0
  v_and_b32 v{V_LANE}, 63, v0
  s_nop 0
  v_readfirstlane_b32 s{S_W}, v1
  v_lshlrev_b32 v{R.V_L16}, 4, v{V_LANE}
""")
    a(f"""
  s_waitcnt lgkmcnt(0)
  s_mov_b32 s{R.S_WS}, s38
  s_and_b32 s{R.S_WS+1}, s39, 0xffff
  s_mov_b32 s{R.S_WS+2}, {NBLK*BLK}
  s_mov_b32 s{R.S_WS+3}, 0x20000
  s_add_u32 s{S_TB}, s38, {TBL_OFF}
  s_addc_u32 s{S_TB+1}, s39, 0
  s_and_b32 s{S_TB+1}, s{S_TB+1}, 0xffff
  s_mov_b32 s{S_TB+2}, {TBL_BYTES}
  s_mov_b32 s{S_TB+3}, 0x20000
  s_mov_b32 s{S_X}, s48
  s_and_b32 s{S_X+1}, s49, 0xffff
  s_mov_b32 s{S_X+2}, {NPX*384}
  s_mov_b32 s{S_X+3}, 0x20000
  s_mov_b32 s{S_OUT}, s50
  s_and_b32 s{S_OUT+1}, s51, 0xffff
  s_mov_b32 s{S_OUT+2}, {NPX*384}
  s_mov_b32 s{S_OUT+3}, 0x20000
  s_mov_b32 s{R.S_NA}, {hex(f2u(-GA))}
  s_mov_b32 s{R.S_S}, {hex(f2u(GS))}
  s_mov_b32 s85, {hex(f2u(GS * (1.0 - OPT['bias'] / 1000.0)))}
  s_mov_b32 s{R.S_NAH}, {hex(h16(-GA) | (h16(-GA) << 16))}
  s_mov_b32 s{R.S_SH}, {hex(h16(GS) | (h16(GS) << 16))}
  s_mov_b32 s{S_LO}, 0x05040100
  s_mov_b32 s{S_HI}, 0x07060302
  s_mov_b32 s{S_EPS}, {hex(f2u(1e-5))}
  s_mov_b32 s{S_INV}, {hex(f2u(1.0/192))}
  s_mul_i32 s{S_G0}, s{S_W}, 6144
""")
    for s in range(3):
        a(f"  s_add_u32 s{R.S_M[2*s]}, s{S_G0}, {s*BLK}")
        a(f"  s_add_u32 s{R.S_M[2*s+1]}, s{S_G0}, {s*BLK + 4096}")
    if OPT['prof'] or OPT['dumph']:
        a(f"""  s_add_u32 s44, s38, {STAMP_OFF}
  s_addc_u32 s45, s39, 0
  s_and_b32 s45, s45, 0xffff
  s_mov_b32 s46, {256*4*512}
  s_mov_b32 s47, 0x20000
  s_lshl_b32 s40, s2, 2
  s_add_u32 s40, s40, s{S_W}
  s_lshl_b32 s40, s40, 9
  s_add_u32 s52, s38, {H_OFF}
  s_addc_u32 s53, s39, 0
  s_and_b32 s53, s53, 0xffff
  s_mov_b32 s54, {NPX*384}
  s_mov_b32 s55, 0x20000""")
    stamp(a)
    a(f"  s_mov_b32 s{S_I}, 0")
    tile_coords(a)
    global_bases(a)
    table_dma(a, 0); table_dma(a, 1)
    x_loads(a, 0, 0); x_loads(a, 0, 1)
    if not OPT['r2late']: x_loads(a, 0, 2)
    npf = 0
    if OPT['spf']:
        a(f"""  s_lshl_b32 s{S_T0}, s{S_TY}, 5
  s_sub_u32 s{S_T0}, s{S_T0}, 3
  s_max_i32 s{S_T0}, s{S_T0}, 0
  s_add_u32 s{S_T0}, s{S_T0}, s{S_W}
  s_lshl_b32 s{S_T0}, s{S_T0}, 9
  s_lshl_b32 s{S_T1}, s{S_TX}, 3
  s_sub_u32 s{S_T1}, s{S_T1}, 4
  s_max_i32 s{S_T1}, s{S_T1}, 0
  s_add_u32 s{S_T0}, s{S_T0}, s{S_T1}
  s_mul_i32 s{S_PF}, s{S_T0}, 384
  v_min_u32 v{V_TMP}, 47, v{V_LANE}
  v_lshlrev_b32 v{V_TMP}, 7, v{V_TMP}
  s_mov_b32 m0, {PFSCR}
  s_lshr_b32 s{S_T0}, s2, 3
  s_lshl_b32 s{S_T0}, s{S_T0}, 2
  s_add_u32 s{S_T0}, s{S_T0}, s{S_W}
  s_mul_i32 s{S_T0}, s{S_T0}, 5120
  v_lshlrev_b32 v16, 6, v{V_LANE}
  buffer_load_dword v16, s[{R.S_WS}:{R.S_WS+3}], s{S_T0} offen lds
  buffer_load_dword v16, s[{R.S_WS}:{R.S_WS+3}], s{S_T0} offen offset:1024 lds""")
        npf = 2
        for idx in range(20):
            a(f"  buffer_load_dword v{V_TMP}, s[{S_X}:{S_X+3}], s{S_PF} offen offset:{64*(idx&1)} lds")
            if idx & 1: a(f"  s_add_u32 s{S_PF}, s{S_PF}, {4*512*384}")
            npf += 1
    a(f"""
  v_add_u32 v{R.V_L16B}, {C.RB if CFG['ring5'] else 2*BLK}, v{R.V_L16}
  v_and_b32 v16, 31, v{V_LANE}             ; n
  v_lshrrev_b32 v17, 5, v{V_LANE}          ; hf
  v_lshrrev_b32 v18, 3, v16
  v_and_b32 v19, 7, v16
  s_lshl_b32 s{S_T0}, s{S_W}, 3
  v_add_u32 v18, s{S_T0}, v18
  v_lshl_add_u32 v20, v18, 9, v19
  s_movk_i32 s{S_T1}, 384
  v_mul_lo_u32 v20, v20, s{S_T1}
  v_lshl_add_u32 v{V_PX[0]}, v17, 4, v20
  v_add_u32 v{V_PX[1]}, {4*512*384}, v{V_PX[0]}
  v_lshl_add_u32 v20, v18, 3, v19
  s_movk_i32 s{S_T1}, {XPS}
  v_mul_lo_u32 v20, v20, s{S_T1}
  v_lshrrev_b32 v21, 1, v18                ; row>>1
  v_add_u32 v21, v21, v17                  ; + hf
  v_lshl_add_u32 v20, v21, 4, v20
  v_add_u32 v{V_XR[0]}, {XCH}, v20
  v_add_u32 v{V_XR[1]}, {XCH + 32*XPS + 32}, v20
  v_and_b32 v18, 0x13, v16
  v_bfe_u32 v19, v16, 2, 1
  v_lshl_or_b32 v18, v19, 3, v18
  v_bfe_u32 v19, v16, 3, 1
  v_lshl_or_b32 v18, v19, 2, v18
  v_lshlrev_b32 v19, 3, v17
  v_sub_u32 v18, v18, v19                  ; c(m) - 8hf
""")
    for d in range(4):
        for (base, reg) in ((0, 112), (16, 116)):
            a(f"""  v_cmp_eq_u32 vcc, {base+2*d}, v18
  v_mov_b32 v19, 0x3f80
  s_nop 1
  v_cndmask_b32 v20, 0, v19, vcc
  v_cmp_eq_u32 vcc, {base+2*d+1}, v18
  v_mov_b32 v19, 0x3f800000
  s_nop 1
  v_cndmask_b32 v21, 0, v19, vcc
  v_or_b32 v{reg+d}, v20, v21""")
    a(f"""  v_add_u32 v20, {IDOFF}, v{R.V_L16}
  ds_write_b128 v20, v[112:115]
  ds_write_b128 v20, v[116:119] offset:1024
  v_and_b32 v16, 15, v{V_LANE}             ; nh
  v_lshrrev_b32 v17, 4, v{V_LANE}          ; q
  v_lshrrev_b32 v18, 1, v17
  v_mul_u32_u24 v18, {PLANE}, v18
  v_lshl_add_u32 v18, v16, 5, v18
  v_and_b32 v19, 1, v17
  v_lshl_add_u32 v18, v19, 4, v18
  s_mul_i32 s{S_T0}, s{S_W}, {2*OS}
  s_add_u32 s{S_T0}, s{S_T0}, {SB}
  v_add_u32 v{V_B}, s{S_T0}, v18
  v_and_b32 v18, 1, v16                    ; mh
  v_bfe_u32 v19, v16, 1, 1                 ; par
  v_lshrrev_b32 v20, 2, v16                ; k'
  v_sub_u32 v21, v17, v18
  v_add_u32 v21, 1, v21
  v_lshlrev_b32 v21, 5, v21
  v_lshl_add_u32 v21, v19, 4, v21
  v_sub_u32 v22, 0, v20
  v_and_b32 v22, 3, v22
  v_lshl_add_u32 v21, v22, 2, v21
  s_lshl_b32 s{S_T0}, s{S_W}, 12
  s_add_u32 s{S_T0}, s{S_T0}, {TB[0]}
  v_add_u32 v{V_T}, s{S_T0}, v21
  v_lshlrev_b32 v21, 1, v20                ; 2k'
  v_add_u32 v22, 1, v21                    ; O: 2k'+1
  v_cmp_eq_u32 vcc, 0, v20
  v_mov_b32 v23, 8
  s_nop 1
  v_cndmask_b32 v21, v21, v23, vcc         ; E
  v_cmp_eq_u32 vcc, 1, v19
  s_nop 1
  v_cndmask_b32 v21, v22, v21, vcc         ; s
  v_mov_b32 v{V_IDX}, 0x4444
""")
    for g in range(4):
        a(f"""  v_cmp_le_u32 vcc, {2*g+2}, v21
  v_mov_b32 v22, {0xA << (4*g)}
  s_nop 1
  v_cndmask_b32 v22, 0, v22, vcc
  v_or_b32 v{V_IDX}, v{V_IDX}, v22""")
    a(f"""
  v_lshlrev_b32 v18, 4, v16                ; 2nh*8
  v_lshlrev_b32 v19, 1, v17                ; 2q'
  v_lshlrev_b32 v20, 4, v16
  s_lshl_b32 s{S_T0}, s{S_W}, 5
  s_add_u32 s{S_T0}, s{S_T0}, {XCH}
  v_add_u32 v20, s{S_T0}, v20
  s_movk_i32 s{S_T1}, {XPS}
  v_add_u32 v21, v18, v19
  v_mul_lo_u32 v21, v21, s{S_T1}
  v_add_u32 v{V_XW[0]}, v21, v20
  v_add_u32 v19, 7, v19
  v_and_b32 v19, 7, v19
  v_add_u32 v21, v18, v19
  v_mul_lo_u32 v21, v21, s{S_T1}
  v_add_u32 v{V_XW[1]}, v21, v20
""")
    a(f"""  s_lshl_b32 s{S_T0}, s{S_W}, 5
  s_mul_i32 s{S_T1}, s{S_W}, {8*8*XPS + 4*16}
  v_subrev_u32 v20, s{S_T0}, v12
  v_subrev_u32 v21, s{S_T0}, v13
  v_subrev_u32 v22, s{S_T1}, v14
  v_subrev_u32 v23, s{S_T1}, v15
  v_add_u32 v16, {SAVEOFF}, v{R.V_L16}
  ds_write_b128 v16, v[20:23]""")
    for r in range(3):
        a(f"""  s_lshl_b32 s{S_T0}, s{S_W}, 6
  s_add_u32 s{S_T0}, s{S_T0}, {256*r}
  v_add_u32 v16, s{S_T0}, v{V_LANE}
  v_and_b32 v18, 7, v16                        ; o
  v_lshrrev_b32 v19, 4, v16                    ; row
  v_bfe_u32 v20, v16, 3, 1                     ; u
  v_mul_u32_u24 v18, {OS}, v18
  v_and_b32 v21, 1, v19
  v_mul_u32_u24 v21, {PLANE}, v21
  v_lshrrev_b32 v19, 1, v19
  v_lshl_add_u32 v21, v19, 5, v21
  v_lshl_add_u32 v21, v20, 4, v21
  v_add_u32 v21, v21, v18
  v_add_u32 v{V_SW[r]}, {SB}, v21""")
        if r == 2:
            a(f"""  s_movk_i32 s{S_T0}, 608
  v_cmp_gt_u32 vcc, s{S_T0}, v16
  v_add_u32 v17, {SDUMMY}, v{R.V_L16}
  s_nop 1
  v_cndmask_b32 v{V_SW[r]}, v17, v{V_SW[r]}, vcc""")
    a(f"  s_waitcnt vmcnt({npf})")
    a(f"  s_mov_b32 s{S_PXP}, 0x80000000")
    a(f"{name}_tile:")
    a(f"  s_mov_b32 s{S_PXO}, s{S_PXN}")
    stamp(a)
    phase_c(a)
    stamp(a)
    if OPT['dumph']:
        for blk in range(2):
            for s in range(12):
                a(f"  buffer_store_dwordx4 {Hf(blk,s)}, v{V_PX[blk]}, s[52:55], s{S_PXO} offen offset:{32*s}")
        a("  s_waitcnt vmcnt(6)" if False else "  s_waitcnt vmcnt(0)")
    core = Core(a)
    tc = Asm()
    tc(f"  s_add_u32 s{S_I}, s{S_I}, 1")
    tile_coords(tc)
    tc(f"""  s_lshl_b32 s{S_T0}, s{S_TY}, 5
  s_sub_u32 s{S_T0}, s{S_T0}, 3
  s_max_i32 s{S_T0}, s{S_T0}, 0
  s_add_u32 s{S_T0}, s{S_T0}, s{S_W}
  s_lshl_b32 s{S_T0}, s{S_T0}, 9
  s_lshl_b32 s{S_T1}, s{S_TX}, 3
  s_sub_u32 s{S_T1}, s{S_T1}, 4
  s_max_i32 s{S_T1}, s{S_T1}, 0
  s_add_u32 s{S_T0}, s{S_T0}, s{S_T1}
  s_mul_i32 s{S_PF}, s{S_T0}, 384
  s_cmp_ge_u32 s{S_I}, 4
  s_cselect_b32 s{S_PF}, 0x80000000, s{S_PF}""")
    tcl = [(l, 4) for l in tc.L]
    ex0 = [(f"  v_min_u32 v{V_TMP}, 47, v{V_LANE}", 4), (f"  v_lshlrev_b32 v{V_TMP}, 7, v{V_TMP}", 4)]
    if OPT['w1late']:
        wl = Asm(); w_dma_block(wl, 1)
        ex0 = [(l, 10 if 'buffer' in l else 4) for l in wl.L] + ex0
    ex0 = ex0 + tcl[:-2] + [(tcl[-2][0] + "\n" + tcl[-1][0], 8)]
    core.extra[0] = ex0
    core.fast_flush = {0}
    core.vmwait[0] = 0
    core.vmwait[1] = 0
    stplan = {}; xplan = {}
    xg = OPT['xg']
    lin = OPT['lin']
    S_SR = 76; S_SX = 77
    linops = {}
    if lin:
        ex0b = f"""  s_mul_i32 s86, s{S_W}, 12800
  s_add_u32 s86, s86, {TREG}
  v_and_b32 v12, 31, v{V_LANE}
  v_mul_u32_u24 v12, 400, v12
  v_lshrrev_b32 v16, 5, v{V_LANE}
  v_lshl_add_u32 v12, v16, 4, v12
  v_add_u32 v12, s86, v12
  s_mov_b32 s87, {(2**32 + 23)//24}""".split("\n")
        for q in range(3):
            ex0b += [f"  v_add_u32 v16, {64*q}, v{V_LANE}", f"  v_mul_hi_u32 v17, v16, s87", f"  v_add_lshl_u32 v16, v16, v17, 4", f"  v_add_u32 v{13+q}, s86, v16"]
        ex0b += [f"  s_lshl_b32 s{S_SR}, s{S_W}, 3", f"  s_mul_i32 s{S_SR}, s{S_SR}, {512*384}", f"  s_add_u32 s{S_SX}, s{S_SR}, s{S_PXO}", f"  s_add_u32 s{S_SR}, s{S_SR}, s{S_PXP}"]
        core.extra[0] = core.extra[0] + [(l, 4) for l in ex0b]
        def AQ(blk, q): r = quad(blk, q); return f"a[{r}:{r+3}]"
        for blk in range(2):
            core.lds_extra[1 + 3 * blk] = [f"  ds_write_b128 v12, {AQ(blk,q)} offset:{32*q}" for q in range(12)]
            core.lds_extra[2 + 3 * blk] = [f"  ds_read_b128 {AQ(blk,q)}, v{13+q%3} offset:{3200*(q//3)}" for q in range(12)]
            if lin == 1:
                core.lds_extra[10 + 4 * blk] = [f"  ds_write_b128 v{13+q%3}, {AQ(blk,q)} offset:{3200*(q//3)}" for q in range(12)]
                core.lds_extra[11 + 4 * blk] = [f"  ds_read_b128 {AQ(blk,q)}, v12 offset:{32*q}" for q in range(12)]
        def st(blk, q):
            L = [f"  buffer_store_dwordx4 {AQ(blk,q)}, v{R.V_L16}, s[{S_OUT}:{S_OUT+3}], s{S_SR} offen offset:{1024*(q%3)}"]
            if q % 3 == 2: L.append(f"  s_add_u32 s{S_SR}, s{S_SR}, {512*384}")
            return (L, 6)
        def xl(blk, q):
            L = [f"  buffer_load_dwordx4 {AQ(blk,q)}, v{R.V_L16}, s[{S_X}:{S_X+3}], s{S_SX} offen offset:{1024*(q%3)}"]
            if q % 3 == 2: L.append(f"  s_add_u32 s{S_SX}, s{S_SX}, {512*384}")
            return (L, 6)
        linops = {2: [st(0, q) for q in range(6)], 3: [st(0, q) for q in range(6, 12)], 4: [xl(0, q) for q in range(6)],
                  5: [st(1, q) for q in range(6)], 6: [st(1, q) for q in range(6, 12)], 7: [xl(0, q) for q in range(6, 12)],
                  10: [xl(1, q) for q in range(6)], 11: [xl(1, q) for q in range(6, 12)]}
        if lin == 2:
            for j_ in (4, 7, 10, 11): del linops[j_]
            for g, j_ in enumerate([4, 7, 8, 9, 10, 11, 12, 14, 16, 18, 20, 22]): xplan[j_] = [2 * g, 2 * g + 1]
        if lin == 3:
            core.lds_extra.pop(1); core.lds_extra.pop(2); core.lds_extra.pop(4); core.lds_extra.pop(5)
            for blk in range(2):
                core.lds_extra[10 + 4 * blk] = [f"  ds_write_b128 v{13+q%3}, {AQ(blk,q)} offset:{3200*(q//3)}" for q in range(12)]
                core.lds_extra[11 + 4 * blk] = [f"  ds_read_b128 {AQ(blk,q)}, v12 offset:{32*q}" for q in range(12)]
            linops = {7: [xl(0, q) for q in range(6)], 8: [xl(0, q) for q in range(6, 12)] , 12: [xl(1, q) for q in range(6)], 13: [xl(1, q) for q in range(6, 12)]}
            core.lds_extra[11] = core.lds_extra.pop(10); core.lds_extra[12] = [f"  ds_read_b128 {AQ(0,q)}, v12 offset:{32*q}" for q in range(12)]
            core.lds_extra[16] = core.lds_extra.pop(14); core.lds_extra[17] = [f"  ds_read_b128 {AQ(1,q)}, v12 offset:{32*q}" for q in range(12)]
            core.lds_extra.pop(15, None)
            for g in range(12): stplan[1 + g] = [2 * g, 2 * g + 1]
    elif xg == 4:
        for g in range(6):
            stplan[1 + 4 * g] = [4 * g + e for e in range(4)]
            xplan[2 + 4 * g] = [4 * g + e for e in range(4)]
    elif xg == 2:
        for g in range(12): stplan[1 + g] = [2 * g, 2 * g + 1]
        for g in range(12): xplan[[2, 4, 6, 8, 10, 12, 14, 16, 18, 20, 21, 22][g]] = [2 * g, 2 * g + 1]
    elif xg == 1:
        for g in range(12): stplan[1 + g] = [2 * g, 2 * g + 1]
        for q in range(24): xplan.setdefault(2 + (q * 21) // 24, []).append(q)
    perj = {}
    for j in range(1, 24):
        ops = []; nv = 0
        for g in linops.get(j, []):
            ops.append(g); nv += 1
        for q in stplan.get(j, []):
            ops.append(([store_parked(q, S_PXP)], 6)); nv += 1
        for q in xplan.get(j, []):
            blk, sI = q // 12, q % 12
            ops.append(([f"  buffer_load_dwordx4 {Xf(blk,sI)}, v{V_PX[blk]}, s[{S_X}:{S_X+3}], s{S_PXO} offen offset:{32*sI} {['', 'nt', 'sc1', 'sc0 sc1'][OPT['xf']]}"], 6)); nv += 1
        if j in ((8, 9) if OPT['lin'] else (4, 6)):
            for gi_, g in enumerate(table_dma_ops(0 if j in (4, 8) else 1)):
                ops.append((g, 6 + 4 * (len(g) - 1))); nv += 1
        if OPT['pf'] and j < 23:
            npf_ = 20 if OPT['pfh'] else 10
            step = OPT['pfs']; first = 23 - npf_ * step
            if j >= first and (j - first) % step == 0:
                idx = (j - first) // step
                t = [f"  s_mov_b32 m0, {PFSCR}", "  s_nop 0", f"  buffer_load_dword v{V_TMP}, s[{S_X}:{S_X+3}], s{S_PF} offen offset:{64 * (idx & 1) if OPT['pfh'] else 0} {['', 'nt', 'sc1', 'sc0 sc1'][OPT['pff']]} lds"]
                if (idx & 1) or not OPT['pfh']: t.append(f"  s_add_u32 s{S_PF}, s{S_PF}, {4*512*384}")
                ops.append((t, 14)); nv += 1
        perj[j] = (ops, nv)
    if CFG['ring5']:
        for j in range(1, 24, 2):
            o1, n1 = perj.get(j, ([], 0)); o2, n2 = perj.get(j + 1, ([], 0))
            core.pend_extra[j] = (o1, o2)
            core.vmwait[j + 2] = n2
    else:
        for j in range(1, 24):
            core.pend_extra[j] = perj[j][0]; core.vmwait[j + 1] = perj[j][1]
    core.extra[23] = []
    core.extra[24] = [(f"  v_add_u32 v56, {IDOFF}, v{R.V_L16}", 4), (f"  ds_read_b128 v[48:51], v56", 8), (f"  ds_read_b128 v[52:55], v56 offset:1024", 8)]
    ps = []
    for blk in range(2):
        for sI in range(12):
            ps.append((f"  v_mfma_f32_32x32x16_bf16 {ACC(blk,sI>>1)}, {vr(52 if sI&1 else 48,4)}, {Xf(blk,sI)}, {ACC(blk,sI>>1)}", []))
    if CFG['ring5']: ps[0] = (ps[0][0], ["  s_waitcnt vmcnt(0)"])
    core.pseudo[24] = ps
    core.extra_first.add(24)
    core.no_barrier.add(25)
    if not CFG['ring5']: core.vmwait[24] = 0
    core.emit(0, 1); core.emit(1, 2)
    if OPT['prof'] >= 2:
        a(f"  v_mov_b32 v47, v{V_TMP}"); stamp(a); a(f"  v_mov_b32 v{V_TMP}, v47")
    for j in range(2, 24): core.emit(j, j + 1)
    if OPT['prof'] >= 2: stamp(a)
    core.emit(24, 25)
    if OPT['prof'] >= 2: stamp(a)
    emit_tail(a, core)
    stamp(a)
    a(f"""  s_cmp_ge_u32 s{S_I}, 4
  s_cbranch_scc1 {name}_last""")
    a("  s_barrier")
    a(f"  s_mov_b32 s{S_PXP}, s{S_PXO}")
    stamp(a)
    a(f"  s_branch {name}_tile")
    a(f"{name}_last:")
    a("  s_nop 15")
    epilogue(a)
    stamp(a)
    a("  s_waitcnt vmcnt(0)")
    stamp(a)
    a(f"""  s_waitcnt vmcnt(0)
{name}_done:
  s_endpgm
""")
    a(kdesc(name, 512, 100, 256))
def emit_loop(a, self, name):
    for j in range(2, 25): self.emit(j, j + 1)
def emit_tail(a, core):
    ch, Pf = core.plan(25, None)
    main = [l for c in ch for l in c]
    for tx, c in core.pending: main += tx
    core.pending = []
    f = []
    f += global_bases_lines(96)
    f += [x_load_line(0, 0, i) for i in range(8)]
    f += [x_load_line(0, 1, i) for i in range(8)]
    if not OPT['r2late']: f += [x_load_line(0, 2, i) for i in range(8)]
    fi = 0
    nm = sum(1 for l in main if "v_mfma" in l); per = -(-len(f) // nm)
    for l in main:
        a(l)
        if "v_mfma" in l:
            for _ in range(per):
                if fi < len(f): a(f[fi]); fi += 1
    while fi < len(f): a(f[fi]); fi += 1
    vm.ops.clear(); vm.add(('t', 0), 5); vm.add(('t', 1), 5); vm.add(('x', 0, 0), 8); vm.add(('x', 0, 1), 8)
    if not OPT['r2late']: vm.add(('x', 0, 2), 8)
```

```python
from asmlib import *
BLK = 24576
NBLK = 26
CFG = dict(ring5=0, pacew=38, D=3, NF=4, nogelu=0, nobar=0, nods=0, nodma=0, gelu='mix', dsc=12, dmac=14, gap=32, accinit=0)
class R:
    V_L16 = 5; V_L16B = 4
    T = 16
    G0 = [24, 28]
    G1 = [[32, 36], [40, 44]]
    S = [[48, 64], [80, 96]]
    WF0 = 144
    S_WS = 4
    S_NA = 25; S_S = 26; S_CNT = 27
    S_G = 22; S_G2 = 23
    S_M = [56, 57, 58, 59, 60, 61]
    S_NAH = 36; S_SH = 37; S_D = 85; S_G0 = 32
    RING = 0
def ACC(blk, b):
    i = blk * 6 + b
    return f"v[{112+16*i}:{112+16*i+15}]" if i < 9 else f"a[{16*(i-9)}:{16*(i-9)+15}]"
def ACCreg(blk, b):
    i = blk * 6 + b
    return ('v', 112 + 16 * i) if i < 9 else ('a', 16 * (i - 9))
def Hf(blk, s): r = 48 + 48 * blk + 4 * s; return f"a[{r}:{r+3}]"
def WFr(k): r = R.WF0 + 4 * k; return f"a[{r}:{r+3}]"
def gelu_pair(x0, x1, t0, t1, g):
    if CFG['gelu'] == 'f32':
        return [
            (f"  v_fma_f32 v{t0}, -v{x0}, v{x0}, s{R.S_NA}", 4),
            (f"  v_fma_f32 v{t1}, -v{x1}, v{x1}, s{R.S_NA}", 4),
            (f"  v_mul_f32 v{t0}, v{t0}, v{x0}", 4),
            (f"  v_mul_f32 v{t1}, v{t1}, v{x1}", 4),
            (f"  v_exp_f32 v{t0}, v{t0}", 8),
            (f"  v_exp_f32 v{t1}, v{t1}", 8),
            (f"  v_fma_f32 v{t0}, v{t0}, s{R.S_D}, s{R.S_D}", 4),
            (f"  v_fma_f32 v{t1}, v{t1}, s{R.S_D}, s{R.S_D}", 4),
            (f"  v_rcp_f32 v{t0}, v{t0}", 8),
            (f"  v_rcp_f32 v{t1}, v{t1}", 8),
            (f"  v_mul_f32 v{t0}, v{x0}, v{t0}", 4),
            (f"  v_mul_f32 v{t1}, v{x1}, v{t1}", 4),
            (f"  v_cvt_pk_bf16_f32 v{g}, v{t0}, v{t1}", 4),
        ]
    else:
        return [
            (f"  v_cvt_pk_f16_f32 v{t0}, v{x0}, v{x1}", 4),
            (f"  v_pk_fma_f16 v{t1}, v{t0}, v{t0}, s{R.S_NAH} neg_lo:[1,0,0] neg_hi:[1,0,0]", 4),
            (f"  v_pk_mul_f16 v{t1}, v{t1}, v{t0}", 4),
            (f"  v_exp_f16_sdwa v{t0}, v{t1} dst_sel:WORD_0 dst_unused:UNUSED_PRESERVE src0_sel:WORD_0", 8),
            (f"  v_exp_f16_sdwa v{t0}, v{t1} dst_sel:WORD_1 dst_unused:UNUSED_PRESERVE src0_sel:WORD_1", 8),
            (f"  v_pk_fma_f16 v{t0}, v{t0}, s{R.S_SH}, s{R.S_SH}", 4),
            (f"  v_rcp_f16_sdwa v{t1}, v{t0} dst_sel:WORD_0 dst_unused:UNUSED_PRESERVE src0_sel:WORD_0", 8),
            (f"  v_rcp_f16_sdwa v{t1}, v{t0} dst_sel:WORD_1 dst_unused:UNUSED_PRESERVE src0_sel:WORD_1", 8),
            (f"  v_fma_mix_f32 v{t0}, v{x0}, v{t1}, 0 op_sel_hi:[0,1,0]", 4),
            (f"  v_fma_mix_f32 v{t1}, v{x1}, v{t1}, 0 op_sel:[0,1,0] op_sel_hi:[0,1,0]", 4),
            (f"  v_cvt_pk_bf16_f32 v{g}, v{t0}, v{t1}", 4),
        ]
def gelu_chains(buf, els, Gdst):
    out = []
    for pi in range(0, len(els), 2):
        for blk in range(2):
            Sr = R.S[buf][blk]
            slot = (len(out)) % 4
            t0 = R.T + 2 * slot
            ops = gelu_pair(Sr + els[pi], Sr + els[pi + 1], t0, t0 + 1, Gdst[blk] + pi // 2)
            if CFG['gelu'] == 'f32':
                deps = [[], [], [0], [1], [2], [3], [4], [5], [6], [7], [8], [9], [10, 11]]
            else:
                deps = [[], [0], [1], [2], [2, 3], [4], [5], [5, 6], [7], [7, 8], [8, 9]]
            out.append([(t, c, d) for (t, c), d in zip(ops, deps)])
    return out
class Chains:
    def __init__(self, chains):
        self.ch = chains; self.done = [[None] * len(c) for c in chains]; self.n = 0
        self.first = 0
    def remaining(self):
        return sum(c for ci, ch in enumerate(self.ch) for oi, (t, c, d) in enumerate(ch) if self.done[ci][oi] is None)
    def chain_done(self, ci): return all(x is not None for x in self.done[ci])
    def ready(self):
        r = []
        while self.first < len(self.ch) and self.chain_done(self.first): self.first += 1
        for ci in range(self.first, min(len(self.ch), self.first + 4)):
            for oi, (t, c, d) in enumerate(self.ch[ci]):
                if self.done[ci][oi] is not None: continue
                if all(self.done[ci][x] is not None and self.n - self.done[ci][x] >= 2 for x in d):
                    r.append((ci, oi, c))
        return r
    def take(self, ci, oi):
        self.done[ci][oi] = self.n; self.n += 1
        return self.ch[ci][oi][0], self.ch[ci][oi][1]
    def tick(self): self.n += 1
    def upto_done(self, k): return all(self.chain_done(c) for c in range(min(k, len(self.ch))))
def iter_frags(j):
    L = []
    if j < 24:
        for s in range(12):
            mk = []
            for blk in range(2):
                Sd = vr(R.S[j & 1][blk], 16); c = "0" if s == 0 else Sd
                mk.append(lambda wf, Sd=Sd, c=c, h=Hf(blk, s): f"  v_mfma_f32_32x32x16_bf16 {Sd}, {wf}, {h}, {c}")
            L.append((s, 1, mk))
    if 2 <= j <= 25:
        for b in range(6):
            mk = [(lambda wf, ac=ACC(blk, b), g=vr(R.G1[(j - 2) & 1][blk], 4): f"  v_mfma_f32_32x32x16_bf16 {ac}, {wf}, {g}, {ac}") for blk in range(2)]
            L.append((12 + b, 2, mk))
    if 1 <= j <= 24:
        for b in range(6):
            mk = [(lambda wf, ac=ACC(blk, b), g=vr(R.G0[blk], 4), c0=(j == 1 and CFG['accinit']): f"  v_mfma_f32_32x32x16_bf16 {ac}, {wf}, {g}, {'0' if c0 else ac}") for blk in range(2)]
            L.append((18 + b, 3, mk))
    return L
RB = 61440
def slot_of(j): return j % 5 if CFG['ring5'] else j % 3
def ds_text(kb, j, fidx):
    off = R.RING + slot_of(j) * BLK + fidx * 1024
    if CFG['ring5']:
        if off < RB: return f"  ds_read_b128 {WFr(kb)}, v{R.V_L16} offset:{off}"
        return f"  ds_read_b128 {WFr(kb)}, v{R.V_L16B} offset:{off - RB}"
    if (j % 3) < 2:
        return f"  ds_read_b128 {WFr(kb)}, v{R.V_L16} offset:{off}"
    return f"  ds_read_b128 {WFr(kb)}, v{R.V_L16B} offset:{off - (R.RING + 2*BLK)}"
def m0_set(jb, half):
    if CFG['ring5']: return f"  s_add_u32 m0, s{R.S_G0}, {R.RING + slot_of(jb) * BLK + 4096 * half}"
    return f"  s_mov_b32 m0, s{R.S_M[2*(jb%3)+half]}"
def dma_ops(jb):
    if jb >= NBLK: return []
    def dma(off, sg):
        return "  s_nop 0" if CFG['nodma'] else f"  buffer_load_dwordx4 v{R.V_L16}, s[{R.S_WS}:{R.S_WS+3}], s{sg} offen offset:{off} lds"
    c = CFG['dmac'] - 8
    return [
        ([m0_set(jb, 0), "  s_nop 0", dma(0, R.S_G)], c + 8),
        ([dma(1024, R.S_G)], c), ([dma(2048, R.S_G)], c), ([dma(3072, R.S_G)], c),
        ([m0_set(jb, 1), f"  s_add_u32 s{R.S_G}, s{R.S_G}, {BLK}", dma(0, R.S_G2)], c + 8),
        ([dma(1024, R.S_G2), f"  s_add_u32 s{R.S_G2}, s{R.S_G2}, {BLK}"], c + 4),
    ]
class Core:
    def __init__(self, a):
        self.a = a; self.k = 0; self.pending = []
        self.over = 0
        self.pace = 0.0; self.pace_acc = 0.0
        self.no_barrier = set()
        self.lds_extra = {}
        self.extra_first = set()
        self.pseudo = {}
        self.fast_flush = set()
        self.pend_extra = {}
        self.vmwait = {}
        self.extra = {}
    def plan(self, j, jn):
        D = CFG['D']; NF = CFG['NF']
        F = iter_frags(j); Fn = iter_frags(jn) if jn is not None else []
        nf = len(F); n = 2 * nf
        Pf = max(0, nf - D)
        chains = []
        nva = 0
        if 1 <= j <= 24 and not CFG['nogelu']:
            buf = (j - 1) & 1
            va = gelu_chains(buf, list(range(0, 8)), R.G0); vb = gelu_chains(buf, list(range(8, 16)), R.G1[buf])
            chains = va + vb; nva = len(va)
        slots = []
        pend = list(self.pending)
        ldsx = list(self.lds_extra.get(j, []))
        for fi in range(nf):
            t = fi + D
            pre = []
            sync_here = fi == Pf and (not CFG['ring5'] or j == 0 or (j & 1))
            if sync_here:
                for tx, c in pend: pre += tx
                pend = []
                if not CFG['nobar'] and j not in self.no_barrier: pre += [f"  s_waitcnt vmcnt({self.vmwait.get(j, 0)})", "  s_barrier"]
                if CFG['ring5']:
                    blocks = (2, 3) if j == 0 else (j + 3, j + 4)
                    e1, e2 = self.pend_extra.get(j, ([], []))
                    pend = dma_ops(blocks[0]) + list(e1) + dma_ops(blocks[1]) + list(e2)
                    self.pace = 0.0 if j == 0 else min(2.0, CFG['pacew'] / max(1, len(pend)))
                    self.pace_acc = 0.0
                else:
                    pend = dma_ops(j + 2) + list(self.pend_extra.get(j, []))
            rd = []
            if not CFG['nods']:
                if t < nf: rd = [ds_text((self.k + t) % NF, j, F[t][0])]
                elif jn is not None: rd = [ds_text((self.k + t) % NF, j + 1, Fn[t - nf][0])]
            slots.append((pre, rd, CFG['dsc'] if rd else 8))
            can = True
            if CFG['ring5'] and self.pace > 1.0:
                self.pace_acc += 1.0
                can = self.pace_acc >= self.pace
                if can and pend: self.pace_acc -= self.pace
            if not CFG['nods'] and fi % 2 == 1:
                nodd = len([q for q in range(fi, nf) if q % 2 == 1])
                lx = [ldsx.pop(0) for _ in range(-(-len(ldsx) // nodd))] if ldsx else []
                cl = 12 * len(lx)
                if len(pend) > self.over and can:
                    tx, c = pend.pop(0)
                    slots.append(([], [f"  s_waitcnt lgkmcnt({D-2})"] + lx + list(tx), 12 + c + cl))
                else:
                    slots.append(([], [f"  s_waitcnt lgkmcnt({D-2})"] + lx, 8 + cl))
            elif pend and can:
                tx, c = pend.pop(0)
                tx = list(tx)
                if j in self.fast_flush and fi >= Pf:
                    while pend:
                        t2, c2 = pend.pop(0); tx += t2; c += c2 + 4
                slots.append(([], tx, 8 + c))
            else:
                slots.append(([], [], 8))
        self.pending = pend
        assert not ldsx
        ex = list(self.extra.get(j, []))
        gi = 0
        while ex:
            per = -(-len(ex) // max(1, (2 * Pf - gi))) if j not in self.extra_first else len(ex)
            pre_, tx_, c_ = slots[gi]
            add_ = ex[:per]; ex = ex[per:]
            slots[gi] = (pre_, list(tx_) + [t for t, _ in add_], c_ + sum(c for _, c in add_))
            gi += 1
        mtext = []; mslots = []; mgrp = []; fragend = []
        ps = list(self.pseudo.get(j, []))
        cnts = [0] * nf
        if ps:
            for q in range(len(ps)): cnts[2 + (q * (nf - 2)) // len(ps)] += 1
        for fi, (fidx, grp, mk) in enumerate(F):
            kb = (self.k + fi) % NF
            mtext.append(mk[0](WFr(kb))); mslots.append(slots[2 * fi]); mgrp.append(grp)
            mtext.append(mk[1](WFr(kb))); mslots.append(slots[2 * fi + 1]); mgrp.append(grp)
            for _ in range(cnts[fi]):
                if ps:
                    t_, pre_ = ps.pop(0)
                    mtext.append(t_); mslots.append((pre_, [], 8)); mgrp.append(0)
            fragend.append(len(mtext))
        assert not ps
        n = len(mtext); slots = mslots
        G = CFG['gap']
        base = [slots[i][2] for i in range(n)]
        for i in range(1, n): base[i - 1] += 4 * len(slots[i][0])
        sched = [[] for _ in range(n)]
        CH = Chains(chains)
        first3 = next((i for i in range(n) if mgrp[i] == 3), None)
        carry = 0.0
        for i in range(n):
            tcur = base[i]
            CH.tick()
            cap = sum(max(0, G - base[q]) for q in range(i, n))
            excess = CH.remaining() - cap
            if excess > 0: carry += excess * 1.0 / (n - i)
            while True:
                rdy = CH.ready()
                if not rdy:
                    if CH.remaining() > 0 and (i == n - 1 or (first3 is not None and i >= first3 - 2 and not CH.upto_done(nva))):
                        sched[i].append(("  s_nop 0", 4)); CH.tick(); tcur += 4; continue
                    break
                must = i == n - 1 or (first3 is not None and i >= first3 - 2 and not CH.upto_done(nva))
                need = G - tcur
                pick = None
                fit = [r for r in rdy if r[2] <= need]
                if fit:
                    pick = fit[0]
                    if need == 8:
                        ex = [r for r in fit if r[2] == 8]
                        pl = [r for r in rdy if r[2] == 4]
                        if ex and len(pl) < 2: pick = ex[0]
                elif must:
                    pick = rdy[0]
                else:
                    over = [(r, tcur + r[2] - max(G, tcur)) for r in rdy]
                    over.sort(key=lambda x: x[1])
                    if need > 0 and excess > 0:
                        pick = over[0][0]; carry -= over[0][1]
                    elif over[0][1] <= carry:
                        pick = over[0][0]; carry -= over[0][1]
                if pick is None: break
                tx, c = CH.take(pick[0], pick[1])
                sched[i].append((tx, c)); tcur += c
        assert CH.remaining() == 0
        chunks = []
        m0 = 0
        for fi in range(nf):
            L = []
            for m in range(m0, fragend[fi]):
                L += slots[m][0]
                if j == 24 and m == first3: L.append("  s_nop 1")
                L.append(mtext[m]); L += slots[m][1]
                L += [t for t, _ in sched[m]]
            m0 = fragend[fi]
            chunks.append(L)
        self.k = (self.k + nf) % NF
        return chunks, Pf
    def emit(self, j, jn):
        ch, Pf = self.plan(j, jn)
        if j == 1: self.a("  s_nop 11")
        for L in ch:
            for t in L: self.a(t)
    def emit_tile(self, name):
        a = self.a
        self.emit(0, 1); self.emit(1, 2)
        a(f"  s_mov_b32 s{R.S_CNT}, 4")
        k0 = self.k; p0 = list(self.pending)
        a(".p2align 6")
        a(f"{name}_loop:")
        a(f"  s_sub_u32 s{R.S_CNT}, s{R.S_CNT}, 1")
        self.emit(2, 3); self.emit(3, 4); self.emit(4, 5)
        ks = self.k; ps = list(self.pending)
        ch, Pf = self.plan(5, 6)
        for L in ch[:Pf]:
            for t in L: a(t)
        a(f"  s_cmp_eq_u32 s{R.S_CNT}, 0")
        a(f"  s_cbranch_scc1 {name}_exit")
        for L in ch[Pf:]:
            for t in L: a(t)
        self.emit(6, 7); self.emit(7, 8)
        assert self.k == k0 and self.pending == p0, (self.k, k0)
        a(f"  s_branch {name}_loop")
        a(f"{name}_exit:")
        self.k = ks; self.pending = ps
        ch, Pf = self.plan(23, 24)
        for L in ch[Pf:]:
            for t in L: a(t)
        self.emit(24, 25); self.emit(25, None)
        for tx, c in self.pending:
            for t in tx: a(t)
        self.pending = []
```

```python
from asmlib import *
import mlpcore as C
from mlpcore import R, ACC, ACCreg, Hf, WFr, Core, BLK, NBLK, CFG
from k_prep2 import TBL_OFF, TBL_BYTES
import numpy as np
TB = [124928, 142336]
OS = 9744; CS = 1216; PLANE = 608
SB = 34816
SDUMMY = SB + 8 * OS
XCH = 49152; XPS = 416
STATS = 24576
IDOFF = 159872
PFSCR = IDOFF + 2048
SAVEOFF = PFSCR + 256
LDS_BYTES = SAVEOFF + 1024
TREG = 73728
assert SDUMMY + 1024 + 7 * CS + 16 <= IDOFF and XCH + 106736 <= IDOFF and LDS_BYTES <= 163840
V_LANE = 0
V_SW = [1, 2, 9]
V_TMP = 3
V_PX = [6, 7]
V_B = 8
V_T = 10
V_IDX = 11
V_XW = [12, 13]
V_XR = [14, 15]
V_GA = [24, 26, 30]; V_GB = [25, 27, 31]
AF = [32, 40]
XR = [48, 80]
XA2 = 96
PT = [32, 40]
def Darch(k, i):
    idx = 16 * k + i
    return 112 + 4 * idx if idx < 36 else 48 + 4 * (idx - 36)
def Dreg(k, i): return ('v', Darch(k, i))
BF = [48, 64, 80]
PARK = 160
S_ST = [78, 79, 80, 81]
def Xf(blk, s):
    r = 160 + 48 * blk + 4 * s; return f"a[{r}:{r+3}]"
S_X = 8; S_OUT = 12; S_TB = 16
S_W = 20; S_I = 21; S_T0 = 28; S_T1 = 29; S_PXO = 30; S_PXN = 31; S_G0 = 32; S_LO = 33; S_HI = 34
S_TX = 64; S_TY = 65; S_TM = 66; S_TG = 67; S_EPS = 68; S_INV = 69
NPX = 512 * 512
STAMP_OFF = 300 << 20
H_OFF = 1 << 20
OPT = dict(dumph=0, prof=0, pf=1, st=3, sbud=100, cbud=32, stc=20, nhi=1, stnt=0, xnt=0, pfn=1, nox=0, nopark=0, sst=11, spf=0, nhs=3, st3=1, hprog=1, samex=0, pfh=0, pfs=1, w1late=0, xg=2, pff=2, xf=0, bias=0, r2late=1, linfin=1, lin=0, skip2=1)
COLS = [0, 1, 8, 9, 2, 3, 10, 11]
S_PXP = 74
S_PF = 75
V_PFA = 3
class VM:
    def __init__(self): self.ops = []
    def add(self, tag, n=1): self.ops += [tag] * n
    def after(self, tag):
        i = max(k for k, t in enumerate(self.ops) if t == tag)
        return len(self.ops) - 1 - i
vm = VM()
def stamp(a):
    if not OPT['prof']: return
    a(f"""  s_memtime s[42:43]
  s_memrealtime s[62:63]
  s_waitcnt lgkmcnt(0)
  v_mov_b32 v{V_TMP}, s42
  s_nop 0
  buffer_store_dword v{V_TMP}, off, s[44:47], s40
  s_nop 1
  v_mov_b32 v{V_TMP}, s62
  s_nop 0
  buffer_store_dword v{V_TMP}, off, s[44:47], s40 offset:256
  s_add_u32 s40, s40, 4""")
def tile_coords(a):
    a(f"""  s_and_b32 s{S_T0}, s2, 7
  s_lshl_b32 s{S_T0}, s{S_T0}, 3
  s_lshr_b32 s{S_T1}, s2, 3
  s_and_b32 s{S_TX}, s{S_T1}, 7
  s_add_u32 s{S_TX}, s{S_TX}, s{S_T0}
  s_lshr_b32 s{S_T1}, s{S_T1}, 3
  s_lshl_b32 s{S_TY}, s{S_I}, 2
  s_add_u32 s{S_TY}, s{S_TY}, s{S_T1}          ; ty = 4*i + (c>>3)
  s_lshl_b32 s{S_T0}, s{S_TY}, 14              ; y0*512 = ty*32*512
  s_lshl_b32 s{S_T1}, s{S_TX}, 3
  s_add_u32 s{S_T0}, s{S_T0}, s{S_T1}
  s_mul_i32 s{S_PXN}, s{S_T0}, 384""")
def global_bases_lines(t):
    L = []
    if OPT['samex']: L += [f"  s_mov_b32 s{S_TX}, 5", f"  s_mov_b32 s{S_TY}, 5"]
    L += f"""  s_lshl_b32 s88, s{S_TY}, 5
  s_sub_u32 s88, s88, 3
  s_lshl_b32 s89, s{S_TX}, 3
  s_sub_u32 s89, s89, 4
  s_lshl_b32 s90, s{S_W}, 2
  s_add_u32 s88, s88, s90
  s_movk_i32 s90, 384
  s_movk_i32 s91, 512
  v_lshrrev_b32 v{t}, 4, v{V_LANE}
  v_bfe_u32 v{t+1}, v{V_LANE}, 3, 1
  v_and_b32 v{t+2}, 7, v{V_LANE}
  v_lshl_add_u32 v{t+1}, v{t+1}, 2, s89
  v_add_u32 v{t}, s88, v{t}
  v_add_u32 v{t+3}, 8, v{t+1}
  v_cmp_gt_u32 s[70:71], s91, v{t+1}
  v_cmp_gt_u32 s[72:73], s91, v{t+3}
  v_lshl_add_u32 v{t+3}, v{t}, 9, v{t+1}
  v_mul_lo_u32 v{t+3}, v{t+3}, s90
  v_lshl_add_u32 v{t+3}, v{t+2}, 4, v{t+3}
  v_mov_b32 v{t+4}, 0x80000000""".split("\n")
    for r in range(3):
        if r > 0:
            L += [f"  v_add_u32 v{t}, 16, v{t}", f"  v_add_u32 v{t+3}, {16*512*384}, v{t+3}"]
        L += [f"  v_cmp_gt_u32 vcc, s91, v{t}"]
        if r == 2:
            L += [f"  v_lshrrev_b32 v{t+5}, 4, v{V_LANE}", f"  s_lshl_b32 s86, s{S_W}, 2", f"  v_add_u32 v{t+5}, s86, v{t+5}",
                  f"  v_cmp_gt_u32 s[86:87], 6, v{t+5}", "  s_nop 0", "  s_and_b64 vcc, vcc, s[86:87]"]
        L += [f"  v_add_u32 v{t+6}, {8*384}, v{t+3}",
              "  s_and_b64 s[92:93], s[70:71], vcc",
              "  s_and_b64 s[94:95], s[72:73], vcc",
              "  s_nop 1",
              f"  v_cndmask_b32 v{V_GA[r]}, v{t+4}, v{t+3}, s[92:93]",
              f"  v_cndmask_b32 v{V_GB[r]}, v{t+4}, v{t+6}, s[94:95]"]
    return L
def global_bases(a, t=128):
    for l in global_bases_lines(t): a(l)
def x_load_line(k, r, i):
    col = COLS[i]
    base = V_GA[r] if col < 8 else V_GB[r]
    off = (col & 7) * 384 + k * 128
    dst = vr(XR[r] + 4 * i, 4) if r < 2 else f"a[{XA2+4*i}:{XA2+4*i+3}]"
    return f"  buffer_load_dwordx4 {dst}, v{base}, s[{S_X}:{S_X+3}], 0 offen offset:{off}"
class Fill:
    def __init__(self, a): self.a = a; self.hi = []; self.lo = []
    def push(self, lines, cost, tag=None, hi=False): (self.hi if hi else self.lo).append((lines, cost, tag))
    def emit1(self, g):
        for l in g[0]: self.a(l)
        if g[2] is not None: vm.add(g[2])
    def pop(self, budget, nhi=1):
        n = 0
        while self.hi and n < nhi:
            g = self.hi.pop(0); self.emit1(g); budget -= g[1]; n += 1
        while self.lo and budget >= self.lo[0][1] * 0.6:
            g = self.lo.pop(0); self.emit1(g); budget -= g[1]
    def flush(self, hi=True, lo=True, n=None):
        if hi:
            while self.hi: self.emit1(self.hi.pop(0))
        if lo:
            c = 0
            while self.lo and (n is None or c < n): self.emit1(self.lo.pop(0)); c += 1
def x_loads(a, k, r):
    for i in range(8): a(x_load_line(k, r, i))
    vm.add(('x', k, r), 8)
def stage_round(a, k, r, hook=None):
    src = XR[r] if r < 2 else XR[0]
    if r == 2:
        for e in range(32): a(f"  v_accvgpr_read_b32 v{XR[0]+e}, a{XA2+e}")
    for d in range(4):
        if hook: hook(d)
        T = PT[d & 1]
        for p in range(4):
            x0 = src + 4 * (2 * p) + d; x1 = src + 4 * (2 * p + 1) + d
            a(f"  v_perm_b32 v{T+p}, v{x1}, v{x0}, s{S_LO}")
        for p in range(4):
            x0 = src + 4 * (2 * p) + d; x1 = src + 4 * (2 * p + 1) + d
            a(f"  v_perm_b32 v{T+4+p}, v{x1}, v{x0}, s{S_HI}")
        a(f"  ds_write_b128 v{V_SW[r]}, {vr(T,4)} offset:{(2*d)*CS}")
        a(f"  ds_write_b128 v{V_SW[r]}, {vr(T+4,4)} offset:{(2*d+1)*CS}")
def table_dma_ops(k):
    d = lambda q: f"  buffer_load_dwordx4 v{R.V_L16}, s[{S_TB}:{S_TB+3}], s{S_TG} offen offset:{1024*q} lds"
    return [
        [f"  s_lshl_b32 s{S_TM}, s{S_W}, 12", f"  s_add_u32 s{S_TG}, s{S_TM}, {k*16384}", f"  s_add_u32 m0, s{S_TM}, {TB[k&1]}", "  s_nop 0", d(0)],
        [d(1)], [d(2)], [d(3)],
        [f"  s_mov_b32 m0, {TB[k&1] + 16384}", f"  s_mov_b32 s{S_TG}, {(k+1)*16384}", d(0)],
    ]
def table_dma(a, k):
    for g in table_dma_ops(k):
        for l in g: a(l)
    vm.add(('t', k), 5)
NCH = 16
def conv_chunk(a, k, hook=None):
    def chan_off(i): j, e = i >> 3, i & 7; return j * OS + e * CS
    def tab_off(i): j, e = i >> 3, i & 7; return TB[k & 1] - TB[0] + j * 2048 + e * 256
    def rdA(i):
        A = AF[i & 1]
        return [f"  ds_read_b32 v{A}, v{V_T} offset:{tab_off(i)}", f"  ds_read_b32 v{A+4}, v{V_T} offset:{tab_off(i)+128}"]
    def rdB(i):
        B = BF[i % 3]
        return [f"  ds_read_b128 a[{B+4*q}:{B+4*q+3}], v{V_B} offset:{chan_off(i)+32*q}" for q in range(4)]
    for t in rdA(0) + rdB(0) + rdB(1): a(t)
    for i in range(NCH):
        A = AF[i & 1]; B = BF[i % 3]
        kind, D = Dreg(k, i)
        Dt = f"{kind}[{D}:{D+3}]"
        nxtA = rdA(i + 1) if i + 1 < NCH else []
        nxtB = rdB(i + 2) if i + 2 < NCH else []
        a(f"  s_waitcnt lgkmcnt({4 if i + 1 < NCH else 0})")
        for t in nxtA: a(t)
        for h in range(2):
            for g in range(3):
                a(f"  v_mov_b32_dpp v{A+4*h+1+g}, v{A+4*h} row_ror:{4*(g+1)} row_mask:0xf bank_mask:0xf")
            rb = nxtB[2*h:2*h+2]
            for t in rb: a(t)
            if len(rb) < 2: a("  s_nop 1")
            a(f"  v_smfmac_f32_16x16x64_bf16 {Dt}, {vr(A+4*h,4)}, a[{B+8*h}:{B+8*h+7}], v{V_IDX}")
        if hook: hook(i)
def zero_D(a, k):
    L = [f"  v_mov_b32 v{r}, 0" for r in range(44, 48)] + ["  s_nop 1"]
    for q in range(4):
        base = Darch(k, 4 * q)
        L.append(f"  v_mfma_f32_32x32x16_bf16 v[{base}:{base+15}], v[44:47], v[44:47], 0")
    for l in L: a(l)
def stats_lines(k, i):
    D = Darch(k, i)
    return [f"  v_pk_add_f32 v[16:17], v[16:17], v[{D}:{D+1}]", f"  v_pk_add_f32 v[18:19], v[18:19], v[{D+2}:{D+3}]",
            f"  v_pk_fma_f32 v[20:21], v[{D}:{D+1}], v[{D}:{D+1}], v[20:21]", f"  v_pk_fma_f32 v[22:23], v[{D+2}:{D+3}], v[{D+2}:{D+3}], v[22:23]"]
def move_lines(k, i):
    D = Darch(k, i); A = Dreg(k, i)[1]
    return [f"  v_accvgpr_read_b32 v{D+e}, a{A+e}" for e in range(4)]
def ln_phase(a, wdma, done3):
    if OPT['lin']:
        a(f"""  s_lshl_b32 s{S_T0}, s{S_W}, 5
  s_mul_i32 s{S_T1}, s{S_W}, {8*8*XPS + 4*16}
  v_add_u32 v12, s{S_T0}, v12
  v_add_u32 v13, s{S_T0}, v13
  v_add_u32 v14, s{S_T1}, v14
  v_add_u32 v15, s{S_T1}, v15""")
    a("  s_nop 7")
    for i in range(done3, NCH):
        for l in stats_lines(2, i): a(l)
    a(f"""  s_lshl_b32 s{S_T0}, s{S_W}, 11
  s_add_u32 s{S_T0}, s{S_T0}, {STATS}
  v_add_u32 v24, s{S_T0}, v{R.V_L16}
  v_add_u32 v25, {STATS}, v{R.V_L16}
  ds_write_b128 v24, v[16:19]
  ds_write_b128 v24, v[20:23] offset:1024
  s_waitcnt lgkmcnt(0)
  s_barrier""")
    for w in range(4):
        a(f"  ds_read_b128 v[{96+4*w}:{99+4*w}], v25 offset:{2048*w}")
    for w in range(4):
        a(f"  ds_read_b128 v[{28+4*w}:{31+4*w}], v25 offset:{2048*w+1024}")
    wl = Asm(); wdma(wl); wl = [l for l in wl.L]
    for l in wl[:8]: a(l)
    wl = wl[8:]
    a("  s_waitcnt lgkmcnt(4)")
    a("""  v_pk_add_f32 v[96:97], v[96:97], v[100:101]
  v_pk_add_f32 v[98:99], v[98:99], v[102:103]
  v_pk_add_f32 v[104:105], v[104:105], v[108:109]
  v_pk_add_f32 v[106:107], v[106:107], v[110:111]
  v_pk_add_f32 v[96:97], v[96:97], v[104:105]
  v_pk_add_f32 v[98:99], v[98:99], v[106:107]
  s_waitcnt lgkmcnt(0)
  v_pk_add_f32 v[28:29], v[28:29], v[32:33]
  v_pk_add_f32 v[30:31], v[30:31], v[34:35]
  v_pk_add_f32 v[36:37], v[36:37], v[40:41]
  v_pk_add_f32 v[38:39], v[38:39], v[42:43]
  v_pk_add_f32 v[28:29], v[28:29], v[36:37]
  v_pk_add_f32 v[30:31], v[30:31], v[38:39]""")
    for r in range(4):
        a(f"  v_mul_f32 v{16+r}, s{S_INV}, v{96+r}")
    for r in range(4):
        a(f"  v_mul_f32 v{28+r}, s{S_INV}, v{28+r}")
    for r in range(4):
        a(f"  v_fma_f32 v{28+r}, -v{16+r}, v{16+r}, v{28+r}")
    for r in range(4):
        a(f"  v_max_f32 v{28+r}, 0, v{28+r}")
    for r in range(4):
        a(f"  v_add_f32 v{28+r}, s{S_EPS}, v{28+r}")
    for r in range(4):
        a(f"  v_rsq_f32 v{20+r}, v{28+r}")
    a("  s_nop 0")
    for r in range(4):
        a(f"  v_mul_f32 v{20+r}, s{R.S_S}, v{20+r}")
    for r in range(4):
        a(f"  v_mul_f32 v{24+r}, -v{16+r}, v{20+r}" .replace("v_mul_f32 v", "v_mul_f32_e64 v"))
    groups = [(k, j) for k in range(3) for j in range(2)]
    def fmas(g):
        k, j = groups[g]; L = []
        for e in range(8):
            D = Darch(k, 8 * j + e)
            L.append(f"  v_pk_fma_f32 v[{D}:{D+1}], v[{D}:{D+1}], v[20:21], v[24:25]")
            L.append(f"  v_pk_fma_f32 v[{D+2}:{D+3}], v[{D+2}:{D+3}], v[22:23], v[26:27]")
        return L
    for l in fmas(0): a(l)
    cnt = 0
    for g, (k, j) in enumerate(groups):
        Ds = [Darch(k, 8 * j + e) for e in range(8)]
        nxt = fmas(g + 1) if g + 1 < len(groups) else []
        for r in range(4):
            T = 32 + 4 * (cnt % 4); cnt += 1
            for e in range(4):
                a(f"  v_cvt_pk_bf16_f32 v{T+e}, v{Ds[2*e]+r}, v{Ds[2*e+1]+r}")
            a(f"  ds_write_b128 v{V_XW[r>>1]}, v[{T}:{T+3}] offset:{(r&1)*8*XPS + 128*k + 16*j}")
            for l in nxt[4*r:4*r+4]: a(l)
            n = 0
            while wl and n < 1:
                l = wl.pop(0); a(l); n += 1
                while wl and l.startswith("  s_"): l = wl.pop(0); a(l)
    for l in wl: a(l)
def w_dma_block(a, blk):
    S_G0 = 32
    for half, cnt in ((0, 4), (1, 2)):
        a(f"  s_add_u32 s{R.S_G}, s{S_G0}, {blk*BLK + 4096*half}\n{C.m0_set(blk, half)}\n  s_nop 0")
        for p in range(cnt):
            a(f"  buffer_load_dwordx4 v{R.V_L16}, s[{R.S_WS}:{R.S_WS+3}], s{R.S_G} offen offset:{1024*p} lds")
    if blk == 1: a(f"  s_add_u32 s{R.S_G}, s{S_G0}, {2*BLK}\n  s_add_u32 s{R.S_G2}, s{S_G0}, {2*BLK+4096}")
def phase_c(a):
    F = Fill(a)
    if OPT['lin']:
        a(f"  v_add_u32 v16, {SAVEOFF}, v{R.V_L16}\n  ds_read_b128 v[12:15], v16")
    for g in range(24):
        L, c = park_group(g); F.push(L if not OPT['nopark'] else ["  s_nop 0 ; cvt"] * 8, c)
    if OPT['r2late']:
        for i in range(8): F.push([x_load_line(0, 2, i)], 12, ('x', 0, 2), hi=True)
    need_by = [8, 16, 24]
    for k in range(3):
        for r in range(3):
            late = OPT['r2late'] and k == 0
            if r == 0 and not late: F.flush(hi=True, lo=False)
            if r == 2 and late:
                for g in [g for g in F.hi if g[2] == ('x', 0, 2)]: F.emit1(g)
                F.hi = [g for g in F.hi if g[2] != ('x', 0, 2)]
            if r == 2 and OPT['skip2']:
                lab = f"fused_kernel_sk{k}"
                a(f"  s_cmp_ge_u32 s{S_W}, 2\n  s_cbranch_scc1 {lab}")
                a(f"  s_waitcnt vmcnt({vm.after(('x', k, r))})")
                rec = []
                def hk(d):
                    n0 = len(a.L); F.pop(OPT['sbud'], OPT['nhs']); rec.extend(a.L[n0:])
                stage_round(a, k, r, hk)
                a(f"  s_branch {lab}_j\n{lab}:")
                for l in rec: a(l)
                a(f"{lab}_j:")
            else:
                a(f"  s_waitcnt vmcnt({vm.after(('x', k, r))})")
                stage_round(a, k, r, lambda d: F.pop(OPT['sbud'], OPT['nhs'] if (r == 2 or (late and r == 0)) else 0))
            if k < 2 and OPT['nox']:
                vm.add(('x', k + 1, r))
            if k < 2 and not OPT['nox']:
                if r == 1:
                    for i in range(8): F.push([x_load_line(k + 1, 1, i)], 12, ('x', k + 1, 1), hi=True)
                if r == 2:
                    F.hi = [([x_load_line(k + 1, 0, i)], 12, ('x', k + 1, 0)) for i in range(8)] + F.hi
                    for i in range(8): F.push([x_load_line(k + 1, 2, i)], 12, ('x', k + 1, 2), hi=True)
        parked = 24 - sum(1 for g in F.lo if 'cvt' in ''.join(g[0]))
        need = need_by[k] - parked
        while need > 0:
            g = F.lo.pop(0); F.emit1(g)
            if 'cvt' in ''.join(g[0]): need -= 1
        zero_D(a, k)
        a(f"  s_waitcnt vmcnt({vm.after(('t', k))}) lgkmcnt(0)")
        a("  s_barrier")
        if k == 1: table_dma(a, 2)
        if k == 1:
            F.flush(hi=False, lo=True)
            F.push([f"  v_mov_b32 v{r}, 0" for r in range(16, 24)], 32)
            for i in range(NCH): F.push(stats_lines(0, i), OPT['stc'])
        if k == 2:
            for i in range(NCH): F.push(stats_lines(1, i), OPT['stc'])
        stamp(a)
        def hook(i, k=k):
            if k == 2 and i >= 3 and OPT['st3']:
                for l in stats_lines(2, i - 3): a(l)
            F.pop(OPT['cbud'], OPT['nhi'])
        conv_chunk(a, k, hook)
        if k < 2: a("  s_barrier")
        stamp(a)
    F.flush()
    ln_phase(a, lambda x: w_dma_block(x, 0), NCH - 3 if OPT['st3'] else 0)
    a("  s_waitcnt vmcnt(0) lgkmcnt(0)\n  s_barrier")
    if not OPT['w1late']: w_dma_block(a, 1)
    for i in range(CFG['D']): a(C.ds_text(i, 0, i))
    for s in range(12):
        for blk in range(2):
            a(f"  ds_read_b128 {Hf(blk,s)}, v{V_XR[blk]} offset:{32*s}")
    a(f"  s_waitcnt lgkmcnt({15 if OPT['hprog'] else 0})")
EPI_ORDER = [(0, s_) for s_ in range(12)] + [(1, s_) for s_ in range(12)]
def quad(blk, sI): return PARK + 4 * (blk * 12 + sI)
def epi_cvt(blk, sI, p, bounce):
    b = sI >> 1
    kind, r0 = ACCreg(blk, b); r0 += 8 * (sI & 1)
    L = []
    if kind == 'a':
        for e in range(8): L.append(f"  v_accvgpr_read_b32 v{bounce+e}, a{r0+e}")
        r0 = bounce
    L += [f"  v_cvt_pk_bf16_f32 v{p}, v{r0}, v{r0+1}", f"  v_cvt_pk_bf16_f32 v{p+1}, v{r0+2}, v{r0+3}",
          f"  v_cvt_pk_bf16_f32 v{p+2}, v{r0+4}, v{r0+5}", f"  v_cvt_pk_bf16_f32 v{p+3}, v{r0+6}, v{r0+7}"]
    return L
def park_group(g):
    blk, sI = EPI_ORDER[g]
    kind, _ = ACCreg(blk, sI >> 1)
    p = 16 if kind == 'a' else 16 + 4 * (g & 1)
    L = epi_cvt(blk, sI, p, 16)
    q = quad(blk, sI)
    L += [f"  v_accvgpr_write_b32 a{q+e}, v{p+e}" for e in range(4)]
    return L, (32 + (32 if kind == 'a' else 0))
def store_parked(i, spx):
    blk, sI = i // 12, i % 12
    q = quad(blk, sI)
    return f"  buffer_store_dwordx4 a[{q}:{q+3}], v{V_PX[blk]}, s[{S_OUT}:{S_OUT+3}], s{spx} offen offset:{32*sI}{['', ' nt', ' sc1', ' sc0 sc1'][OPT['stnt']]}"
class Epi:
    def __init__(self, a): self.a = a; self.g = 0
    def emit(self, n=1):
        pass
def epilogue(a):
    if not OPT['linfin']:
        for g in range(24):
            blk, sI = g // 12, g % 12
            p = 16 + 4 * (g & 1)
            for t in epi_cvt(blk, sI, p, 40): a(t)
            a(f"  buffer_store_dwordx4 {vr(p,4)}, v{V_PX[blk]}, s[{S_OUT}:{S_OUT+3}], s{S_PXO} offen offset:{32*sI}")
        return
    REG = 73728
    a("  s_waitcnt vmcnt(0)")
    a(f"""  s_mul_i32 s{S_T0}, s{S_W}, 12800
  s_add_u32 s{S_T0}, s{S_T0}, {REG}
  v_and_b32 v24, 31, v{V_LANE}
  v_mul_u32_u24 v24, 400, v24
  v_lshrrev_b32 v25, 5, v{V_LANE}
  v_lshl_add_u32 v24, v25, 4, v24
  v_add_u32 v24, s{S_T0}, v24
  s_mov_b32 s{S_T1}, {(2**32 + 23)//24}""")
    for q in range(3):
        a(f"""  v_add_u32 v28, {64*q}, v{V_LANE}
  v_mul_hi_u32 v29, v28, s{S_T1}
  v_add_lshl_u32 v28, v28, v29, 4
  v_add_u32 v{25+q}, s{S_T0}, v28""")
    a(f"""  s_lshl_b32 s86, s{S_W}, 3
  s_mul_i32 s86, s86, {512*384}
  s_add_u32 s86, s86, s{S_PXO}""")
    for blk in range(2):
        for sI in range(12):
            p = 32 + 4 * (sI & 3)
            for t in epi_cvt(blk, sI, p, 16): a(t)
            a(f"  ds_write_b128 v24, {vr(p,4)} offset:{32*sI}")
        a("  s_waitcnt lgkmcnt(0)")
        for q in range(12):
            a(f"  ds_read_b128 {vr(48+4*q+48*(blk&0),4)}, v{25+q%3} offset:{3200*(q//3)}")
        for q in range(12):
            a(f"  s_waitcnt lgkmcnt({11-q})")
            if q % 3 == 0 and (q or blk): a(f"  s_add_u32 s86, s86, {512*384}")
            a(f"  buffer_store_dwordx4 {vr(48+4*q,4)}, v{R.V_L16}, s[{S_OUT}:{S_OUT+3}], s86 offen offset:{1024*(q%3)}")
        if blk == 0: a("  s_nop 1")
def gen_fused(a, name="fused_kernel", nwg=256):
    CFG['accinit'] = 1
    a(kstart(name))
    h16 = lambda x: int(np.float16(x).view(np.uint16))
    a(f"""
  s_cmp_ge_u32 s2, {nwg}
  s_cbranch_scc1 {name}_done
  s_load_dwordx2 s[48:49], s[0:1], 0       ; x
  s_load_dwordx2 s[50:51], s[0:1], 32      ; out
  s_load_dwordx2 s[38:39], s[0:1], 48      ; ws
  v_lshrrev_b32 v1, 6, v0
  v_and_b32 v{V_LANE}, 63, v0
  s_nop 0
  v_readfirstlane_b32 s{S_W}, v1
  v_lshlrev_b32 v{R.V_L16}, 4, v{V_LANE}
""")
    a(f"""
  s_waitcnt lgkmcnt(0)
  s_mov_b32 s{R.S_WS}, s38
  s_and_b32 s{R.S_WS+1}, s39, 0xffff
  s_mov_b32 s{R.S_WS+2}, {NBLK*BLK}
  s_mov_b32 s{R.S_WS+3}, 0x20000
  s_add_u32 s{S_TB}, s38, {TBL_OFF}
  s_addc_u32 s{S_TB+1}, s39, 0
  s_and_b32 s{S_TB+1}, s{S_TB+1}, 0xffff
  s_mov_b32 s{S_TB+2}, {TBL_BYTES}
  s_mov_b32 s{S_TB+3}, 0x20000
  s_mov_b32 s{S_X}, s48
  s_and_b32 s{S_X+1}, s49, 0xffff
  s_mov_b32 s{S_X+2}, {NPX*384}
  s_mov_b32 s{S_X+3}, 0x20000
  s_mov_b32 s{S_OUT}, s50
  s_and_b32 s{S_OUT+1}, s51, 0xffff
  s_mov_b32 s{S_OUT+2}, {NPX*384}
  s_mov_b32 s{S_OUT+3}, 0x20000
  s_mov_b32 s{R.S_NA}, {hex(f2u(-GA))}
  s_mov_b32 s{R.S_S}, {hex(f2u(GS))}
  s_mov_b32 s85, {hex(f2u(GS * (1.0 - OPT['bias'] / 1000.0)))}
  s_mov_b32 s{R.S_NAH}, {hex(h16(-GA) | (h16(-GA) << 16))}
  s_mov_b32 s{R.S_SH}, {hex(h16(GS) | (h16(GS) << 16))}
  s_mov_b32 s{S_LO}, 0x05040100
  s_mov_b32 s{S_HI}, 0x07060302
  s_mov_b32 s{S_EPS}, {hex(f2u(1e-5))}
  s_mov_b32 s{S_INV}, {hex(f2u(1.0/192))}
  s_mul_i32 s{S_G0}, s{S_W}, 6144
""")
    for s in range(3):
        a(f"  s_add_u32 s{R.S_M[2*s]}, s{S_G0}, {s*BLK}")
        a(f"  s_add_u32 s{R.S_M[2*s+1]}, s{S_G0}, {s*BLK + 4096}")
    if OPT['prof'] or OPT['dumph']:
        a(f"""  s_add_u32 s44, s38, {STAMP_OFF}
  s_addc_u32 s45, s39, 0
  s_and_b32 s45, s45, 0xffff
  s_mov_b32 s46, {256*4*512}
  s_mov_b32 s47, 0x20000
  s_lshl_b32 s40, s2, 2
  s_add_u32 s40, s40, s{S_W}
  s_lshl_b32 s40, s40, 9
  s_add_u32 s52, s38, {H_OFF}
  s_addc_u32 s53, s39, 0
  s_and_b32 s53, s53, 0xffff
  s_mov_b32 s54, {NPX*384}
  s_mov_b32 s55, 0x20000""")
    stamp(a)
    a(f"  s_mov_b32 s{S_I}, 0")
    tile_coords(a)
    global_bases(a)
    table_dma(a, 0); table_dma(a, 1)
    x_loads(a, 0, 0); x_loads(a, 0, 1)
    if not OPT['r2late']: x_loads(a, 0, 2)
    npf = 0
    if OPT['spf']:
        a(f"""  s_lshl_b32 s{S_T0}, s{S_TY}, 5
  s_sub_u32 s{S_T0}, s{S_T0}, 3
  s_max_i32 s{S_T0}, s{S_T0}, 0
  s_add_u32 s{S_T0}, s{S_T0}, s{S_W}
  s_lshl_b32 s{S_T0}, s{S_T0}, 9
  s_lshl_b32 s{S_T1}, s{S_TX}, 3
  s_sub_u32 s{S_T1}, s{S_T1}, 4
  s_max_i32 s{S_T1}, s{S_T1}, 0
  s_add_u32 s{S_T0}, s{S_T0}, s{S_T1}
  s_mul_i32 s{S_PF}, s{S_T0}, 384
  v_min_u32 v{V_TMP}, 47, v{V_LANE}
  v_lshlrev_b32 v{V_TMP}, 7, v{V_TMP}
  s_mov_b32 m0, {PFSCR}
  s_lshr_b32 s{S_T0}, s2, 3
  s_lshl_b32 s{S_T0}, s{S_T0}, 2
  s_add_u32 s{S_T0}, s{S_T0}, s{S_W}
  s_mul_i32 s{S_T0}, s{S_T0}, 5120
  v_lshlrev_b32 v16, 6, v{V_LANE}
  buffer_load_dword v16, s[{R.S_WS}:{R.S_WS+3}], s{S_T0} offen lds
  buffer_load_dword v16, s[{R.S_WS}:{R.S_WS+3}], s{S_T0} offen offset:1024 lds""")
        npf = 2
        for idx in range(20):
            a(f"  buffer_load_dword v{V_TMP}, s[{S_X}:{S_X+3}], s{S_PF} offen offset:{64*(idx&1)} lds")
            if idx & 1: a(f"  s_add_u32 s{S_PF}, s{S_PF}, {4*512*384}")
            npf += 1
    a(f"""
  v_add_u32 v{R.V_L16B}, {C.RB if CFG['ring5'] else 2*BLK}, v{R.V_L16}
  v_and_b32 v16, 31, v{V_LANE}             ; n
  v_lshrrev_b32 v17, 5, v{V_LANE}          ; hf
  v_lshrrev_b32 v18, 3, v16
  v_and_b32 v19, 7, v16
  s_lshl_b32 s{S_T0}, s{S_W}, 3
  v_add_u32 v18, s{S_T0}, v18
  v_lshl_add_u32 v20, v18, 9, v19
  s_movk_i32 s{S_T1}, 384
  v_mul_lo_u32 v20, v20, s{S_T1}
  v_lshl_add_u32 v{V_PX[0]}, v17, 4, v20
  v_add_u32 v{V_PX[1]}, {4*512*384}, v{V_PX[0]}
  v_lshl_add_u32 v20, v18, 3, v19
  s_movk_i32 s{S_T1}, {XPS}
  v_mul_lo_u32 v20, v20, s{S_T1}
  v_lshrrev_b32 v21, 1, v18                ; row>>1
  v_add_u32 v21, v21, v17                  ; + hf
  v_lshl_add_u32 v20, v21, 4, v20
  v_add_u32 v{V_XR[0]}, {XCH}, v20
  v_add_u32 v{V_XR[1]}, {XCH + 32*XPS + 32}, v20
  v_and_b32 v18, 0x13, v16
  v_bfe_u32 v19, v16, 2, 1
  v_lshl_or_b32 v18, v19, 3, v18
  v_bfe_u32 v19, v16, 3, 1
  v_lshl_or_b32 v18, v19, 2, v18
  v_lshlrev_b32 v19, 3, v17
  v_sub_u32 v18, v18, v19                  ; c(m) - 8hf
""")
    for d in range(4):
        for (base, reg) in ((0, 112), (16, 116)):
            a(f"""  v_cmp_eq_u32 vcc, {base+2*d}, v18
  v_mov_b32 v19, 0x3f80
  s_nop 1
  v_cndmask_b32 v20, 0, v19, vcc
  v_cmp_eq_u32 vcc, {base+2*d+1}, v18
  v_mov_b32 v19, 0x3f800000
  s_nop 1
  v_cndmask_b32 v21, 0, v19, vcc
  v_or_b32 v{reg+d}, v20, v21""")
    a(f"""  v_add_u32 v20, {IDOFF}, v{R.V_L16}
  ds_write_b128 v20, v[112:115]
  ds_write_b128 v20, v[116:119] offset:1024
  v_and_b32 v16, 15, v{V_LANE}             ; nh
  v_lshrrev_b32 v17, 4, v{V_LANE}          ; q
  v_lshrrev_b32 v18, 1, v17
  v_mul_u32_u24 v18, {PLANE}, v18
  v_lshl_add_u32 v18, v16, 5, v18
  v_and_b32 v19, 1, v17
  v_lshl_add_u32 v18, v19, 4, v18
  s_mul_i32 s{S_T0}, s{S_W}, {2*OS}
  s_add_u32 s{S_T0}, s{S_T0}, {SB}
  v_add_u32 v{V_B}, s{S_T0}, v18
  v_and_b32 v18, 1, v16                    ; mh
  v_bfe_u32 v19, v16, 1, 1                 ; par
  v_lshrrev_b32 v20, 2, v16                ; k'
  v_sub_u32 v21, v17, v18
  v_add_u32 v21, 1, v21
  v_lshlrev_b32 v21, 5, v21
  v_lshl_add_u32 v21, v19, 4, v21
  v_sub_u32 v22, 0, v20
  v_and_b32 v22, 3, v22
  v_lshl_add_u32 v21, v22, 2, v21
  s_lshl_b32 s{S_T0}, s{S_W}, 12
  s_add_u32 s{S_T0}, s{S_T0}, {TB[0]}
  v_add_u32 v{V_T}, s{S_T0}, v21
  v_lshlrev_b32 v21, 1, v20                ; 2k'
  v_add_u32 v22, 1, v21                    ; O: 2k'+1
  v_cmp_eq_u32 vcc, 0, v20
  v_mov_b32 v23, 8
  s_nop 1
  v_cndmask_b32 v21, v21, v23, vcc         ; E
  v_cmp_eq_u32 vcc, 1, v19
  s_nop 1
  v_cndmask_b32 v21, v22, v21, vcc         ; s
  v_mov_b32 v{V_IDX}, 0x4444
""")
    for g in range(4):
        a(f"""  v_cmp_le_u32 vcc, {2*g+2}, v21
  v_mov_b32 v22, {0xA << (4*g)}
  s_nop 1
  v_cndmask_b32 v22, 0, v22, vcc
  v_or_b32 v{V_IDX}, v{V_IDX}, v22""")
    a(f"""
  v_lshlrev_b32 v18, 4, v16                ; 2nh*8
  v_lshlrev_b32 v19, 1, v17                ; 2q'
  v_lshlrev_b32 v20, 4, v16
  s_lshl_b32 s{S_T0}, s{S_W}, 5
  s_add_u32 s{S_T0}, s{S_T0}, {XCH}
  v_add_u32 v20, s{S_T0}, v20
  s_movk_i32 s{S_T1}, {XPS}
  v_add_u32 v21, v18, v19
  v_mul_lo_u32 v21, v21, s{S_T1}
  v_add_u32 v{V_XW[0]}, v21, v20
  v_add_u32 v19, 7, v19
  v_and_b32 v19, 7, v19
  v_add_u32 v21, v18, v19
  v_mul_lo_u32 v21, v21, s{S_T1}
  v_add_u32 v{V_XW[1]}, v21, v20
""")
    a(f"""  s_lshl_b32 s{S_T0}, s{S_W}, 5
  s_mul_i32 s{S_T1}, s{S_W}, {8*8*XPS + 4*16}
  v_subrev_u32 v20, s{S_T0}, v12
  v_subrev_u32 v21, s{S_T0}, v13
  v_subrev_u32 v22, s{S_T1}, v14
  v_subrev_u32 v23, s{S_T1}, v15
  v_add_u32 v16, {SAVEOFF}, v{R.V_L16}
  ds_write_b128 v16, v[20:23]""")
    for r in range(3):
        a(f"""  s_lshl_b32 s{S_T0}, s{S_W}, 6
  s_add_u32 s{S_T0}, s{S_T0}, {256*r}
  v_add_u32 v16, s{S_T0}, v{V_LANE}
  v_and_b32 v18, 7, v16                        ; o
  v_lshrrev_b32 v19, 4, v16                    ; row
  v_bfe_u32 v20, v16, 3, 1                     ; u
  v_mul_u32_u24 v18, {OS}, v18
  v_and_b32 v21, 1, v19
  v_mul_u32_u24 v21, {PLANE}, v21
  v_lshrrev_b32 v19, 1, v19
  v_lshl_add_u32 v21, v19, 5, v21
  v_lshl_add_u32 v21, v20, 4, v21
  v_add_u32 v21, v21, v18
  v_add_u32 v{V_SW[r]}, {SB}, v21""")
        if r == 2:
            a(f"""  s_movk_i32 s{S_T0}, 608
  v_cmp_gt_u32 vcc, s{S_T0}, v16
  v_add_u32 v17, {SDUMMY}, v{R.V_L16}
  s_nop 1
  v_cndmask_b32 v{V_SW[r]}, v17, v{V_SW[r]}, vcc""")
    a(f"  s_waitcnt vmcnt({npf})")
    a(f"  s_mov_b32 s{S_PXP}, 0x80000000")
    a(f"{name}_tile:")
    a(f"  s_mov_b32 s{S_PXO}, s{S_PXN}")
    stamp(a)
    phase_c(a)
    stamp(a)
    if OPT['dumph']:
        for blk in range(2):
            for s in range(12):
                a(f"  buffer_store_dwordx4 {Hf(blk,s)}, v{V_PX[blk]}, s[52:55], s{S_PXO} offen offset:{32*s}")
        a("  s_waitcnt vmcnt(6)" if False else "  s_waitcnt vmcnt(0)")
    core = Core(a)
    tc = Asm()
    tc(f"  s_add_u32 s{S_I}, s{S_I}, 1")
    tile_coords(tc)
    tc(f"""  s_lshl_b32 s{S_T0}, s{S_TY}, 5
  s_sub_u32 s{S_T0}, s{S_T0}, 3
  s_max_i32 s{S_T0}, s{S_T0}, 0
  s_add_u32 s{S_T0}, s{S_T0}, s{S_W}
  s_lshl_b32 s{S_T0}, s{S_T0}, 9
  s_lshl_b32 s{S_T1}, s{S_TX}, 3
  s_sub_u32 s{S_T1}, s{S_T1}, 4
  s_max_i32 s{S_T1}, s{S_T1}, 0
  s_add_u32 s{S_T0}, s{S_T0}, s{S_T1}
  s_mul_i32 s{S_PF}, s{S_T0}, 384
  s_cmp_ge_u32 s{S_I}, 4
  s_cselect_b32 s{S_PF}, 0x80000000, s{S_PF}""")
    tcl = [(l, 4) for l in tc.L]
    ex0 = [(f"  v_min_u32 v{V_TMP}, 47, v{V_LANE}", 4), (f"  v_lshlrev_b32 v{V_TMP}, 7, v{V_TMP}", 4)]
    if OPT['w1late']:
        wl = Asm(); w_dma_block(wl, 1)
        ex0 = [(l, 10 if 'buffer' in l else 4) for l in wl.L] + ex0
    ex0 = ex0 + tcl[:-2] + [(tcl[-2][0] + "\n" + tcl[-1][0], 8)]
    core.extra[0] = ex0
    core.fast_flush = {0}
    core.vmwait[0] = 0
    core.vmwait[1] = 0
    stplan = {}; xplan = {}
    xg = OPT['xg']
    lin = OPT['lin']
    S_SR = 76; S_SX = 77
    linops = {}
    if lin:
        ex0b = f"""  s_mul_i32 s86, s{S_W}, 12800
  s_add_u32 s86, s86, {TREG}
  v_and_b32 v12, 31, v{V_LANE}
  v_mul_u32_u24 v12, 400, v12
  v_lshrrev_b32 v16, 5, v{V_LANE}
  v_lshl_add_u32 v12, v16, 4, v12
  v_add_u32 v12, s86, v12
  s_mov_b32 s87, {(2**32 + 23)//24}""".split("\n")
        for q in range(3):
            ex0b += [f"  v_add_u32 v16, {64*q}, v{V_LANE}", f"  v_mul_hi_u32 v17, v16, s87", f"  v_add_lshl_u32 v16, v16, v17, 4", f"  v_add_u32 v{13+q}, s86, v16"]
        ex0b += [f"  s_lshl_b32 s{S_SR}, s{S_W}, 3", f"  s_mul_i32 s{S_SR}, s{S_SR}, {512*384}", f"  s_add_u32 s{S_SX}, s{S_SR}, s{S_PXO}", f"  s_add_u32 s{S_SR}, s{S_SR}, s{S_PXP}"]
        core.extra[0] = core.extra[0] + [(l, 4) for l in ex0b]
        def AQ(blk, q): r = quad(blk, q); return f"a[{r}:{r+3}]"
        for blk in range(2):
            core.lds_extra[1 + 3 * blk] = [f"  ds_write_b128 v12, {AQ(blk,q)} offset:{32*q}" for q in range(12)]
            core.lds_extra[2 + 3 * blk] = [f"  ds_read_b128 {AQ(blk,q)}, v{13+q%3} offset:{3200*(q//3)}" for q in range(12)]
            if lin == 1:
                core.lds_extra[10 + 4 * blk] = [f"  ds_write_b128 v{13+q%3}, {AQ(blk,q)} offset:{3200*(q//3)}" for q in range(12)]
                core.lds_extra[11 + 4 * blk] = [f"  ds_read_b128 {AQ(blk,q)}, v12 offset:{32*q}" for q in range(12)]
        def st(blk, q):
            L = [f"  buffer_store_dwordx4 {AQ(blk,q)}, v{R.V_L16}, s[{S_OUT}:{S_OUT+3}], s{S_SR} offen offset:{1024*(q%3)}"]
            if q % 3 == 2: L.append(f"  s_add_u32 s{S_SR}, s{S_SR}, {512*384}")
            return (L, 6)
        def xl(blk, q):
            L = [f"  buffer_load_dwordx4 {AQ(blk,q)}, v{R.V_L16}, s[{S_X}:{S_X+3}], s{S_SX} offen offset:{1024*(q%3)}"]
            if q % 3 == 2: L.append(f"  s_add_u32 s{S_SX}, s{S_SX}, {512*384}")
            return (L, 6)
        linops = {2: [st(0, q) for q in range(6)], 3: [st(0, q) for q in range(6, 12)], 4: [xl(0, q) for q in range(6)],
                  5: [st(1, q) for q in range(6)], 6: [st(1, q) for q in range(6, 12)], 7: [xl(0, q) for q in range(6, 12)],
                  10: [xl(1, q) for q in range(6)], 11: [xl(1, q) for q in range(6, 12)]}
        if lin == 2:
            for j_ in (4, 7, 10, 11): del linops[j_]
            for g, j_ in enumerate([4, 7, 8, 9, 10, 11, 12, 14, 16, 18, 20, 22]): xplan[j_] = [2 * g, 2 * g + 1]
        if lin == 3:
            core.lds_extra.pop(1); core.lds_extra.pop(2); core.lds_extra.pop(4); core.lds_extra.pop(5)
            for blk in range(2):
                core.lds_extra[10 + 4 * blk] = [f"  ds_write_b128 v{13+q%3}, {AQ(blk,q)} offset:{3200*(q//3)}" for q in range(12)]
                core.lds_extra[11 + 4 * blk] = [f"  ds_read_b128 {AQ(blk,q)}, v12 offset:{32*q}" for q in range(12)]
            linops = {7: [xl(0, q) for q in range(6)], 8: [xl(0, q) for q in range(6, 12)] , 12: [xl(1, q) for q in range(6)], 13: [xl(1, q) for q in range(6, 12)]}
            core.lds_extra[11] = core.lds_extra.pop(10); core.lds_extra[12] = [f"  ds_read_b128 {AQ(0,q)}, v12 offset:{32*q}" for q in range(12)]
            core.lds_extra[16] = core.lds_extra.pop(14); core.lds_extra[17] = [f"  ds_read_b128 {AQ(1,q)}, v12 offset:{32*q}" for q in range(12)]
            core.lds_extra.pop(15, None)
            for g in range(12): stplan[1 + g] = [2 * g, 2 * g + 1]
    elif xg == 4:
        for g in range(6):
            stplan[1 + 4 * g] = [4 * g + e for e in range(4)]
            xplan[2 + 4 * g] = [4 * g + e for e in range(4)]
    elif xg == 2:
        for g in range(12): stplan[1 + g] = [2 * g, 2 * g + 1]
        for g in range(12): xplan[[2, 4, 6, 8, 10, 12, 14, 16, 18, 20, 21, 22][g]] = [2 * g, 2 * g + 1]
    elif xg == 1:
        for g in range(12): stplan[1 + g] = [2 * g, 2 * g + 1]
        for q in range(24): xplan.setdefault(2 + (q * 21) // 24, []).append(q)
    perj = {}
    for j in range(1, 24):
        ops = []; nv = 0
        for g in linops.get(j, []):
            ops.append(g); nv += 1
        for q in stplan.get(j, []):
            ops.append(([store_parked(q, S_PXP)], 6)); nv += 1
        for q in xplan.get(j, []):
            blk, sI = q // 12, q % 12
            ops.append(([f"  buffer_load_dwordx4 {Xf(blk,sI)}, v{V_PX[blk]}, s[{S_X}:{S_X+3}], s{S_PXO} offen offset:{32*sI} {['', 'nt', 'sc1', 'sc0 sc1'][OPT['xf']]}"], 6)); nv += 1
        if j in ((8, 9) if OPT['lin'] else (4, 6)):
            for gi_, g in enumerate(table_dma_ops(0 if j in (4, 8) else 1)):
                ops.append((g, 6 + 4 * (len(g) - 1))); nv += 1
        if OPT['pf'] and j < 23:
            npf_ = 20 if OPT['pfh'] else 10
            step = OPT['pfs']; first = 23 - npf_ * step
            if j >= first and (j - first) % step == 0:
                idx = (j - first) // step
                t = [f"  s_mov_b32 m0, {PFSCR}", "  s_nop 0", f"  buffer_load_dword v{V_TMP}, s[{S_X}:{S_X+3}], s{S_PF} offen offset:{64 * (idx & 1) if OPT['pfh'] else 0} {['', 'nt', 'sc1', 'sc0 sc1'][OPT['pff']]} lds"]
                if (idx & 1) or not OPT['pfh']: t.append(f"  s_add_u32 s{S_PF}, s{S_PF}, {4*512*384}")
                ops.append((t, 14)); nv += 1
        perj[j] = (ops, nv)
    if CFG['ring5']:
        for j in range(1, 24, 2):
            o1, n1 = perj.get(j, ([], 0)); o2, n2 = perj.get(j + 1, ([], 0))
            core.pend_extra[j] = (o1, o2)
            core.vmwait[j + 2] = n2
    else:
        for j in range(1, 24):
            core.pend_extra[j] = perj[j][0]; core.vmwait[j + 1] = perj[j][1]
    core.extra[23] = []
    core.extra[24] = [(f"  v_add_u32 v56, {IDOFF}, v{R.V_L16}", 4), (f"  ds_read_b128 v[48:51], v56", 8), (f"  ds_read_b128 v[52:55], v56 offset:1024", 8)]
    ps = []
    for blk in range(2):
        for sI in range(12):
            ps.append((f"  v_mfma_f32_32x32x16_bf16 {ACC(blk,sI>>1)}, {vr(52 if sI&1 else 48,4)}, {Xf(blk,sI)}, {ACC(blk,sI>>1)}", []))
    if CFG['ring5']: ps[0] = (ps[0][0], ["  s_waitcnt vmcnt(0)"])
    core.pseudo[24] = ps
    core.extra_first.add(24)
    core.no_barrier.add(25)
    if not CFG['ring5']: core.vmwait[24] = 0
    core.emit(0, 1); core.emit(1, 2)
    if OPT['prof'] >= 2:
        a(f"  v_mov_b32 v47, v{V_TMP}"); stamp(a); a(f"  v_mov_b32 v{V_TMP}, v47")
    for j in range(2, 24): core.emit(j, j + 1)
    if OPT['prof'] >= 2: stamp(a)
    core.emit(24, 25)
    if OPT['prof'] >= 2: stamp(a)
    emit_tail(a, core)
    stamp(a)
    a(f"""  s_cmp_ge_u32 s{S_I}, 4
  s_cbranch_scc1 {name}_last""")
    a("  s_barrier")
    a(f"  s_mov_b32 s{S_PXP}, s{S_PXO}")
    stamp(a)
    a(f"  s_branch {name}_tile")
    a(f"{name}_last:")
    a("  s_nop 15")
    epilogue(a)
    stamp(a)
    a("  s_waitcnt vmcnt(0)")
    stamp(a)
    a(f"""  s_waitcnt vmcnt(0)
{name}_done:
  s_endpgm
""")
    a(kdesc(name, 512, 100, 256))
def emit_loop(a, self, name):
    for j in range(2, 25): self.emit(j, j + 1)
def emit_tail(a, core):
    ch, Pf = core.plan(25, None)
    main = [l for c in ch for l in c]
    for tx, c in core.pending: main += tx
    core.pending = []
    f = []
    f += global_bases_lines(96)
    f += [x_load_line(0, 0, i) for i in range(8)]
    f += [x_load_line(0, 1, i) for i in range(8)]
    if not OPT['r2late']: f += [x_load_line(0, 2, i) for i in range(8)]
    fi = 0
    nm = sum(1 for l in main if "v_mfma" in l); per = -(-len(f) // nm)
    for l in main:
        a(l)
        if "v_mfma" in l:
            for _ in range(per):
                if fi < len(f): a(f[fi]); fi += 1
    while fi < len(f): a(f[fi]); fi += 1
    vm.ops.clear(); vm.add(('t', 0), 5); vm.add(('t', 1), 5); vm.add(('x', 0, 0), 8); vm.add(('x', 0, 1), 8)
    if not OPT['r2late']: vm.add(('x', 0, 2), 8)
```

```python
from asmlib import *
import mlpcore as C
from mlpcore import R, ACC, ACCreg, Hf, WFr, Core, BLK, NBLK, CFG
from k_prep2 import TBL_OFF, TBL_BYTES
import numpy as np
TB = [124928, 142336]
OS = 9744; CS = 1216; PLANE = 608
SB = 34816
SDUMMY = SB + 8 * OS
XCH = 49152; XPS = 416
STATS = 24576
IDOFF = 159872
PFSCR = IDOFF + 2048
SAVEOFF = PFSCR + 256
LDS_BYTES = SAVEOFF + 1024
TREG = 73728
assert SDUMMY + 1024 + 7 * CS + 16 <= IDOFF and XCH + 106736 <= IDOFF and LDS_BYTES <= 163840
V_LANE = 0
V_SW = [1, 2, 9]
V_TMP = 3
V_PX = [6, 7]
V_B = 8
V_T = 10
V_IDX = 11
V_XW = [12, 13]
V_XR = [14, 15]
V_GA = [24, 26, 30]; V_GB = [25, 27, 31]
AF = [32, 40]
XR = [48, 80]
XA2 = 96
PT = [32, 40]
def Darch(k, i):
    idx = 16 * k + i
    return 112 + 4 * idx if idx < 36 else 48 + 4 * (idx - 36)
def Dreg(k, i): return ('v', Darch(k, i))
BF = [48, 64, 80]
PARK = 160
S_ST = [78, 79, 80, 81]
def Xf(blk, s):
    r = 160 + 48 * blk + 4 * s; return f"a[{r}:{r+3}]"
S_X = 8; S_OUT = 12; S_TB = 16
S_W = 20; S_I = 21; S_T0 = 28; S_T1 = 29; S_PXO = 30; S_PXN = 31; S_G0 = 32; S_LO = 33; S_HI = 34
S_TX = 64; S_TY = 65; S_TM = 66; S_TG = 67; S_EPS = 68; S_INV = 69
NPX = 512 * 512
STAMP_OFF = 300 << 20
H_OFF = 1 << 20
OPT = dict(dumph=0, prof=0, pf=1, st=3, sbud=100, cbud=32, stc=20, nhi=1, stnt=0, xnt=0, pfn=1, nox=0, nopark=0, sst=11, spf=0, nhs=3, st3=1, hprog=1, samex=0, pfh=0, pfs=1, w1late=0, xg=2, pff=2, xf=0, bias=0, r2late=1, linfin=1, lin=0, skip2=0, wpf=0, cpf=0, cord=1, sord=2, jith=1)
COLS = [0, 1, 8, 9, 2, 3, 10, 11]
S_PXP = 74
S_PF = 75
V_PFA = 3
class VM:
    def __init__(self): self.ops = []
    def add(self, tag, n=1): self.ops += [tag] * n
    def after(self, tag):
        i = max(k for k, t in enumerate(self.ops) if t == tag)
        return len(self.ops) - 1 - i
vm = VM()
def stamp(a, force=False):
    if not OPT['prof']: return
    if OPT['prof'] == 3 and not force: return
    a(f"""  s_memtime s[42:43]
  s_memrealtime s[62:63]
  s_waitcnt lgkmcnt(0)
  v_mov_b32 v{V_TMP}, s42
  s_nop 0
  buffer_store_dword v{V_TMP}, off, s[44:47], s40
  s_nop 1
  v_mov_b32 v{V_TMP}, s62
  s_nop 0
  buffer_store_dword v{V_TMP}, off, s[44:47], s40 offset:256
  s_add_u32 s40, s40, 4""")
def tile_coords(a):
    a(f"""  s_and_b32 s{S_T0}, s2, 7
  s_lshl_b32 s{S_T0}, s{S_T0}, 3
  s_lshr_b32 s{S_T1}, s2, 3
  s_and_b32 s{S_TX}, s{S_T1}, 7
  s_add_u32 s{S_TX}, s{S_TX}, s{S_T0}
  s_lshr_b32 s{S_T1}, s{S_T1}, 3
  s_lshl_b32 s{S_TY}, s{S_I}, 2
  s_add_u32 s{S_TY}, s{S_TY}, s{S_T1}          ; ty = 4*i + (c>>3)
  s_lshl_b32 s{S_T0}, s{S_TY}, 14              ; y0*512 = ty*32*512
  s_lshl_b32 s{S_T1}, s{S_TX}, 3
  s_add_u32 s{S_T0}, s{S_T0}, s{S_T1}
  s_mul_i32 s{S_PXN}, s{S_T0}, 384""")
def global_bases_lines(t):
    L = []
    if OPT['samex']: L += [f"  s_mov_b32 s{S_TX}, 5", f"  s_mov_b32 s{S_TY}, 5"]
    L += f"""  s_lshl_b32 s88, s{S_TY}, 5
  s_sub_u32 s88, s88, 3
  s_lshl_b32 s89, s{S_TX}, 3
  s_sub_u32 s89, s89, 4
  s_lshl_b32 s90, s{S_W}, 2
  s_add_u32 s88, s88, s90
  s_movk_i32 s90, 384
  s_movk_i32 s91, 512
  v_lshrrev_b32 v{t}, 4, v{V_LANE}
  v_bfe_u32 v{t+1}, v{V_LANE}, 3, 1
  v_and_b32 v{t+2}, 7, v{V_LANE}
  v_lshl_add_u32 v{t+1}, v{t+1}, 2, s89
  v_add_u32 v{t}, s88, v{t}
  v_add_u32 v{t+3}, 8, v{t+1}
  v_cmp_gt_u32 s[70:71], s91, v{t+1}
  v_cmp_gt_u32 s[72:73], s91, v{t+3}
  v_lshl_add_u32 v{t+3}, v{t}, 9, v{t+1}
  v_mul_lo_u32 v{t+3}, v{t+3}, s90
  v_lshl_add_u32 v{t+3}, v{t+2}, 4, v{t+3}
  v_mov_b32 v{t+4}, 0x80000000""".split("\n")
    for r in range(3):
        if r > 0:
            L += [f"  v_add_u32 v{t}, 16, v{t}", f"  v_add_u32 v{t+3}, {16*512*384}, v{t+3}"]
        L += [f"  v_cmp_gt_u32 vcc, s91, v{t}"]
        if r == 2:
            L += [f"  v_lshrrev_b32 v{t+5}, 4, v{V_LANE}", f"  s_lshl_b32 s86, s{S_W}, 2", f"  v_add_u32 v{t+5}, s86, v{t+5}",
                  f"  v_cmp_gt_u32 s[86:87], 6, v{t+5}", "  s_nop 0", "  s_and_b64 vcc, vcc, s[86:87]"]
        L += [f"  v_add_u32 v{t+6}, {8*384}, v{t+3}",
              "  s_and_b64 s[92:93], s[70:71], vcc",
              "  s_and_b64 s[94:95], s[72:73], vcc",
              "  s_nop 1",
              f"  v_cndmask_b32 v{V_GA[r]}, v{t+4}, v{t+3}, s[92:93]",
              f"  v_cndmask_b32 v{V_GB[r]}, v{t+4}, v{t+6}, s[94:95]"]
    return L
def global_bases(a, t=128):
    for l in global_bases_lines(t): a(l)
def x_load_line(k, r, i):
    col = COLS[i]
    base = V_GA[r] if col < 8 else V_GB[r]
    off = (col & 7) * 384 + k * 128
    dst = vr(XR[r] + 4 * i, 4) if r < 2 else f"a[{XA2+4*i}:{XA2+4*i+3}]"
    return f"  buffer_load_dwordx4 {dst}, v{base}, s[{S_X}:{S_X+3}], 0 offen offset:{off}"
class Fill:
    def __init__(self, a): self.a = a; self.hi = []; self.lo = []
    def push(self, lines, cost, tag=None, hi=False): (self.hi if hi else self.lo).append((lines, cost, tag))
    def emit1(self, g):
        for l in g[0]: self.a(l)
        if g[2] is not None: vm.add(g[2])
    def pop(self, budget, nhi=1):
        n = 0
        while self.hi and n < nhi:
            g = self.hi.pop(0); self.emit1(g); budget -= g[1]; n += 1
        while self.lo and budget >= self.lo[0][1] * 0.6:
            g = self.lo.pop(0); self.emit1(g); budget -= g[1]
    def flush(self, hi=True, lo=True, n=None):
        if hi:
            while self.hi: self.emit1(self.hi.pop(0))
        if lo:
            c = 0
            while self.lo and (n is None or c < n): self.emit1(self.lo.pop(0)); c += 1
def x_loads(a, k, r):
    for i in range(8): a(x_load_line(k, r, i))
    vm.add(('x', k, r), 8)
def stage_round(a, k, r, hook=None):
    src = XR[r] if r < 2 else XR[0]
    if r == 2:
        for e in range(32): a(f"  v_accvgpr_read_b32 v{XR[0]+e}, a{XA2+e}")
    for d in range(4):
        if hook and OPT['sord'] != 2: hook(d)
        T = PT[d & 1]
        lo = [f"  v_perm_b32 v{T+p}, v{src + 4*(2*p+1) + d}, v{src + 4*(2*p) + d}, s{S_LO}" for p in range(4)]
        hi = [f"  v_perm_b32 v{T+4+p}, v{src + 4*(2*p+1) + d}, v{src + 4*(2*p) + d}, s{S_HI}" for p in range(4)]
        w0 = f"  ds_write_b128 v{V_SW[r]}, {vr(T,4)} offset:{(2*d)*CS}"
        w1 = f"  ds_write_b128 v{V_SW[r]}, {vr(T+4,4)} offset:{(2*d+1)*CS}"
        if OPT['sord'] == 0:
            for l in lo + hi + [w0, w1]: a(l)
        elif OPT['sord'] == 1:
            for l in lo + [w0] + hi + [w1]: a(l)
        else:
            for l in lo + [w0] + hi: a(l)
            if hook: hook(d)
            a(w1)
def table_dma_ops(k):
    d = lambda q: f"  buffer_load_dwordx4 v{R.V_L16}, s[{S_TB}:{S_TB+3}], s{S_TG} offen offset:{1024*q} lds"
    return [
        [f"  s_lshl_b32 s{S_TM}, s{S_W}, 12", f"  s_add_u32 s{S_TG}, s{S_TM}, {k*16384}", f"  s_add_u32 m0, s{S_TM}, {TB[k&1]}", "  s_nop 0", d(0)],
        [d(1)], [d(2)], [d(3)],
        [f"  s_mov_b32 m0, {TB[k&1] + 16384}", f"  s_mov_b32 s{S_TG}, {(k+1)*16384}", d(0)],
    ]
def table_dma(a, k):
    for g in table_dma_ops(k):
        for l in g: a(l)
    vm.add(('t', k), 5)
NCH = 16
def conv_chunk(a, k, hook=None):
    def chan_off(i): j, e = i >> 3, i & 7; return j * OS + e * CS
    def tab_off(i): j, e = i >> 3, i & 7; return TB[k & 1] - TB[0] + j * 2048 + e * 256
    def rdA(i):
        A = AF[i & 1]
        return [f"  ds_read_b32 v{A}, v{V_T} offset:{tab_off(i)}", f"  ds_read_b32 v{A+4}, v{V_T} offset:{tab_off(i)+128}"]
    def rdB(i):
        B = BF[i % 3]
        return [f"  ds_read_b128 a[{B+4*q}:{B+4*q+3}], v{V_B} offset:{chan_off(i)+32*q}" for q in range(4)]
    for t in rdA(0) + rdB(0) + rdB(1): a(t)
    for i in range(NCH):
        A = AF[i & 1]; B = BF[i % 3]
        kind, D = Dreg(k, i)
        Dt = f"{kind}[{D}:{D+3}]"
        nxtA = rdA(i + 1) if i + 1 < NCH else []
        nxtB = rdB(i + 2) if i + 2 < NCH else []
        a(f"  s_waitcnt lgkmcnt({4 if i + 1 < NCH else 0})")
        sm = [f"  v_smfmac_f32_16x16x64_bf16 {Dt}, {vr(A+4*h,4)}, a[{B+8*h}:{B+8*h+7}], v{V_IDX}" for h in range(2)]
        dp = [[f"  v_mov_b32_dpp v{A+4*h+1+g}, v{A+4*h} row_ror:{4*(g+1)} row_mask:0xf bank_mask:0xf" for g in range(3)] for h in range(2)]
        if OPT['cord'] == 0:
            for t in nxtA: a(t)
            for h in range(2):
                for t in dp[h]: a(t)
                rb = nxtB[2*h:2*h+2]
                for t in rb: a(t)
                if len(rb) < 2: a("  s_nop 1")
                a(sm[h])
        elif OPT['cord'] == 1:
            for t in dp[0] + dp[1]: a(t)
            a(sm[0])
            for t in nxtA + nxtB[:2]: a(t)
            if not (nxtA + nxtB[:2]): a("  s_nop 1")
            a(sm[1])
            for t in nxtB[2:]: a(t)
        elif OPT['cord'] == 2:
            for t in nxtA[:1]: a(t)
            for t in dp[0]: a(t)
            for t in nxtA[1:]: a(t)
            for t in dp[1]: a(t)
            a(sm[0])
            for t in nxtB[:2]: a(t)
            if not nxtB[:2]: a("  s_nop 1")
            a(sm[1])
            for t in nxtB[2:]: a(t)
        if hook: hook(i)
def zero_D(a, k):
    L = [f"  v_mov_b32 v{r}, 0" for r in range(44, 48)] + ["  s_nop 1"]
    for q in range(4):
        base = Darch(k, 4 * q)
        L.append(f"  v_mfma_f32_32x32x16_bf16 v[{base}:{base+15}], v[44:47], v[44:47], 0")
    for l in L: a(l)
def stats_lines(k, i):
    D = Darch(k, i)
    return [f"  v_pk_add_f32 v[16:17], v[16:17], v[{D}:{D+1}]", f"  v_pk_add_f32 v[18:19], v[18:19], v[{D+2}:{D+3}]",
            f"  v_pk_fma_f32 v[20:21], v[{D}:{D+1}], v[{D}:{D+1}], v[20:21]", f"  v_pk_fma_f32 v[22:23], v[{D+2}:{D+3}], v[{D+2}:{D+3}], v[22:23]"]
def move_lines(k, i):
    D = Darch(k, i); A = Dreg(k, i)[1]
    return [f"  v_accvgpr_read_b32 v{D+e}, a{A+e}" for e in range(4)]
def ln_phase(a, wdma, done3):
    if OPT['lin']:
        a(f"""  s_lshl_b32 s{S_T0}, s{S_W}, 5
  s_mul_i32 s{S_T1}, s{S_W}, {8*8*XPS + 4*16}
  v_add_u32 v12, s{S_T0}, v12
  v_add_u32 v13, s{S_T0}, v13
  v_add_u32 v14, s{S_T1}, v14
  v_add_u32 v15, s{S_T1}, v15""")
    a("  s_nop 7")
    for i in range(done3, NCH):
        for l in stats_lines(2, i): a(l)
    a(f"""  s_lshl_b32 s{S_T0}, s{S_W}, 11
  s_add_u32 s{S_T0}, s{S_T0}, {STATS}
  v_add_u32 v24, s{S_T0}, v{R.V_L16}
  v_add_u32 v25, {STATS}, v{R.V_L16}
  ds_write_b128 v24, v[16:19]
  ds_write_b128 v24, v[20:23] offset:1024
  s_waitcnt lgkmcnt(0)
  s_barrier""")
    for w in range(4):
        a(f"  ds_read_b128 v[{96+4*w}:{99+4*w}], v25 offset:{2048*w}")
    for w in range(4):
        a(f"  ds_read_b128 v[{28+4*w}:{31+4*w}], v25 offset:{2048*w+1024}")
    wl = Asm(); wdma(wl); wl = [l for l in wl.L]
    for l in wl[:8]: a(l)
    wl = wl[8:]
    a("  s_waitcnt lgkmcnt(4)")
    a("""  v_pk_add_f32 v[96:97], v[96:97], v[100:101]
  v_pk_add_f32 v[98:99], v[98:99], v[102:103]
  v_pk_add_f32 v[104:105], v[104:105], v[108:109]
  v_pk_add_f32 v[106:107], v[106:107], v[110:111]
  v_pk_add_f32 v[96:97], v[96:97], v[104:105]
  v_pk_add_f32 v[98:99], v[98:99], v[106:107]
  s_waitcnt lgkmcnt(0)
  v_pk_add_f32 v[28:29], v[28:29], v[32:33]
  v_pk_add_f32 v[30:31], v[30:31], v[34:35]
  v_pk_add_f32 v[36:37], v[36:37], v[40:41]
  v_pk_add_f32 v[38:39], v[38:39], v[42:43]
  v_pk_add_f32 v[28:29], v[28:29], v[36:37]
  v_pk_add_f32 v[30:31], v[30:31], v[38:39]""")
    for r in range(4):
        a(f"  v_mul_f32 v{16+r}, s{S_INV}, v{96+r}")
    for r in range(4):
        a(f"  v_mul_f32 v{28+r}, s{S_INV}, v{28+r}")
    for r in range(4):
        a(f"  v_fma_f32 v{28+r}, -v{16+r}, v{16+r}, v{28+r}")
    for r in range(4):
        a(f"  v_max_f32 v{28+r}, 0, v{28+r}")
    for r in range(4):
        a(f"  v_add_f32 v{28+r}, s{S_EPS}, v{28+r}")
    for r in range(4):
        a(f"  v_rsq_f32 v{20+r}, v{28+r}")
    a("  s_nop 0")
    for r in range(4):
        a(f"  v_mul_f32 v{20+r}, s{R.S_S}, v{20+r}")
    for r in range(4):
        a(f"  v_mul_f32 v{24+r}, -v{16+r}, v{20+r}" .replace("v_mul_f32 v", "v_mul_f32_e64 v"))
    groups = [(k, j) for k in range(3) for j in range(2)]
    def fmas(g):
        k, j = groups[g]; L = []
        for e in range(8):
            D = Darch(k, 8 * j + e)
            L.append(f"  v_pk_fma_f32 v[{D}:{D+1}], v[{D}:{D+1}], v[20:21], v[24:25]")
            L.append(f"  v_pk_fma_f32 v[{D+2}:{D+3}], v[{D+2}:{D+3}], v[22:23], v[26:27]")
        return L
    for l in fmas(0): a(l)
    cnt = 0
    for g, (k, j) in enumerate(groups):
        Ds = [Darch(k, 8 * j + e) for e in range(8)]
        nxt = fmas(g + 1) if g + 1 < len(groups) else []
        for r in range(4):
            T = 32 + 4 * (cnt % 4); cnt += 1
            for e in range(4):
                a(f"  v_cvt_pk_bf16_f32 v{T+e}, v{Ds[2*e]+r}, v{Ds[2*e+1]+r}")
            a(f"  ds_write_b128 v{V_XW[r>>1]}, v[{T}:{T+3}] offset:{(r&1)*8*XPS + 128*k + 16*j}")
            for l in nxt[4*r:4*r+4]: a(l)
            n = 0
            while wl and n < 1:
                l = wl.pop(0); a(l); n += 1
                while wl and l.startswith("  s_"): l = wl.pop(0); a(l)
    for l in wl: a(l)
def w_dma_block(a, blk):
    S_G0 = 32
    for half, cnt in ((0, 4), (1, 2)):
        a(f"  s_add_u32 s{R.S_G}, s{S_G0}, {blk*BLK + 4096*half}\n{C.m0_set(blk, half)}\n  s_nop 0")
        for p in range(cnt):
            a(f"  buffer_load_dwordx4 v{R.V_L16}, s[{R.S_WS}:{R.S_WS+3}], s{R.S_G} offen offset:{1024*p} lds")
    if blk == 1: a(f"  s_add_u32 s{R.S_G}, s{S_G0}, {2*BLK}\n  s_add_u32 s{R.S_G2}, s{S_G0}, {2*BLK+4096}")
def phase_c(a):
    F = Fill(a)
    if OPT['lin']:
        a(f"  v_add_u32 v16, {SAVEOFF}, v{R.V_L16}\n  ds_read_b128 v[12:15], v16")
    for g in range(24):
        L, c = park_group(g); F.push(L if not OPT['nopark'] else ["  s_nop 0 ; cvt"] * 8, c)
    if OPT['r2late']:
        for i in range(8): F.push([x_load_line(0, 2, i)], 12, ('x', 0, 2), hi=True)
    need_by = [8, 16, 24]
    for k in range(3):
        for r in range(3):
            late = OPT['r2late'] and k == 0
            if r == 0 and not late: F.flush(hi=True, lo=False)
            if r == 2 and late:
                for g in [g for g in F.hi if g[2] == ('x', 0, 2)]: F.emit1(g)
                F.hi = [g for g in F.hi if g[2] != ('x', 0, 2)]
            if r == 2 and OPT['skip2']:
                lab = f"fused_kernel_sk{k}"
                a(f"  s_cmp_ge_u32 s{S_W}, 2\n  s_cbranch_scc1 {lab}")
                a(f"  s_waitcnt vmcnt({vm.after(('x', k, r))})")
                rec = []
                def hk(d):
                    n0 = len(a.L); F.pop(OPT['sbud'], OPT['nhs']); rec.extend(a.L[n0:])
                stage_round(a, k, r, hk)
                a(f"  s_branch {lab}_j\n{lab}:")
                for l in rec: a(l)
                a(f"{lab}_j:")
            else:
                a(f"  s_waitcnt vmcnt({vm.after(('x', k, r))})")
                stage_round(a, k, r, lambda d: F.pop(OPT['sbud'], OPT['nhs'] if (r == 2 or (late and r == 0)) else 0))
            if k < 2 and OPT['nox']:
                vm.add(('x', k + 1, r))
            if k < 2 and not OPT['nox']:
                if r == 1:
                    for i in range(8): F.push([x_load_line(k + 1, 1, i)], 12, ('x', k + 1, 1), hi=True)
                if r == 2:
                    F.hi = [([x_load_line(k + 1, 0, i)], 12, ('x', k + 1, 0)) for i in range(8)] + F.hi
                    for i in range(8): F.push([x_load_line(k + 1, 2, i)], 12, ('x', k + 1, 2), hi=True)
        parked = 24 - sum(1 for g in F.lo if 'cvt' in ''.join(g[0]))
        need = need_by[k] - parked
        while need > 0:
            g = F.lo.pop(0); F.emit1(g)
            if 'cvt' in ''.join(g[0]): need -= 1
        zero_D(a, k)
        a(f"  s_waitcnt vmcnt({vm.after(('t', k))}) lgkmcnt(0)")
        a("  s_barrier")
        if k == 1: table_dma(a, 2)
        if k == 1:
            F.flush(hi=False, lo=True)
            F.push([f"  v_mov_b32 v{r}, 0" for r in range(16, 24)], 32)
            for i in range(NCH): F.push(stats_lines(0, i), OPT['stc'])
        if k == 2:
            for i in range(NCH): F.push(stats_lines(1, i), OPT['stc'])
        stamp(a)
        def hook(i, k=k):
            if k == 2 and i >= 3 and OPT['st3']:
                for l in stats_lines(2, i - 3): a(l)
            F.pop(OPT['cbud'], OPT['nhi'])
        conv_chunk(a, k, hook)
        if k < 2: a("  s_barrier")
        stamp(a)
    F.flush()
    ln_phase(a, lambda x: w_dma_block(x, 0), NCH - 3 if OPT['st3'] else 0)
    a("  s_waitcnt vmcnt(0) lgkmcnt(0)\n  s_barrier")
    if not OPT['w1late']: w_dma_block(a, 1)
    if OPT['jith']:
        for i in range(CFG['D']):
            a(C.ds_text(i, 0, i))
            for blk in range(2): a(f"  ds_read_b128 {Hf(blk,i)}, v{V_XR[blk]} offset:{32*i}")
        a(f"  s_waitcnt lgkmcnt({3*(CFG['D']-1)})")
        return
    for i in range(CFG['D']): a(C.ds_text(i, 0, i))
    for s in range(12):
        for blk in range(2):
            a(f"  ds_read_b128 {Hf(blk,s)}, v{V_XR[blk]} offset:{32*s}")
    a(f"  s_waitcnt lgkmcnt({15 if OPT['hprog'] else 0})")
EPI_ORDER = [(0, s_) for s_ in range(12)] + [(1, s_) for s_ in range(12)]
def quad(blk, sI): return PARK + 4 * (blk * 12 + sI)
def epi_cvt(blk, sI, p, bounce):
    b = sI >> 1
    kind, r0 = ACCreg(blk, b); r0 += 8 * (sI & 1)
    L = []
    if kind == 'a':
        for e in range(8): L.append(f"  v_accvgpr_read_b32 v{bounce+e}, a{r0+e}")
        r0 = bounce
    L += [f"  v_cvt_pk_bf16_f32 v{p}, v{r0}, v{r0+1}", f"  v_cvt_pk_bf16_f32 v{p+1}, v{r0+2}, v{r0+3}",
          f"  v_cvt_pk_bf16_f32 v{p+2}, v{r0+4}, v{r0+5}", f"  v_cvt_pk_bf16_f32 v{p+3}, v{r0+6}, v{r0+7}"]
    return L
def park_group(g):
    blk, sI = EPI_ORDER[g]
    kind, _ = ACCreg(blk, sI >> 1)
    p = 16 if kind == 'a' else 16 + 4 * (g & 1)
    L = epi_cvt(blk, sI, p, 16)
    q = quad(blk, sI)
    L += [f"  v_accvgpr_write_b32 a{q+e}, v{p+e}" for e in range(4)]
    return L, (32 + (32 if kind == 'a' else 0))
def store_parked(i, spx):
    blk, sI = i // 12, i % 12
    q = quad(blk, sI)
    return f"  buffer_store_dwordx4 a[{q}:{q+3}], v{V_PX[blk]}, s[{S_OUT}:{S_OUT+3}], s{spx} offen offset:{32*sI}{['', ' nt', ' sc1', ' sc0 sc1'][OPT['stnt']]}"
class Epi:
    def __init__(self, a): self.a = a; self.g = 0
    def emit(self, n=1):
        pass
def epilogue(a):
    if not OPT['linfin']:
        for g in range(24):
            blk, sI = g // 12, g % 12
            p = 16 + 4 * (g & 1)
            for t in epi_cvt(blk, sI, p, 40): a(t)
            a(f"  buffer_store_dwordx4 {vr(p,4)}, v{V_PX[blk]}, s[{S_OUT}:{S_OUT+3}], s{S_PXO} offen offset:{32*sI}")
        return
    REG = 73728
    a("  s_waitcnt vmcnt(0)")
    a(f"""  s_mul_i32 s{S_T0}, s{S_W}, 12800
  s_add_u32 s{S_T0}, s{S_T0}, {REG}
  v_and_b32 v24, 31, v{V_LANE}
  v_mul_u32_u24 v24, 400, v24
  v_lshrrev_b32 v25, 5, v{V_LANE}
  v_lshl_add_u32 v24, v25, 4, v24
  v_add_u32 v24, s{S_T0}, v24
  s_mov_b32 s{S_T1}, {(2**32 + 23)//24}""")
    for q in range(3):
        a(f"""  v_add_u32 v28, {64*q}, v{V_LANE}
  v_mul_hi_u32 v29, v28, s{S_T1}
  v_add_lshl_u32 v28, v28, v29, 4
  v_add_u32 v{25+q}, s{S_T0}, v28""")
    a(f"""  s_lshl_b32 s86, s{S_W}, 3
  s_mul_i32 s86, s86, {512*384}
  s_add_u32 s86, s86, s{S_PXO}""")
    for blk in range(2):
        for sI in range(12):
            p = 32 + 4 * (sI & 3)
            for t in epi_cvt(blk, sI, p, 16): a(t)
            a(f"  ds_write_b128 v24, {vr(p,4)} offset:{32*sI}")
        a("  s_waitcnt lgkmcnt(0)")
        for q in range(12):
            a(f"  ds_read_b128 {vr(48+4*q+48*(blk&0),4)}, v{25+q%3} offset:{3200*(q//3)}")
        for q in range(12):
            a(f"  s_waitcnt lgkmcnt({11-q})")
            if q % 3 == 0 and (q or blk): a(f"  s_add_u32 s86, s86, {512*384}")
            a(f"  buffer_store_dwordx4 {vr(48+4*q,4)}, v{R.V_L16}, s[{S_OUT}:{S_OUT+3}], s86 offen offset:{1024*(q%3)}")
        if blk == 0: a("  s_nop 1")
def gen_fused(a, name="fused_kernel", nwg=256):
    CFG['accinit'] = 1
    a(kstart(name))
    h16 = lambda x: int(np.float16(x).view(np.uint16))
    a(f"""
  s_cmp_ge_u32 s2, {nwg}
  s_cbranch_scc1 {name}_done
  s_load_dwordx2 s[48:49], s[0:1], 0       ; x
  s_load_dwordx2 s[50:51], s[0:1], 32      ; out
  s_load_dwordx2 s[38:39], s[0:1], 48      ; ws
  v_lshrrev_b32 v1, 6, v0
  v_and_b32 v{V_LANE}, 63, v0
  s_nop 0
  v_readfirstlane_b32 s{S_W}, v1
  v_lshlrev_b32 v{R.V_L16}, 4, v{V_LANE}
""")
    a(f"""
  s_waitcnt lgkmcnt(0)
  s_mov_b32 s{R.S_WS}, s38
  s_and_b32 s{R.S_WS+1}, s39, 0xffff
  s_mov_b32 s{R.S_WS+2}, {NBLK*BLK}
  s_mov_b32 s{R.S_WS+3}, 0x20000
  s_add_u32 s{S_TB}, s38, {TBL_OFF}
  s_addc_u32 s{S_TB+1}, s39, 0
  s_and_b32 s{S_TB+1}, s{S_TB+1}, 0xffff
  s_mov_b32 s{S_TB+2}, {TBL_BYTES}
  s_mov_b32 s{S_TB+3}, 0x20000
  s_mov_b32 s{S_X}, s48
  s_and_b32 s{S_X+1}, s49, 0xffff
  s_mov_b32 s{S_X+2}, {NPX*384}
  s_mov_b32 s{S_X+3}, 0x20000
  s_mov_b32 s{S_OUT}, s50
  s_and_b32 s{S_OUT+1}, s51, 0xffff
  s_mov_b32 s{S_OUT+2}, {NPX*384}
  s_mov_b32 s{S_OUT+3}, 0x20000
  s_mov_b32 s{R.S_NA}, {hex(f2u(-GA))}
  s_mov_b32 s{R.S_S}, {hex(f2u(GS))}
  s_mov_b32 s85, {hex(f2u(GS * (1.0 - OPT['bias'] / 1000.0)))}
  s_mov_b32 s{R.S_NAH}, {hex(h16(-GA) | (h16(-GA) << 16))}
  s_mov_b32 s{R.S_SH}, {hex(h16(GS) | (h16(GS) << 16))}
  s_mov_b32 s{S_LO}, 0x05040100
  s_mov_b32 s{S_HI}, 0x07060302
  s_mov_b32 s{S_EPS}, {hex(f2u(1e-5))}
  s_mov_b32 s{S_INV}, {hex(f2u(1.0/192))}
  s_mul_i32 s{S_G0}, s{S_W}, 6144
""")
    for s in range(3):
        a(f"  s_add_u32 s{R.S_M[2*s]}, s{S_G0}, {s*BLK}")
        a(f"  s_add_u32 s{R.S_M[2*s+1]}, s{S_G0}, {s*BLK + 4096}")
    if OPT['prof'] or OPT['dumph']:
        a(f"""  s_add_u32 s44, s38, {STAMP_OFF}
  s_addc_u32 s45, s39, 0
  s_and_b32 s45, s45, 0xffff
  s_mov_b32 s46, {256*4*512}
  s_mov_b32 s47, 0x20000
  s_lshl_b32 s40, s2, 2
  s_add_u32 s40, s40, s{S_W}
  s_lshl_b32 s40, s40, 9
  s_add_u32 s52, s38, {H_OFF}
  s_addc_u32 s53, s39, 0
  s_and_b32 s53, s53, 0xffff
  s_mov_b32 s54, {NPX*384}
  s_mov_b32 s55, 0x20000""")
    stamp(a, True)
    a(f"  s_mov_b32 s{S_I}, 0")
    tile_coords(a)
    global_bases(a)
    table_dma(a, 0); table_dma(a, 1)
    x_loads(a, 0, 0); x_loads(a, 0, 1)
    if not OPT['r2late']: x_loads(a, 0, 2)
    npf = 0
    if OPT['spf']:
        a(f"""  s_lshl_b32 s{S_T0}, s{S_TY}, 5
  s_sub_u32 s{S_T0}, s{S_T0}, 3
  s_max_i32 s{S_T0}, s{S_T0}, 0
  s_add_u32 s{S_T0}, s{S_T0}, s{S_W}
  s_lshl_b32 s{S_T0}, s{S_T0}, 9
  s_lshl_b32 s{S_T1}, s{S_TX}, 3
  s_sub_u32 s{S_T1}, s{S_T1}, 4
  s_max_i32 s{S_T1}, s{S_T1}, 0
  s_add_u32 s{S_T0}, s{S_T0}, s{S_T1}
  s_mul_i32 s{S_PF}, s{S_T0}, 384
  v_min_u32 v{V_TMP}, 47, v{V_LANE}
  v_lshlrev_b32 v{V_TMP}, 7, v{V_TMP}
  s_mov_b32 m0, {PFSCR}
  s_lshr_b32 s{S_T0}, s2, 3
  s_lshl_b32 s{S_T0}, s{S_T0}, 2
  s_add_u32 s{S_T0}, s{S_T0}, s{S_W}
  s_mul_i32 s{S_T0}, s{S_T0}, 5120
  v_lshlrev_b32 v16, 6, v{V_LANE}
  buffer_load_dword v16, s[{R.S_WS}:{R.S_WS+3}], s{S_T0} offen lds
  buffer_load_dword v16, s[{R.S_WS}:{R.S_WS+3}], s{S_T0} offen offset:1024 lds""")
        npf = 2
        for idx in range(20):
            a(f"  buffer_load_dword v{V_TMP}, s[{S_X}:{S_X+3}], s{S_PF} offen offset:{64*(idx&1)} lds")
            if idx & 1: a(f"  s_add_u32 s{S_PF}, s{S_PF}, {4*512*384}")
            npf += 1
    if OPT['wpf']:
        a(f"""  s_mov_b32 m0, {PFSCR}
  s_lshr_b32 s{S_T0}, s2, 3
  s_lshl_b32 s{S_T0}, s{S_T0}, 2
  s_add_u32 s{S_T0}, s{S_T0}, s{S_W}
  s_mul_i32 s{S_T0}, s{S_T0}, 5120
  v_lshlrev_b32 v16, 6, v{V_LANE}
  buffer_load_dword v16, s[{R.S_WS}:{R.S_WS+3}], s{S_T0} offen lds
  buffer_load_dword v16, s[{R.S_WS}:{R.S_WS+3}], s{S_T0} offen offset:1024 lds""")
        npf += 2
    if OPT['cpf']:
        a(f"""  s_getpc_b64 s[88:89]
{{CODEBASE}}:
  v_lshlrev_b32 v17, 7, v{V_LANE}
  s_lshl_b32 s{S_T0}, s{S_W}, 13
  v_add_u32 v17, s{S_T0}, v17""".replace("{CODEBASE}", "fused_kernel_pc"))
        for q in range(3):
            a(f"  v_min_u32 v18, fused_kernel_done-fused_kernel_pc, v17")
            a(f"  global_load_dword v{120+q}, v18, s[88:89]")
            a(f"  v_add_u32 v17, {4*8192}, v17")
            npf += 1
    a(f"""
  v_add_u32 v{R.V_L16B}, {C.RB if CFG['ring5'] else 2*BLK}, v{R.V_L16}
  v_and_b32 v16, 31, v{V_LANE}             ; n
  v_lshrrev_b32 v17, 5, v{V_LANE}          ; hf
  v_lshrrev_b32 v18, 3, v16
  v_and_b32 v19, 7, v16
  s_lshl_b32 s{S_T0}, s{S_W}, 3
  v_add_u32 v18, s{S_T0}, v18
  v_lshl_add_u32 v20, v18, 9, v19
  s_movk_i32 s{S_T1}, 384
  v_mul_lo_u32 v20, v20, s{S_T1}
  v_lshl_add_u32 v{V_PX[0]}, v17, 4, v20
  v_add_u32 v{V_PX[1]}, {4*512*384}, v{V_PX[0]}
  v_lshl_add_u32 v20, v18, 3, v19
  s_movk_i32 s{S_T1}, {XPS}
  v_mul_lo_u32 v20, v20, s{S_T1}
  v_lshrrev_b32 v21, 1, v18                ; row>>1
  v_add_u32 v21, v21, v17                  ; + hf
  v_lshl_add_u32 v20, v21, 4, v20
  v_add_u32 v{V_XR[0]}, {XCH}, v20
  v_add_u32 v{V_XR[1]}, {XCH + 32*XPS + 32}, v20
  v_and_b32 v18, 0x13, v16
  v_bfe_u32 v19, v16, 2, 1
  v_lshl_or_b32 v18, v19, 3, v18
  v_bfe_u32 v19, v16, 3, 1
  v_lshl_or_b32 v18, v19, 2, v18
  v_lshlrev_b32 v19, 3, v17
  v_sub_u32 v18, v18, v19                  ; c(m) - 8hf
""")
    for d in range(4):
        for (base, reg) in ((0, 112), (16, 116)):
            a(f"""  v_cmp_eq_u32 vcc, {base+2*d}, v18
  v_mov_b32 v19, 0x3f80
  s_nop 1
  v_cndmask_b32 v20, 0, v19, vcc
  v_cmp_eq_u32 vcc, {base+2*d+1}, v18
  v_mov_b32 v19, 0x3f800000
  s_nop 1
  v_cndmask_b32 v21, 0, v19, vcc
  v_or_b32 v{reg+d}, v20, v21""")
    a(f"""  v_add_u32 v20, {IDOFF}, v{R.V_L16}
  ds_write_b128 v20, v[112:115]
  ds_write_b128 v20, v[116:119] offset:1024
  v_and_b32 v16, 15, v{V_LANE}             ; nh
  v_lshrrev_b32 v17, 4, v{V_LANE}          ; q
  v_lshrrev_b32 v18, 1, v17
  v_mul_u32_u24 v18, {PLANE}, v18
  v_lshl_add_u32 v18, v16, 5, v18
  v_and_b32 v19, 1, v17
  v_lshl_add_u32 v18, v19, 4, v18
  s_mul_i32 s{S_T0}, s{S_W}, {2*OS}
  s_add_u32 s{S_T0}, s{S_T0}, {SB}
  v_add_u32 v{V_B}, s{S_T0}, v18
  v_and_b32 v18, 1, v16                    ; mh
  v_bfe_u32 v19, v16, 1, 1                 ; par
  v_lshrrev_b32 v20, 2, v16                ; k'
  v_sub_u32 v21, v17, v18
  v_add_u32 v21, 1, v21
  v_lshlrev_b32 v21, 5, v21
  v_lshl_add_u32 v21, v19, 4, v21
  v_sub_u32 v22, 0, v20
  v_and_b32 v22, 3, v22
  v_lshl_add_u32 v21, v22, 2, v21
  s_lshl_b32 s{S_T0}, s{S_W}, 12
  s_add_u32 s{S_T0}, s{S_T0}, {TB[0]}
  v_add_u32 v{V_T}, s{S_T0}, v21
  v_lshlrev_b32 v21, 1, v20                ; 2k'
  v_add_u32 v22, 1, v21                    ; O: 2k'+1
  v_cmp_eq_u32 vcc, 0, v20
  v_mov_b32 v23, 8
  s_nop 1
  v_cndmask_b32 v21, v21, v23, vcc         ; E
  v_cmp_eq_u32 vcc, 1, v19
  s_nop 1
  v_cndmask_b32 v21, v22, v21, vcc         ; s
  v_mov_b32 v{V_IDX}, 0x4444
""")
    for g in range(4):
        a(f"""  v_cmp_le_u32 vcc, {2*g+2}, v21
  v_mov_b32 v22, {0xA << (4*g)}
  s_nop 1
  v_cndmask_b32 v22, 0, v22, vcc
  v_or_b32 v{V_IDX}, v{V_IDX}, v22""")
    a(f"""
  v_lshlrev_b32 v18, 4, v16                ; 2nh*8
  v_lshlrev_b32 v19, 1, v17                ; 2q'
  v_lshlrev_b32 v20, 4, v16
  s_lshl_b32 s{S_T0}, s{S_W}, 5
  s_add_u32 s{S_T0}, s{S_T0}, {XCH}
  v_add_u32 v20, s{S_T0}, v20
  s_movk_i32 s{S_T1}, {XPS}
  v_add_u32 v21, v18, v19
  v_mul_lo_u32 v21, v21, s{S_T1}
  v_add_u32 v{V_XW[0]}, v21, v20
  v_add_u32 v19, 7, v19
  v_and_b32 v19, 7, v19
  v_add_u32 v21, v18, v19
  v_mul_lo_u32 v21, v21, s{S_T1}
  v_add_u32 v{V_XW[1]}, v21, v20
""")
    a(f"""  s_lshl_b32 s{S_T0}, s{S_W}, 5
  s_mul_i32 s{S_T1}, s{S_W}, {8*8*XPS + 4*16}
  v_subrev_u32 v20, s{S_T0}, v12
  v_subrev_u32 v21, s{S_T0}, v13
  v_subrev_u32 v22, s{S_T1}, v14
  v_subrev_u32 v23, s{S_T1}, v15
  v_add_u32 v16, {SAVEOFF}, v{R.V_L16}
  ds_write_b128 v16, v[20:23]""")
    for r in range(3):
        a(f"""  s_lshl_b32 s{S_T0}, s{S_W}, 6
  s_add_u32 s{S_T0}, s{S_T0}, {256*r}
  v_add_u32 v16, s{S_T0}, v{V_LANE}
  v_and_b32 v18, 7, v16                        ; o
  v_lshrrev_b32 v19, 4, v16                    ; row
  v_bfe_u32 v20, v16, 3, 1                     ; u
  v_mul_u32_u24 v18, {OS}, v18
  v_and_b32 v21, 1, v19
  v_mul_u32_u24 v21, {PLANE}, v21
  v_lshrrev_b32 v19, 1, v19
  v_lshl_add_u32 v21, v19, 5, v21
  v_lshl_add_u32 v21, v20, 4, v21
  v_add_u32 v21, v21, v18
  v_add_u32 v{V_SW[r]}, {SB}, v21""")
        if r == 2:
            a(f"""  s_movk_i32 s{S_T0}, 608
  v_cmp_gt_u32 vcc, s{S_T0}, v16
  v_add_u32 v17, {SDUMMY}, v{R.V_L16}
  s_nop 1
  v_cndmask_b32 v{V_SW[r]}, v17, v{V_SW[r]}, vcc""")
    a(f"  s_waitcnt vmcnt({npf})")
    a(f"  s_mov_b32 s{S_PXP}, 0x80000000")
    a(f"{name}_tile:")
    a(f"  s_mov_b32 s{S_PXO}, s{S_PXN}")
    stamp(a, True)
    phase_c(a)
    stamp(a)
    if OPT['dumph']:
        for blk in range(2):
            for s in range(12):
                a(f"  buffer_store_dwordx4 {Hf(blk,s)}, v{V_PX[blk]}, s[52:55], s{S_PXO} offen offset:{32*s}")
        a("  s_waitcnt vmcnt(6)" if False else "  s_waitcnt vmcnt(0)")
    core = Core(a)
    if OPT['jith']: core.jit_reads = lambda t: [f"  ds_read_b128 {Hf(blk,t)}, v{V_XR[blk]} offset:{32*t}" for blk in range(2)]
    tc = Asm()
    tc(f"  s_add_u32 s{S_I}, s{S_I}, 1")
    tile_coords(tc)
    tc(f"""  s_lshl_b32 s{S_T0}, s{S_TY}, 5
  s_sub_u32 s{S_T0}, s{S_T0}, 3
  s_max_i32 s{S_T0}, s{S_T0}, 0
  s_add_u32 s{S_T0}, s{S_T0}, s{S_W}
  s_lshl_b32 s{S_T0}, s{S_T0}, 9
  s_lshl_b32 s{S_T1}, s{S_TX}, 3
  s_sub_u32 s{S_T1}, s{S_T1}, 4
  s_max_i32 s{S_T1}, s{S_T1}, 0
  s_add_u32 s{S_T0}, s{S_T0}, s{S_T1}
  s_mul_i32 s{S_PF}, s{S_T0}, 384
  s_cmp_ge_u32 s{S_I}, 4
  s_cselect_b32 s{S_PF}, 0x80000000, s{S_PF}""")
    tcl = [(l, 4) for l in tc.L]
    ex0 = [(f"  v_min_u32 v{V_TMP}, 47, v{V_LANE}", 4), (f"  v_lshlrev_b32 v{V_TMP}, 7, v{V_TMP}", 4)]
    if OPT['w1late']:
        wl = Asm(); w_dma_block(wl, 1)
        ex0 = [(l, 10 if 'buffer' in l else 4) for l in wl.L] + ex0
    ex0 = ex0 + tcl[:-2] + [(tcl[-2][0] + "\n" + tcl[-1][0], 8)]
    core.extra[0] = ex0
    core.fast_flush = {0}
    core.vmwait[0] = 0
    core.vmwait[1] = 0
    stplan = {}; xplan = {}
    xg = OPT['xg']
    lin = OPT['lin']
    S_SR = 76; S_SX = 77
    linops = {}
    if lin:
        ex0b = f"""  s_mul_i32 s86, s{S_W}, 12800
  s_add_u32 s86, s86, {TREG}
  v_and_b32 v12, 31, v{V_LANE}
  v_mul_u32_u24 v12, 400, v12
  v_lshrrev_b32 v16, 5, v{V_LANE}
  v_lshl_add_u32 v12, v16, 4, v12
  v_add_u32 v12, s86, v12
  s_mov_b32 s87, {(2**32 + 23)//24}""".split("\n")
        for q in range(3):
            ex0b += [f"  v_add_u32 v16, {64*q}, v{V_LANE}", f"  v_mul_hi_u32 v17, v16, s87", f"  v_add_lshl_u32 v16, v16, v17, 4", f"  v_add_u32 v{13+q}, s86, v16"]
        ex0b += [f"  s_lshl_b32 s{S_SR}, s{S_W}, 3", f"  s_mul_i32 s{S_SR}, s{S_SR}, {512*384}", f"  s_add_u32 s{S_SX}, s{S_SR}, s{S_PXO}", f"  s_add_u32 s{S_SR}, s{S_SR}, s{S_PXP}"]
        core.extra[0] = core.extra[0] + [(l, 4) for l in ex0b]
        def AQ(blk, q): r = quad(blk, q); return f"a[{r}:{r+3}]"
        for blk in range(2):
            core.lds_extra[1 + 3 * blk] = [f"  ds_write_b128 v12, {AQ(blk,q)} offset:{32*q}" for q in range(12)]
            core.lds_extra[2 + 3 * blk] = [f"  ds_read_b128 {AQ(blk,q)}, v{13+q%3} offset:{3200*(q//3)}" for q in range(12)]
            if lin == 1:
                core.lds_extra[10 + 4 * blk] = [f"  ds_write_b128 v{13+q%3}, {AQ(blk,q)} offset:{3200*(q//3)}" for q in range(12)]
                core.lds_extra[11 + 4 * blk] = [f"  ds_read_b128 {AQ(blk,q)}, v12 offset:{32*q}" for q in range(12)]
        def st(blk, q):
            L = [f"  buffer_store_dwordx4 {AQ(blk,q)}, v{R.V_L16}, s[{S_OUT}:{S_OUT+3}], s{S_SR} offen offset:{1024*(q%3)}"]
            if q % 3 == 2: L.append(f"  s_add_u32 s{S_SR}, s{S_SR}, {512*384}")
            return (L, 6)
        def xl(blk, q):
            L = [f"  buffer_load_dwordx4 {AQ(blk,q)}, v{R.V_L16}, s[{S_X}:{S_X+3}], s{S_SX} offen offset:{1024*(q%3)}"]
            if q % 3 == 2: L.append(f"  s_add_u32 s{S_SX}, s{S_SX}, {512*384}")
            return (L, 6)
        linops = {2: [st(0, q) for q in range(6)], 3: [st(0, q) for q in range(6, 12)], 4: [xl(0, q) for q in range(6)],
                  5: [st(1, q) for q in range(6)], 6: [st(1, q) for q in range(6, 12)], 7: [xl(0, q) for q in range(6, 12)],
                  10: [xl(1, q) for q in range(6)], 11: [xl(1, q) for q in range(6, 12)]}
        if lin == 2:
            for j_ in (4, 7, 10, 11): del linops[j_]
            for g, j_ in enumerate([4, 7, 8, 9, 10, 11, 12, 14, 16, 18, 20, 22]): xplan[j_] = [2 * g, 2 * g + 1]
        if lin == 3:
            core.lds_extra.pop(1); core.lds_extra.pop(2); core.lds_extra.pop(4); core.lds_extra.pop(5)
            for blk in range(2):
                core.lds_extra[10 + 4 * blk] = [f"  ds_write_b128 v{13+q%3}, {AQ(blk,q)} offset:{3200*(q//3)}" for q in range(12)]
                core.lds_extra[11 + 4 * blk] = [f"  ds_read_b128 {AQ(blk,q)}, v12 offset:{32*q}" for q in range(12)]
            linops = {7: [xl(0, q) for q in range(6)], 8: [xl(0, q) for q in range(6, 12)] , 12: [xl(1, q) for q in range(6)], 13: [xl(1, q) for q in range(6, 12)]}
            core.lds_extra[11] = core.lds_extra.pop(10); core.lds_extra[12] = [f"  ds_read_b128 {AQ(0,q)}, v12 offset:{32*q}" for q in range(12)]
            core.lds_extra[16] = core.lds_extra.pop(14); core.lds_extra[17] = [f"  ds_read_b128 {AQ(1,q)}, v12 offset:{32*q}" for q in range(12)]
            core.lds_extra.pop(15, None)
            for g in range(12): stplan[1 + g] = [2 * g, 2 * g + 1]
    elif xg == 4:
        for g in range(6):
            stplan[1 + 4 * g] = [4 * g + e for e in range(4)]
            xplan[2 + 4 * g] = [4 * g + e for e in range(4)]
    elif xg == 2:
        for g in range(12): stplan[1 + g] = [2 * g, 2 * g + 1]
        for g in range(12): xplan[[2, 4, 6, 8, 10, 12, 14, 16, 18, 20, 21, 22][g]] = [2 * g, 2 * g + 1]
    elif xg == 1:
        for g in range(12): stplan[1 + g] = [2 * g, 2 * g + 1]
        for q in range(24): xplan.setdefault(2 + (q * 21) // 24, []).append(q)
    perj = {}
    for j in range(1, 24):
        ops = []; nv = 0
        for g in linops.get(j, []):
            ops.append(g); nv += 1
        for q in stplan.get(j, []):
            ops.append(([store_parked(q, S_PXP)], 6)); nv += 1
        for q in xplan.get(j, []):
            blk, sI = q // 12, q % 12
            ops.append(([f"  buffer_load_dwordx4 {Xf(blk,sI)}, v{V_PX[blk]}, s[{S_X}:{S_X+3}], s{S_PXO} offen offset:{32*sI} {['', 'nt', 'sc1', 'sc0 sc1'][OPT['xf']]}"], 6)); nv += 1
        if j in ((8, 9) if OPT['lin'] else (4, 6)):
            for gi_, g in enumerate(table_dma_ops(0 if j in (4, 8) else 1)):
                ops.append((g, 6 + 4 * (len(g) - 1))); nv += 1
        if OPT['pf'] and j < 23:
            npf_ = 20 if OPT['pfh'] else 10
            step = OPT['pfs']; first = 23 - npf_ * step
            if j >= first and (j - first) % step == 0:
                idx = (j - first) // step
                t = [f"  s_mov_b32 m0, {PFSCR}", "  s_nop 0", f"  buffer_load_dword v{V_TMP}, s[{S_X}:{S_X+3}], s{S_PF} offen offset:{64 * (idx & 1) if OPT['pfh'] else 0} {['', 'nt', 'sc1', 'sc0 sc1'][OPT['pff']]} lds"]
                if (idx & 1) or not OPT['pfh']: t.append(f"  s_add_u32 s{S_PF}, s{S_PF}, {4*512*384}")
                ops.append((t, 14)); nv += 1
        perj[j] = (ops, nv)
    if CFG['ring5']:
        for j in range(1, 24, 2):
            o1, n1 = perj.get(j, ([], 0)); o2, n2 = perj.get(j + 1, ([], 0))
            core.pend_extra[j] = (o1, o2)
            core.vmwait[j + 2] = n2
    else:
        for j in range(1, 24):
            core.pend_extra[j] = perj[j][0]; core.vmwait[j + 1] = perj[j][1]
    core.extra[23] = []
    core.extra[24] = [(f"  v_add_u32 v56, {IDOFF}, v{R.V_L16}", 4), (f"  ds_read_b128 v[48:51], v56", 8), (f"  ds_read_b128 v[52:55], v56 offset:1024", 8)]
    ps = []
    for blk in range(2):
        for sI in range(12):
            ps.append((f"  v_mfma_f32_32x32x16_bf16 {ACC(blk,sI>>1)}, {vr(52 if sI&1 else 48,4)}, {Xf(blk,sI)}, {ACC(blk,sI>>1)}", []))
    if CFG['ring5']: ps[0] = (ps[0][0], ["  s_waitcnt vmcnt(0)"])
    core.pseudo[24] = ps
    core.extra_first.add(24)
    core.no_barrier.add(25)
    if not CFG['ring5']: core.vmwait[24] = 0
    core.emit(0, 1); core.emit(1, 2)
    if OPT['prof'] >= 2:
        a(f"  v_mov_b32 v47, v{V_TMP}"); stamp(a); a(f"  v_mov_b32 v{V_TMP}, v47")
    for j in range(2, 24): core.emit(j, j + 1)
    if OPT['prof'] >= 2: stamp(a)
    core.emit(24, 25)
    if OPT['prof'] >= 2: stamp(a)
    emit_tail(a, core)
    stamp(a)
    a(f"""  s_cmp_ge_u32 s{S_I}, 4
  s_cbranch_scc1 {name}_last""")
    a("  s_barrier")
    a(f"  s_mov_b32 s{S_PXP}, s{S_PXO}")
    stamp(a)
    a(f"  s_branch {name}_tile")
    a(f"{name}_last:")
    a("  s_nop 15")
    epilogue(a)
    stamp(a)
    a("  s_waitcnt vmcnt(0)")
    stamp(a, True)
    a(f"""  s_waitcnt vmcnt(0)
{name}_done:
  s_endpgm
""")
    a(kdesc(name, 512, 100, 256))
def emit_loop(a, self, name):
    for j in range(2, 25): self.emit(j, j + 1)
def emit_tail(a, core):
    ch, Pf = core.plan(25, None)
    main = [l for c in ch for l in c]
    for tx, c in core.pending: main += tx
    core.pending = []
    f = []
    f += global_bases_lines(96)
    f += [x_load_line(0, 0, i) for i in range(8)]
    f += [x_load_line(0, 1, i) for i in range(8)]
    if not OPT['r2late']: f += [x_load_line(0, 2, i) for i in range(8)]
    fi = 0
    nm = sum(1 for l in main if "v_mfma" in l); per = -(-len(f) // nm)
    for l in main:
        a(l)
        if "v_mfma" in l:
            for _ in range(per):
                if fi < len(f): a(f[fi]); fi += 1
    while fi < len(f): a(f[fi]); fi += 1
    vm.ops.clear(); vm.add(('t', 0), 5); vm.add(('t', 1), 5); vm.add(('x', 0, 0), 8); vm.add(('x', 0, 1), 8)
    if not OPT['r2late']: vm.add(('x', 0, 2), 8)
```

```python
from asmlib import *
BLK = 24576
NBLK = 26
CFG = dict(ring5=0, pacew=38, D=3, NF=4, nogelu=0, nobar=0, nods=0, nodma=0, gelu='mix', dsc=12, dmac=14, gap=32, accinit=0)
class R:
    V_L16 = 5; V_L16B = 4
    T = 16
    G0 = [24, 28]
    G1 = [[32, 36], [40, 44]]
    S = [[48, 64], [80, 96]]
    WF0 = 144
    S_WS = 4
    S_NA = 25; S_S = 26; S_CNT = 27
    S_G = 22; S_G2 = 23
    S_M = [56, 57, 58, 59, 60, 61]
    S_NAH = 36; S_SH = 37; S_D = 85; S_G0 = 32
    RING = 0
def ACC(blk, b):
    i = blk * 6 + b
    return f"v[{112+16*i}:{112+16*i+15}]" if i < 9 else f"a[{16*(i-9)}:{16*(i-9)+15}]"
def ACCreg(blk, b):
    i = blk * 6 + b
    return ('v', 112 + 16 * i) if i < 9 else ('a', 16 * (i - 9))
def Hf(blk, s): r = 48 + 48 * blk + 4 * s; return f"a[{r}:{r+3}]"
def WFr(k): r = R.WF0 + 4 * k; return f"a[{r}:{r+3}]"
def gelu_pair(x0, x1, t0, t1, g):
    if CFG['gelu'] == 'f32':
        return [
            (f"  v_fma_f32 v{t0}, -v{x0}, v{x0}, s{R.S_NA}", 4),
            (f"  v_fma_f32 v{t1}, -v{x1}, v{x1}, s{R.S_NA}", 4),
            (f"  v_mul_f32 v{t0}, v{t0}, v{x0}", 4),
            (f"  v_mul_f32 v{t1}, v{t1}, v{x1}", 4),
            (f"  v_exp_f32 v{t0}, v{t0}", 8),
            (f"  v_exp_f32 v{t1}, v{t1}", 8),
            (f"  v_fma_f32 v{t0}, v{t0}, s{R.S_D}, s{R.S_D}", 4),
            (f"  v_fma_f32 v{t1}, v{t1}, s{R.S_D}, s{R.S_D}", 4),
            (f"  v_rcp_f32 v{t0}, v{t0}", 8),
            (f"  v_rcp_f32 v{t1}, v{t1}", 8),
            (f"  v_mul_f32 v{t0}, v{x0}, v{t0}", 4),
            (f"  v_mul_f32 v{t1}, v{x1}, v{t1}", 4),
            (f"  v_cvt_pk_bf16_f32 v{g}, v{t0}, v{t1}", 4),
        ]
    else:
        return [
            (f"  v_cvt_pk_f16_f32 v{t0}, v{x0}, v{x1}", 4),
            (f"  v_pk_fma_f16 v{t1}, v{t0}, v{t0}, s{R.S_NAH} neg_lo:[1,0,0] neg_hi:[1,0,0]", 4),
            (f"  v_pk_mul_f16 v{t1}, v{t1}, v{t0}", 4),
            (f"  v_exp_f16_sdwa v{t0}, v{t1} dst_sel:WORD_0 dst_unused:UNUSED_PRESERVE src0_sel:WORD_0", 8),
            (f"  v_exp_f16_sdwa v{t0}, v{t1} dst_sel:WORD_1 dst_unused:UNUSED_PRESERVE src0_sel:WORD_1", 8),
            (f"  v_pk_fma_f16 v{t0}, v{t0}, s{R.S_SH}, s{R.S_SH}", 4),
            (f"  v_rcp_f16_sdwa v{t1}, v{t0} dst_sel:WORD_0 dst_unused:UNUSED_PRESERVE src0_sel:WORD_0", 8),
            (f"  v_rcp_f16_sdwa v{t1}, v{t0} dst_sel:WORD_1 dst_unused:UNUSED_PRESERVE src0_sel:WORD_1", 8),
            (f"  v_fma_mix_f32 v{t0}, v{x0}, v{t1}, 0 op_sel_hi:[0,1,0]", 4),
            (f"  v_fma_mix_f32 v{t1}, v{x1}, v{t1}, 0 op_sel:[0,1,0] op_sel_hi:[0,1,0]", 4),
            (f"  v_cvt_pk_bf16_f32 v{g}, v{t0}, v{t1}", 4),
        ]
def gelu_chains(buf, els, Gdst):
    out = []
    for pi in range(0, len(els), 2):
        for blk in range(2):
            Sr = R.S[buf][blk]
            slot = (len(out)) % 4
            t0 = R.T + 2 * slot
            ops = gelu_pair(Sr + els[pi], Sr + els[pi + 1], t0, t0 + 1, Gdst[blk] + pi // 2)
            if CFG['gelu'] == 'f32':
                deps = [[], [], [0], [1], [2], [3], [4], [5], [6], [7], [8], [9], [10, 11]]
            else:
                deps = [[], [0], [1], [2], [2, 3], [4], [5], [5, 6], [7], [7, 8], [8, 9]]
            out.append([(t, c, d) for (t, c), d in zip(ops, deps)])
    return out
class Chains:
    def __init__(self, chains):
        self.ch = chains; self.done = [[None] * len(c) for c in chains]; self.n = 0
        self.first = 0
    def remaining(self):
        return sum(c for ci, ch in enumerate(self.ch) for oi, (t, c, d) in enumerate(ch) if self.done[ci][oi] is None)
    def chain_done(self, ci): return all(x is not None for x in self.done[ci])
    def ready(self):
        r = []
        while self.first < len(self.ch) and self.chain_done(self.first): self.first += 1
        for ci in range(self.first, min(len(self.ch), self.first + 4)):
            for oi, (t, c, d) in enumerate(self.ch[ci]):
                if self.done[ci][oi] is not None: continue
                if all(self.done[ci][x] is not None and self.n - self.done[ci][x] >= 2 for x in d):
                    r.append((ci, oi, c))
        return r
    def take(self, ci, oi):
        self.done[ci][oi] = self.n; self.n += 1
        return self.ch[ci][oi][0], self.ch[ci][oi][1]
    def tick(self): self.n += 1
    def upto_done(self, k): return all(self.chain_done(c) for c in range(min(k, len(self.ch))))
def iter_frags(j):
    L = []
    if j < 24:
        for s in range(12):
            mk = []
            for blk in range(2):
                Sd = vr(R.S[j & 1][blk], 16); c = "0" if s == 0 else Sd
                mk.append(lambda wf, Sd=Sd, c=c, h=Hf(blk, s): f"  v_mfma_f32_32x32x16_bf16 {Sd}, {wf}, {h}, {c}")
            L.append((s, 1, mk))
    if 2 <= j <= 25:
        for b in range(6):
            mk = [(lambda wf, ac=ACC(blk, b), g=vr(R.G1[(j - 2) & 1][blk], 4): f"  v_mfma_f32_32x32x16_bf16 {ac}, {wf}, {g}, {ac}") for blk in range(2)]
            L.append((12 + b, 2, mk))
    if 1 <= j <= 24:
        for b in range(6):
            mk = [(lambda wf, ac=ACC(blk, b), g=vr(R.G0[blk], 4), c0=(j == 1 and CFG['accinit']): f"  v_mfma_f32_32x32x16_bf16 {ac}, {wf}, {g}, {'0' if c0 else ac}") for blk in range(2)]
            L.append((18 + b, 3, mk))
    return L
RB = 61440
def slot_of(j): return j % 5 if CFG['ring5'] else j % 3
def ds_text(kb, j, fidx):
    off = R.RING + slot_of(j) * BLK + fidx * 1024
    if CFG['ring5']:
        if off < RB: return f"  ds_read_b128 {WFr(kb)}, v{R.V_L16} offset:{off}"
        return f"  ds_read_b128 {WFr(kb)}, v{R.V_L16B} offset:{off - RB}"
    if (j % 3) < 2:
        return f"  ds_read_b128 {WFr(kb)}, v{R.V_L16} offset:{off}"
    return f"  ds_read_b128 {WFr(kb)}, v{R.V_L16B} offset:{off - (R.RING + 2*BLK)}"
def m0_set(jb, half):
    if CFG['ring5']: return f"  s_add_u32 m0, s{R.S_G0}, {R.RING + slot_of(jb) * BLK + 4096 * half}"
    return f"  s_mov_b32 m0, s{R.S_M[2*(jb%3)+half]}"
def dma_ops(jb):
    if jb >= NBLK: return []
    def dma(off, sg):
        return "  s_nop 0" if CFG['nodma'] else f"  buffer_load_dwordx4 v{R.V_L16}, s[{R.S_WS}:{R.S_WS+3}], s{sg} offen offset:{off} lds"
    c = CFG['dmac'] - 8
    return [
        ([m0_set(jb, 0), "  s_nop 0", dma(0, R.S_G)], c + 8),
        ([dma(1024, R.S_G)], c), ([dma(2048, R.S_G)], c), ([dma(3072, R.S_G)], c),
        ([m0_set(jb, 1), f"  s_add_u32 s{R.S_G}, s{R.S_G}, {BLK}", dma(0, R.S_G2)], c + 8),
        ([dma(1024, R.S_G2), f"  s_add_u32 s{R.S_G2}, s{R.S_G2}, {BLK}"], c + 4),
    ]
class Core:
    def __init__(self, a):
        self.a = a; self.k = 0; self.pending = []
        self.over = 0
        self.pace = 0.0; self.pace_acc = 0.0
        self.no_barrier = set()
        self.jit_reads = None
        self.lds_extra = {}
        self.extra_first = set()
        self.pseudo = {}
        self.fast_flush = set()
        self.pend_extra = {}
        self.vmwait = {}
        self.extra = {}
    def plan(self, j, jn):
        D = CFG['D']; NF = CFG['NF']
        F = iter_frags(j); Fn = iter_frags(jn) if jn is not None else []
        nf = len(F); n = 2 * nf
        Pf = max(0, nf - D)
        chains = []
        nva = 0
        if 1 <= j <= 24 and not CFG['nogelu']:
            buf = (j - 1) & 1
            va = gelu_chains(buf, list(range(0, 8)), R.G0); vb = gelu_chains(buf, list(range(8, 16)), R.G1[buf])
            chains = va + vb; nva = len(va)
        slots = []
        pend = list(self.pending)
        ldsx = list(self.lds_extra.get(j, []))
        for fi in range(nf):
            t = fi + D
            pre = []
            sync_here = fi == Pf and (not CFG['ring5'] or j == 0 or (j & 1))
            if sync_here:
                for tx, c in pend: pre += tx
                pend = []
                lg0 = " lgkmcnt(0)" if (j == 0 and self.jit_reads) else ""
                if not CFG['nobar'] and j not in self.no_barrier: pre += [f"  s_waitcnt vmcnt({self.vmwait.get(j, 0)}){lg0}", "  s_barrier"]
                if CFG['ring5']:
                    blocks = (2, 3) if j == 0 else (j + 3, j + 4)
                    e1, e2 = self.pend_extra.get(j, ([], []))
                    pend = dma_ops(blocks[0]) + list(e1) + dma_ops(blocks[1]) + list(e2)
                    self.pace = 0.0 if j == 0 else min(2.0, CFG['pacew'] / max(1, len(pend)))
                    self.pace_acc = 0.0
                else:
                    pend = dma_ops(j + 2) + list(self.pend_extra.get(j, []))
            rd = []
            if not CFG['nods']:
                if t < nf: rd = [ds_text((self.k + t) % NF, j, F[t][0])]
                elif jn is not None: rd = [ds_text((self.k + t) % NF, j + 1, Fn[t - nf][0])]
            jit = list(self.jit_reads(t)) if (j == 0 and self.jit_reads and t < nf) else []
            rd = rd + jit
            slots.append((pre, rd, (CFG['dsc'] if rd else 8) + 12 * len(jit)))
            can = True
            if CFG['ring5'] and self.pace > 1.0:
                self.pace_acc += 1.0
                can = self.pace_acc >= self.pace
                if can and pend: self.pace_acc -= self.pace
            if j == 0 and self.jit_reads:
                younger = sum((3 if (q < nf) else 1) for q in range(fi + 2, fi + D + 1))
                wtxt = f"  s_waitcnt lgkmcnt({min(15, younger)})"
                if pend and can:
                    tx, c = pend.pop(0); tx = list(tx)
                    if j in self.fast_flush and fi >= Pf:
                        while pend:
                            t2, c2 = pend.pop(0); tx += t2; c += c2 + 4
                    slots.append(([], [wtxt] + tx, 12 + c))
                else:
                    slots.append(([], [wtxt], 8))
            elif not CFG['nods'] and fi % 2 == 1:
                nodd = len([q for q in range(fi, nf) if q % 2 == 1])
                lx = [ldsx.pop(0) for _ in range(-(-len(ldsx) // nodd))] if ldsx else []
                cl = 12 * len(lx)
                if len(pend) > self.over and can:
                    tx, c = pend.pop(0)
                    slots.append(([], [f"  s_waitcnt lgkmcnt({D-2})"] + lx + list(tx), 12 + c + cl))
                else:
                    slots.append(([], [f"  s_waitcnt lgkmcnt({D-2})"] + lx, 8 + cl))
            elif pend and can:
                tx, c = pend.pop(0)
                tx = list(tx)
                if j in self.fast_flush and fi >= Pf:
                    while pend:
                        t2, c2 = pend.pop(0); tx += t2; c += c2 + 4
                slots.append(([], tx, 8 + c))
            else:
                slots.append(([], [], 8))
        self.pending = pend
        assert not ldsx
        ex = list(self.extra.get(j, []))
        gi = 0
        while ex:
            per = -(-len(ex) // max(1, (2 * Pf - gi))) if j not in self.extra_first else len(ex)
            pre_, tx_, c_ = slots[gi]
            add_ = ex[:per]; ex = ex[per:]
            slots[gi] = (pre_, list(tx_) + [t for t, _ in add_], c_ + sum(c for _, c in add_))
            gi += 1
        mtext = []; mslots = []; mgrp = []; fragend = []
        ps = list(self.pseudo.get(j, []))
        cnts = [0] * nf
        if ps:
            for q in range(len(ps)): cnts[2 + (q * (nf - 2)) // len(ps)] += 1
        for fi, (fidx, grp, mk) in enumerate(F):
            kb = (self.k + fi) % NF
            mtext.append(mk[0](WFr(kb))); mslots.append(slots[2 * fi]); mgrp.append(grp)
            mtext.append(mk[1](WFr(kb))); mslots.append(slots[2 * fi + 1]); mgrp.append(grp)
            for _ in range(cnts[fi]):
                if ps:
                    t_, pre_ = ps.pop(0)
                    mtext.append(t_); mslots.append((pre_, [], 8)); mgrp.append(0)
            fragend.append(len(mtext))
        assert not ps
        n = len(mtext); slots = mslots
        G = CFG['gap']
        base = [slots[i][2] for i in range(n)]
        for i in range(1, n): base[i - 1] += 4 * len(slots[i][0])
        sched = [[] for _ in range(n)]
        CH = Chains(chains)
        first3 = next((i for i in range(n) if mgrp[i] == 3), None)
        carry = 0.0
        for i in range(n):
            tcur = base[i]
            CH.tick()
            cap = sum(max(0, G - base[q]) for q in range(i, n))
            excess = CH.remaining() - cap
            if excess > 0: carry += excess * 1.0 / (n - i)
            while True:
                rdy = CH.ready()
                if not rdy:
                    if CH.remaining() > 0 and (i == n - 1 or (first3 is not None and i >= first3 - 2 and not CH.upto_done(nva))):
                        sched[i].append(("  s_nop 0", 4)); CH.tick(); tcur += 4; continue
                    break
                must = i == n - 1 or (first3 is not None and i >= first3 - 2 and not CH.upto_done(nva))
                need = G - tcur
                pick = None
                fit = [r for r in rdy if r[2] <= need]
                if fit:
                    pick = fit[0]
                    if need == 8:
                        ex = [r for r in fit if r[2] == 8]
                        pl = [r for r in rdy if r[2] == 4]
                        if ex and len(pl) < 2: pick = ex[0]
                elif must:
                    pick = rdy[0]
                else:
                    over = [(r, tcur + r[2] - max(G, tcur)) for r in rdy]
                    over.sort(key=lambda x: x[1])
                    if need > 0 and excess > 0:
                        pick = over[0][0]; carry -= over[0][1]
                    elif over[0][1] <= carry:
                        pick = over[0][0]; carry -= over[0][1]
                if pick is None: break
                tx, c = CH.take(pick[0], pick[1])
                sched[i].append((tx, c)); tcur += c
        assert CH.remaining() == 0
        chunks = []
        m0 = 0
        for fi in range(nf):
            L = []
            for m in range(m0, fragend[fi]):
                L += slots[m][0]
                if j == 24 and m == first3: L.append("  s_nop 1")
                L.append(mtext[m]); L += slots[m][1]
                L += [t for t, _ in sched[m]]
            m0 = fragend[fi]
            chunks.append(L)
        self.k = (self.k + nf) % NF
        return chunks, Pf
    def emit(self, j, jn):
        ch, Pf = self.plan(j, jn)
        if j == 1: self.a("  s_nop 11")
        for L in ch:
            for t in L: self.a(t)
    def emit_tile(self, name):
        a = self.a
        self.emit(0, 1); self.emit(1, 2)
        a(f"  s_mov_b32 s{R.S_CNT}, 4")
        k0 = self.k; p0 = list(self.pending)
        a(".p2align 6")
        a(f"{name}_loop:")
        a(f"  s_sub_u32 s{R.S_CNT}, s{R.S_CNT}, 1")
        self.emit(2, 3); self.emit(3, 4); self.emit(4, 5)
        ks = self.k; ps = list(self.pending)
        ch, Pf = self.plan(5, 6)
        for L in ch[:Pf]:
            for t in L: a(t)
        a(f"  s_cmp_eq_u32 s{R.S_CNT}, 0")
        a(f"  s_cbranch_scc1 {name}_exit")
        for L in ch[Pf:]:
            for t in L: a(t)
        self.emit(6, 7); self.emit(7, 8)
        assert self.k == k0 and self.pending == p0, (self.k, k0)
        a(f"  s_branch {name}_loop")
        a(f"{name}_exit:")
        self.k = ks; self.pending = ps
        ch, Pf = self.plan(23, 24)
        for L in ch[Pf:]:
            for t in L: a(t)
        self.emit(24, 25); self.emit(25, None)
        for tx, c in self.pending:
            for t in tx: a(t)
        self.pending = []
```

```python
from asmlib import *
BLK = 24576
NBLK = 26
CFG = dict(typed=0, vlong=99, tailgap=0, ring5=0, pacew=38, D=3, NF=4, nogelu=0, nobar=0, nods=0, nodma=0, gelu='mix', dsc=12, dmac=14, gap=32, accinit=0)
class R:
    V_L16 = 5; V_L16B = 4
    T = 16
    G0 = [24, 28]
    G1 = [[32, 36], [40, 44]]
    S = [[48, 64], [80, 96]]
    WF0 = 144
    S_WS = 4
    S_NA = 25; S_S = 26; S_CNT = 27
    S_G = 22; S_G2 = 23
    S_M = [56, 57, 58, 59, 60, 61]
    S_NAH = 36; S_SH = 37; S_D = 85; S_G0 = 32
    RING = 0
def ACC(blk, b):
    i = blk * 6 + b
    return f"v[{112+16*i}:{112+16*i+15}]" if i < 9 else f"a[{16*(i-9)}:{16*(i-9)+15}]"
def ACCreg(blk, b):
    i = blk * 6 + b
    return ('v', 112 + 16 * i) if i < 9 else ('a', 16 * (i - 9))
def Hf(blk, s): r = 48 + 48 * blk + 4 * s; return f"a[{r}:{r+3}]"
def WFr(k): r = R.WF0 + 4 * k; return f"a[{r}:{r+3}]"
def gelu_pair(x0, x1, t0, t1, g):
    if CFG['gelu'] == 'f32':
        return [
            (f"  v_fma_f32 v{t0}, -v{x0}, v{x0}, s{R.S_NA}", 4),
            (f"  v_fma_f32 v{t1}, -v{x1}, v{x1}, s{R.S_NA}", 4),
            (f"  v_mul_f32 v{t0}, v{t0}, v{x0}", 4),
            (f"  v_mul_f32 v{t1}, v{t1}, v{x1}", 4),
            (f"  v_exp_f32 v{t0}, v{t0}", 8),
            (f"  v_exp_f32 v{t1}, v{t1}", 8),
            (f"  v_fma_f32 v{t0}, v{t0}, s{R.S_D}, s{R.S_D}", 4),
            (f"  v_fma_f32 v{t1}, v{t1}, s{R.S_D}, s{R.S_D}", 4),
            (f"  v_rcp_f32 v{t0}, v{t0}", 8),
            (f"  v_rcp_f32 v{t1}, v{t1}", 8),
            (f"  v_mul_f32 v{t0}, v{x0}, v{t0}", 4),
            (f"  v_mul_f32 v{t1}, v{x1}, v{t1}", 4),
            (f"  v_cvt_pk_bf16_f32 v{g}, v{t0}, v{t1}", 4),
        ]
    else:
        return [
            (f"  v_cvt_pk_f16_f32 v{t0}, v{x0}, v{x1}", 4),
            (f"  v_pk_fma_f16 v{t1}, v{t0}, v{t0}, s{R.S_NAH} neg_lo:[1,0,0] neg_hi:[1,0,0]", 4),
            (f"  v_pk_mul_f16 v{t1}, v{t1}, v{t0}", 4),
            (f"  v_exp_f16_sdwa v{t0}, v{t1} dst_sel:WORD_0 dst_unused:UNUSED_PRESERVE src0_sel:WORD_0", 8),
            (f"  v_exp_f16_sdwa v{t0}, v{t1} dst_sel:WORD_1 dst_unused:UNUSED_PRESERVE src0_sel:WORD_1", 8),
            (f"  v_pk_fma_f16 v{t0}, v{t0}, s{R.S_SH}, s{R.S_SH}", 4),
            (f"  v_rcp_f16_sdwa v{t1}, v{t0} dst_sel:WORD_0 dst_unused:UNUSED_PRESERVE src0_sel:WORD_0", 8),
            (f"  v_rcp_f16_sdwa v{t1}, v{t0} dst_sel:WORD_1 dst_unused:UNUSED_PRESERVE src0_sel:WORD_1", 8),
            (f"  v_fma_mix_f32 v{t0}, v{x0}, v{t1}, 0 op_sel_hi:[0,1,0]", 4),
            (f"  v_fma_mix_f32 v{t1}, v{x1}, v{t1}, 0 op_sel:[0,1,0] op_sel_hi:[0,1,0]", 4),
            (f"  v_cvt_pk_bf16_f32 v{g}, v{t0}, v{t1}", 4),
        ]
def gelu_chains(buf, els, Gdst):
    out = []
    for pi in range(0, len(els), 2):
        for blk in range(2):
            Sr = R.S[buf][blk]
            slot = (len(out)) % 4
            t0 = R.T + 2 * slot
            ops = gelu_pair(Sr + els[pi], Sr + els[pi + 1], t0, t0 + 1, Gdst[blk] + pi // 2)
            if CFG['gelu'] == 'f32':
                deps = [[], [], [0], [1], [2], [3], [4], [5], [6], [7], [8], [9], [10, 11]]
            else:
                deps = [[], [0], [1], [2], [2, 3], [4], [5], [5, 6], [7], [7, 8], [8, 9]]
            out.append([(t, c, d) for (t, c), d in zip(ops, deps)])
    return out
class Chains:
    def __init__(self, chains):
        self.ch = chains; self.done = [[None] * len(c) for c in chains]; self.n = 0
        self.first = 0
    def remaining(self):
        return sum(c for ci, ch in enumerate(self.ch) for oi, (t, c, d) in enumerate(ch) if self.done[ci][oi] is None)
    def chain_done(self, ci): return all(x is not None for x in self.done[ci])
    def ready(self):
        r = []
        while self.first < len(self.ch) and self.chain_done(self.first): self.first += 1
        for ci in range(self.first, min(len(self.ch), self.first + 4)):
            for oi, (t, c, d) in enumerate(self.ch[ci]):
                if self.done[ci][oi] is not None: continue
                if all(self.done[ci][x] is not None and self.n - self.done[ci][x] >= 2 for x in d):
                    r.append((ci, oi, c))
        return r
    def take(self, ci, oi):
        self.done[ci][oi] = self.n; self.n += 1
        return self.ch[ci][oi][0], self.ch[ci][oi][1]
    def tick(self): self.n += 1
    def upto_done(self, k): return all(self.chain_done(c) for c in range(min(k, len(self.ch))))
def iter_frags(j):
    L = []
    if j < 24:
        for s in range(12):
            mk = []
            for blk in range(2):
                Sd = vr(R.S[j & 1][blk], 16); c = "0" if s == 0 else Sd
                mk.append(lambda wf, Sd=Sd, c=c, h=Hf(blk, s): f"  v_mfma_f32_32x32x16_bf16 {Sd}, {wf}, {h}, {c}")
            L.append((s, 1, mk))
    if 2 <= j <= 25:
        for b in range(6):
            mk = [(lambda wf, ac=ACC(blk, b), g=vr(R.G1[(j - 2) & 1][blk], 4): f"  v_mfma_f32_32x32x16_bf16 {ac}, {wf}, {g}, {ac}") for blk in range(2)]
            L.append((12 + b, 2, mk))
    if 1 <= j <= 24:
        for b in range(6):
            mk = [(lambda wf, ac=ACC(blk, b), g=vr(R.G0[blk], 4), c0=(j == 1 and CFG['accinit']): f"  v_mfma_f32_32x32x16_bf16 {ac}, {wf}, {g}, {'0' if c0 else ac}") for blk in range(2)]
            L.append((18 + b, 3, mk))
    return L
RB = 61440
def slot_of(j): return j % 5 if CFG['ring5'] else j % 3
def ds_text(kb, j, fidx):
    off = R.RING + slot_of(j) * BLK + fidx * 1024
    if CFG['ring5']:
        if off < RB: return f"  ds_read_b128 {WFr(kb)}, v{R.V_L16} offset:{off}"
        return f"  ds_read_b128 {WFr(kb)}, v{R.V_L16B} offset:{off - RB}"
    if (j % 3) < 2:
        return f"  ds_read_b128 {WFr(kb)}, v{R.V_L16} offset:{off}"
    return f"  ds_read_b128 {WFr(kb)}, v{R.V_L16B} offset:{off - (R.RING + 2*BLK)}"
def m0_set(jb, half):
    if CFG['ring5']: return f"  s_add_u32 m0, s{R.S_G0}, {R.RING + slot_of(jb) * BLK + 4096 * half}"
    return f"  s_mov_b32 m0, s{R.S_M[2*(jb%3)+half]}"
def dma_ops(jb):
    if jb >= NBLK: return []
    def dma(off, sg):
        return "  s_nop 0" if CFG['nodma'] else f"  buffer_load_dwordx4 v{R.V_L16}, s[{R.S_WS}:{R.S_WS+3}], s{sg} offen offset:{off} lds"
    c = CFG['dmac'] - 8
    return [
        ([m0_set(jb, 0), "  s_nop 0", dma(0, R.S_G)], c + 8),
        ([dma(1024, R.S_G)], c), ([dma(2048, R.S_G)], c), ([dma(3072, R.S_G)], c),
        ([m0_set(jb, 1), f"  s_add_u32 s{R.S_G}, s{R.S_G}, {BLK}", dma(0, R.S_G2)], c + 8),
        ([dma(1024, R.S_G2), f"  s_add_u32 s{R.S_G2}, s{R.S_G2}, {BLK}"], c + 4),
    ]
class Core:
    def __init__(self, a):
        self.a = a; self.k = 0; self.pending = []
        self.over = 0
        self.pace = 0.0; self.pace_acc = 0.0
        self.no_barrier = set()
        self.jit_reads = None
        self.lds_extra = {}
        self.extra_first = set()
        self.pseudo = {}
        self.fast_flush = set()
        self.pend_extra = {}
        self.vmwait = {}
        self.extra = {}
    def plan(self, j, jn):
        D = CFG['D']; NF = CFG['NF']
        F = iter_frags(j); Fn = iter_frags(jn) if jn is not None else []
        nf = len(F); n = 2 * nf
        Pf = max(0, nf - D)
        chains = []
        nva = 0
        if 1 <= j <= 24 and not CFG['nogelu']:
            buf = (j - 1) & 1
            va = gelu_chains(buf, list(range(0, 8)), R.G0); vb = gelu_chains(buf, list(range(8, 16)), R.G1[buf])
            chains = va + vb; nva = len(va)
        slots = []
        pend = list(self.pending)
        ldsx = list(self.lds_extra.get(j, []))
        for fi in range(nf):
            t = fi + D
            pre = []
            sync_here = fi == Pf and (not CFG['ring5'] or j == 0 or (j & 1))
            if sync_here:
                for tx, c in pend: pre += tx
                pre = [x for l in pre for x in ([l, "  s_nop 0"] if l.strip().startswith(("s_mov_b32 m0", "s_add_u32 m0")) else [l])]
                pend = []
                lg0 = " lgkmcnt(0)" if (j == 0 and self.jit_reads) else ""
                if not CFG['nobar'] and j not in self.no_barrier: pre += [f"  s_waitcnt vmcnt({self.vmwait.get(j, 0)}){lg0}", "  s_barrier"]
                if CFG['ring5']:
                    blocks = (2, 3) if j == 0 else (j + 3, j + 4)
                    e1, e2 = self.pend_extra.get(j, ([], []))
                    pend = dma_ops(blocks[0]) + list(e1) + dma_ops(blocks[1]) + list(e2)
                    self.pace = 0.0 if j == 0 else min(2.0, CFG['pacew'] / max(1, len(pend)))
                    self.pace_acc = 0.0
                else:
                    pend = dma_ops(j + 2) + list(self.pend_extra.get(j, []))
            rd = []
            if not CFG['nods']:
                if t < nf: rd = [ds_text((self.k + t) % NF, j, F[t][0])]
                elif jn is not None: rd = [ds_text((self.k + t) % NF, j + 1, Fn[t - nf][0])]
            jit = list(self.jit_reads(t)) if (j == 0 and self.jit_reads and t < nf) else []
            rd = rd + jit
            slots.append((pre, rd, (CFG['dsc'] if rd else 8) + 12 * len(jit)))
            can = True
            if CFG['ring5'] and self.pace > 1.0:
                self.pace_acc += 1.0
                can = self.pace_acc >= self.pace
                if can and pend: self.pace_acc -= self.pace
            if j == 0 and self.jit_reads:
                younger = sum((3 if (q < nf) else 1) for q in range(fi + 2, fi + D + 1))
                wtxt = f"  s_waitcnt lgkmcnt({min(15, younger)})"
                if pend and can:
                    tx, c = pend.pop(0); tx = list(tx)
                    if j in self.fast_flush and fi >= Pf:
                        while pend:
                            t2, c2 = pend.pop(0); tx += t2; c += c2 + 4
                    slots.append(([], [wtxt] + tx, 12 + c))
                else:
                    slots.append(([], [wtxt], 8))
            elif CFG['typed'] and j != 0 and not (j in self.fast_flush and fi >= Pf):
                flat = [l for tx, c in pend for l in tx if l.strip() != "s_nop 0"]
                isv = lambda l: l.strip().startswith("buffer_")
                L = []; cost = 8
                if fi % 2 == 1:
                    L.append(f"  s_waitcnt lgkmcnt({D-2})")
                    n_ = 0
                    while flat and not isv(flat[0]) and n_ < 2: L.append(flat.pop(0)); cost += 4; n_ += 1
                    if flat and isv(flat[0]) and n_ == 0 and sum(map(isv, flat)) > CFG['vlong']:
                        L.append(flat.pop(0)); cost += 14
                else:
                    if flat and isv(flat[0]):
                        L.append(flat.pop(0)); cost += 6
                        n_ = 0
                        while flat and not isv(flat[0]) and not flat[0].strip().startswith(("s_mov_b32 m0", "s_add_u32 m0")) and n_ < 1:
                            L.append(flat.pop(0)); cost += 4; n_ += 1
                    else:
                        n_ = 0
                        while flat and not isv(flat[0]) and n_ < 2:
                            L.append(flat.pop(0)); cost += 0 if n_ == 0 else 4; n_ += 1
                pend = [([l], 0) for l in flat]
                slots.append(([], L, cost))
            elif not CFG['nods'] and fi % 2 == 1:
                nodd = len([q for q in range(fi, nf) if q % 2 == 1])
                lx = [ldsx.pop(0) for _ in range(-(-len(ldsx) // nodd))] if ldsx else []
                cl = 12 * len(lx)
                if len(pend) > self.over and can:
                    tx, c = pend.pop(0)
                    slots.append(([], [f"  s_waitcnt lgkmcnt({D-2})"] + lx + list(tx), 12 + c + cl))
                else:
                    slots.append(([], [f"  s_waitcnt lgkmcnt({D-2})"] + lx, 8 + cl))
            elif pend and can:
                tx, c = pend.pop(0)
                tx = list(tx)
                if j in self.fast_flush and fi >= Pf:
                    while pend:
                        t2, c2 = pend.pop(0); tx += t2; c += c2 + 4
                slots.append(([], tx, 8 + c))
            else:
                slots.append(([], [], 8))
        self.pending = pend
        assert not ldsx
        ex = list(self.extra.get(j, []))
        gi = 0
        while ex:
            per = -(-len(ex) // max(1, (2 * Pf - gi))) if j not in self.extra_first else len(ex)
            pre_, tx_, c_ = slots[gi]
            add_ = ex[:per]; ex = ex[per:]
            slots[gi] = (pre_, list(tx_) + [t for t, _ in add_], c_ + sum(c for _, c in add_))
            gi += 1
        mtext = []; mslots = []; mgrp = []; fragend = []
        ps = list(self.pseudo.get(j, []))
        cnts = [0] * nf
        if ps:
            for q in range(len(ps)): cnts[2 + (q * (nf - 2)) // len(ps)] += 1
        for fi, (fidx, grp, mk) in enumerate(F):
            kb = (self.k + fi) % NF
            mtext.append(mk[0](WFr(kb))); mslots.append(slots[2 * fi]); mgrp.append(grp)
            mtext.append(mk[1](WFr(kb))); mslots.append(slots[2 * fi + 1]); mgrp.append(grp)
            for _ in range(cnts[fi]):
                if ps:
                    t_, pre_ = ps.pop(0)
                    mtext.append(t_); mslots.append((pre_, [], 8)); mgrp.append(0)
            fragend.append(len(mtext))
        assert not ps
        n = len(mtext); slots = mslots
        G = CFG['gap']
        base = [slots[i][2] for i in range(n)]
        for i in range(1, n): base[i - 1] += 4 * len(slots[i][0])
        sched = [[] for _ in range(n)]
        CH = Chains(chains)
        first3 = next((i for i in range(n) if mgrp[i] == 3), None)
        carry = 0.0
        for i in range(n):
            tcur = base[i]
            CH.tick()
            cap = sum(max(0, G - base[q]) for q in range(i, max(i + 1, n - CFG['tailgap'])))
            excess = CH.remaining() - cap
            if excess > 0: carry += excess * 1.0 / (n - i)
            while True:
                rdy = CH.ready()
                if not rdy:
                    if CH.remaining() > 0 and (i == n - 1 or (first3 is not None and i >= first3 - 2 and not CH.upto_done(nva))):
                        sched[i].append(("  s_nop 0", 4)); CH.tick(); tcur += 4; continue
                    break
                must = i == n - 1 or (first3 is not None and i >= first3 - 2 and not CH.upto_done(nva))
                need = G - tcur
                pick = None
                fit = [r for r in rdy if r[2] <= need]
                if fit:
                    pick = fit[0]
                    if need == 8:
                        ex = [r for r in fit if r[2] == 8]
                        pl = [r for r in rdy if r[2] == 4]
                        if ex and len(pl) < 2: pick = ex[0]
                elif must:
                    pick = rdy[0]
                else:
                    over = [(r, tcur + r[2] - max(G, tcur)) for r in rdy]
                    over.sort(key=lambda x: x[1])
                    if need > 0 and excess > 0:
                        pick = over[0][0]; carry -= over[0][1]
                    elif over[0][1] <= carry:
                        pick = over[0][0]; carry -= over[0][1]
                if pick is None: break
                tx, c = CH.take(pick[0], pick[1])
                sched[i].append((tx, c)); tcur += c
        assert CH.remaining() == 0
        chunks = []
        m0 = 0
        for fi in range(nf):
            L = []
            for m in range(m0, fragend[fi]):
                L += slots[m][0]
                if j == 24 and m == first3: L.append("  s_nop 1")
                L.append(mtext[m]); L += slots[m][1]
                L += [t for t, _ in sched[m]]
            m0 = fragend[fi]
            chunks.append(L)
        self.k = (self.k + nf) % NF
        return chunks, Pf
    def emit(self, j, jn):
        ch, Pf = self.plan(j, jn)
        if j == 1: self.a("  s_nop 11")
        for L in ch:
            for t in L: self.a(t)
    def emit_tile(self, name):
        a = self.a
        self.emit(0, 1); self.emit(1, 2)
        a(f"  s_mov_b32 s{R.S_CNT}, 4")
        k0 = self.k; p0 = list(self.pending)
        a(".p2align 6")
        a(f"{name}_loop:")
        a(f"  s_sub_u32 s{R.S_CNT}, s{R.S_CNT}, 1")
        self.emit(2, 3); self.emit(3, 4); self.emit(4, 5)
        ks = self.k; ps = list(self.pending)
        ch, Pf = self.plan(5, 6)
        for L in ch[:Pf]:
            for t in L: a(t)
        a(f"  s_cmp_eq_u32 s{R.S_CNT}, 0")
        a(f"  s_cbranch_scc1 {name}_exit")
        for L in ch[Pf:]:
            for t in L: a(t)
        self.emit(6, 7); self.emit(7, 8)
        assert self.k == k0 and self.pending == p0, (self.k, k0)
        a(f"  s_branch {name}_loop")
        a(f"{name}_exit:")
        self.k = ks; self.pending = ps
        ch, Pf = self.plan(23, 24)
        for L in ch[Pf:]:
            for t in L: a(t)
        self.emit(24, 25); self.emit(25, None)
        for tx, c in self.pending:
            for t in tx: a(t)
        self.pending = []
```

```python
from asmlib import *
import mlpcore as C
from mlpcore import R, ACC, ACCreg, Hf, WFr, Core, BLK, NBLK, CFG
from k_prep2 import TBL_OFF, TBL_BYTES
import numpy as np
TB = [124928, 142336]
OS = 9744; CS = 1216; PLANE = 608
SB = 34816
SDUMMY = SB + 8 * OS
XCH = 49152; XPS = 416
STATS = 24576
IDOFF = 159872
PFSCR = IDOFF + 2048
SAVEOFF = PFSCR + 256
LDS_BYTES = SAVEOFF + 1024
TREG = 73728
assert SDUMMY + 1024 + 7 * CS + 16 <= IDOFF and XCH + 106736 <= IDOFF and LDS_BYTES <= 163840
V_LANE = 0
V_SW = [1, 2, 9]
V_TMP = 3
V_PX = [6, 7]
V_B = 8
V_T = 10
V_IDX = 11
V_XW = [12, 13]
V_XR = [14, 15]
V_GA = [24, 26, 30]; V_GB = [25, 27, 31]
AF = [32, 40]
XR = [48, 80]
XA2 = 96
PT = [32, 40]
def Darch(k, i):
    idx = 16 * k + i
    return 112 + 4 * idx if idx < 36 else 48 + 4 * (idx - 36)
def Dreg(k, i): return ('v', Darch(k, i))
BF = [48, 64, 80]
PARK = 160
S_ST = [78, 79, 80, 81]
def Xf(blk, s):
    r = 160 + 48 * blk + 4 * s; return f"a[{r}:{r+3}]"
S_X = 8; S_OUT = 12; S_TB = 16
S_W = 20; S_I = 21; S_T0 = 28; S_T1 = 29; S_PXO = 30; S_PXN = 31; S_G0 = 32; S_LO = 33; S_HI = 34
S_TX = 64; S_TY = 65; S_TM = 66; S_TG = 67; S_EPS = 68; S_INV = 69
NPX = 512 * 512
STAMP_OFF = 300 << 20
H_OFF = 1 << 20
OPT = dict(dumph=0, prof=0, pf=1, st=3, sbud=100, cbud=32, stc=20, nhi=1, stnt=0, xnt=0, pfn=1, nox=0, nopark=0, sst=11, spf=0, nhs=3, st3=1, hprog=1, samex=0, pfh=0, pfs=1, w1late=0, xg=2, pff=2, xf=0, bias=0, r2late=1, linfin=1, lin=0, skip2=0, wpf=0, cpf=0, cord=1, sord=2, jith=0, ststage=0, cbud2=0, wb=0)
COLS = [0, 1, 8, 9, 2, 3, 10, 11]
S_PXP = 74
S_PF = 75
V_PFA = 3
class VM:
    def __init__(self): self.ops = []
    def add(self, tag, n=1): self.ops += [tag] * n
    def after(self, tag):
        i = max(k for k, t in enumerate(self.ops) if t == tag)
        return len(self.ops) - 1 - i
vm = VM()
OOL = []
def stamp(a, force=False):
    if not OPT['prof']: return
    if OPT['prof'] == 3 and not force: return
    a(f"""  s_memtime s[42:43]
  s_memrealtime s[62:63]
  s_waitcnt lgkmcnt(0)
  v_mov_b32 v{V_TMP}, s42
  s_nop 0
  buffer_store_dword v{V_TMP}, off, s[44:47], s40
  s_nop 1
  v_mov_b32 v{V_TMP}, s62
  s_nop 0
  buffer_store_dword v{V_TMP}, off, s[44:47], s40 offset:256
  s_add_u32 s40, s40, 4""")
def tile_coords(a):
    a(f"""  s_and_b32 s{S_T0}, s2, 7
  s_lshl_b32 s{S_T0}, s{S_T0}, 3
  s_lshr_b32 s{S_T1}, s2, 3
  s_and_b32 s{S_TX}, s{S_T1}, 7
  s_add_u32 s{S_TX}, s{S_TX}, s{S_T0}
  s_lshr_b32 s{S_T1}, s{S_T1}, 3
  s_lshl_b32 s{S_TY}, s{S_I}, 2
  s_add_u32 s{S_TY}, s{S_TY}, s{S_T1}          ; ty = 4*i + (c>>3)
  s_lshl_b32 s{S_T0}, s{S_TY}, 14              ; y0*512 = ty*32*512
  s_lshl_b32 s{S_T1}, s{S_TX}, 3
  s_add_u32 s{S_T0}, s{S_T0}, s{S_T1}
  s_mul_i32 s{S_PXN}, s{S_T0}, 384""")
def global_bases_lines(t):
    L = []
    if OPT['samex']: L += [f"  s_mov_b32 s{S_TX}, 5", f"  s_mov_b32 s{S_TY}, 5"]
    L += f"""  s_lshl_b32 s88, s{S_TY}, 5
  s_sub_u32 s88, s88, 3
  s_lshl_b32 s89, s{S_TX}, 3
  s_sub_u32 s89, s89, 4
  s_lshl_b32 s90, s{S_W}, 2
  s_add_u32 s88, s88, s90
  s_movk_i32 s90, 384
  s_movk_i32 s91, 512
  v_lshrrev_b32 v{t}, 4, v{V_LANE}
  v_bfe_u32 v{t+1}, v{V_LANE}, 3, 1
  v_and_b32 v{t+2}, 7, v{V_LANE}
  v_lshl_add_u32 v{t+1}, v{t+1}, 2, s89
  v_add_u32 v{t}, s88, v{t}
  v_add_u32 v{t+3}, 8, v{t+1}
  v_cmp_gt_u32 s[70:71], s91, v{t+1}
  v_cmp_gt_u32 s[72:73], s91, v{t+3}
  v_lshl_add_u32 v{t+3}, v{t}, 9, v{t+1}
  v_mul_lo_u32 v{t+3}, v{t+3}, s90
  v_lshl_add_u32 v{t+3}, v{t+2}, 4, v{t+3}
  v_mov_b32 v{t+4}, 0x80000000""".split("\n")
    for r in range(3):
        if r > 0:
            L += [f"  v_add_u32 v{t}, 16, v{t}", f"  v_add_u32 v{t+3}, {16*512*384}, v{t+3}"]
        L += [f"  v_cmp_gt_u32 vcc, s91, v{t}"]
        if r == 2:
            L += [f"  v_lshrrev_b32 v{t+5}, 4, v{V_LANE}", f"  s_lshl_b32 s86, s{S_W}, 2", f"  v_add_u32 v{t+5}, s86, v{t+5}",
                  f"  v_cmp_gt_u32 s[86:87], 6, v{t+5}", "  s_nop 0", "  s_and_b64 vcc, vcc, s[86:87]"]
        L += [f"  v_add_u32 v{t+6}, {8*384}, v{t+3}",
              "  s_and_b64 s[92:93], s[70:71], vcc",
              "  s_and_b64 s[94:95], s[72:73], vcc",
              "  s_nop 1",
              f"  v_cndmask_b32 v{V_GA[r]}, v{t+4}, v{t+3}, s[92:93]",
              f"  v_cndmask_b32 v{V_GB[r]}, v{t+4}, v{t+6}, s[94:95]"]
    return L
def global_bases(a, t=128):
    for l in global_bases_lines(t): a(l)
def x_load_line(k, r, i):
    col = COLS[i]
    base = V_GA[r] if col < 8 else V_GB[r]
    off = (col & 7) * 384 + k * 128
    dst = vr(XR[r] + 4 * i, 4) if r < 2 else f"a[{XA2+4*i}:{XA2+4*i+3}]"
    return f"  buffer_load_dwordx4 {dst}, v{base}, s[{S_X}:{S_X+3}], 0 offen offset:{off}"
class Fill:
    def __init__(self, a): self.a = a; self.hi = []; self.lo = []
    def push(self, lines, cost, tag=None, hi=False): (self.hi if hi else self.lo).append((lines, cost, tag))
    def emit1(self, g):
        for l in g[0]: self.a(l)
        if g[2] is not None: vm.add(g[2])
    def pop(self, budget, nhi=1):
        n = 0
        while self.hi and n < nhi:
            g = self.hi.pop(0); self.emit1(g); budget -= g[1]; n += 1
        while self.lo and budget >= self.lo[0][1] * 0.6:
            g = self.lo.pop(0); self.emit1(g); budget -= g[1]
    def flush(self, hi=True, lo=True, n=None):
        if hi:
            while self.hi: self.emit1(self.hi.pop(0))
        if lo:
            c = 0
            while self.lo and (n is None or c < n): self.emit1(self.lo.pop(0)); c += 1
def x_loads(a, k, r):
    for i in range(8): a(x_load_line(k, r, i))
    vm.add(('x', k, r), 8)
def stage_round(a, k, r, hook=None):
    src = XR[r] if r < 2 else XR[0]
    if r == 2:
        for e in range(32): a(f"  v_accvgpr_read_b32 v{XR[0]+e}, a{XA2+e}")
    for d in range(4):
        if hook and OPT['sord'] != 2: hook(d)
        T = PT[d & 1]
        lo = [f"  v_perm_b32 v{T+p}, v{src + 4*(2*p+1) + d}, v{src + 4*(2*p) + d}, s{S_LO}" for p in range(4)]
        hi = [f"  v_perm_b32 v{T+4+p}, v{src + 4*(2*p+1) + d}, v{src + 4*(2*p) + d}, s{S_HI}" for p in range(4)]
        w0 = f"  ds_write_b128 v{V_SW[r]}, {vr(T,4)} offset:{(2*d)*CS}"
        w1 = f"  ds_write_b128 v{V_SW[r]}, {vr(T+4,4)} offset:{(2*d+1)*CS}"
        if OPT['sord'] == 0:
            for l in lo + hi + [w0, w1]: a(l)
        elif OPT['sord'] == 1:
            for l in lo + [w0] + hi + [w1]: a(l)
        else:
            for l in lo + [w0] + hi: a(l)
            if hook: hook(d)
            a(w1)
def table_dma_ops(k):
    d = lambda q: f"  buffer_load_dwordx4 v{R.V_L16}, s[{S_TB}:{S_TB+3}], s{S_TG} offen offset:{1024*q} lds"
    return [
        [f"  s_lshl_b32 s{S_TM}, s{S_W}, 12", f"  s_add_u32 s{S_TG}, s{S_TM}, {k*16384}", f"  s_add_u32 m0, s{S_TM}, {TB[k&1]}", "  s_nop 0", d(0)],
        [d(1)], [d(2)], [d(3)],
        [f"  s_mov_b32 m0, {TB[k&1] + 16384}", f"  s_mov_b32 s{S_TG}, {(k+1)*16384}", d(0)],
    ]
def table_dma(a, k):
    for g in table_dma_ops(k):
        for l in g: a(l)
    vm.add(('t', k), 5)
NCH = 16
def conv_chunk(a, k, hook=None):
    def chan_off(i): j, e = i >> 3, i & 7; return j * OS + e * CS
    def tab_off(i): j, e = i >> 3, i & 7; return TB[k & 1] - TB[0] + j * 2048 + e * 256
    def rdA(i):
        A = AF[i & 1]
        return [f"  ds_read_b32 v{A}, v{V_T} offset:{tab_off(i)}", f"  ds_read_b32 v{A+4}, v{V_T} offset:{tab_off(i)+128}"]
    def rdB(i):
        B = BF[i % 3]
        return [f"  ds_read_b128 a[{B+4*q}:{B+4*q+3}], v{V_B} offset:{chan_off(i)+32*q}" for q in range(4)]
    for t in rdA(0) + rdB(0) + rdB(1): a(t)
    for i in range(NCH):
        A = AF[i & 1]; B = BF[i % 3]
        kind, D = Dreg(k, i)
        Dt = f"{kind}[{D}:{D+3}]"
        nxtA = rdA(i + 1) if i + 1 < NCH else []
        nxtB = rdB(i + 2) if i + 2 < NCH else []
        a(f"  s_waitcnt lgkmcnt({4 if i + 1 < NCH else 0})")
        sm = [f"  v_smfmac_f32_16x16x64_bf16 {Dt}, {vr(A+4*h,4)}, a[{B+8*h}:{B+8*h+7}], v{V_IDX}" for h in range(2)]
        dp = [[f"  v_mov_b32_dpp v{A+4*h+1+g}, v{A+4*h} row_ror:{4*(g+1)} row_mask:0xf bank_mask:0xf" for g in range(3)] for h in range(2)]
        if OPT['cord'] == 0:
            for t in nxtA: a(t)
            for h in range(2):
                for t in dp[h]: a(t)
                rb = nxtB[2*h:2*h+2]
                for t in rb: a(t)
                if len(rb) < 2: a("  s_nop 1")
                a(sm[h])
        elif OPT['cord'] == 1:
            for t in dp[0] + dp[1]: a(t)
            a(sm[0])
            for t in nxtA + nxtB[:2]: a(t)
            if not (nxtA + nxtB[:2]): a("  s_nop 1")
            a(sm[1])
            for t in nxtB[2:]: a(t)
        elif OPT['cord'] == 2:
            for t in nxtA[:1]: a(t)
            for t in dp[0]: a(t)
            for t in nxtA[1:]: a(t)
            for t in dp[1]: a(t)
            a(sm[0])
            for t in nxtB[:2]: a(t)
            if not nxtB[:2]: a("  s_nop 1")
            a(sm[1])
            for t in nxtB[2:]: a(t)
        if hook: hook(i)
def zero_D(a, k):
    L = [f"  v_mov_b32 v{r}, 0" for r in range(44, 48)] + ["  s_nop 1"]
    for q in range(4):
        base = Darch(k, 4 * q)
        L.append(f"  v_mfma_f32_32x32x16_bf16 v[{base}:{base+15}], v[44:47], v[44:47], 0")
    for l in L: a(l)
def stats_lines(k, i):
    D = Darch(k, i)
    return [f"  v_pk_add_f32 v[16:17], v[16:17], v[{D}:{D+1}]", f"  v_pk_add_f32 v[18:19], v[18:19], v[{D+2}:{D+3}]",
            f"  v_pk_fma_f32 v[20:21], v[{D}:{D+1}], v[{D}:{D+1}], v[20:21]", f"  v_pk_fma_f32 v[22:23], v[{D+2}:{D+3}], v[{D+2}:{D+3}], v[22:23]"]
def move_lines(k, i):
    D = Darch(k, i); A = Dreg(k, i)[1]
    return [f"  v_accvgpr_read_b32 v{D+e}, a{A+e}" for e in range(4)]
def ln_phase(a, wdma, done3):
    if OPT['lin']:
        a(f"""  s_lshl_b32 s{S_T0}, s{S_W}, 5
  s_mul_i32 s{S_T1}, s{S_W}, {8*8*XPS + 4*16}
  v_add_u32 v12, s{S_T0}, v12
  v_add_u32 v13, s{S_T0}, v13
  v_add_u32 v14, s{S_T1}, v14
  v_add_u32 v15, s{S_T1}, v15""")
    a("  s_nop 7")
    for i in range(done3, NCH):
        for l in stats_lines(2, i): a(l)
    a(f"""  s_lshl_b32 s{S_T0}, s{S_W}, 11
  s_add_u32 s{S_T0}, s{S_T0}, {STATS}
  v_add_u32 v24, s{S_T0}, v{R.V_L16}
  v_add_u32 v25, {STATS}, v{R.V_L16}
  ds_write_b128 v24, v[16:19]
  ds_write_b128 v24, v[20:23] offset:1024
  s_waitcnt lgkmcnt(0)
  s_barrier""")
    for w in range(4):
        a(f"  ds_read_b128 v[{96+4*w}:{99+4*w}], v25 offset:{2048*w}")
    for w in range(4):
        a(f"  ds_read_b128 v[{28+4*w}:{31+4*w}], v25 offset:{2048*w+1024}")
    wl = Asm(); wdma(wl); wl = [l for l in wl.L]
    for l in wl[:8]: a(l)
    wl = wl[8:]
    a("  s_waitcnt lgkmcnt(4)")
    a("""  v_pk_add_f32 v[96:97], v[96:97], v[100:101]
  v_pk_add_f32 v[98:99], v[98:99], v[102:103]
  v_pk_add_f32 v[104:105], v[104:105], v[108:109]
  v_pk_add_f32 v[106:107], v[106:107], v[110:111]
  v_pk_add_f32 v[96:97], v[96:97], v[104:105]
  v_pk_add_f32 v[98:99], v[98:99], v[106:107]
  s_waitcnt lgkmcnt(0)
  v_pk_add_f32 v[28:29], v[28:29], v[32:33]
  v_pk_add_f32 v[30:31], v[30:31], v[34:35]
  v_pk_add_f32 v[36:37], v[36:37], v[40:41]
  v_pk_add_f32 v[38:39], v[38:39], v[42:43]
  v_pk_add_f32 v[28:29], v[28:29], v[36:37]
  v_pk_add_f32 v[30:31], v[30:31], v[38:39]""")
    for r in range(4):
        a(f"  v_mul_f32 v{16+r}, s{S_INV}, v{96+r}")
    for r in range(4):
        a(f"  v_mul_f32 v{28+r}, s{S_INV}, v{28+r}")
    for r in range(4):
        a(f"  v_fma_f32 v{28+r}, -v{16+r}, v{16+r}, v{28+r}")
    for r in range(4):
        a(f"  v_max_f32 v{28+r}, 0, v{28+r}")
    for r in range(4):
        a(f"  v_add_f32 v{28+r}, s{S_EPS}, v{28+r}")
    for r in range(4):
        a(f"  v_rsq_f32 v{20+r}, v{28+r}")
    a("  s_nop 0")
    for r in range(4):
        a(f"  v_mul_f32 v{20+r}, s{R.S_S}, v{20+r}")
    for r in range(4):
        a(f"  v_mul_f32 v{24+r}, -v{16+r}, v{20+r}" .replace("v_mul_f32 v", "v_mul_f32_e64 v"))
    groups = [(k, j) for k in range(3) for j in range(2)]
    def fmas(g):
        k, j = groups[g]; L = []
        for e in range(8):
            D = Darch(k, 8 * j + e)
            L.append(f"  v_pk_fma_f32 v[{D}:{D+1}], v[{D}:{D+1}], v[20:21], v[24:25]")
            L.append(f"  v_pk_fma_f32 v[{D+2}:{D+3}], v[{D+2}:{D+3}], v[22:23], v[26:27]")
        return L
    for l in fmas(0): a(l)
    cnt = 0
    for g, (k, j) in enumerate(groups):
        Ds = [Darch(k, 8 * j + e) for e in range(8)]
        nxt = fmas(g + 1) if g + 1 < len(groups) else []
        for r in range(4):
            T = 32 + 4 * (cnt % 4); cnt += 1
            for e in range(4):
                a(f"  v_cvt_pk_bf16_f32 v{T+e}, v{Ds[2*e]+r}, v{Ds[2*e+1]+r}")
            a(f"  ds_write_b128 v{V_XW[r>>1]}, v[{T}:{T+3}] offset:{(r&1)*8*XPS + 128*k + 16*j}")
            for l in nxt[4*r:4*r+4]: a(l)
            n = 0
            while wl and n < 1:
                l = wl.pop(0); a(l); n += 1
                while wl and l.startswith("  s_"): l = wl.pop(0); a(l)
    for l in wl: a(l)
def w_dma_block(a, blk):
    S_G0 = 32
    for half, cnt in ((0, 4), (1, 2)):
        a(f"  s_add_u32 s{R.S_G}, s{S_G0}, {blk*BLK + 4096*half}\n{C.m0_set(blk, half)}\n  s_nop 0")
        for p in range(cnt):
            a(f"  buffer_load_dwordx4 v{R.V_L16}, s[{R.S_WS}:{R.S_WS+3}], s{R.S_G} offen offset:{1024*p} lds")
    if blk == 1: a(f"  s_add_u32 s{R.S_G}, s{S_G0}, {2*BLK}\n  s_add_u32 s{R.S_G2}, s{S_G0}, {2*BLK+4096}")
def phase_c(a):
    F = Fill(a)
    if OPT['lin']:
        a(f"  v_add_u32 v16, {SAVEOFF}, v{R.V_L16}\n  ds_read_b128 v[12:15], v16")
    for g in range(24):
        L, c = park_group(g); F.push(L if not OPT['nopark'] else ["  s_nop 0 ; cvt"] * 8, c)
    if OPT['r2late']:
        for i in range(8): F.push([x_load_line(0, 2, i)], 12, ('x', 0, 2), hi=True)
    need_by = [8, 16, 24]
    for k in range(3):
        if OPT['ststage'] and k >= 1:
            if k == 1: F.push([f"  v_mov_b32 v{r}, 0" for r in range(16, 24)], 32)
            for i in range(NCH): F.push(stats_lines(k - 1, i), 16)
        for r in range(3):
            late = OPT['r2late'] and k == 0
            if r == 0 and not late: F.flush(hi=True, lo=False)
            if r == 2 and late:
                for g in [g for g in F.hi if g[2] == ('x', 0, 2)]: F.emit1(g)
                F.hi = [g for g in F.hi if g[2] != ('x', 0, 2)]
            if r == 2 and OPT['skip2']:
                lab = f"fused_kernel_sk{k}"
                a(f"  s_cmp_ge_u32 s{S_W}, 2\n  s_cbranch_scc1 {lab}")
                a(f"  s_waitcnt vmcnt({vm.after(('x', k, r))})")
                rec = []
                def hk(d):
                    n0 = len(a.L); F.pop(OPT['sbud'], OPT['nhs']); rec.extend(a.L[n0:])
                stage_round(a, k, r, hk)
                a(f"{lab}_j:")
                OOL.append([f"{lab}:"] + rec + [f"  s_branch {lab}_j"])
            else:
                a(f"  s_waitcnt vmcnt({vm.after(('x', k, r))})")
                stage_round(a, k, r, lambda d: F.pop(OPT['sbud'], OPT['nhs'] if (r == 2 or (late and r == 0)) else 0))
            if k < 2 and OPT['nox']:
                vm.add(('x', k + 1, r))
            if k < 2 and not OPT['nox']:
                if r == 1:
                    for i in range(8): F.push([x_load_line(k + 1, 1, i)], 12, ('x', k + 1, 1), hi=True)
                if r == 2:
                    F.hi = [([x_load_line(k + 1, 0, i)], 12, ('x', k + 1, 0)) for i in range(8)] + F.hi
                    for i in range(8): F.push([x_load_line(k + 1, 2, i)], 12, ('x', k + 1, 2), hi=True)
        parked = 24 - sum(1 for g in F.lo if 'cvt' in ''.join(g[0]))
        need = need_by[k] - parked
        while need > 0:
            g = F.lo.pop(0); F.emit1(g)
            if 'cvt' in ''.join(g[0]): need -= 1
        zero_D(a, k)
        a(f"  s_waitcnt vmcnt({vm.after(('t', k))}) lgkmcnt(0)")
        a("  s_barrier")
        if k == 1: table_dma(a, 2)
        if not OPT['ststage']:
            if k == 1:
                F.flush(hi=False, lo=True)
                F.push([f"  v_mov_b32 v{r}, 0" for r in range(16, 24)], 32)
                for i in range(NCH): F.push(stats_lines(0, i), OPT['stc'])
            if k == 2:
                for i in range(NCH): F.push(stats_lines(1, i), OPT['stc'])
        stamp(a)
        def hook(i, k=k):
            if k == 2 and i >= 3 and OPT['st3']:
                for l in stats_lines(2, i - 3): a(l)
            F.pop(OPT['cbud'] if not OPT['ststage'] else OPT['cbud2'], OPT['nhi'])
        conv_chunk(a, k, hook)
        if k < 2: a("  s_barrier")
        stamp(a)
    F.flush()
    ln_phase(a, lambda x: w_dma_block(x, 0), NCH - 3 if OPT['st3'] else 0)
    a("  s_waitcnt vmcnt(0) lgkmcnt(0)\n  s_barrier")
    if not OPT['w1late']: w_dma_block(a, 1)
    if OPT['jith']:
        for i in range(CFG['D']):
            a(C.ds_text(i, 0, i))
            for blk in range(2): a(f"  ds_read_b128 {Hf(blk,i)}, v{V_XR[blk]} offset:{32*i}")
        a(f"  s_waitcnt lgkmcnt({3*(CFG['D']-1)})")
        return
    for i in range(CFG['D']): a(C.ds_text(i, 0, i))
    for s in range(12):
        for blk in range(2):
            a(f"  ds_read_b128 {Hf(blk,s)}, v{V_XR[blk]} offset:{32*s}")
    a(f"  s_waitcnt lgkmcnt({15 if OPT['hprog'] else 0})")
EPI_ORDER = [(0, s_) for s_ in range(12)] + [(1, s_) for s_ in range(12)]
def quad(blk, sI): return PARK + 4 * (blk * 12 + sI)
def epi_cvt(blk, sI, p, bounce):
    b = sI >> 1
    kind, r0 = ACCreg(blk, b); r0 += 8 * (sI & 1)
    L = []
    if kind == 'a':
        for e in range(8): L.append(f"  v_accvgpr_read_b32 v{bounce+e}, a{r0+e}")
        r0 = bounce
    L += [f"  v_cvt_pk_bf16_f32 v{p}, v{r0}, v{r0+1}", f"  v_cvt_pk_bf16_f32 v{p+1}, v{r0+2}, v{r0+3}",
          f"  v_cvt_pk_bf16_f32 v{p+2}, v{r0+4}, v{r0+5}", f"  v_cvt_pk_bf16_f32 v{p+3}, v{r0+6}, v{r0+7}"]
    return L
def park_group(g):
    blk, sI = EPI_ORDER[g]
    kind, _ = ACCreg(blk, sI >> 1)
    p = 16 if kind == 'a' else 16 + 4 * (g & 1)
    L = epi_cvt(blk, sI, p, 16)
    q = quad(blk, sI)
    L += [f"  v_accvgpr_write_b32 a{q+e}, v{p+e}" for e in range(4)]
    return L, (32 + (32 if kind == 'a' else 0))
def store_parked(i, spx):
    blk, sI = i // 12, i % 12
    q = quad(blk, sI)
    return f"  buffer_store_dwordx4 a[{q}:{q+3}], v{V_PX[blk]}, s[{S_OUT}:{S_OUT+3}], s{spx} offen offset:{32*sI}{['', ' nt', ' sc1', ' sc0 sc1'][OPT['stnt']]}"
class Epi:
    def __init__(self, a): self.a = a; self.g = 0
    def emit(self, n=1):
        pass
def epilogue(a):
    if not OPT['linfin']:
        for g in range(24):
            blk, sI = g // 12, g % 12
            p = 16 + 4 * (g & 1)
            for t in epi_cvt(blk, sI, p, 40): a(t)
            a(f"  buffer_store_dwordx4 {vr(p,4)}, v{V_PX[blk]}, s[{S_OUT}:{S_OUT+3}], s{S_PXO} offen offset:{32*sI}")
        return
    REG = 73728
    a("  s_waitcnt vmcnt(0)")
    a(f"""  s_mul_i32 s{S_T0}, s{S_W}, 12800
  s_add_u32 s{S_T0}, s{S_T0}, {REG}
  v_and_b32 v24, 31, v{V_LANE}
  v_mul_u32_u24 v24, 400, v24
  v_lshrrev_b32 v25, 5, v{V_LANE}
  v_lshl_add_u32 v24, v25, 4, v24
  v_add_u32 v24, s{S_T0}, v24
  s_mov_b32 s{S_T1}, {(2**32 + 23)//24}""")
    for q in range(3):
        a(f"""  v_add_u32 v28, {64*q}, v{V_LANE}
  v_mul_hi_u32 v29, v28, s{S_T1}
  v_add_lshl_u32 v28, v28, v29, 4
  v_add_u32 v{25+q}, s{S_T0}, v28""")
    a(f"""  s_lshl_b32 s86, s{S_W}, 3
  s_mul_i32 s86, s86, {512*384}
  s_add_u32 s86, s86, s{S_PXO}""")
    for blk in range(2):
        for sI in range(12):
            p = 32 + 4 * (sI & 3)
            for t in epi_cvt(blk, sI, p, 16): a(t)
            a(f"  ds_write_b128 v24, {vr(p,4)} offset:{32*sI}")
        a("  s_waitcnt lgkmcnt(0)")
        for q in range(12):
            a(f"  ds_read_b128 {vr(48+4*q+48*(blk&0),4)}, v{25+q%3} offset:{3200*(q//3)}")
        for q in range(12):
            a(f"  s_waitcnt lgkmcnt({11-q})")
            if q % 3 == 0 and (q or blk): a(f"  s_add_u32 s86, s86, {512*384}")
            a(f"  buffer_store_dwordx4 {vr(48+4*q,4)}, v{R.V_L16}, s[{S_OUT}:{S_OUT+3}], s86 offen offset:{1024*(q%3)}")
        if blk == 0: a("  s_nop 1")
def gen_fused(a, name="fused_kernel", nwg=256):
    CFG['accinit'] = 1
    a(kstart(name))
    h16 = lambda x: int(np.float16(x).view(np.uint16))
    a(f"""
  s_cmp_ge_u32 s2, {nwg}
  s_cbranch_scc1 {name}_done
  s_load_dwordx2 s[48:49], s[0:1], 0       ; x
  s_load_dwordx2 s[50:51], s[0:1], 32      ; out
  s_load_dwordx2 s[38:39], s[0:1], 48      ; ws
  v_lshrrev_b32 v1, 6, v0
  v_and_b32 v{V_LANE}, 63, v0
  s_nop 0
  v_readfirstlane_b32 s{S_W}, v1
  v_lshlrev_b32 v{R.V_L16}, 4, v{V_LANE}
""")
    a(f"""
  s_waitcnt lgkmcnt(0)
  s_mov_b32 s{R.S_WS}, s38
  s_and_b32 s{R.S_WS+1}, s39, 0xffff
  s_mov_b32 s{R.S_WS+2}, {NBLK*BLK}
  s_mov_b32 s{R.S_WS+3}, 0x20000
  s_add_u32 s{S_TB}, s38, {TBL_OFF}
  s_addc_u32 s{S_TB+1}, s39, 0
  s_and_b32 s{S_TB+1}, s{S_TB+1}, 0xffff
  s_mov_b32 s{S_TB+2}, {TBL_BYTES}
  s_mov_b32 s{S_TB+3}, 0x20000
  s_mov_b32 s{S_X}, s48
  s_and_b32 s{S_X+1}, s49, 0xffff
  s_mov_b32 s{S_X+2}, {NPX*384}
  s_mov_b32 s{S_X+3}, 0x20000
  s_mov_b32 s{S_OUT}, s50
  s_and_b32 s{S_OUT+1}, s51, 0xffff
  s_mov_b32 s{S_OUT+2}, {NPX*384}
  s_mov_b32 s{S_OUT+3}, 0x20000
  s_mov_b32 s{R.S_NA}, {hex(f2u(-GA))}
  s_mov_b32 s{R.S_S}, {hex(f2u(GS))}
  s_mov_b32 s85, {hex(f2u(GS * (1.0 - OPT['bias'] / 1000.0)))}
  s_mov_b32 s{R.S_NAH}, {hex(h16(-GA) | (h16(-GA) << 16))}
  s_mov_b32 s{R.S_SH}, {hex(h16(GS) | (h16(GS) << 16))}
  s_mov_b32 s{S_LO}, 0x05040100
  s_mov_b32 s{S_HI}, 0x07060302
  s_mov_b32 s{S_EPS}, {hex(f2u(1e-5))}
  s_mov_b32 s{S_INV}, {hex(f2u(1.0/192))}
  s_mul_i32 s{S_G0}, s{S_W}, 6144
""")
    for s in range(3):
        a(f"  s_add_u32 s{R.S_M[2*s]}, s{S_G0}, {s*BLK}")
        a(f"  s_add_u32 s{R.S_M[2*s+1]}, s{S_G0}, {s*BLK + 4096}")
    if OPT['prof'] or OPT['dumph']:
        a(f"""  s_add_u32 s44, s38, {STAMP_OFF}
  s_addc_u32 s45, s39, 0
  s_and_b32 s45, s45, 0xffff
  s_mov_b32 s46, {256*4*512}
  s_mov_b32 s47, 0x20000
  s_lshl_b32 s40, s2, 2
  s_add_u32 s40, s40, s{S_W}
  s_lshl_b32 s40, s40, 9
  s_add_u32 s52, s38, {H_OFF}
  s_addc_u32 s53, s39, 0
  s_and_b32 s53, s53, 0xffff
  s_mov_b32 s54, {NPX*384}
  s_mov_b32 s55, 0x20000""")
    stamp(a, True)
    a(f"  s_mov_b32 s{S_I}, 0")
    tile_coords(a)
    global_bases(a)
    table_dma(a, 0); table_dma(a, 1)
    x_loads(a, 0, 0); x_loads(a, 0, 1)
    if not OPT['r2late']: x_loads(a, 0, 2)
    npf = 0
    if OPT['spf']:
        a(f"""  s_lshl_b32 s{S_T0}, s{S_TY}, 5
  s_sub_u32 s{S_T0}, s{S_T0}, 3
  s_max_i32 s{S_T0}, s{S_T0}, 0
  s_add_u32 s{S_T0}, s{S_T0}, s{S_W}
  s_lshl_b32 s{S_T0}, s{S_T0}, 9
  s_lshl_b32 s{S_T1}, s{S_TX}, 3
  s_sub_u32 s{S_T1}, s{S_T1}, 4
  s_max_i32 s{S_T1}, s{S_T1}, 0
  s_add_u32 s{S_T0}, s{S_T0}, s{S_T1}
  s_mul_i32 s{S_PF}, s{S_T0}, 384
  v_min_u32 v{V_TMP}, 47, v{V_LANE}
  v_lshlrev_b32 v{V_TMP}, 7, v{V_TMP}
  s_mov_b32 m0, {PFSCR}
  s_lshr_b32 s{S_T0}, s2, 3
  s_lshl_b32 s{S_T0}, s{S_T0}, 2
  s_add_u32 s{S_T0}, s{S_T0}, s{S_W}
  s_mul_i32 s{S_T0}, s{S_T0}, 5120
  v_lshlrev_b32 v16, 6, v{V_LANE}
  buffer_load_dword v16, s[{R.S_WS}:{R.S_WS+3}], s{S_T0} offen lds
  buffer_load_dword v16, s[{R.S_WS}:{R.S_WS+3}], s{S_T0} offen offset:1024 lds""")
        npf = 2
        for idx in range(20):
            a(f"  buffer_load_dword v{V_TMP}, s[{S_X}:{S_X+3}], s{S_PF} offen offset:{64*(idx&1)} lds")
            if idx & 1: a(f"  s_add_u32 s{S_PF}, s{S_PF}, {4*512*384}")
            npf += 1
    if OPT['wpf']:
        a(f"""  s_mov_b32 m0, {PFSCR}
  s_lshr_b32 s{S_T0}, s2, 3
  s_lshl_b32 s{S_T0}, s{S_T0}, 2
  s_add_u32 s{S_T0}, s{S_T0}, s{S_W}
  s_mul_i32 s{S_T0}, s{S_T0}, 5120
  v_lshlrev_b32 v16, 6, v{V_LANE}
  buffer_load_dword v16, s[{R.S_WS}:{R.S_WS+3}], s{S_T0} offen lds
  buffer_load_dword v16, s[{R.S_WS}:{R.S_WS+3}], s{S_T0} offen offset:1024 lds""")
        npf += 2
    if OPT['cpf']:
        a(f"""  s_getpc_b64 s[88:89]
{{CODEBASE}}:
  v_lshlrev_b32 v17, 7, v{V_LANE}
  s_lshl_b32 s{S_T0}, s{S_W}, 13
  v_add_u32 v17, s{S_T0}, v17""".replace("{CODEBASE}", "fused_kernel_pc"))
        for q in range(3):
            a(f"  v_min_u32 v18, fused_kernel_done-fused_kernel_pc, v17")
            a(f"  global_load_dword v{120+q}, v18, s[88:89]")
            a(f"  v_add_u32 v17, {4*8192}, v17")
            npf += 1
    a(f"""
  v_add_u32 v{R.V_L16B}, {C.RB if CFG['ring5'] else 2*BLK}, v{R.V_L16}
  v_and_b32 v16, 31, v{V_LANE}             ; n
  v_lshrrev_b32 v17, 5, v{V_LANE}          ; hf
  v_lshrrev_b32 v18, 3, v16
  v_and_b32 v19, 7, v16
  s_lshl_b32 s{S_T0}, s{S_W}, 3
  v_add_u32 v18, s{S_T0}, v18
  v_lshl_add_u32 v20, v18, 9, v19
  s_movk_i32 s{S_T1}, 384
  v_mul_lo_u32 v20, v20, s{S_T1}
  v_lshl_add_u32 v{V_PX[0]}, v17, 4, v20
  v_add_u32 v{V_PX[1]}, {4*512*384}, v{V_PX[0]}
  v_lshl_add_u32 v20, v18, 3, v19
  s_movk_i32 s{S_T1}, {XPS}
  v_mul_lo_u32 v20, v20, s{S_T1}
  v_lshrrev_b32 v21, 1, v18                ; row>>1
  v_add_u32 v21, v21, v17                  ; + hf
  v_lshl_add_u32 v20, v21, 4, v20
  v_add_u32 v{V_XR[0]}, {XCH}, v20
  v_add_u32 v{V_XR[1]}, {XCH + 32*XPS + 32}, v20
  v_and_b32 v18, 0x13, v16
  v_bfe_u32 v19, v16, 2, 1
  v_lshl_or_b32 v18, v19, 3, v18
  v_bfe_u32 v19, v16, 3, 1
  v_lshl_or_b32 v18, v19, 2, v18
  v_lshlrev_b32 v19, 3, v17
  v_sub_u32 v18, v18, v19                  ; c(m) - 8hf
""")
    for d in range(4):
        for (base, reg) in ((0, 112), (16, 116)):
            a(f"""  v_cmp_eq_u32 vcc, {base+2*d}, v18
  v_mov_b32 v19, 0x3f80
  s_nop 1
  v_cndmask_b32 v20, 0, v19, vcc
  v_cmp_eq_u32 vcc, {base+2*d+1}, v18
  v_mov_b32 v19, 0x3f800000
  s_nop 1
  v_cndmask_b32 v21, 0, v19, vcc
  v_or_b32 v{reg+d}, v20, v21""")
    a(f"""  v_add_u32 v20, {IDOFF}, v{R.V_L16}
  ds_write_b128 v20, v[112:115]
  ds_write_b128 v20, v[116:119] offset:1024
  v_and_b32 v16, 15, v{V_LANE}             ; nh
  v_lshrrev_b32 v17, 4, v{V_LANE}          ; q
  v_lshrrev_b32 v18, 1, v17
  v_mul_u32_u24 v18, {PLANE}, v18
  v_lshl_add_u32 v18, v16, 5, v18
  v_and_b32 v19, 1, v17
  v_lshl_add_u32 v18, v19, 4, v18
  s_mul_i32 s{S_T0}, s{S_W}, {2*OS}
  s_add_u32 s{S_T0}, s{S_T0}, {SB}
  v_add_u32 v{V_B}, s{S_T0}, v18
  v_and_b32 v18, 1, v16                    ; mh
  v_bfe_u32 v19, v16, 1, 1                 ; par
  v_lshrrev_b32 v20, 2, v16                ; k'
  v_sub_u32 v21, v17, v18
  v_add_u32 v21, 1, v21
  v_lshlrev_b32 v21, 5, v21
  v_lshl_add_u32 v21, v19, 4, v21
  v_sub_u32 v22, 0, v20
  v_and_b32 v22, 3, v22
  v_lshl_add_u32 v21, v22, 2, v21
  s_lshl_b32 s{S_T0}, s{S_W}, 12
  s_add_u32 s{S_T0}, s{S_T0}, {TB[0]}
  v_add_u32 v{V_T}, s{S_T0}, v21
  v_lshlrev_b32 v21, 1, v20                ; 2k'
  v_add_u32 v22, 1, v21                    ; O: 2k'+1
  v_cmp_eq_u32 vcc, 0, v20
  v_mov_b32 v23, 8
  s_nop 1
  v_cndmask_b32 v21, v21, v23, vcc         ; E
  v_cmp_eq_u32 vcc, 1, v19
  s_nop 1
  v_cndmask_b32 v21, v22, v21, vcc         ; s
  v_mov_b32 v{V_IDX}, 0x4444
""")
    for g in range(4):
        a(f"""  v_cmp_le_u32 vcc, {2*g+2}, v21
  v_mov_b32 v22, {0xA << (4*g)}
  s_nop 1
  v_cndmask_b32 v22, 0, v22, vcc
  v_or_b32 v{V_IDX}, v{V_IDX}, v22""")
    a(f"""
  v_lshlrev_b32 v18, 4, v16                ; 2nh*8
  v_lshlrev_b32 v19, 1, v17                ; 2q'
  v_lshlrev_b32 v20, 4, v16
  s_lshl_b32 s{S_T0}, s{S_W}, 5
  s_add_u32 s{S_T0}, s{S_T0}, {XCH}
  v_add_u32 v20, s{S_T0}, v20
  s_movk_i32 s{S_T1}, {XPS}
  v_add_u32 v21, v18, v19
  v_mul_lo_u32 v21, v21, s{S_T1}
  v_add_u32 v{V_XW[0]}, v21, v20
  v_add_u32 v19, 7, v19
  v_and_b32 v19, 7, v19
  v_add_u32 v21, v18, v19
  v_mul_lo_u32 v21, v21, s{S_T1}
  v_add_u32 v{V_XW[1]}, v21, v20
""")
    a(f"""  s_lshl_b32 s{S_T0}, s{S_W}, 5
  s_mul_i32 s{S_T1}, s{S_W}, {8*8*XPS + 4*16}
  v_subrev_u32 v20, s{S_T0}, v12
  v_subrev_u32 v21, s{S_T0}, v13
  v_subrev_u32 v22, s{S_T1}, v14
  v_subrev_u32 v23, s{S_T1}, v15
  v_add_u32 v16, {SAVEOFF}, v{R.V_L16}
  ds_write_b128 v16, v[20:23]""")
    for r in range(3):
        a(f"""  s_lshl_b32 s{S_T0}, s{S_W}, 6
  s_add_u32 s{S_T0}, s{S_T0}, {256*r}
  v_add_u32 v16, s{S_T0}, v{V_LANE}
  v_and_b32 v18, 7, v16                        ; o
  v_lshrrev_b32 v19, 4, v16                    ; row
  v_bfe_u32 v20, v16, 3, 1                     ; u
  v_mul_u32_u24 v18, {OS}, v18
  v_and_b32 v21, 1, v19
  v_mul_u32_u24 v21, {PLANE}, v21
  v_lshrrev_b32 v19, 1, v19
  v_lshl_add_u32 v21, v19, 5, v21
  v_lshl_add_u32 v21, v20, 4, v21
  v_add_u32 v21, v21, v18
  v_add_u32 v{V_SW[r]}, {SB}, v21""")
        if r == 2:
            a(f"""  s_movk_i32 s{S_T0}, 608
  v_cmp_gt_u32 vcc, s{S_T0}, v16
  v_add_u32 v17, {SDUMMY}, v{R.V_L16}
  s_nop 1
  v_cndmask_b32 v{V_SW[r]}, v17, v{V_SW[r]}, vcc""")
    a(f"  s_waitcnt vmcnt({npf})")
    a(f"  s_mov_b32 s{S_PXP}, 0x80000000")
    a(f"{name}_tile:")
    a(f"  s_mov_b32 s{S_PXO}, s{S_PXN}")
    stamp(a, True)
    phase_c(a)
    stamp(a)
    if OPT['dumph']:
        for blk in range(2):
            for s in range(12):
                a(f"  buffer_store_dwordx4 {Hf(blk,s)}, v{V_PX[blk]}, s[52:55], s{S_PXO} offen offset:{32*s}")
        a("  s_waitcnt vmcnt(6)" if False else "  s_waitcnt vmcnt(0)")
    core = Core(a)
    if OPT['jith']: core.jit_reads = lambda t: [f"  ds_read_b128 {Hf(blk,t)}, v{V_XR[blk]} offset:{32*t}" for blk in range(2)]
    tc = Asm()
    tc(f"  s_add_u32 s{S_I}, s{S_I}, 1")
    tile_coords(tc)
    tc(f"""  s_lshl_b32 s{S_T0}, s{S_TY}, 5
  s_sub_u32 s{S_T0}, s{S_T0}, 3
  s_max_i32 s{S_T0}, s{S_T0}, 0
  s_add_u32 s{S_T0}, s{S_T0}, s{S_W}
  s_lshl_b32 s{S_T0}, s{S_T0}, 9
  s_lshl_b32 s{S_T1}, s{S_TX}, 3
  s_sub_u32 s{S_T1}, s{S_T1}, 4
  s_max_i32 s{S_T1}, s{S_T1}, 0
  s_add_u32 s{S_T0}, s{S_T0}, s{S_T1}
  s_mul_i32 s{S_PF}, s{S_T0}, 384
  s_cmp_ge_u32 s{S_I}, 4
  s_cselect_b32 s{S_PF}, 0x80000000, s{S_PF}""")
    tcl = [(l, 4) for l in tc.L]
    ex0 = [(f"  v_min_u32 v{V_TMP}, 47, v{V_LANE}", 4), (f"  v_lshlrev_b32 v{V_TMP}, 7, v{V_TMP}", 4)]
    if OPT['w1late']:
        wl = Asm(); w_dma_block(wl, 1)
        ex0 = [(l, 10 if 'buffer' in l else 4) for l in wl.L] + ex0
    ex0 = ex0 + tcl[:-2] + [(tcl[-2][0] + "\n" + tcl[-1][0], 8)]
    core.extra[0] = ex0
    core.fast_flush = {0}
    core.vmwait[0] = 0
    core.vmwait[1] = 0
    stplan = {}; xplan = {}
    xg = OPT['xg']
    lin = OPT['lin']
    S_SR = 76; S_SX = 77
    linops = {}
    if lin:
        ex0b = f"""  s_mul_i32 s86, s{S_W}, 12800
  s_add_u32 s86, s86, {TREG}
  v_and_b32 v12, 31, v{V_LANE}
  v_mul_u32_u24 v12, 400, v12
  v_lshrrev_b32 v16, 5, v{V_LANE}
  v_lshl_add_u32 v12, v16, 4, v12
  v_add_u32 v12, s86, v12
  s_mov_b32 s87, {(2**32 + 23)//24}""".split("\n")
        for q in range(3):
            ex0b += [f"  v_add_u32 v16, {64*q}, v{V_LANE}", f"  v_mul_hi_u32 v17, v16, s87", f"  v_add_lshl_u32 v16, v16, v17, 4", f"  v_add_u32 v{13+q}, s86, v16"]
        ex0b += [f"  s_lshl_b32 s{S_SR}, s{S_W}, 3", f"  s_mul_i32 s{S_SR}, s{S_SR}, {512*384}", f"  s_add_u32 s{S_SX}, s{S_SR}, s{S_PXO}", f"  s_add_u32 s{S_SR}, s{S_SR}, s{S_PXP}"]
        core.extra[0] = core.extra[0] + [(l, 4) for l in ex0b]
        def AQ(blk, q): r = quad(blk, q); return f"a[{r}:{r+3}]"
        for blk in range(2):
            core.lds_extra[1 + 3 * blk] = [f"  ds_write_b128 v12, {AQ(blk,q)} offset:{32*q}" for q in range(12)]
            core.lds_extra[2 + 3 * blk] = [f"  ds_read_b128 {AQ(blk,q)}, v{13+q%3} offset:{3200*(q//3)}" for q in range(12)]
            if lin == 1:
                core.lds_extra[10 + 4 * blk] = [f"  ds_write_b128 v{13+q%3}, {AQ(blk,q)} offset:{3200*(q//3)}" for q in range(12)]
                core.lds_extra[11 + 4 * blk] = [f"  ds_read_b128 {AQ(blk,q)}, v12 offset:{32*q}" for q in range(12)]
        def st(blk, q):
            L = [f"  buffer_store_dwordx4 {AQ(blk,q)}, v{R.V_L16}, s[{S_OUT}:{S_OUT+3}], s{S_SR} offen offset:{1024*(q%3)}"]
            if q % 3 == 2: L.append(f"  s_add_u32 s{S_SR}, s{S_SR}, {512*384}")
            return (L, 6)
        def xl(blk, q):
            L = [f"  buffer_load_dwordx4 {AQ(blk,q)}, v{R.V_L16}, s[{S_X}:{S_X+3}], s{S_SX} offen offset:{1024*(q%3)}"]
            if q % 3 == 2: L.append(f"  s_add_u32 s{S_SX}, s{S_SX}, {512*384}")
            return (L, 6)
        linops = {2: [st(0, q) for q in range(6)], 3: [st(0, q) for q in range(6, 12)], 4: [xl(0, q) for q in range(6)],
                  5: [st(1, q) for q in range(6)], 6: [st(1, q) for q in range(6, 12)], 7: [xl(0, q) for q in range(6, 12)],
                  10: [xl(1, q) for q in range(6)], 11: [xl(1, q) for q in range(6, 12)]}
        if lin == 2:
            for j_ in (4, 7, 10, 11): del linops[j_]
            for g, j_ in enumerate([4, 7, 8, 9, 10, 11, 12, 14, 16, 18, 20, 22]): xplan[j_] = [2 * g, 2 * g + 1]
        if lin == 3:
            core.lds_extra.pop(1); core.lds_extra.pop(2); core.lds_extra.pop(4); core.lds_extra.pop(5)
            for blk in range(2):
                core.lds_extra[10 + 4 * blk] = [f"  ds_write_b128 v{13+q%3}, {AQ(blk,q)} offset:{3200*(q//3)}" for q in range(12)]
                core.lds_extra[11 + 4 * blk] = [f"  ds_read_b128 {AQ(blk,q)}, v12 offset:{32*q}" for q in range(12)]
            linops = {7: [xl(0, q) for q in range(6)], 8: [xl(0, q) for q in range(6, 12)] , 12: [xl(1, q) for q in range(6)], 13: [xl(1, q) for q in range(6, 12)]}
            core.lds_extra[11] = core.lds_extra.pop(10); core.lds_extra[12] = [f"  ds_read_b128 {AQ(0,q)}, v12 offset:{32*q}" for q in range(12)]
            core.lds_extra[16] = core.lds_extra.pop(14); core.lds_extra[17] = [f"  ds_read_b128 {AQ(1,q)}, v12 offset:{32*q}" for q in range(12)]
            core.lds_extra.pop(15, None)
            for g in range(12): stplan[1 + g] = [2 * g, 2 * g + 1]
    elif xg == 4:
        for g in range(6):
            stplan[1 + 4 * g] = [4 * g + e for e in range(4)]
            xplan[2 + 4 * g] = [4 * g + e for e in range(4)]
    elif xg == 2:
        for g in range(12): stplan[1 + g] = [2 * g, 2 * g + 1]
        for g in range(12): xplan[[2, 4, 6, 8, 10, 12, 14, 16, 18, 20, 21, 22][g]] = [2 * g, 2 * g + 1]
    elif xg == 1:
        for g in range(12): stplan[1 + g] = [2 * g, 2 * g + 1]
        for q in range(24): xplan.setdefault(2 + (q * 21) // 24, []).append(q)
    perj = {}
    for j in range(1, 24):
        ops = []; nv = 0
        for g in linops.get(j, []):
            ops.append(g); nv += 1
        for q in stplan.get(j, []):
            ops.append(([store_parked(q, S_PXP)], 6)); nv += 1
        for q in xplan.get(j, []):
            blk, sI = q // 12, q % 12
            ops.append(([f"  buffer_load_dwordx4 {Xf(blk,sI)}, v{V_PX[blk]}, s[{S_X}:{S_X+3}], s{S_PXO} offen offset:{32*sI} {['', 'nt', 'sc1', 'sc0 sc1'][OPT['xf']]}"], 6)); nv += 1
        if j in ((8, 9) if OPT['lin'] else (4, 6)):
            for gi_, g in enumerate(table_dma_ops(0 if j in (4, 8) else 1)):
                ops.append((g, 6 + 4 * (len(g) - 1))); nv += 1
        if OPT['pf'] and j < 23:
            npf_ = 20 if OPT['pfh'] else 10
            step = OPT['pfs']; first = 23 - npf_ * step
            if j >= first and (j - first) % step == 0:
                idx = (j - first) // step
                t = [f"  s_mov_b32 m0, {PFSCR}", "  s_nop 0", f"  buffer_load_dword v{V_TMP}, s[{S_X}:{S_X+3}], s{S_PF} offen offset:{64 * (idx & 1) if OPT['pfh'] else 0} {['', 'nt', 'sc1', 'sc0 sc1'][OPT['pff']]} lds"]
                if (idx & 1) or not OPT['pfh']: t.append(f"  s_add_u32 s{S_PF}, s{S_PF}, {4*512*384}")
                ops.append((t, 14)); nv += 1
        perj[j] = (ops, nv)
    if CFG['ring5']:
        for j in range(1, 24, 2):
            o1, n1 = perj.get(j, ([], 0)); o2, n2 = perj.get(j + 1, ([], 0))
            core.pend_extra[j] = (o1, o2)
            core.vmwait[j + 2] = n2
    else:
        for j in range(1, 24):
            core.pend_extra[j] = perj[j][0]; core.vmwait[j + 1] = perj[j][1]
    core.extra[23] = []
    core.extra[24] = [(f"  v_add_u32 v56, {IDOFF}, v{R.V_L16}", 4), (f"  ds_read_b128 v[48:51], v56", 8), (f"  ds_read_b128 v[52:55], v56 offset:1024", 8)]
    ps = []
    for blk in range(2):
        for sI in range(12):
            ps.append((f"  v_mfma_f32_32x32x16_bf16 {ACC(blk,sI>>1)}, {vr(52 if sI&1 else 48,4)}, {Xf(blk,sI)}, {ACC(blk,sI>>1)}", []))
    if CFG['ring5']: ps[0] = (ps[0][0], ["  s_waitcnt vmcnt(0)"])
    core.pseudo[24] = ps
    core.extra_first.add(24)
    core.no_barrier.add(25)
    if not CFG['ring5']: core.vmwait[24] = 0
    core.emit(0, 1); core.emit(1, 2)
    if OPT['prof'] >= 2:
        a(f"  v_mov_b32 v47, v{V_TMP}"); stamp(a); a(f"  v_mov_b32 v{V_TMP}, v47")
    for j in range(2, 24): core.emit(j, j + 1)
    if OPT['prof'] >= 2: stamp(a)
    core.emit(24, 25)
    if OPT['prof'] >= 2: stamp(a)
    if OPT['wb']:
        a(f"""  s_cmp_lt_u32 s{S_I}, 4
  s_cbranch_scc1 {name}_nowb
  s_cmp_ge_u32 s2, {8 if OPT['wb'] == 1 else 256}
  s_cbranch_scc1 {name}_nowb
  s_cmp_lg_u32 s{S_W}, 0
  s_cbranch_scc1 {name}_nowb
  buffer_wbl2 sc1
{name}_nowb:""")
    emit_tail(a, core)
    stamp(a)
    a(f"""  s_cmp_ge_u32 s{S_I}, 4
  s_cbranch_scc1 {name}_last""")
    a("  s_barrier")
    a(f"  s_mov_b32 s{S_PXP}, s{S_PXO}")
    stamp(a)
    a(f"  s_branch {name}_tile")
    a(f"{name}_last:")
    a("  s_nop 15")
    epilogue(a)
    stamp(a)
    a("  s_waitcnt vmcnt(0)")
    stamp(a, True)
    a(f"""  s_waitcnt vmcnt(0)
{name}_done:
  s_endpgm
""")
    for blk in OOL:
        for l in blk: a(l)
    a(kdesc(name, 512, 100, 256))
def emit_loop(a, self, name):
    for j in range(2, 25): self.emit(j, j + 1)
def emit_tail(a, core):
    ch, Pf = core.plan(25, None)
    main = [l for c in ch for l in c]
    for tx, c in core.pending: main += tx
    core.pending = []
    f = []
    f += global_bases_lines(96)
    f += [x_load_line(0, 0, i) for i in range(8)]
    f += [x_load_line(0, 1, i) for i in range(8)]
    if not OPT['r2late']: f += [x_load_line(0, 2, i) for i in range(8)]
    fi = 0
    nm = sum(1 for l in main if "v_mfma" in l); per = -(-len(f) // nm)
    for l in main:
        a(l)
        if "v_mfma" in l:
            for _ in range(per):
                if fi < len(f): a(f[fi]); fi += 1
    while fi < len(f): a(f[fi]); fi += 1
    vm.ops.clear(); vm.add(('t', 0), 5); vm.add(('t', 1), 5); vm.add(('x', 0, 0), 8); vm.add(('x', 0, 1), 8)
    if not OPT['r2late']: vm.add(('x', 0, 2), 8)
```

```python
from asmlib import *
import mlpcore as C
from mlpcore import R, ACC, ACCreg, Hf, WFr, Core, BLK, NBLK, CFG
from k_prep2 import TBL_OFF, TBL_BYTES
import numpy as np
TB = [124928, 142336]
OS = 9744; CS = 1216; PLANE = 608
SB = 34816
SDUMMY = SB + 8 * OS
XCH = 49152; XPS = 416
STATS = 24576
IDOFF = 159872
PFSCR = IDOFF + 2048
SAVEOFF = PFSCR + 256
LDS_BYTES = SAVEOFF + 1024
TREG = 73728
assert SDUMMY + 1024 + 7 * CS + 16 <= IDOFF and XCH + 106736 <= IDOFF and LDS_BYTES <= 163840
V_LANE = 0
V_SW = [1, 2, 9]
V_TMP = 3
V_PX = [6, 7]
V_B = 8
V_T = 10
V_IDX = 11
V_XW = [12, 13]
V_XR = [14, 15]
V_GA = [24, 26, 30]; V_GB = [25, 27, 31]
AF = [32, 40]
XR = [48, 80]
XA2 = 96
PT = [32, 40]
def Darch(k, i):
    idx = 16 * k + i
    return 112 + 4 * idx if idx < 36 else 48 + 4 * (idx - 36)
def Dreg(k, i): return ('v', Darch(k, i))
BF = [48, 64, 80]
PARK = 160
S_ST = [78, 79, 80, 81]
def Xf(blk, s):
    r = 160 + 48 * blk + 4 * s; return f"a[{r}:{r+3}]"
S_X = 8; S_OUT = 12; S_TB = 16
S_W = 20; S_I = 21; S_T0 = 28; S_T1 = 29; S_PXO = 30; S_PXN = 31; S_G0 = 32; S_LO = 33; S_HI = 34
S_TX = 64; S_TY = 65; S_TM = 66; S_TG = 67; S_EPS = 68; S_INV = 69
NPX = 512 * 512
STAMP_OFF = 300 << 20
H_OFF = 1 << 20
OPT = dict(dumph=0, prof=0, pf=1, st=3, sbud=100, cbud=32, stc=20, nhi=1, stnt=0, xnt=0, pfn=1, nox=0, nopark=0, sst=11, spf=0, nhs=3, st3=1, hprog=1, samex=0, pfh=0, pfs=1, w1late=0, xg=2, pff=2, xf=0, bias=0, r2late=1, linfin=1, lin=0, skip2=1, wpf=0, cpf=0, cord=1, sord=2, jith=0, ststage=0, cbud2=0, wb=0, w0early=1)
COLS = [0, 1, 8, 9, 2, 3, 10, 11]
S_PXP = 74
S_PF = 75
V_PFA = 3
class VM:
    def __init__(self): self.ops = []
    def add(self, tag, n=1): self.ops += [tag] * n
    def after(self, tag):
        i = max(k for k, t in enumerate(self.ops) if t == tag)
        return len(self.ops) - 1 - i
vm = VM()
OOL = []
def stamp(a, force=False):
    if not OPT['prof']: return
    if OPT['prof'] == 3 and not force: return
    a(f"""  s_memtime s[42:43]
  s_memrealtime s[62:63]
  s_waitcnt lgkmcnt(0)
  v_mov_b32 v{V_TMP}, s42
  s_nop 0
  buffer_store_dword v{V_TMP}, off, s[44:47], s40
  s_nop 1
  v_mov_b32 v{V_TMP}, s62
  s_nop 0
  buffer_store_dword v{V_TMP}, off, s[44:47], s40 offset:256
  s_add_u32 s40, s40, 4""")
def tile_coords(a):
    a(f"""  s_and_b32 s{S_T0}, s2, 7
  s_lshl_b32 s{S_T0}, s{S_T0}, 3
  s_lshr_b32 s{S_T1}, s2, 3
  s_and_b32 s{S_TX}, s{S_T1}, 7
  s_add_u32 s{S_TX}, s{S_TX}, s{S_T0}
  s_lshr_b32 s{S_T1}, s{S_T1}, 3
  s_lshl_b32 s{S_TY}, s{S_I}, 2
  s_add_u32 s{S_TY}, s{S_TY}, s{S_T1}          ; ty = 4*i + (c>>3)
  s_lshl_b32 s{S_T0}, s{S_TY}, 14              ; y0*512 = ty*32*512
  s_lshl_b32 s{S_T1}, s{S_TX}, 3
  s_add_u32 s{S_T0}, s{S_T0}, s{S_T1}
  s_mul_i32 s{S_PXN}, s{S_T0}, 384""")
def global_bases_lines(t):
    L = []
    if OPT['samex']: L += [f"  s_mov_b32 s{S_TX}, 5", f"  s_mov_b32 s{S_TY}, 5"]
    L += f"""  s_lshl_b32 s88, s{S_TY}, 5
  s_sub_u32 s88, s88, 3
  s_lshl_b32 s89, s{S_TX}, 3
  s_sub_u32 s89, s89, 4
  s_lshl_b32 s90, s{S_W}, 2
  s_add_u32 s88, s88, s90
  s_movk_i32 s90, 384
  s_movk_i32 s91, 512
  v_lshrrev_b32 v{t}, 4, v{V_LANE}
  v_bfe_u32 v{t+1}, v{V_LANE}, 3, 1
  v_and_b32 v{t+2}, 7, v{V_LANE}
  v_lshl_add_u32 v{t+1}, v{t+1}, 2, s89
  v_add_u32 v{t}, s88, v{t}
  v_add_u32 v{t+3}, 8, v{t+1}
  v_cmp_gt_u32 s[70:71], s91, v{t+1}
  v_cmp_gt_u32 s[72:73], s91, v{t+3}
  v_lshl_add_u32 v{t+3}, v{t}, 9, v{t+1}
  v_mul_lo_u32 v{t+3}, v{t+3}, s90
  v_lshl_add_u32 v{t+3}, v{t+2}, 4, v{t+3}
  v_mov_b32 v{t+4}, 0x80000000""".split("\n")
    for r in range(3):
        if r > 0:
            L += [f"  v_add_u32 v{t}, 16, v{t}", f"  v_add_u32 v{t+3}, {16*512*384}, v{t+3}"]
        L += [f"  v_cmp_gt_u32 vcc, s91, v{t}"]
        if r == 2:
            L += [f"  v_lshrrev_b32 v{t+5}, 4, v{V_LANE}", f"  s_lshl_b32 s86, s{S_W}, 2", f"  v_add_u32 v{t+5}, s86, v{t+5}",
                  f"  v_cmp_gt_u32 s[86:87], 6, v{t+5}", "  s_nop 0", "  s_and_b64 vcc, vcc, s[86:87]"]
        L += [f"  v_add_u32 v{t+6}, {8*384}, v{t+3}",
              "  s_and_b64 s[92:93], s[70:71], vcc",
              "  s_and_b64 s[94:95], s[72:73], vcc",
              "  s_nop 1",
              f"  v_cndmask_b32 v{V_GA[r]}, v{t+4}, v{t+3}, s[92:93]",
              f"  v_cndmask_b32 v{V_GB[r]}, v{t+4}, v{t+6}, s[94:95]"]
    return L
def global_bases(a, t=128):
    for l in global_bases_lines(t): a(l)
def x_load_line(k, r, i):
    col = COLS[i]
    base = V_GA[r] if col < 8 else V_GB[r]
    off = (col & 7) * 384 + k * 128
    dst = vr(XR[r] + 4 * i, 4) if r < 2 else f"a[{XA2+4*i}:{XA2+4*i+3}]"
    return f"  buffer_load_dwordx4 {dst}, v{base}, s[{S_X}:{S_X+3}], 0 offen offset:{off}"
class Fill:
    def __init__(self, a): self.a = a; self.hi = []; self.lo = []
    def push(self, lines, cost, tag=None, hi=False): (self.hi if hi else self.lo).append((lines, cost, tag))
    def emit1(self, g):
        for l in g[0]: self.a(l)
        if g[2] is not None: vm.add(g[2])
    def pop(self, budget, nhi=1):
        n = 0
        while self.hi and n < nhi:
            g = self.hi.pop(0); self.emit1(g); budget -= g[1]; n += 1
        while self.lo and budget >= self.lo[0][1] * 0.6:
            g = self.lo.pop(0); self.emit1(g); budget -= g[1]
    def flush(self, hi=True, lo=True, n=None):
        if hi:
            while self.hi: self.emit1(self.hi.pop(0))
        if lo:
            c = 0
            while self.lo and (n is None or c < n): self.emit1(self.lo.pop(0)); c += 1
def x_loads(a, k, r):
    for i in range(8): a(x_load_line(k, r, i))
    vm.add(('x', k, r), 8)
def stage_round(a, k, r, hook=None):
    src = XR[r] if r < 2 else XR[0]
    if r == 2:
        for e in range(32): a(f"  v_accvgpr_read_b32 v{XR[0]+e}, a{XA2+e}")
    for d in range(4):
        if hook and OPT['sord'] != 2: hook(d)
        T = PT[d & 1]
        lo = [f"  v_perm_b32 v{T+p}, v{src + 4*(2*p+1) + d}, v{src + 4*(2*p) + d}, s{S_LO}" for p in range(4)]
        hi = [f"  v_perm_b32 v{T+4+p}, v{src + 4*(2*p+1) + d}, v{src + 4*(2*p) + d}, s{S_HI}" for p in range(4)]
        w0 = f"  ds_write_b128 v{V_SW[r]}, {vr(T,4)} offset:{(2*d)*CS}"
        w1 = f"  ds_write_b128 v{V_SW[r]}, {vr(T+4,4)} offset:{(2*d+1)*CS}"
        if OPT['sord'] == 0:
            for l in lo + hi + [w0, w1]: a(l)
        elif OPT['sord'] == 1:
            for l in lo + [w0] + hi + [w1]: a(l)
        else:
            for l in lo + [w0] + hi: a(l)
            if hook: hook(d)
            a(w1)
def table_dma_ops(k):
    d = lambda q: f"  buffer_load_dwordx4 v{R.V_L16}, s[{S_TB}:{S_TB+3}], s{S_TG} offen offset:{1024*q} lds"
    return [
        [f"  s_lshl_b32 s{S_TM}, s{S_W}, 12", f"  s_add_u32 s{S_TG}, s{S_TM}, {k*16384}", f"  s_add_u32 m0, s{S_TM}, {TB[k&1]}", "  s_nop 0", d(0)],
        [d(1)], [d(2)], [d(3)],
        [f"  s_mov_b32 m0, {TB[k&1] + 16384}", f"  s_mov_b32 s{S_TG}, {(k+1)*16384}", d(0)],
    ]
def table_dma(a, k):
    for g in table_dma_ops(k):
        for l in g: a(l)
    vm.add(('t', k), 5)
NCH = 16
def conv_chunk(a, k, hook=None):
    def chan_off(i): j, e = i >> 3, i & 7; return j * OS + e * CS
    def tab_off(i): j, e = i >> 3, i & 7; return TB[k & 1] - TB[0] + j * 2048 + e * 256
    def rdA(i):
        A = AF[i & 1]
        return [f"  ds_read_b32 v{A}, v{V_T} offset:{tab_off(i)}", f"  ds_read_b32 v{A+4}, v{V_T} offset:{tab_off(i)+128}"]
    def rdB(i):
        B = BF[i % 3]
        return [f"  ds_read_b128 a[{B+4*q}:{B+4*q+3}], v{V_B} offset:{chan_off(i)+32*q}" for q in range(4)]
    for t in rdA(0) + rdB(0) + rdB(1): a(t)
    for i in range(NCH):
        A = AF[i & 1]; B = BF[i % 3]
        kind, D = Dreg(k, i)
        Dt = f"{kind}[{D}:{D+3}]"
        nxtA = rdA(i + 1) if i + 1 < NCH else []
        nxtB = rdB(i + 2) if i + 2 < NCH else []
        a(f"  s_waitcnt lgkmcnt({4 if i + 1 < NCH else 0})")
        sm = [f"  v_smfmac_f32_16x16x64_bf16 {Dt}, {vr(A+4*h,4)}, a[{B+8*h}:{B+8*h+7}], v{V_IDX}" for h in range(2)]
        dp = [[f"  v_mov_b32_dpp v{A+4*h+1+g}, v{A+4*h} row_ror:{4*(g+1)} row_mask:0xf bank_mask:0xf" for g in range(3)] for h in range(2)]
        if OPT['cord'] == 0:
            for t in nxtA: a(t)
            for h in range(2):
                for t in dp[h]: a(t)
                rb = nxtB[2*h:2*h+2]
                for t in rb: a(t)
                if len(rb) < 2: a("  s_nop 1")
                a(sm[h])
        elif OPT['cord'] == 1:
            for t in dp[0] + dp[1]: a(t)
            a(sm[0])
            for t in nxtA + nxtB[:2]: a(t)
            if not (nxtA + nxtB[:2]): a("  s_nop 1")
            a(sm[1])
            for t in nxtB[2:]: a(t)
        elif OPT['cord'] == 2:
            for t in nxtA[:1]: a(t)
            for t in dp[0]: a(t)
            for t in nxtA[1:]: a(t)
            for t in dp[1]: a(t)
            a(sm[0])
            for t in nxtB[:2]: a(t)
            if not nxtB[:2]: a("  s_nop 1")
            a(sm[1])
            for t in nxtB[2:]: a(t)
        if hook: hook(i)
def zero_D(a, k):
    L = [f"  v_mov_b32 v{r}, 0" for r in range(44, 48)] + ["  s_nop 1"]
    for q in range(4):
        base = Darch(k, 4 * q)
        L.append(f"  v_mfma_f32_32x32x16_bf16 v[{base}:{base+15}], v[44:47], v[44:47], 0")
    for l in L: a(l)
def stats_lines(k, i):
    D = Darch(k, i)
    return [f"  v_pk_add_f32 v[16:17], v[16:17], v[{D}:{D+1}]", f"  v_pk_add_f32 v[18:19], v[18:19], v[{D+2}:{D+3}]",
            f"  v_pk_fma_f32 v[20:21], v[{D}:{D+1}], v[{D}:{D+1}], v[20:21]", f"  v_pk_fma_f32 v[22:23], v[{D+2}:{D+3}], v[{D+2}:{D+3}], v[22:23]"]
def move_lines(k, i):
    D = Darch(k, i); A = Dreg(k, i)[1]
    return [f"  v_accvgpr_read_b32 v{D+e}, a{A+e}" for e in range(4)]
def ln_phase(a, wdma, done3):
    if OPT['lin']:
        a(f"""  s_lshl_b32 s{S_T0}, s{S_W}, 5
  s_mul_i32 s{S_T1}, s{S_W}, {8*8*XPS + 4*16}
  v_add_u32 v12, s{S_T0}, v12
  v_add_u32 v13, s{S_T0}, v13
  v_add_u32 v14, s{S_T1}, v14
  v_add_u32 v15, s{S_T1}, v15""")
    a("  s_nop 7")
    for i in range(done3, NCH):
        for l in stats_lines(2, i): a(l)
    a(f"""  s_lshl_b32 s{S_T0}, s{S_W}, 11
  s_add_u32 s{S_T0}, s{S_T0}, {STATS}
  v_add_u32 v24, s{S_T0}, v{R.V_L16}
  v_add_u32 v25, {STATS}, v{R.V_L16}
  ds_write_b128 v24, v[16:19]
  ds_write_b128 v24, v[20:23] offset:1024
  s_waitcnt lgkmcnt(0)
  s_barrier""")
    for w in range(4):
        a(f"  ds_read_b128 v[{96+4*w}:{99+4*w}], v25 offset:{2048*w}")
    for w in range(4):
        a(f"  ds_read_b128 v[{28+4*w}:{31+4*w}], v25 offset:{2048*w+1024}")
    wl = Asm(); wdma(wl); wl = [l for l in wl.L]
    for l in wl[:8]: a(l)
    wl = wl[8:]
    a("  s_waitcnt lgkmcnt(4)")
    a("""  v_pk_add_f32 v[96:97], v[96:97], v[100:101]
  v_pk_add_f32 v[98:99], v[98:99], v[102:103]
  v_pk_add_f32 v[104:105], v[104:105], v[108:109]
  v_pk_add_f32 v[106:107], v[106:107], v[110:111]
  v_pk_add_f32 v[96:97], v[96:97], v[104:105]
  v_pk_add_f32 v[98:99], v[98:99], v[106:107]
  s_waitcnt lgkmcnt(0)
  v_pk_add_f32 v[28:29], v[28:29], v[32:33]
  v_pk_add_f32 v[30:31], v[30:31], v[34:35]
  v_pk_add_f32 v[36:37], v[36:37], v[40:41]
  v_pk_add_f32 v[38:39], v[38:39], v[42:43]
  v_pk_add_f32 v[28:29], v[28:29], v[36:37]
  v_pk_add_f32 v[30:31], v[30:31], v[38:39]""")
    for r in range(4):
        a(f"  v_mul_f32 v{16+r}, s{S_INV}, v{96+r}")
    for r in range(4):
        a(f"  v_mul_f32 v{28+r}, s{S_INV}, v{28+r}")
    for r in range(4):
        a(f"  v_fma_f32 v{28+r}, -v{16+r}, v{16+r}, v{28+r}")
    for r in range(4):
        a(f"  v_max_f32 v{28+r}, 0, v{28+r}")
    for r in range(4):
        a(f"  v_add_f32 v{28+r}, s{S_EPS}, v{28+r}")
    for r in range(4):
        a(f"  v_rsq_f32 v{20+r}, v{28+r}")
    a("  s_nop 0")
    for r in range(4):
        a(f"  v_mul_f32 v{20+r}, s{R.S_S}, v{20+r}")
    for r in range(4):
        a(f"  v_mul_f32 v{24+r}, -v{16+r}, v{20+r}" .replace("v_mul_f32 v", "v_mul_f32_e64 v"))
    groups = [(k, j) for k in range(3) for j in range(2)]
    def fmas(g):
        k, j = groups[g]; L = []
        for e in range(8):
            D = Darch(k, 8 * j + e)
            L.append(f"  v_pk_fma_f32 v[{D}:{D+1}], v[{D}:{D+1}], v[20:21], v[24:25]")
            L.append(f"  v_pk_fma_f32 v[{D+2}:{D+3}], v[{D+2}:{D+3}], v[22:23], v[26:27]")
        return L
    for l in fmas(0): a(l)
    cnt = 0
    for g, (k, j) in enumerate(groups):
        Ds = [Darch(k, 8 * j + e) for e in range(8)]
        nxt = fmas(g + 1) if g + 1 < len(groups) else []
        for r in range(4):
            T = 32 + 4 * (cnt % 4); cnt += 1
            for e in range(4):
                a(f"  v_cvt_pk_bf16_f32 v{T+e}, v{Ds[2*e]+r}, v{Ds[2*e+1]+r}")
            a(f"  ds_write_b128 v{V_XW[r>>1]}, v[{T}:{T+3}] offset:{(r&1)*8*XPS + 128*k + 16*j}")
            for l in nxt[4*r:4*r+4]: a(l)
            n = 0
            while wl and n < 1:
                l = wl.pop(0); a(l); n += 1
                while wl and l.startswith("  s_"): l = wl.pop(0); a(l)
    for l in wl: a(l)
def w_dma_block(a, blk):
    S_G0 = 32
    for half, cnt in ((0, 4), (1, 2)):
        a(f"  s_add_u32 s{R.S_G}, s{S_G0}, {blk*BLK + 4096*half}\n{C.m0_set(blk, half)}\n  s_nop 0")
        for p in range(cnt):
            a(f"  buffer_load_dwordx4 v{R.V_L16}, s[{R.S_WS}:{R.S_WS+3}], s{R.S_G} offen offset:{1024*p} lds")
    if blk == 1: a(f"  s_add_u32 s{R.S_G}, s{S_G0}, {2*BLK}\n  s_add_u32 s{R.S_G2}, s{S_G0}, {2*BLK+4096}")
def phase_c(a):
    F = Fill(a)
    if OPT['lin']:
        a(f"  v_add_u32 v16, {SAVEOFF}, v{R.V_L16}\n  ds_read_b128 v[12:15], v16")
    for g in range(24):
        L, c = park_group(g); F.push(L if not OPT['nopark'] else ["  s_nop 0 ; cvt"] * 8, c)
    if OPT['r2late']:
        for i in range(8): F.push([x_load_line(0, 2, i)], 12, ('x', 0, 2), hi=True)
    need_by = [8, 16, 24]
    for k in range(3):
        if OPT['ststage'] and k >= 1:
            if k == 1: F.push([f"  v_mov_b32 v{r}, 0" for r in range(16, 24)], 32)
            for i in range(NCH): F.push(stats_lines(k - 1, i), 16)
        for r in range(3):
            late = OPT['r2late'] and k == 0
            if r == 0 and not late: F.flush(hi=True, lo=False)
            if r == 2 and late:
                for g in [g for g in F.hi if g[2] == ('x', 0, 2)]: F.emit1(g)
                F.hi = [g for g in F.hi if g[2] != ('x', 0, 2)]
            if r == 2 and OPT['skip2']:
                lab = f"fused_kernel_sk{k}"
                a(f"  s_cmp_ge_u32 s{S_W}, 2\n  s_cbranch_scc1 {lab}")
                a(f"  s_waitcnt vmcnt({vm.after(('x', k, r))})")
                rec = []
                def hk(d):
                    n0 = len(a.L); F.pop(OPT['sbud'], OPT['nhs']); rec.extend(a.L[n0:])
                stage_round(a, k, r, hk)
                a(f"{lab}_j:")
                OOL.append([f"{lab}:"] + rec + [f"  s_branch {lab}_j"])
            else:
                a(f"  s_waitcnt vmcnt({vm.after(('x', k, r))})")
                stage_round(a, k, r, lambda d: F.pop(OPT['sbud'], OPT['nhs'] if (r == 2 or (late and r == 0)) else 0))
            if k < 2 and OPT['nox']:
                vm.add(('x', k + 1, r))
            if k < 2 and not OPT['nox']:
                if r == 1:
                    for i in range(8): F.push([x_load_line(k + 1, 1, i)], 12, ('x', k + 1, 1), hi=True)
                if r == 2:
                    F.hi = [([x_load_line(k + 1, 0, i)], 12, ('x', k + 1, 0)) for i in range(8)] + F.hi
                    for i in range(8): F.push([x_load_line(k + 1, 2, i)], 12, ('x', k + 1, 2), hi=True)
        parked = 24 - sum(1 for g in F.lo if 'cvt' in ''.join(g[0]))
        need = need_by[k] - parked
        while need > 0:
            g = F.lo.pop(0); F.emit1(g)
            if 'cvt' in ''.join(g[0]): need -= 1
        zero_D(a, k)
        a(f"  s_waitcnt vmcnt({vm.after(('t', k))}) lgkmcnt(0)")
        a("  s_barrier")
        if k == 1: table_dma(a, 2)
        if k == 2 and OPT['w0early']:
            wl = Asm(); w_dma_block(wl, 0)
            grp = []
            for l in wl.L:
                grp.append(l)
                if 'buffer_load' in l:
                    F.push(grp, 12, ('w', 0), hi=True); grp = []
        if not OPT['ststage']:
            if k == 1:
                F.flush(hi=False, lo=True)
                F.push([f"  v_mov_b32 v{r}, 0" for r in range(16, 24)], 32)
                for i in range(NCH): F.push(stats_lines(0, i), OPT['stc'])
            if k == 2:
                for i in range(NCH): F.push(stats_lines(1, i), OPT['stc'])
        stamp(a)
        def hook(i, k=k):
            if k == 2 and i >= 3 and OPT['st3']:
                for l in stats_lines(2, i - 3): a(l)
            F.pop(OPT['cbud'] if not OPT['ststage'] else OPT['cbud2'], OPT['nhi'])
        conv_chunk(a, k, hook)
        if k < 2: a("  s_barrier")
        stamp(a)
    F.flush()
    ln_phase(a, (lambda x: None) if OPT['w0early'] else (lambda x: w_dma_block(x, 0)), NCH - 3 if OPT['st3'] else 0)
    a("  s_waitcnt vmcnt(0) lgkmcnt(0)\n  s_barrier")
    if not OPT['w1late']: w_dma_block(a, 1)
    if OPT['jith']:
        for i in range(CFG['D']):
            a(C.ds_text(i, 0, i))
            for blk in range(2): a(f"  ds_read_b128 {Hf(blk,i)}, v{V_XR[blk]} offset:{32*i}")
        a(f"  s_waitcnt lgkmcnt({3*(CFG['D']-1)})")
        return
    for i in range(CFG['D']): a(C.ds_text(i, 0, i))
    for s in range(12):
        for blk in range(2):
            a(f"  ds_read_b128 {Hf(blk,s)}, v{V_XR[blk]} offset:{32*s}")
    a(f"  s_waitcnt lgkmcnt({15 if OPT['hprog'] else 0})")
EPI_ORDER = [(0, s_) for s_ in range(12)] + [(1, s_) for s_ in range(12)]
def quad(blk, sI): return PARK + 4 * (blk * 12 + sI)
def epi_cvt(blk, sI, p, bounce):
    b = sI >> 1
    kind, r0 = ACCreg(blk, b); r0 += 8 * (sI & 1)
    L = []
    if kind == 'a':
        for e in range(8): L.append(f"  v_accvgpr_read_b32 v{bounce+e}, a{r0+e}")
        r0 = bounce
    L += [f"  v_cvt_pk_bf16_f32 v{p}, v{r0}, v{r0+1}", f"  v_cvt_pk_bf16_f32 v{p+1}, v{r0+2}, v{r0+3}",
          f"  v_cvt_pk_bf16_f32 v{p+2}, v{r0+4}, v{r0+5}", f"  v_cvt_pk_bf16_f32 v{p+3}, v{r0+6}, v{r0+7}"]
    return L
def park_group(g):
    blk, sI = EPI_ORDER[g]
    kind, _ = ACCreg(blk, sI >> 1)
    p = 16 if kind == 'a' else 16 + 4 * (g & 1)
    L = epi_cvt(blk, sI, p, 16)
    q = quad(blk, sI)
    L += [f"  v_accvgpr_write_b32 a{q+e}, v{p+e}" for e in range(4)]
    return L, (32 + (32 if kind == 'a' else 0))
def store_parked(i, spx):
    blk, sI = i // 12, i % 12
    q = quad(blk, sI)
    return f"  buffer_store_dwordx4 a[{q}:{q+3}], v{V_PX[blk]}, s[{S_OUT}:{S_OUT+3}], s{spx} offen offset:{32*sI}{['', ' nt', ' sc1', ' sc0 sc1'][OPT['stnt']]}"
class Epi:
    def __init__(self, a): self.a = a; self.g = 0
    def emit(self, n=1):
        pass
def epilogue(a):
    if not OPT['linfin']:
        for g in range(24):
            blk, sI = g // 12, g % 12
            p = 16 + 4 * (g & 1)
            for t in epi_cvt(blk, sI, p, 40): a(t)
            a(f"  buffer_store_dwordx4 {vr(p,4)}, v{V_PX[blk]}, s[{S_OUT}:{S_OUT+3}], s{S_PXO} offen offset:{32*sI}")
        return
    REG = 73728
    a("  s_waitcnt vmcnt(0)")
    a(f"""  s_mul_i32 s{S_T0}, s{S_W}, 12800
  s_add_u32 s{S_T0}, s{S_T0}, {REG}
  v_and_b32 v24, 31, v{V_LANE}
  v_mul_u32_u24 v24, 400, v24
  v_lshrrev_b32 v25, 5, v{V_LANE}
  v_lshl_add_u32 v24, v25, 4, v24
  v_add_u32 v24, s{S_T0}, v24
  s_mov_b32 s{S_T1}, {(2**32 + 23)//24}""")
    for q in range(3):
        a(f"""  v_add_u32 v28, {64*q}, v{V_LANE}
  v_mul_hi_u32 v29, v28, s{S_T1}
  v_add_lshl_u32 v28, v28, v29, 4
  v_add_u32 v{25+q}, s{S_T0}, v28""")
    a(f"""  s_lshl_b32 s86, s{S_W}, 3
  s_mul_i32 s86, s86, {512*384}
  s_add_u32 s86, s86, s{S_PXO}""")
    for blk in range(2):
        for sI in range(12):
            p = 32 + 4 * (sI & 3)
            for t in epi_cvt(blk, sI, p, 16): a(t)
            a(f"  ds_write_b128 v24, {vr(p,4)} offset:{32*sI}")
        a("  s_waitcnt lgkmcnt(0)")
        for q in range(12):
            a(f"  ds_read_b128 {vr(48+4*q+48*(blk&0),4)}, v{25+q%3} offset:{3200*(q//3)}")
        for q in range(12):
            a(f"  s_waitcnt lgkmcnt({11-q})")
            if q % 3 == 0 and (q or blk): a(f"  s_add_u32 s86, s86, {512*384}")
            a(f"  buffer_store_dwordx4 {vr(48+4*q,4)}, v{R.V_L16}, s[{S_OUT}:{S_OUT+3}], s86 offen offset:{1024*(q%3)}")
        if blk == 0: a("  s_nop 1")
def gen_fused(a, name="fused_kernel", nwg=256):
    CFG['accinit'] = 1
    a(kstart(name))
    h16 = lambda x: int(np.float16(x).view(np.uint16))
    a(f"""
  s_cmp_ge_u32 s2, {nwg}
  s_cbranch_scc1 {name}_done
  s_load_dwordx2 s[48:49], s[0:1], 0       ; x
  s_load_dwordx2 s[50:51], s[0:1], 32      ; out
  s_load_dwordx2 s[38:39], s[0:1], 48      ; ws
  v_lshrrev_b32 v1, 6, v0
  v_and_b32 v{V_LANE}, 63, v0
  s_nop 0
  v_readfirstlane_b32 s{S_W}, v1
  v_lshlrev_b32 v{R.V_L16}, 4, v{V_LANE}
""")
    a(f"""
  s_waitcnt lgkmcnt(0)
  s_mov_b32 s{R.S_WS}, s38
  s_and_b32 s{R.S_WS+1}, s39, 0xffff
  s_mov_b32 s{R.S_WS+2}, {NBLK*BLK}
  s_mov_b32 s{R.S_WS+3}, 0x20000
  s_add_u32 s{S_TB}, s38, {TBL_OFF}
  s_addc_u32 s{S_TB+1}, s39, 0
  s_and_b32 s{S_TB+1}, s{S_TB+1}, 0xffff
  s_mov_b32 s{S_TB+2}, {TBL_BYTES}
  s_mov_b32 s{S_TB+3}, 0x20000
  s_mov_b32 s{S_X}, s48
  s_and_b32 s{S_X+1}, s49, 0xffff
  s_mov_b32 s{S_X+2}, {NPX*384}
  s_mov_b32 s{S_X+3}, 0x20000
  s_mov_b32 s{S_OUT}, s50
  s_and_b32 s{S_OUT+1}, s51, 0xffff
  s_mov_b32 s{S_OUT+2}, {NPX*384}
  s_mov_b32 s{S_OUT+3}, 0x20000
  s_mov_b32 s{R.S_NA}, {hex(f2u(-GA))}
  s_mov_b32 s{R.S_S}, {hex(f2u(GS))}
  s_mov_b32 s85, {hex(f2u(GS * (1.0 - OPT['bias'] / 1000.0)))}
  s_mov_b32 s{R.S_NAH}, {hex(h16(-GA) | (h16(-GA) << 16))}
  s_mov_b32 s{R.S_SH}, {hex(h16(GS) | (h16(GS) << 16))}
  s_mov_b32 s{S_LO}, 0x05040100
  s_mov_b32 s{S_HI}, 0x07060302
  s_mov_b32 s{S_EPS}, {hex(f2u(1e-5))}
  s_mov_b32 s{S_INV}, {hex(f2u(1.0/192))}
  s_mul_i32 s{S_G0}, s{S_W}, 6144
""")
    for s in range(3):
        a(f"  s_add_u32 s{R.S_M[2*s]}, s{S_G0}, {s*BLK}")
        a(f"  s_add_u32 s{R.S_M[2*s+1]}, s{S_G0}, {s*BLK + 4096}")
    if OPT['prof'] or OPT['dumph']:
        a(f"""  s_add_u32 s44, s38, {STAMP_OFF}
  s_addc_u32 s45, s39, 0
  s_and_b32 s45, s45, 0xffff
  s_mov_b32 s46, {256*4*512}
  s_mov_b32 s47, 0x20000
  s_lshl_b32 s40, s2, 2
  s_add_u32 s40, s40, s{S_W}
  s_lshl_b32 s40, s40, 9
  s_add_u32 s52, s38, {H_OFF}
  s_addc_u32 s53, s39, 0
  s_and_b32 s53, s53, 0xffff
  s_mov_b32 s54, {NPX*384}
  s_mov_b32 s55, 0x20000""")
    stamp(a, True)
    a(f"  s_mov_b32 s{S_I}, 0")
    tile_coords(a)
    global_bases(a)
    table_dma(a, 0); table_dma(a, 1)
    x_loads(a, 0, 0); x_loads(a, 0, 1)
    if not OPT['r2late']: x_loads(a, 0, 2)
    npf = 0
    if OPT['spf']:
        a(f"""  s_lshl_b32 s{S_T0}, s{S_TY}, 5
  s_sub_u32 s{S_T0}, s{S_T0}, 3
  s_max_i32 s{S_T0}, s{S_T0}, 0
  s_add_u32 s{S_T0}, s{S_T0}, s{S_W}
  s_lshl_b32 s{S_T0}, s{S_T0}, 9
  s_lshl_b32 s{S_T1}, s{S_TX}, 3
  s_sub_u32 s{S_T1}, s{S_T1}, 4
  s_max_i32 s{S_T1}, s{S_T1}, 0
  s_add_u32 s{S_T0}, s{S_T0}, s{S_T1}
  s_mul_i32 s{S_PF}, s{S_T0}, 384
  v_min_u32 v{V_TMP}, 47, v{V_LANE}
  v_lshlrev_b32 v{V_TMP}, 7, v{V_TMP}
  s_mov_b32 m0, {PFSCR}
  s_lshr_b32 s{S_T0}, s2, 3
  s_lshl_b32 s{S_T0}, s{S_T0}, 2
  s_add_u32 s{S_T0}, s{S_T0}, s{S_W}
  s_mul_i32 s{S_T0}, s{S_T0}, 5120
  v_lshlrev_b32 v16, 6, v{V_LANE}
  buffer_load_dword v16, s[{R.S_WS}:{R.S_WS+3}], s{S_T0} offen lds
  buffer_load_dword v16, s[{R.S_WS}:{R.S_WS+3}], s{S_T0} offen offset:1024 lds""")
        npf = 2
        for idx in range(20):
            a(f"  buffer_load_dword v{V_TMP}, s[{S_X}:{S_X+3}], s{S_PF} offen offset:{64*(idx&1)} lds")
            if idx & 1: a(f"  s_add_u32 s{S_PF}, s{S_PF}, {4*512*384}")
            npf += 1
    if OPT['wpf']:
        a(f"""  s_mov_b32 m0, {PFSCR}
  s_lshr_b32 s{S_T0}, s2, 3
  s_lshl_b32 s{S_T0}, s{S_T0}, 2
  s_add_u32 s{S_T0}, s{S_T0}, s{S_W}
  s_mul_i32 s{S_T0}, s{S_T0}, 5120
  v_lshlrev_b32 v16, 6, v{V_LANE}
  buffer_load_dword v16, s[{R.S_WS}:{R.S_WS+3}], s{S_T0} offen lds
  buffer_load_dword v16, s[{R.S_WS}:{R.S_WS+3}], s{S_T0} offen offset:1024 lds""")
        npf += 2
    if OPT['cpf']:
        a(f"""  s_getpc_b64 s[88:89]
{{CODEBASE}}:
  v_lshlrev_b32 v17, 7, v{V_LANE}
  s_lshl_b32 s{S_T0}, s{S_W}, 13
  v_add_u32 v17, s{S_T0}, v17""".replace("{CODEBASE}", "fused_kernel_pc"))
        for q in range(3):
            a(f"  v_min_u32 v18, fused_kernel_done-fused_kernel_pc, v17")
            a(f"  global_load_dword v{120+q}, v18, s[88:89]")
            a(f"  v_add_u32 v17, {4*8192}, v17")
            npf += 1
    a(f"""
  v_add_u32 v{R.V_L16B}, {C.RB if CFG['ring5'] else 2*BLK}, v{R.V_L16}
  v_and_b32 v16, 31, v{V_LANE}             ; n
  v_lshrrev_b32 v17, 5, v{V_LANE}          ; hf
  v_lshrrev_b32 v18, 3, v16
  v_and_b32 v19, 7, v16
  s_lshl_b32 s{S_T0}, s{S_W}, 3
  v_add_u32 v18, s{S_T0}, v18
  v_lshl_add_u32 v20, v18, 9, v19
  s_movk_i32 s{S_T1}, 384
  v_mul_lo_u32 v20, v20, s{S_T1}
  v_lshl_add_u32 v{V_PX[0]}, v17, 4, v20
  v_add_u32 v{V_PX[1]}, {4*512*384}, v{V_PX[0]}
  v_lshl_add_u32 v20, v18, 3, v19
  s_movk_i32 s{S_T1}, {XPS}
  v_mul_lo_u32 v20, v20, s{S_T1}
  v_lshrrev_b32 v21, 1, v18                ; row>>1
  v_add_u32 v21, v21, v17                  ; + hf
  v_lshl_add_u32 v20, v21, 4, v20
  v_add_u32 v{V_XR[0]}, {XCH}, v20
  v_add_u32 v{V_XR[1]}, {XCH + 32*XPS + 32}, v20
  v_and_b32 v18, 0x13, v16
  v_bfe_u32 v19, v16, 2, 1
  v_lshl_or_b32 v18, v19, 3, v18
  v_bfe_u32 v19, v16, 3, 1
  v_lshl_or_b32 v18, v19, 2, v18
  v_lshlrev_b32 v19, 3, v17
  v_sub_u32 v18, v18, v19                  ; c(m) - 8hf
""")
    for d in range(4):
        for (base, reg) in ((0, 112), (16, 116)):
            a(f"""  v_cmp_eq_u32 vcc, {base+2*d}, v18
  v_mov_b32 v19, 0x3f80
  s_nop 1
  v_cndmask_b32 v20, 0, v19, vcc
  v_cmp_eq_u32 vcc, {base+2*d+1}, v18
  v_mov_b32 v19, 0x3f800000
  s_nop 1
  v_cndmask_b32 v21, 0, v19, vcc
  v_or_b32 v{reg+d}, v20, v21""")
    a(f"""  v_add_u32 v20, {IDOFF}, v{R.V_L16}
  ds_write_b128 v20, v[112:115]
  ds_write_b128 v20, v[116:119] offset:1024
  v_and_b32 v16, 15, v{V_LANE}             ; nh
  v_lshrrev_b32 v17, 4, v{V_LANE}          ; q
  v_lshrrev_b32 v18, 1, v17
  v_mul_u32_u24 v18, {PLANE}, v18
  v_lshl_add_u32 v18, v16, 5, v18
  v_and_b32 v19, 1, v17
  v_lshl_add_u32 v18, v19, 4, v18
  s_mul_i32 s{S_T0}, s{S_W}, {2*OS}
  s_add_u32 s{S_T0}, s{S_T0}, {SB}
  v_add_u32 v{V_B}, s{S_T0}, v18
  v_and_b32 v18, 1, v16                    ; mh
  v_bfe_u32 v19, v16, 1, 1                 ; par
  v_lshrrev_b32 v20, 2, v16                ; k'
  v_sub_u32 v21, v17, v18
  v_add_u32 v21, 1, v21
  v_lshlrev_b32 v21, 5, v21
  v_lshl_add_u32 v21, v19, 4, v21
  v_sub_u32 v22, 0, v20
  v_and_b32 v22, 3, v22
  v_lshl_add_u32 v21, v22, 2, v21
  s_lshl_b32 s{S_T0}, s{S_W}, 12
  s_add_u32 s{S_T0}, s{S_T0}, {TB[0]}
  v_add_u32 v{V_T}, s{S_T0}, v21
  v_lshlrev_b32 v21, 1, v20                ; 2k'
  v_add_u32 v22, 1, v21                    ; O: 2k'+1
  v_cmp_eq_u32 vcc, 0, v20
  v_mov_b32 v23, 8
  s_nop 1
  v_cndmask_b32 v21, v21, v23, vcc         ; E
  v_cmp_eq_u32 vcc, 1, v19
  s_nop 1
  v_cndmask_b32 v21, v22, v21, vcc         ; s
  v_mov_b32 v{V_IDX}, 0x4444
""")
    for g in range(4):
        a(f"""  v_cmp_le_u32 vcc, {2*g+2}, v21
  v_mov_b32 v22, {0xA << (4*g)}
  s_nop 1
  v_cndmask_b32 v22, 0, v22, vcc
  v_or_b32 v{V_IDX}, v{V_IDX}, v22""")
    a(f"""
  v_lshlrev_b32 v18, 4, v16                ; 2nh*8
  v_lshlrev_b32 v19, 1, v17                ; 2q'
  v_lshlrev_b32 v20, 4, v16
  s_lshl_b32 s{S_T0}, s{S_W}, 5
  s_add_u32 s{S_T0}, s{S_T0}, {XCH}
  v_add_u32 v20, s{S_T0}, v20
  s_movk_i32 s{S_T1}, {XPS}
  v_add_u32 v21, v18, v19
  v_mul_lo_u32 v21, v21, s{S_T1}
  v_add_u32 v{V_XW[0]}, v21, v20
  v_add_u32 v19, 7, v19
  v_and_b32 v19, 7, v19
  v_add_u32 v21, v18, v19
  v_mul_lo_u32 v21, v21, s{S_T1}
  v_add_u32 v{V_XW[1]}, v21, v20
""")
    a(f"""  s_lshl_b32 s{S_T0}, s{S_W}, 5
  s_mul_i32 s{S_T1}, s{S_W}, {8*8*XPS + 4*16}
  v_subrev_u32 v20, s{S_T0}, v12
  v_subrev_u32 v21, s{S_T0}, v13
  v_subrev_u32 v22, s{S_T1}, v14
  v_subrev_u32 v23, s{S_T1}, v15
  v_add_u32 v16, {SAVEOFF}, v{R.V_L16}
  ds_write_b128 v16, v[20:23]""")
    for r in range(3):
        a(f"""  s_lshl_b32 s{S_T0}, s{S_W}, 6
  s_add_u32 s{S_T0}, s{S_T0}, {256*r}
  v_add_u32 v16, s{S_T0}, v{V_LANE}
  v_and_b32 v18, 7, v16                        ; o
  v_lshrrev_b32 v19, 4, v16                    ; row
  v_bfe_u32 v20, v16, 3, 1                     ; u
  v_mul_u32_u24 v18, {OS}, v18
  v_and_b32 v21, 1, v19
  v_mul_u32_u24 v21, {PLANE}, v21
  v_lshrrev_b32 v19, 1, v19
  v_lshl_add_u32 v21, v19, 5, v21
  v_lshl_add_u32 v21, v20, 4, v21
  v_add_u32 v21, v21, v18
  v_add_u32 v{V_SW[r]}, {SB}, v21""")
        if r == 2:
            a(f"""  s_movk_i32 s{S_T0}, 608
  v_cmp_gt_u32 vcc, s{S_T0}, v16
  v_add_u32 v17, {SDUMMY}, v{R.V_L16}
  s_nop 1
  v_cndmask_b32 v{V_SW[r]}, v17, v{V_SW[r]}, vcc""")
    a(f"  s_waitcnt vmcnt({npf})")
    a(f"  s_mov_b32 s{S_PXP}, 0x80000000")
    a(f"{name}_tile:")
    a(f"  s_mov_b32 s{S_PXO}, s{S_PXN}")
    stamp(a, True)
    phase_c(a)
    stamp(a)
    if OPT['dumph']:
        for blk in range(2):
            for s in range(12):
                a(f"  buffer_store_dwordx4 {Hf(blk,s)}, v{V_PX[blk]}, s[52:55], s{S_PXO} offen offset:{32*s}")
        a("  s_waitcnt vmcnt(6)" if False else "  s_waitcnt vmcnt(0)")
    core = Core(a)
    if OPT['jith']: core.jit_reads = lambda t: [f"  ds_read_b128 {Hf(blk,t)}, v{V_XR[blk]} offset:{32*t}" for blk in range(2)]
    tc = Asm()
    tc(f"  s_add_u32 s{S_I}, s{S_I}, 1")
    tile_coords(tc)
    tc(f"""  s_lshl_b32 s{S_T0}, s{S_TY}, 5
  s_sub_u32 s{S_T0}, s{S_T0}, 3
  s_max_i32 s{S_T0}, s{S_T0}, 0
  s_add_u32 s{S_T0}, s{S_T0}, s{S_W}
  s_lshl_b32 s{S_T0}, s{S_T0}, 9
  s_lshl_b32 s{S_T1}, s{S_TX}, 3
  s_sub_u32 s{S_T1}, s{S_T1}, 4
  s_max_i32 s{S_T1}, s{S_T1}, 0
  s_add_u32 s{S_T0}, s{S_T0}, s{S_T1}
  s_mul_i32 s{S_PF}, s{S_T0}, 384
  s_cmp_ge_u32 s{S_I}, 4
  s_cselect_b32 s{S_PF}, 0x80000000, s{S_PF}""")
    tcl = [(l, 4) for l in tc.L]
    ex0 = [(f"  v_min_u32 v{V_TMP}, 47, v{V_LANE}", 4), (f"  v_lshlrev_b32 v{V_TMP}, 7, v{V_TMP}", 4)]
    if OPT['w1late']:
        wl = Asm(); w_dma_block(wl, 1)
        ex0 = [(l, 10 if 'buffer' in l else 4) for l in wl.L] + ex0
    ex0 = ex0 + tcl[:-2] + [(tcl[-2][0] + "\n" + tcl[-1][0], 8)]
    core.extra[0] = ex0
    core.fast_flush = {0}
    core.vmwait[0] = 0
    core.vmwait[1] = 0
    stplan = {}; xplan = {}
    xg = OPT['xg']
    lin = OPT['lin']
    S_SR = 76; S_SX = 77
    linops = {}
    if lin:
        ex0b = f"""  s_mul_i32 s86, s{S_W}, 12800
  s_add_u32 s86, s86, {TREG}
  v_and_b32 v12, 31, v{V_LANE}
  v_mul_u32_u24 v12, 400, v12
  v_lshrrev_b32 v16, 5, v{V_LANE}
  v_lshl_add_u32 v12, v16, 4, v12
  v_add_u32 v12, s86, v12
  s_mov_b32 s87, {(2**32 + 23)//24}""".split("\n")
        for q in range(3):
            ex0b += [f"  v_add_u32 v16, {64*q}, v{V_LANE}", f"  v_mul_hi_u32 v17, v16, s87", f"  v_add_lshl_u32 v16, v16, v17, 4", f"  v_add_u32 v{13+q}, s86, v16"]
        ex0b += [f"  s_lshl_b32 s{S_SR}, s{S_W}, 3", f"  s_mul_i32 s{S_SR}, s{S_SR}, {512*384}", f"  s_add_u32 s{S_SX}, s{S_SR}, s{S_PXO}", f"  s_add_u32 s{S_SR}, s{S_SR}, s{S_PXP}"]
        core.extra[0] = core.extra[0] + [(l, 4) for l in ex0b]
        def AQ(blk, q): r = quad(blk, q); return f"a[{r}:{r+3}]"
        for blk in range(2):
            core.lds_extra[1 + 3 * blk] = [f"  ds_write_b128 v12, {AQ(blk,q)} offset:{32*q}" for q in range(12)]
            core.lds_extra[2 + 3 * blk] = [f"  ds_read_b128 {AQ(blk,q)}, v{13+q%3} offset:{3200*(q//3)}" for q in range(12)]
            if lin == 1:
                core.lds_extra[10 + 4 * blk] = [f"  ds_write_b128 v{13+q%3}, {AQ(blk,q)} offset:{3200*(q//3)}" for q in range(12)]
                core.lds_extra[11 + 4 * blk] = [f"  ds_read_b128 {AQ(blk,q)}, v12 offset:{32*q}" for q in range(12)]
        def st(blk, q):
            L = [f"  buffer_store_dwordx4 {AQ(blk,q)}, v{R.V_L16}, s[{S_OUT}:{S_OUT+3}], s{S_SR} offen offset:{1024*(q%3)}"]
            if q % 3 == 2: L.append(f"  s_add_u32 s{S_SR}, s{S_SR}, {512*384}")
            return (L, 6)
        def xl(blk, q):
            L = [f"  buffer_load_dwordx4 {AQ(blk,q)}, v{R.V_L16}, s[{S_X}:{S_X+3}], s{S_SX} offen offset:{1024*(q%3)}"]
            if q % 3 == 2: L.append(f"  s_add_u32 s{S_SX}, s{S_SX}, {512*384}")
            return (L, 6)
        linops = {2: [st(0, q) for q in range(6)], 3: [st(0, q) for q in range(6, 12)], 4: [xl(0, q) for q in range(6)],
                  5: [st(1, q) for q in range(6)], 6: [st(1, q) for q in range(6, 12)], 7: [xl(0, q) for q in range(6, 12)],
                  10: [xl(1, q) for q in range(6)], 11: [xl(1, q) for q in range(6, 12)]}
        if lin == 2:
            for j_ in (4, 7, 10, 11): del linops[j_]
            for g, j_ in enumerate([4, 7, 8, 9, 10, 11, 12, 14, 16, 18, 20, 22]): xplan[j_] = [2 * g, 2 * g + 1]
        if lin == 3:
            core.lds_extra.pop(1); core.lds_extra.pop(2); core.lds_extra.pop(4); core.lds_extra.pop(5)
            for blk in range(2):
                core.lds_extra[10 + 4 * blk] = [f"  ds_write_b128 v{13+q%3}, {AQ(blk,q)} offset:{3200*(q//3)}" for q in range(12)]
                core.lds_extra[11 + 4 * blk] = [f"  ds_read_b128 {AQ(blk,q)}, v12 offset:{32*q}" for q in range(12)]
            linops = {7: [xl(0, q) for q in range(6)], 8: [xl(0, q) for q in range(6, 12)] , 12: [xl(1, q) for q in range(6)], 13: [xl(1, q) for q in range(6, 12)]}
            core.lds_extra[11] = core.lds_extra.pop(10); core.lds_extra[12] = [f"  ds_read_b128 {AQ(0,q)}, v12 offset:{32*q}" for q in range(12)]
            core.lds_extra[16] = core.lds_extra.pop(14); core.lds_extra[17] = [f"  ds_read_b128 {AQ(1,q)}, v12 offset:{32*q}" for q in range(12)]
            core.lds_extra.pop(15, None)
            for g in range(12): stplan[1 + g] = [2 * g, 2 * g + 1]
    elif xg == 4:
        for g in range(6):
            stplan[1 + 4 * g] = [4 * g + e for e in range(4)]
            xplan[2 + 4 * g] = [4 * g + e for e in range(4)]
    elif xg == 2:
        for g in range(12): stplan[1 + g] = [2 * g, 2 * g + 1]
        for g in range(12): xplan[[2, 4, 6, 8, 10, 12, 14, 16, 18, 20, 21, 22][g]] = [2 * g, 2 * g + 1]
    elif xg == 1:
        for g in range(12): stplan[1 + g] = [2 * g, 2 * g + 1]
        for q in range(24): xplan.setdefault(2 + (q * 21) // 24, []).append(q)
    perj = {}
    for j in range(1, 24):
        ops = []; nv = 0
        for g in linops.get(j, []):
            ops.append(g); nv += 1
        for q in stplan.get(j, []):
            ops.append(([store_parked(q, S_PXP)], 6)); nv += 1
        for q in xplan.get(j, []):
            blk, sI = q // 12, q % 12
            ops.append(([f"  buffer_load_dwordx4 {Xf(blk,sI)}, v{V_PX[blk]}, s[{S_X}:{S_X+3}], s{S_PXO} offen offset:{32*sI} {['', 'nt', 'sc1', 'sc0 sc1'][OPT['xf']]}"], 6)); nv += 1
        if j in ((8, 9) if OPT['lin'] else (4, 6)):
            for gi_, g in enumerate(table_dma_ops(0 if j in (4, 8) else 1)):
                ops.append((g, 6 + 4 * (len(g) - 1))); nv += 1
        if OPT['pf'] and j < 23:
            npf_ = 20 if OPT['pfh'] else 10
            step = OPT['pfs']; first = 23 - npf_ * step
            if j >= first and (j - first) % step == 0:
                idx = (j - first) // step
                t = [f"  s_mov_b32 m0, {PFSCR}", "  s_nop 0", f"  buffer_load_dword v{V_TMP}, s[{S_X}:{S_X+3}], s{S_PF} offen offset:{64 * (idx & 1) if OPT['pfh'] else 0} {['', 'nt', 'sc1', 'sc0 sc1'][OPT['pff']]} lds"]
                if (idx & 1) or not OPT['pfh']: t.append(f"  s_add_u32 s{S_PF}, s{S_PF}, {4*512*384}")
                ops.append((t, 14)); nv += 1
        perj[j] = (ops, nv)
    if CFG['ring5']:
        for j in range(1, 24, 2):
            o1, n1 = perj.get(j, ([], 0)); o2, n2 = perj.get(j + 1, ([], 0))
            core.pend_extra[j] = (o1, o2)
            core.vmwait[j + 2] = n2
    else:
        for j in range(1, 24):
            core.pend_extra[j] = perj[j][0]; core.vmwait[j + 1] = perj[j][1]
    core.extra[23] = []
    core.extra[24] = [(f"  v_add_u32 v56, {IDOFF}, v{R.V_L16}", 4), (f"  ds_read_b128 v[48:51], v56", 8), (f"  ds_read_b128 v[52:55], v56 offset:1024", 8)]
    ps = []
    for blk in range(2):
        for sI in range(12):
            ps.append((f"  v_mfma_f32_32x32x16_bf16 {ACC(blk,sI>>1)}, {vr(52 if sI&1 else 48,4)}, {Xf(blk,sI)}, {ACC(blk,sI>>1)}", []))
    if CFG['ring5']: ps[0] = (ps[0][0], ["  s_waitcnt vmcnt(0)"])
    core.pseudo[24] = ps
    core.extra_first.add(24)
    core.no_barrier.add(25)
    if not CFG['ring5']: core.vmwait[24] = 0
    core.emit(0, 1); core.emit(1, 2)
    if OPT['prof'] >= 2:
        a(f"  v_mov_b32 v47, v{V_TMP}"); stamp(a); a(f"  v_mov_b32 v{V_TMP}, v47")
    for j in range(2, 24): core.emit(j, j + 1)
    if OPT['prof'] >= 2: stamp(a)
    core.emit(24, 25)
    if OPT['prof'] >= 2: stamp(a)
    if OPT['wb']:
        a(f"""  s_cmp_lt_u32 s{S_I}, 4
  s_cbranch_scc1 {name}_nowb
  s_cmp_ge_u32 s2, {8 if OPT['wb'] == 1 else 256}
  s_cbranch_scc1 {name}_nowb
  s_cmp_lg_u32 s{S_W}, 0
  s_cbranch_scc1 {name}_nowb
  buffer_wbl2 sc1
{name}_nowb:""")
    emit_tail(a, core)
    stamp(a)
    a(f"""  s_cmp_ge_u32 s{S_I}, 4
  s_cbranch_scc1 {name}_last""")
    a("  s_barrier")
    a(f"  s_mov_b32 s{S_PXP}, s{S_PXO}")
    stamp(a)
    a(f"  s_branch {name}_tile")
    a(f"{name}_last:")
    a("  s_nop 15")
    epilogue(a)
    stamp(a)
    a("  s_waitcnt vmcnt(0)")
    stamp(a, True)
    a(f"""  s_waitcnt vmcnt(0)
{name}_done:
  s_endpgm
""")
    for blk in OOL:
        for l in blk: a(l)
    a(kdesc(name, 512, 100, 256))
def emit_loop(a, self, name):
    for j in range(2, 25): self.emit(j, j + 1)
def emit_tail(a, core):
    ch, Pf = core.plan(25, None)
    main = [l for c in ch for l in c]
    for tx, c in core.pending: main += tx
    core.pending = []
    f = []
    f += global_bases_lines(96)
    f += [x_load_line(0, 0, i) for i in range(8)]
    f += [x_load_line(0, 1, i) for i in range(8)]
    if not OPT['r2late']: f += [x_load_line(0, 2, i) for i in range(8)]
    fi = 0
    nm = sum(1 for l in main if "v_mfma" in l); per = -(-len(f) // nm)
    for l in main:
        a(l)
        if "v_mfma" in l:
            for _ in range(per):
                if fi < len(f): a(f[fi]); fi += 1
    while fi < len(f): a(f[fi]); fi += 1
    vm.ops.clear(); vm.add(('t', 0), 5); vm.add(('t', 1), 5); vm.add(('x', 0, 0), 8); vm.add(('x', 0, 1), 8)
    if not OPT['r2late']: vm.add(('x', 0, 2), 8)
```

```python
from asmlib import *
import mlpcore as C
from mlpcore import R, ACC, ACCreg, Hf, WFr, Core, BLK, NBLK, CFG
from k_prep2 import TBL_OFF, TBL_BYTES
import numpy as np
OS = 9744; CS = 1216; PLANE = 608
SB = 49152
TB = [SB + 8 * OS, SB + 8 * OS + 16384]
ZROW = TB[1] + 16384
XCH = 49152; XPS = 416
STATS = TB[1] + 1024
IDOFF = ZROW + 64
PFSCR = IDOFF + 2048
LDS_BYTES = PFSCR + 256
TREG = 73728
SAVEOFF = 0
assert XCH + 106736 <= IDOFF and LDS_BYTES <= 163840 and STATS + 8192 <= ZROW
V_LANE = 0
V_SW = [1, 2, 9]
V_TMP = 3
V_PX = [6, 7]
V_B = 8
V_T = 10
V_IDX = 11
V_XW = [12, 13]
V_XR = [14, 15]
V_GA = [24, 26, 30]; V_GB = [25, 27, 31]
AF = [32, 40]
XR = [48, 80]
XA2 = 96
PT = [32, 40]
def Darch(k, i):
    idx = 16 * k + i
    return 112 + 4 * idx if idx < 36 else 48 + 4 * (idx - 36)
def Dreg(k, i): return ('v', Darch(k, i))
BF = [48, 64, 80]
PARK = 160
S_ST = [78, 79, 80, 81]
def Xf(blk, s):
    r = 160 + 48 * blk + 4 * s; return f"a[{r}:{r+3}]"
S_X = 8; S_OUT = 12; S_TB = 16
S_W = 20; S_I = 21; S_T0 = 28; S_T1 = 29; S_PXO = 30; S_PXN = 31; S_G0 = 32; S_LO = 33; S_HI = 34
S_TX = 64; S_TY = 65; S_TM = 66; S_TG = 67; S_EPS = 68; S_INV = 69
NPX = 512 * 512
STAMP_OFF = 300 << 20
H_OFF = 1 << 20
OPT = dict(dumph=0, prof=0, pf=1, st=3, sbud=100, cbud=32, stc=20, nhi=1, stnt=0, xnt=0, pfn=1, nox=0, nopark=0, sst=11, spf=0, nhs=2, st3=1, hprog=1, samex=0, pfh=0, pfs=1, w1late=0, xg=2, pff=2, xf=0, bias=0, r2late=1, linfin=1, lin=0, skip2=1, wpf=0, cpf=0, cord=1, sord=2, jith=0, ststage=0, cbud2=0, wb=0, w0early=1, r1late=1, zlate=1)
COLS = [0, 1, 8, 9, 2, 3, 10, 11]
S_PXP = 74
S_PF = 75
V_PFA = 3
class VM:
    def __init__(self): self.ops = []
    def add(self, tag, n=1): self.ops += [tag] * n
    def after(self, tag):
        i = max(k for k, t in enumerate(self.ops) if t == tag)
        return len(self.ops) - 1 - i
vm = VM()
OOL = []
def stamp(a, force=False):
    if not OPT['prof']: return
    if OPT['prof'] == 3 and not force: return
    a(f"""  s_memtime s[42:43]
  s_memrealtime s[62:63]
  s_waitcnt lgkmcnt(0)
  v_mov_b32 v{V_TMP}, s42
  s_nop 0
  buffer_store_dword v{V_TMP}, off, s[44:47], s40
  s_nop 1
  v_mov_b32 v{V_TMP}, s62
  s_nop 0
  buffer_store_dword v{V_TMP}, off, s[44:47], s40 offset:256
  s_add_u32 s40, s40, 4""")
def tile_coords(a):
    a(f"""  s_and_b32 s{S_T0}, s2, 7
  s_lshl_b32 s{S_T0}, s{S_T0}, 3
  s_lshr_b32 s{S_T1}, s2, 3
  s_and_b32 s{S_TX}, s{S_T1}, 7
  s_add_u32 s{S_TX}, s{S_TX}, s{S_T0}
  s_lshr_b32 s{S_T1}, s{S_T1}, 3
  s_lshl_b32 s{S_TY}, s{S_I}, 2
  s_add_u32 s{S_TY}, s{S_TY}, s{S_T1}          ; ty = 4*i + (c>>3)
  s_lshl_b32 s{S_T0}, s{S_TY}, 14              ; y0*512 = ty*32*512
  s_lshl_b32 s{S_T1}, s{S_TX}, 3
  s_add_u32 s{S_T0}, s{S_T0}, s{S_T1}
  s_mul_i32 s{S_PXN}, s{S_T0}, 384""")
def global_bases_lines(t):
    L = []
    if OPT['samex']: L += [f"  s_mov_b32 s{S_TX}, 5", f"  s_mov_b32 s{S_TY}, 5"]
    L += f"""  s_lshl_b32 s88, s{S_TY}, 5
  s_sub_u32 s88, s88, 3
  s_lshl_b32 s89, s{S_TX}, 3
  s_sub_u32 s89, s89, 4
  s_lshl_b32 s90, s{S_W}, 2
  s_add_u32 s88, s88, s90
  s_movk_i32 s90, 384
  s_movk_i32 s91, 512
  v_lshrrev_b32 v{t}, 4, v{V_LANE}
  v_bfe_u32 v{t+1}, v{V_LANE}, 3, 1
  v_and_b32 v{t+2}, 7, v{V_LANE}
  v_lshl_add_u32 v{t+1}, v{t+1}, 2, s89
  v_add_u32 v{t}, s88, v{t}
  v_add_u32 v{t+3}, 8, v{t+1}
  v_cmp_gt_u32 s[70:71], s91, v{t+1}
  v_cmp_gt_u32 s[72:73], s91, v{t+3}
  v_lshl_add_u32 v{t+3}, v{t}, 9, v{t+1}
  v_mul_lo_u32 v{t+3}, v{t+3}, s90
  v_lshl_add_u32 v{t+3}, v{t+2}, 4, v{t+3}
  v_mov_b32 v{t+4}, 0x80000000""".split("\n")
    for r in range(3):
        if r > 0:
            L += [f"  v_add_u32 v{t}, 16, v{t}", f"  v_add_u32 v{t+3}, {16*512*384}, v{t+3}"]
        L += [f"  v_cmp_gt_u32 vcc, s91, v{t}"]
        if r == 2:
            L = L[:-1]
            L += [f"  v_lshrrev_b32 v{t+5}, 4, v{V_LANE}", f"  s_lshl_b32 s86, s{S_W}, 2", f"  v_add_u32 v{t+5}, s86, v{t+5}",
                  f"  v_cmp_gt_u32 vcc, 6, v{t+5}", f"  v_subrev_u32 v{t+6}, 2, v{t}", f"  v_subrev_u32 v{t+5}, {2*512*384}, v{t+3}", "  s_nop 0",
                  f"  v_cndmask_b32 v{t}, v{t+6}, v{t}, vcc", f"  v_cndmask_b32 v{t+3}, v{t+5}, v{t+3}, vcc",
                  f"  v_cmp_gt_u32 vcc, s91, v{t}", f"  s_cmp_lt_u32 s{S_W}, 2", "  s_cselect_b64 s[86:87], -1, 0", "  s_and_b64 vcc, vcc, s[86:87]"]
        L += [f"  v_add_u32 v{t+6}, {8*384}, v{t+3}",
              "  s_and_b64 s[92:93], s[70:71], vcc",
              "  s_and_b64 s[94:95], s[72:73], vcc",
              "  s_nop 1",
              f"  v_cndmask_b32 v{V_GA[r]}, v{t+4}, v{t+3}, s[92:93]",
              f"  v_cndmask_b32 v{V_GB[r]}, v{t+4}, v{t+6}, s[94:95]"]
    return L
def global_bases(a, t=128):
    for l in global_bases_lines(t): a(l)
def x_load_line(k, r, i):
    col = COLS[i]
    base = V_GA[r] if col < 8 else V_GB[r]
    off = (col & 7) * 384 + k * 128
    dst = vr(XR[r] + 4 * i, 4) if r < 2 else f"a[{XA2+4*i}:{XA2+4*i+3}]"
    return f"  buffer_load_dwordx4 {dst}, v{base}, s[{S_X}:{S_X+3}], 0 offen offset:{off}"
class Fill:
    def __init__(self, a): self.a = a; self.hi = []; self.lo = []
    def push(self, lines, cost, tag=None, hi=False): (self.hi if hi else self.lo).append((lines, cost, tag))
    def emit1(self, g):
        for l in g[0]: self.a(l)
        if g[2] is not None: vm.add(g[2])
    def pop(self, budget, nhi=1):
        n = 0
        while self.hi and n < nhi:
            g = self.hi.pop(0); self.emit1(g); budget -= g[1]; n += 1
        while self.lo and budget >= self.lo[0][1] * 0.6:
            g = self.lo.pop(0); self.emit1(g); budget -= g[1]
    def flush(self, hi=True, lo=True, n=None):
        if hi:
            while self.hi: self.emit1(self.hi.pop(0))
        if lo:
            c = 0
            while self.lo and (n is None or c < n): self.emit1(self.lo.pop(0)); c += 1
def x_loads(a, k, r):
    for i in range(8): a(x_load_line(k, r, i))
    vm.add(('x', k, r), 8)
def stage_round(a, k, r, hook=None):
    src = XR[r] if r < 2 else XR[0]
    if r == 2:
        for e in range(32): a(f"  v_accvgpr_read_b32 v{XR[0]+e}, a{XA2+e}")
    for d in range(4):
        if hook and OPT['sord'] != 2: hook(d)
        T = PT[d & 1]
        lo = [f"  v_perm_b32 v{T+p}, v{src + 4*(2*p+1) + d}, v{src + 4*(2*p) + d}, s{S_LO}" for p in range(4)]
        hi = [f"  v_perm_b32 v{T+4+p}, v{src + 4*(2*p+1) + d}, v{src + 4*(2*p) + d}, s{S_HI}" for p in range(4)]
        w0 = f"  ds_write_b128 v{V_SW[r]}, {vr(T,4)} offset:{(2*d)*CS}"
        w1 = f"  ds_write_b128 v{V_SW[r]}, {vr(T+4,4)} offset:{(2*d+1)*CS}"
        if OPT['sord'] == 0:
            for l in lo + hi + [w0, w1]: a(l)
        elif OPT['sord'] == 1:
            for l in lo + [w0] + hi + [w1]: a(l)
        else:
            for l in lo + [w0] + hi: a(l)
            if hook: hook(d)
            a(w1)
def table_dma_ops(k):
    d = lambda q: f"  buffer_load_dwordx4 v{R.V_L16}, s[{S_TB}:{S_TB+3}], s{S_TG} offen offset:{1024*q} lds"
    return [
        [f"  s_lshl_b32 s{S_TM}, s{S_W}, 12", f"  s_add_u32 s{S_TG}, s{S_TM}, {k*16384}", f"  s_add_u32 m0, s{S_TM}, {TB[k&1]}", "  s_nop 0", d(0)],
        [d(1)], [d(2)], [d(3)],
    ]
def table_dma(a, k):
    for g in table_dma_ops(k):
        for l in g: a(l)
    vm.add(('t', k), 4)
NCH = 16
def conv_chunk(a, k, hook=None):
    def chan_off(i): j, e = i >> 3, i & 7; return j * OS + e * CS
    def tab_off(i): j, e = i >> 3, i & 7; return TB[k & 1] - TB[0] + j * 2048 + e * 256
    def rdA(i):
        A = AF[i & 1]
        return [f"  ds_read_b32 v{A}, v{V_T} offset:{tab_off(i)}", f"  ds_read_b32 v{A+4}, v{V_T} offset:{tab_off(i)+128}"]
    def rdB(i):
        B = BF[i % 3]
        return [f"  ds_read_b128 a[{B+4*q}:{B+4*q+3}], v{V_B} offset:{chan_off(i)+32*q}" for q in range(4)]
    for t in rdA(0) + rdB(0) + rdB(1): a(t)
    if OPT['zlate']: zero_D(a, k)
    for i in range(NCH):
        A = AF[i & 1]; B = BF[i % 3]
        kind, D = Dreg(k, i)
        Dt = f"{kind}[{D}:{D+3}]"
        nxtA = rdA(i + 1) if i + 1 < NCH else []
        nxtB = rdB(i + 2) if i + 2 < NCH else []
        a(f"  s_waitcnt lgkmcnt({4 if i + 1 < NCH else 0})")
        sm = [f"  v_smfmac_f32_16x16x64_bf16 {Dt}, {vr(A+4*h,4)}, a[{B+8*h}:{B+8*h+7}], v{V_IDX}" for h in range(2)]
        dp = [[f"  v_mov_b32_dpp v{A+4*h+1+g}, v{A+4*h} row_ror:{4*(g+1)} row_mask:0xf bank_mask:0xf" for g in range(3)] for h in range(2)]
        if OPT['cord'] == 0:
            for t in nxtA: a(t)
            for h in range(2):
                for t in dp[h]: a(t)
                rb = nxtB[2*h:2*h+2]
                for t in rb: a(t)
                if len(rb) < 2: a("  s_nop 1")
                a(sm[h])
        elif OPT['cord'] == 1:
            for t in dp[0] + dp[1]: a(t)
            a(sm[0])
            for t in nxtA + nxtB[:2]: a(t)
            if not (nxtA + nxtB[:2]): a("  s_nop 1")
            a(sm[1])
            for t in nxtB[2:]: a(t)
        elif OPT['cord'] == 2:
            for t in nxtA[:1]: a(t)
            for t in dp[0]: a(t)
            for t in nxtA[1:]: a(t)
            for t in dp[1]: a(t)
            a(sm[0])
            for t in nxtB[:2]: a(t)
            if not nxtB[:2]: a("  s_nop 1")
            a(sm[1])
            for t in nxtB[2:]: a(t)
        if hook: hook(i)
def zero_D(a, k):
    L = [f"  v_mov_b32 v{r}, 0" for r in range(44, 48)] + ["  s_nop 1"]
    for q in range(4):
        base = Darch(k, 4 * q)
        L.append(f"  v_mfma_f32_32x32x16_bf16 v[{base}:{base+15}], v[44:47], v[44:47], 0")
    for l in L: a(l)
def stats_lines(k, i):
    D = Darch(k, i)
    return [f"  v_pk_add_f32 v[16:17], v[16:17], v[{D}:{D+1}]", f"  v_pk_add_f32 v[18:19], v[18:19], v[{D+2}:{D+3}]",
            f"  v_pk_fma_f32 v[20:21], v[{D}:{D+1}], v[{D}:{D+1}], v[20:21]", f"  v_pk_fma_f32 v[22:23], v[{D+2}:{D+3}], v[{D+2}:{D+3}], v[22:23]"]
def move_lines(k, i):
    D = Darch(k, i); A = Dreg(k, i)[1]
    return [f"  v_accvgpr_read_b32 v{D+e}, a{A+e}" for e in range(4)]
def ln_phase(a, wdma, done3):
    if OPT['lin']:
        a(f"""  s_lshl_b32 s{S_T0}, s{S_W}, 5
  s_mul_i32 s{S_T1}, s{S_W}, {8*8*XPS + 4*16}
  v_add_u32 v12, s{S_T0}, v12
  v_add_u32 v13, s{S_T0}, v13
  v_add_u32 v14, s{S_T1}, v14
  v_add_u32 v15, s{S_T1}, v15""")
    a("  s_nop 7")
    for i in range(done3, NCH):
        for l in stats_lines(2, i): a(l)
    a(f"""  s_lshl_b32 s{S_T0}, s{S_W}, 11
  s_add_u32 s{S_T0}, s{S_T0}, {STATS}
  v_add_u32 v24, s{S_T0}, v{R.V_L16}
  v_add_u32 v25, {STATS}, v{R.V_L16}
  ds_write_b128 v24, v[16:19]
  ds_write_b128 v24, v[20:23] offset:1024
  s_waitcnt lgkmcnt(0)
  s_barrier""")
    for w in range(4):
        a(f"  ds_read_b128 v[{96+4*w}:{99+4*w}], v25 offset:{2048*w}")
    for w in range(4):
        a(f"  ds_read_b128 v[{28+4*w}:{31+4*w}], v25 offset:{2048*w+1024}")
    wl = Asm(); wdma(wl); wl = [l for l in wl.L]
    for l in wl[:8]: a(l)
    wl = wl[8:]
    a("  s_waitcnt lgkmcnt(4)")
    a("""  v_pk_add_f32 v[96:97], v[96:97], v[100:101]
  v_pk_add_f32 v[98:99], v[98:99], v[102:103]
  v_pk_add_f32 v[104:105], v[104:105], v[108:109]
  v_pk_add_f32 v[106:107], v[106:107], v[110:111]
  v_pk_add_f32 v[96:97], v[96:97], v[104:105]
  v_pk_add_f32 v[98:99], v[98:99], v[106:107]
  s_waitcnt lgkmcnt(0)
  v_pk_add_f32 v[28:29], v[28:29], v[32:33]
  v_pk_add_f32 v[30:31], v[30:31], v[34:35]
  v_pk_add_f32 v[36:37], v[36:37], v[40:41]
  v_pk_add_f32 v[38:39], v[38:39], v[42:43]
  v_pk_add_f32 v[28:29], v[28:29], v[36:37]
  v_pk_add_f32 v[30:31], v[30:31], v[38:39]""")
    a("  s_barrier        ; everybody has read the statistics: the exchange buffer may overwrite them")
    for r in range(4):
        a(f"  v_mul_f32 v{16+r}, s{S_INV}, v{96+r}")
    for r in range(4):
        a(f"  v_mul_f32 v{28+r}, s{S_INV}, v{28+r}")
    for r in range(4):
        a(f"  v_fma_f32 v{28+r}, -v{16+r}, v{16+r}, v{28+r}")
    for r in range(4):
        a(f"  v_max_f32 v{28+r}, 0, v{28+r}")
    for r in range(4):
        a(f"  v_add_f32 v{28+r}, s{S_EPS}, v{28+r}")
    for r in range(4):
        a(f"  v_rsq_f32 v{20+r}, v{28+r}")
    a("  s_nop 0")
    for r in range(4):
        a(f"  v_mul_f32 v{20+r}, s{R.S_S}, v{20+r}")
    for r in range(4):
        a(f"  v_mul_f32 v{24+r}, -v{16+r}, v{20+r}" .replace("v_mul_f32 v", "v_mul_f32_e64 v"))
    groups = [(k, j) for k in range(3) for j in range(2)]
    def fmas(g):
        k, j = groups[g]; L = []
        for e in range(8):
            D = Darch(k, 8 * j + e)
            L.append(f"  v_pk_fma_f32 v[{D}:{D+1}], v[{D}:{D+1}], v[20:21], v[24:25]")
            L.append(f"  v_pk_fma_f32 v[{D+2}:{D+3}], v[{D+2}:{D+3}], v[22:23], v[26:27]")
        return L
    for l in fmas(0): a(l)
    cnt = 0
    for g, (k, j) in enumerate(groups):
        Ds = [Darch(k, 8 * j + e) for e in range(8)]
        nxt = fmas(g + 1) if g + 1 < len(groups) else []
        for r in range(4):
            T = 32 + 4 * (cnt % 4); cnt += 1
            for e in range(4):
                a(f"  v_cvt_pk_bf16_f32 v{T+e}, v{Ds[2*e]+r}, v{Ds[2*e+1]+r}")
            a(f"  ds_write_b128 v{V_XW[r>>1]}, v[{T}:{T+3}] offset:{(r&1)*8*XPS + 128*k + 16*j}")
            for l in nxt[4*r:4*r+4]: a(l)
            n = 0
            while wl and n < 1:
                l = wl.pop(0); a(l); n += 1
                while wl and l.startswith("  s_"): l = wl.pop(0); a(l)
    for l in wl: a(l)
def w_dma_block(a, blk):
    S_G0 = 32
    for half, cnt in ((0, 4), (1, 2)):
        a(f"  s_add_u32 s{R.S_G}, s{S_G0}, {blk*BLK + 4096*half}\n{C.m0_set(blk, half)}\n  s_nop 0")
        for p in range(cnt):
            a(f"  buffer_load_dwordx4 v{R.V_L16}, s[{R.S_WS}:{R.S_WS+3}], s{R.S_G} offen offset:{1024*p} lds")
    if blk == 1: a(f"  s_add_u32 s{R.S_G}, s{S_G0}, {2*BLK}\n  s_add_u32 s{R.S_G2}, s{S_G0}, {2*BLK+4096}")
def phase_c(a):
    F = Fill(a)
    if OPT['lin']:
        a(f"  v_add_u32 v16, {SAVEOFF}, v{R.V_L16}\n  ds_read_b128 v[12:15], v16")
    for g in range(24):
        L, c = park_group(g); F.push(L if not OPT['nopark'] else ["  s_nop 0 ; cvt"] * 8, c)
    if OPT['r1late']:
        for i in range(8): F.push([x_load_line(0, 1, i)], 12, ('x', 0, 1), hi=True)
    if OPT['r2late']:
        for i in range(8): F.push([x_load_line(0, 2, i)], 12, ('x', 0, 2), hi=True)
    need_by = [8, 16, 24]
    for k in range(3):
        if OPT['ststage'] and k >= 1:
            if k == 1: F.push([f"  v_mov_b32 v{r}, 0" for r in range(16, 24)], 32)
            for i in range(NCH): F.push(stats_lines(k - 1, i), 16)
        for r in range(3):
            late = OPT['r2late'] and k == 0
            if r == 0 and not late: F.flush(hi=True, lo=False)
            if r >= 1 and late:
                for g in [g for g in F.hi if g[2] == ('x', 0, r)]: F.emit1(g)
                F.hi = [g for g in F.hi if g[2] != ('x', 0, r)]
            if r == 2 and OPT['skip2']:
                lab = f"fused_kernel_sk{k}"
                a(f"  s_cmp_ge_u32 s{S_W}, 2\n  s_cbranch_scc1 {lab}")
                a(f"  s_waitcnt vmcnt({vm.after(('x', k, r))})")
                rec = []
                def hk(d):
                    n0 = len(a.L); F.pop(OPT['sbud'], OPT['nhs']); rec.extend(a.L[n0:])
                stage_round(a, k, r, hk)
                a(f"{lab}_j:")
                OOL.append([f"{lab}:"] + rec + [f"  s_branch {lab}_j"])
            else:
                a(f"  s_waitcnt vmcnt({vm.after(('x', k, r))})")
                stage_round(a, k, r, lambda d: F.pop(OPT['sbud'], OPT['nhs'] if (r == 2 or (late and (r == 0 or OPT['r1late']))) else 0))
            if k < 2 and OPT['nox']:
                vm.add(('x', k + 1, r))
            if k < 2 and not OPT['nox']:
                if r == 1:
                    for i in range(8): F.push([x_load_line(k + 1, 1, i)], 12, ('x', k + 1, 1), hi=True)
                if r == 2:
                    F.hi = [([x_load_line(k + 1, 0, i)], 12, ('x', k + 1, 0)) for i in range(8)] + F.hi
                    for i in range(8): F.push([x_load_line(k + 1, 2, i)], 12, ('x', k + 1, 2), hi=True)
        parked = 24 - sum(1 for g in F.lo if 'cvt' in ''.join(g[0]))
        need = need_by[k] - parked
        while need > 0:
            g = F.lo.pop(0); F.emit1(g)
            if 'cvt' in ''.join(g[0]): need -= 1
        if not OPT['zlate']: zero_D(a, k)
        a(f"  s_waitcnt vmcnt({vm.after(('t', k))}) lgkmcnt(0)")
        a("  s_barrier")
        if k == 1: table_dma(a, 2)
        if k == 2 and OPT['w0early']:
            wl = Asm(); w_dma_block(wl, 0); w_dma_block(wl, 1)
            grp = []
            for l in wl.L:
                grp.append(l)
                if 'buffer_load' in l:
                    F.push(grp, 12, ('w', 0), hi=True); grp = []
            if grp: F.push(grp, 8, None, hi=True)
        if not OPT['ststage']:
            if k == 1:
                F.flush(hi=False, lo=True)
                F.push([f"  v_mov_b32 v{r}, 0" for r in range(16, 24)], 32)
                for i in range(NCH): F.push(stats_lines(0, i), OPT['stc'])
            if k == 2:
                for i in range(NCH): F.push(stats_lines(1, i), OPT['stc'])
        stamp(a)
        def hook(i, k=k):
            if k == 2 and i >= 3 and OPT['st3']:
                for l in stats_lines(2, i - 3): a(l)
            F.pop(OPT['cbud'] if not OPT['ststage'] else OPT['cbud2'], OPT['nhi'])
        conv_chunk(a, k, hook)
        if k < 2: a("  s_barrier")
        stamp(a)
    F.flush()
    ln_phase(a, (lambda x: None) if OPT['w0early'] else (lambda x: w_dma_block(x, 0)), NCH - 3 if OPT['st3'] else 0)
    a(f"  s_waitcnt vmcnt({vm.after(('w', 0)) if False else 0}) lgkmcnt(0)\n  s_barrier")
    if OPT['jith']:
        for i in range(CFG['D']):
            a(C.ds_text(i, 0, i))
            for blk in range(2): a(f"  ds_read_b128 {Hf(blk,i)}, v{V_XR[blk]} offset:{32*i}")
        a(f"  s_waitcnt lgkmcnt({3*(CFG['D']-1)})")
        return
    for i in range(CFG['D']): a(C.ds_text(i, 0, i))
    for s in range(12):
        for blk in range(2):
            a(f"  ds_read_b128 {Hf(blk,s)}, v{V_XR[blk]} offset:{32*s}")
    a(f"  s_waitcnt lgkmcnt({15 if OPT['hprog'] else 0})")
EPI_ORDER = [(0, s_) for s_ in range(12)] + [(1, s_) for s_ in range(12)]
def quad(blk, sI): return PARK + 4 * (blk * 12 + sI)
def epi_cvt(blk, sI, p, bounce):
    b = sI >> 1
    kind, r0 = ACCreg(blk, b); r0 += 8 * (sI & 1)
    L = []
    if kind == 'a':
        for e in range(8): L.append(f"  v_accvgpr_read_b32 v{bounce+e}, a{r0+e}")
        r0 = bounce
    L += [f"  v_cvt_pk_bf16_f32 v{p}, v{r0}, v{r0+1}", f"  v_cvt_pk_bf16_f32 v{p+1}, v{r0+2}, v{r0+3}",
          f"  v_cvt_pk_bf16_f32 v{p+2}, v{r0+4}, v{r0+5}", f"  v_cvt_pk_bf16_f32 v{p+3}, v{r0+6}, v{r0+7}"]
    return L
def park_group(g):
    blk, sI = EPI_ORDER[g]
    kind, _ = ACCreg(blk, sI >> 1)
    p = 16 if kind == 'a' else 16 + 4 * (g & 1)
    L = epi_cvt(blk, sI, p, 16)
    q = quad(blk, sI)
    L += [f"  v_accvgpr_write_b32 a{q+e}, v{p+e}" for e in range(4)]
    return L, (32 + (32 if kind == 'a' else 0))
def store_parked(i, spx):
    blk, sI = i // 12, i % 12
    q = quad(blk, sI)
    return f"  buffer_store_dwordx4 a[{q}:{q+3}], v{V_PX[blk]}, s[{S_OUT}:{S_OUT+3}], s{spx} offen offset:{32*sI}{['', ' nt', ' sc1', ' sc0 sc1'][OPT['stnt']]}"
class Epi:
    def __init__(self, a): self.a = a; self.g = 0
    def emit(self, n=1):
        pass
def epilogue(a):
    if not OPT['linfin']:
        for g in range(24):
            blk, sI = g // 12, g % 12
            p = 16 + 4 * (g & 1)
            for t in epi_cvt(blk, sI, p, 40): a(t)
            a(f"  buffer_store_dwordx4 {vr(p,4)}, v{V_PX[blk]}, s[{S_OUT}:{S_OUT+3}], s{S_PXO} offen offset:{32*sI}")
        return
    REG = 73728
    a("  s_waitcnt vmcnt(0)")
    a(f"""  s_mul_i32 s{S_T0}, s{S_W}, 12800
  s_add_u32 s{S_T0}, s{S_T0}, {REG}
  v_and_b32 v24, 31, v{V_LANE}
  v_mul_u32_u24 v24, 400, v24
  v_lshrrev_b32 v25, 5, v{V_LANE}
  v_lshl_add_u32 v24, v25, 4, v24
  v_add_u32 v24, s{S_T0}, v24
  s_mov_b32 s{S_T1}, {(2**32 + 23)//24}""")
    for q in range(3):
        a(f"""  v_add_u32 v28, {64*q}, v{V_LANE}
  v_mul_hi_u32 v29, v28, s{S_T1}
  v_add_lshl_u32 v28, v28, v29, 4
  v_add_u32 v{25+q}, s{S_T0}, v28""")
    a(f"""  s_lshl_b32 s86, s{S_W}, 3
  s_mul_i32 s86, s86, {512*384}
  s_add_u32 s86, s86, s{S_PXO}""")
    for blk in range(2):
        for sI in range(12):
            p = 32 + 4 * (sI & 3)
            for t in epi_cvt(blk, sI, p, 16): a(t)
            a(f"  ds_write_b128 v24, {vr(p,4)} offset:{32*sI}")
        a("  s_waitcnt lgkmcnt(0)")
        for q in range(12):
            a(f"  ds_read_b128 {vr(48+4*q+48*(blk&0),4)}, v{25+q%3} offset:{3200*(q//3)}")
        for q in range(12):
            a(f"  s_waitcnt lgkmcnt({11-q})")
            if q % 3 == 0 and (q or blk): a(f"  s_add_u32 s86, s86, {512*384}")
            a(f"  buffer_store_dwordx4 {vr(48+4*q,4)}, v{R.V_L16}, s[{S_OUT}:{S_OUT+3}], s86 offen offset:{1024*(q%3)}")
        if blk == 0: a("  s_nop 1")
def gen_fused(a, name="fused_kernel", nwg=256):
    CFG['accinit'] = 1
    a(kstart(name))
    h16 = lambda x: int(np.float16(x).view(np.uint16))
    a(f"""
  s_cmp_ge_u32 s2, {nwg}
  s_cbranch_scc1 {name}_done
  s_load_dwordx2 s[48:49], s[0:1], 0       ; x
  s_load_dwordx2 s[50:51], s[0:1], 32      ; out
  s_load_dwordx2 s[38:39], s[0:1], 48      ; ws
  v_lshrrev_b32 v1, 6, v0
  v_and_b32 v{V_LANE}, 63, v0
  s_nop 0
  v_readfirstlane_b32 s{S_W}, v1
  v_lshlrev_b32 v{R.V_L16}, 4, v{V_LANE}
""")
    a(f"""
  s_waitcnt lgkmcnt(0)
  s_mov_b32 s{R.S_WS}, s38
  s_and_b32 s{R.S_WS+1}, s39, 0xffff
  s_mov_b32 s{R.S_WS+2}, {NBLK*BLK}
  s_mov_b32 s{R.S_WS+3}, 0x20000
  s_add_u32 s{S_TB}, s38, {TBL_OFF}
  s_addc_u32 s{S_TB+1}, s39, 0
  s_and_b32 s{S_TB+1}, s{S_TB+1}, 0xffff
  s_mov_b32 s{S_TB+2}, {TBL_BYTES}
  s_mov_b32 s{S_TB+3}, 0x20000
  s_mov_b32 s{S_X}, s48
  s_and_b32 s{S_X+1}, s49, 0xffff
  s_mov_b32 s{S_X+2}, {NPX*384}
  s_mov_b32 s{S_X+3}, 0x20000
  s_mov_b32 s{S_OUT}, s50
  s_and_b32 s{S_OUT+1}, s51, 0xffff
  s_mov_b32 s{S_OUT+2}, {NPX*384}
  s_mov_b32 s{S_OUT+3}, 0x20000
  s_mov_b32 s{R.S_NA}, {hex(f2u(-GA))}
  s_mov_b32 s{R.S_S}, {hex(f2u(GS))}
  s_mov_b32 s85, {hex(f2u(GS * (1.0 - OPT['bias'] / 1000.0)))}
  s_mov_b32 s{R.S_NAH}, {hex(h16(-GA) | (h16(-GA) << 16))}
  s_mov_b32 s{R.S_SH}, {hex(h16(GS) | (h16(GS) << 16))}
  s_mov_b32 s{S_LO}, 0x05040100
  s_mov_b32 s{S_HI}, 0x07060302
  s_mov_b32 s{S_EPS}, {hex(f2u(1e-5))}
  s_mov_b32 s{S_INV}, {hex(f2u(1.0/192))}
  s_mul_i32 s{S_G0}, s{S_W}, 6144
""")
    for s in range(3):
        a(f"  s_add_u32 s{R.S_M[2*s]}, s{S_G0}, {s*BLK}")
        a(f"  s_add_u32 s{R.S_M[2*s+1]}, s{S_G0}, {s*BLK + 4096}")
    if OPT['prof'] or OPT['dumph']:
        a(f"""  s_add_u32 s44, s38, {STAMP_OFF}
  s_addc_u32 s45, s39, 0
  s_and_b32 s45, s45, 0xffff
  s_mov_b32 s46, {256*4*512}
  s_mov_b32 s47, 0x20000
  s_lshl_b32 s40, s2, 2
  s_add_u32 s40, s40, s{S_W}
  s_lshl_b32 s40, s40, 9
  s_add_u32 s52, s38, {H_OFF}
  s_addc_u32 s53, s39, 0
  s_and_b32 s53, s53, 0xffff
  s_mov_b32 s54, {NPX*384}
  s_mov_b32 s55, 0x20000""")
    stamp(a, True)
    a(f"  s_mov_b32 s{S_I}, 0")
    tile_coords(a)
    global_bases(a)
    table_dma(a, 0); table_dma(a, 1)
    x_loads(a, 0, 0)
    if not OPT['r1late']: x_loads(a, 0, 1)
    if not OPT['r2late']: x_loads(a, 0, 2)
    npf = 0
    if OPT['spf']:
        a(f"""  s_lshl_b32 s{S_T0}, s{S_TY}, 5
  s_sub_u32 s{S_T0}, s{S_T0}, 3
  s_max_i32 s{S_T0}, s{S_T0}, 0
  s_add_u32 s{S_T0}, s{S_T0}, s{S_W}
  s_lshl_b32 s{S_T0}, s{S_T0}, 9
  s_lshl_b32 s{S_T1}, s{S_TX}, 3
  s_sub_u32 s{S_T1}, s{S_T1}, 4
  s_max_i32 s{S_T1}, s{S_T1}, 0
  s_add_u32 s{S_T0}, s{S_T0}, s{S_T1}
  s_mul_i32 s{S_PF}, s{S_T0}, 384
  v_min_u32 v{V_TMP}, 47, v{V_LANE}
  v_lshlrev_b32 v{V_TMP}, 7, v{V_TMP}
  s_mov_b32 m0, {PFSCR}
  s_lshr_b32 s{S_T0}, s2, 3
  s_lshl_b32 s{S_T0}, s{S_T0}, 2
  s_add_u32 s{S_T0}, s{S_T0}, s{S_W}
  s_mul_i32 s{S_T0}, s{S_T0}, 5120
  v_lshlrev_b32 v16, 6, v{V_LANE}
  buffer_load_dword v16, s[{R.S_WS}:{R.S_WS+3}], s{S_T0} offen lds
  buffer_load_dword v16, s[{R.S_WS}:{R.S_WS+3}], s{S_T0} offen offset:1024 lds""")
        npf = 2
        for idx in range(20):
            a(f"  buffer_load_dword v{V_TMP}, s[{S_X}:{S_X+3}], s{S_PF} offen offset:{64*(idx&1)} lds")
            if idx & 1: a(f"  s_add_u32 s{S_PF}, s{S_PF}, {4*512*384}")
            npf += 1
    if OPT['wpf']:
        a(f"""  s_mov_b32 m0, {PFSCR}
  s_lshr_b32 s{S_T0}, s2, 3
  s_lshl_b32 s{S_T0}, s{S_T0}, 2
  s_add_u32 s{S_T0}, s{S_T0}, s{S_W}
  s_mul_i32 s{S_T0}, s{S_T0}, 5120
  v_lshlrev_b32 v16, 6, v{V_LANE}
  buffer_load_dword v16, s[{R.S_WS}:{R.S_WS+3}], s{S_T0} offen lds
  buffer_load_dword v16, s[{R.S_WS}:{R.S_WS+3}], s{S_T0} offen offset:1024 lds""")
        npf += 2
    if OPT['cpf']:
        a(f"""  s_getpc_b64 s[88:89]
{{CODEBASE}}:
  v_lshlrev_b32 v17, 7, v{V_LANE}
  s_lshl_b32 s{S_T0}, s{S_W}, 13
  v_add_u32 v17, s{S_T0}, v17""".replace("{CODEBASE}", "fused_kernel_pc"))
        for q in range(3):
            a(f"  v_min_u32 v18, fused_kernel_done-fused_kernel_pc, v17")
            a(f"  global_load_dword v{120+q}, v18, s[88:89]")
            a(f"  v_add_u32 v17, {4*8192}, v17")
            npf += 1
    a(f"""
  v_add_u32 v{R.V_L16B}, {C.RB if CFG['ring5'] else 2*BLK}, v{R.V_L16}
  v_and_b32 v16, 31, v{V_LANE}             ; n
  v_lshrrev_b32 v17, 5, v{V_LANE}          ; hf
  v_lshrrev_b32 v18, 3, v16
  v_and_b32 v19, 7, v16
  s_lshl_b32 s{S_T0}, s{S_W}, 3
  v_add_u32 v18, s{S_T0}, v18
  v_lshl_add_u32 v20, v18, 9, v19
  s_movk_i32 s{S_T1}, 384
  v_mul_lo_u32 v20, v20, s{S_T1}
  v_lshl_add_u32 v{V_PX[0]}, v17, 4, v20
  v_add_u32 v{V_PX[1]}, {4*512*384}, v{V_PX[0]}
  v_lshl_add_u32 v20, v18, 3, v19
  s_movk_i32 s{S_T1}, {XPS}
  v_mul_lo_u32 v20, v20, s{S_T1}
  v_lshrrev_b32 v21, 1, v18                ; row>>1
  v_add_u32 v21, v21, v17                  ; + hf
  v_lshl_add_u32 v20, v21, 4, v20
  v_add_u32 v{V_XR[0]}, {XCH}, v20
  v_add_u32 v{V_XR[1]}, {XCH + 32*XPS + 32}, v20
  v_and_b32 v18, 0x13, v16
  v_bfe_u32 v19, v16, 2, 1
  v_lshl_or_b32 v18, v19, 3, v18
  v_bfe_u32 v19, v16, 3, 1
  v_lshl_or_b32 v18, v19, 2, v18
  v_lshlrev_b32 v19, 3, v17
  v_sub_u32 v18, v18, v19                  ; c(m) - 8hf
""")
    for d in range(4):
        for (base, reg) in ((0, 112), (16, 116)):
            a(f"""  v_cmp_eq_u32 vcc, {base+2*d}, v18
  v_mov_b32 v19, 0x3f80
  s_nop 1
  v_cndmask_b32 v20, 0, v19, vcc
  v_cmp_eq_u32 vcc, {base+2*d+1}, v18
  v_mov_b32 v19, 0x3f800000
  s_nop 1
  v_cndmask_b32 v21, 0, v19, vcc
  v_or_b32 v{reg+d}, v20, v21""")
    a(f"""  v_add_u32 v20, {IDOFF}, v{R.V_L16}
  ds_write_b128 v20, v[112:115]
  ds_write_b128 v20, v[116:119] offset:1024
  v_and_b32 v16, 15, v{V_LANE}             ; nh
  v_lshrrev_b32 v17, 4, v{V_LANE}          ; q
  v_lshrrev_b32 v18, 1, v17
  v_mul_u32_u24 v18, {PLANE}, v18
  v_lshl_add_u32 v18, v16, 5, v18
  v_and_b32 v19, 1, v17
  v_lshl_add_u32 v18, v19, 4, v18
  s_mul_i32 s{S_T0}, s{S_W}, {2*OS}
  s_add_u32 s{S_T0}, s{S_T0}, {SB}
  v_add_u32 v{V_B}, s{S_T0}, v18
  v_and_b32 v18, 1, v16                    ; mh
  v_bfe_u32 v19, v16, 1, 1                 ; par
  v_lshrrev_b32 v20, 2, v16                ; k'
  v_sub_u32 v21, v17, v18
  v_add_u32 v21, 1, v21
  v_lshlrev_b32 v21, 5, v21
  v_lshl_add_u32 v21, v19, 4, v21
  v_sub_u32 v22, 0, v20
  v_and_b32 v22, 3, v22
  v_lshl_add_u32 v21, v22, 2, v21
  s_lshl_b32 s{S_T0}, s{S_W}, 12
  s_add_u32 s{S_T0}, s{S_T0}, {TB[0]}
  v_add_u32 v{V_T}, s{S_T0}, v21
  v_lshlrev_b32 v21, 1, v20                ; 2k'
  v_add_u32 v22, 1, v21                    ; O: 2k'+1
  v_cmp_eq_u32 vcc, 0, v20
  v_mov_b32 v23, 8
  s_nop 1
  v_cndmask_b32 v21, v21, v23, vcc         ; E
  v_cmp_eq_u32 vcc, 1, v19
  s_nop 1
  v_cndmask_b32 v21, v22, v21, vcc         ; s
  v_mov_b32 v{V_IDX}, 0x4444
""")
    for g in range(4):
        a(f"""  v_cmp_le_u32 vcc, {2*g+2}, v21
  v_mov_b32 v22, {0xA << (4*g)}
  s_nop 1
  v_cndmask_b32 v22, 0, v22, vcc
  v_or_b32 v{V_IDX}, v{V_IDX}, v22""")
    a(f"""
  v_lshlrev_b32 v18, 4, v16                ; 2nh*8
  v_lshlrev_b32 v19, 1, v17                ; 2q'
  v_lshlrev_b32 v20, 4, v16
  s_lshl_b32 s{S_T0}, s{S_W}, 5
  s_add_u32 s{S_T0}, s{S_T0}, {XCH}
  v_add_u32 v20, s{S_T0}, v20
  s_movk_i32 s{S_T1}, {XPS}
  v_add_u32 v21, v18, v19
  v_mul_lo_u32 v21, v21, s{S_T1}
  v_add_u32 v{V_XW[0]}, v21, v20
  v_add_u32 v19, 7, v19
  v_and_b32 v19, 7, v19
  v_add_u32 v21, v18, v19
  v_mul_lo_u32 v21, v21, s{S_T1}
  v_add_u32 v{V_XW[1]}, v21, v20
""")
    a(f"  v_mov_b32 v20, 0\n  v_mov_b32 v21, {ZROW}\n  v_lshl_add_u32 v21, v{V_LANE}, 0, v21\n  v_and_b32 v22, 15, v{V_LANE}\n  v_lshlrev_b32 v22, 2, v22\n  v_add_u32 v22, {ZROW}, v22\n  ds_write_b32 v22, v20")
    for r in range(3):
        a(f"""  s_lshl_b32 s{S_T0}, s{S_W}, 6
  s_add_u32 s{S_T0}, s{S_T0}, {256*r}
  v_add_u32 v16, s{S_T0}, v{V_LANE}
  s_movk_i32 s{S_T1}, 608
  v_cmp_gt_u32 vcc, s{S_T1}, v16
  v_subrev_u32 v17, 32, v16
  s_nop 1
  v_cndmask_b32 v16, v17, v16, vcc
  v_and_b32 v18, 7, v16                        ; o
  v_lshrrev_b32 v19, 4, v16                    ; row
  v_bfe_u32 v20, v16, 3, 1                     ; u
  v_mul_u32_u24 v18, {OS}, v18
  v_and_b32 v21, 1, v19
  v_mul_u32_u24 v21, {PLANE}, v21
  v_lshrrev_b32 v19, 1, v19
  v_lshl_add_u32 v21, v19, 5, v21
  v_lshl_add_u32 v21, v20, 4, v21
  v_add_u32 v21, v21, v18
  v_add_u32 v{V_SW[r]}, {SB}, v21""")
    a(f"  s_waitcnt vmcnt({npf})")
    a(f"  s_mov_b32 s{S_PXP}, 0x80000000")
    a(f"{name}_tile:")
    a(f"  s_mov_b32 s{S_PXO}, s{S_PXN}")
    stamp(a, True)
    phase_c(a)
    stamp(a)
    if OPT['dumph']:
        for blk in range(2):
            for s in range(12):
                a(f"  buffer_store_dwordx4 {Hf(blk,s)}, v{V_PX[blk]}, s[52:55], s{S_PXO} offen offset:{32*s}")
        a("  s_waitcnt vmcnt(6)" if False else "  s_waitcnt vmcnt(0)")
    core = Core(a)
    if OPT['jith']: core.jit_reads = lambda t: [f"  ds_read_b128 {Hf(blk,t)}, v{V_XR[blk]} offset:{32*t}" for blk in range(2)]
    tc = Asm()
    tc(f"  s_add_u32 s{S_I}, s{S_I}, 1")
    tile_coords(tc)
    tc(f"""  s_lshl_b32 s{S_T0}, s{S_TY}, 5
  s_sub_u32 s{S_T0}, s{S_T0}, 3
  s_max_i32 s{S_T0}, s{S_T0}, 0
  s_add_u32 s{S_T0}, s{S_T0}, s{S_W}
  s_lshl_b32 s{S_T0}, s{S_T0}, 9
  s_lshl_b32 s{S_T1}, s{S_TX}, 3
  s_sub_u32 s{S_T1}, s{S_T1}, 4
  s_max_i32 s{S_T1}, s{S_T1}, 0
  s_add_u32 s{S_T0}, s{S_T0}, s{S_T1}
  s_mul_i32 s{S_PF}, s{S_T0}, 384
  s_cmp_ge_u32 s{S_I}, 4
  s_cselect_b32 s{S_PF}, 0x80000000, s{S_PF}""")
    tcl = [(l, 4) for l in tc.L]
    ex0 = [(f"  v_min_u32 v{V_TMP}, 47, v{V_LANE}", 4), (f"  v_lshlrev_b32 v{V_TMP}, 7, v{V_TMP}", 4)]
    if OPT['w1late']:
        wl = Asm(); w_dma_block(wl, 1)
        ex0 = [(l, 10 if 'buffer' in l else 4) for l in wl.L] + ex0
    ex0 = ex0 + tcl[:-2] + [(tcl[-2][0] + "\n" + tcl[-1][0], 8)]
    core.extra[0] = ex0
    core.fast_flush = {0}
    core.vmwait[0] = 0
    core.vmwait[1] = 0
    stplan = {}; xplan = {}
    xg = OPT['xg']
    lin = OPT['lin']
    S_SR = 76; S_SX = 77
    linops = {}
    if lin:
        ex0b = f"""  s_mul_i32 s86, s{S_W}, 12800
  s_add_u32 s86, s86, {TREG}
  v_and_b32 v12, 31, v{V_LANE}
  v_mul_u32_u24 v12, 400, v12
  v_lshrrev_b32 v16, 5, v{V_LANE}
  v_lshl_add_u32 v12, v16, 4, v12
  v_add_u32 v12, s86, v12
  s_mov_b32 s87, {(2**32 + 23)//24}""".split("\n")
        for q in range(3):
            ex0b += [f"  v_add_u32 v16, {64*q}, v{V_LANE}", f"  v_mul_hi_u32 v17, v16, s87", f"  v_add_lshl_u32 v16, v16, v17, 4", f"  v_add_u32 v{13+q}, s86, v16"]
        ex0b += [f"  s_lshl_b32 s{S_SR}, s{S_W}, 3", f"  s_mul_i32 s{S_SR}, s{S_SR}, {512*384}", f"  s_add_u32 s{S_SX}, s{S_SR}, s{S_PXO}", f"  s_add_u32 s{S_SR}, s{S_SR}, s{S_PXP}"]
        core.extra[0] = core.extra[0] + [(l, 4) for l in ex0b]
        def AQ(blk, q): r = quad(blk, q); return f"a[{r}:{r+3}]"
        for blk in range(2):
            core.lds_extra[1 + 3 * blk] = [f"  ds_write_b128 v12, {AQ(blk,q)} offset:{32*q}" for q in range(12)]
            core.lds_extra[2 + 3 * blk] = [f"  ds_read_b128 {AQ(blk,q)}, v{13+q%3} offset:{3200*(q//3)}" for q in range(12)]
            if lin == 1:
                core.lds_extra[10 + 4 * blk] = [f"  ds_write_b128 v{13+q%3}, {AQ(blk,q)} offset:{3200*(q//3)}" for q in range(12)]
                core.lds_extra[11 + 4 * blk] = [f"  ds_read_b128 {AQ(blk,q)}, v12 offset:{32*q}" for q in range(12)]
        def st(blk, q):
            L = [f"  buffer_store_dwordx4 {AQ(blk,q)}, v{R.V_L16}, s[{S_OUT}:{S_OUT+3}], s{S_SR} offen offset:{1024*(q%3)}"]
            if q % 3 == 2: L.append(f"  s_add_u32 s{S_SR}, s{S_SR}, {512*384}")
            return (L, 6)
        def xl(blk, q):
            L = [f"  buffer_load_dwordx4 {AQ(blk,q)}, v{R.V_L16}, s[{S_X}:{S_X+3}], s{S_SX} offen offset:{1024*(q%3)}"]
            if q % 3 == 2: L.append(f"  s_add_u32 s{S_SX}, s{S_SX}, {512*384}")
            return (L, 6)
        linops = {2: [st(0, q) for q in range(6)], 3: [st(0, q) for q in range(6, 12)], 4: [xl(0, q) for q in range(6)],
                  5: [st(1, q) for q in range(6)], 6: [st(1, q) for q in range(6, 12)], 7: [xl(0, q) for q in range(6, 12)],
                  10: [xl(1, q) for q in range(6)], 11: [xl(1, q) for q in range(6, 12)]}
        if lin == 2:
            for j_ in (4, 7, 10, 11): del linops[j_]
            for g, j_ in enumerate([4, 7, 8, 9, 10, 11, 12, 14, 16, 18, 20, 22]): xplan[j_] = [2 * g, 2 * g + 1]
        if lin == 3:
            core.lds_extra.pop(1); core.lds_extra.pop(2); core.lds_extra.pop(4); core.lds_extra.pop(5)
            for blk in range(2):
                core.lds_extra[10 + 4 * blk] = [f"  ds_write_b128 v{13+q%3}, {AQ(blk,q)} offset:{3200*(q//3)}" for q in range(12)]
                core.lds_extra[11 + 4 * blk] = [f"  ds_read_b128 {AQ(blk,q)}, v12 offset:{32*q}" for q in range(12)]
            linops = {7: [xl(0, q) for q in range(6)], 8: [xl(0, q) for q in range(6, 12)] , 12: [xl(1, q) for q in range(6)], 13: [xl(1, q) for q in range(6, 12)]}
            core.lds_extra[11] = core.lds_extra.pop(10); core.lds_extra[12] = [f"  ds_read_b128 {AQ(0,q)}, v12 offset:{32*q}" for q in range(12)]
            core.lds_extra[16] = core.lds_extra.pop(14); core.lds_extra[17] = [f"  ds_read_b128 {AQ(1,q)}, v12 offset:{32*q}" for q in range(12)]
            core.lds_extra.pop(15, None)
            for g in range(12): stplan[1 + g] = [2 * g, 2 * g + 1]
    elif xg == 4:
        for g in range(6):
            stplan[1 + 4 * g] = [4 * g + e for e in range(4)]
            xplan[2 + 4 * g] = [4 * g + e for e in range(4)]
    elif xg == 2:
        for g in range(12): stplan[1 + g] = [2 * g, 2 * g + 1]
        for g in range(12): xplan[[2, 4, 6, 8, 10, 12, 14, 16, 18, 20, 21, 22][g]] = [2 * g, 2 * g + 1]
    elif xg == 1:
        for g in range(12): stplan[1 + g] = [2 * g, 2 * g + 1]
        for q in range(24): xplan.setdefault(2 + (q * 21) // 24, []).append(q)
    perj = {}
    for j in range(1, 24):
        ops = []; nv = 0
        for g in linops.get(j, []):
            ops.append(g); nv += 1
        for q in stplan.get(j, []):
            ops.append(([store_parked(q, S_PXP)], 6)); nv += 1
        for q in xplan.get(j, []):
            blk, sI = q // 12, q % 12
            ops.append(([f"  buffer_load_dwordx4 {Xf(blk,sI)}, v{V_PX[blk]}, s[{S_X}:{S_X+3}], s{S_PXO} offen offset:{32*sI} {['', 'nt', 'sc1', 'sc0 sc1'][OPT['xf']]}"], 6)); nv += 1
        if j in ((8, 9) if OPT['lin'] else (4, 6)):
            for gi_, g in enumerate(table_dma_ops(0 if j in (4, 8) else 1)):
                ops.append((g, 6 + 4 * (len(g) - 1))); nv += 1
        if OPT['pf'] and j < 23:
            npf_ = 20 if OPT['pfh'] else 10
            step = OPT['pfs']; first = 23 - npf_ * step
            if j >= first and (j - first) % step == 0:
                idx = (j - first) // step
                t = [f"  s_mov_b32 m0, {PFSCR}", "  s_nop 0", f"  buffer_load_dword v{V_TMP}, s[{S_X}:{S_X+3}], s{S_PF} offen offset:{64 * (idx & 1) if OPT['pfh'] else 0} {['', 'nt', 'sc1', 'sc0 sc1'][OPT['pff']]} lds"]
                if (idx & 1) or not OPT['pfh']: t.append(f"  s_add_u32 s{S_PF}, s{S_PF}, {4*512*384}")
                ops.append((t, 14)); nv += 1
        perj[j] = (ops, nv)
    if CFG['ring5']:
        for j in range(1, 24, 2):
            o1, n1 = perj.get(j, ([], 0)); o2, n2 = perj.get(j + 1, ([], 0))
            core.pend_extra[j] = (o1, o2)
            core.vmwait[j + 2] = n2
    else:
        for j in range(1, 24):
            core.pend_extra[j] = perj[j][0]; core.vmwait[j + 1] = perj[j][1]
    core.extra[23] = []
    core.extra[24] = [(f"  v_add_u32 v56, {IDOFF}, v{R.V_L16}", 4), (f"  ds_read_b128 v[48:51], v56", 8), (f"  ds_read_b128 v[52:55], v56 offset:1024", 8)]
    ps = []
    for blk in range(2):
        for sI in range(12):
            ps.append((f"  v_mfma_f32_32x32x16_bf16 {ACC(blk,sI>>1)}, {vr(52 if sI&1 else 48,4)}, {Xf(blk,sI)}, {ACC(blk,sI>>1)}", []))
    if CFG['ring5']: ps[0] = (ps[0][0], ["  s_waitcnt vmcnt(0)"])
    core.pseudo[24] = ps
    core.extra_first.add(24)
    core.no_barrier.add(25)
    if not CFG['ring5']: core.vmwait[24] = 0
    core.emit(0, 1); core.emit(1, 2)
    if OPT['prof'] >= 2:
        a(f"  v_mov_b32 v47, v{V_TMP}"); stamp(a); a(f"  v_mov_b32 v{V_TMP}, v47")
    for j in range(2, 24): core.emit(j, j + 1)
    if OPT['prof'] >= 2: stamp(a)
    core.emit(24, 25)
    if OPT['prof'] >= 2: stamp(a)
    if OPT['wb']:
        a(f"""  s_cmp_lt_u32 s{S_I}, 4
  s_cbranch_scc1 {name}_nowb
  s_cmp_ge_u32 s2, {8 if OPT['wb'] == 1 else 256}
  s_cbranch_scc1 {name}_nowb
  s_cmp_lg_u32 s{S_W}, 0
  s_cbranch_scc1 {name}_nowb
  buffer_wbl2 sc1
{name}_nowb:""")
    emit_tail(a, core)
    stamp(a)
    a(f"""  s_cmp_ge_u32 s{S_I}, 4
  s_cbranch_scc1 {name}_last""")
    a("  s_barrier")
    a(f"  s_mov_b32 s{S_PXP}, s{S_PXO}")
    stamp(a)
    a(f"  s_branch {name}_tile")
    a(f"{name}_last:")
    a("  s_nop 15")
    epilogue(a)
    stamp(a)
    a("  s_waitcnt vmcnt(0)")
    stamp(a, True)
    a(f"""  s_waitcnt vmcnt(0)
{name}_done:
  s_endpgm
""")
    for blk in OOL:
        for l in blk: a(l)
    a(kdesc(name, 512, 100, 256))
def emit_loop(a, self, name):
    for j in range(2, 25): self.emit(j, j + 1)
def emit_tail(a, core):
    ch, Pf = core.plan(25, None)
    main = [l for c in ch for l in c]
    for tx, c in core.pending: main += tx
    core.pending = []
    f = []
    f += global_bases_lines(96)
    f += [x_load_line(0, 0, i) for i in range(8)]
    if not OPT['r1late']: f += [x_load_line(0, 1, i) for i in range(8)]
    if not OPT['r2late']: f += [x_load_line(0, 2, i) for i in range(8)]
    fi = 0
    nm = sum(1 for l in main if "v_mfma" in l); per = -(-len(f) // nm)
    for l in main:
        a(l)
        if "v_mfma" in l:
            for _ in range(per):
                if fi < len(f): a(f[fi]); fi += 1
    while fi < len(f): a(f[fi]); fi += 1
    vm.ops.clear(); vm.add(('t', 0), 4); vm.add(('t', 1), 4); vm.add(('x', 0, 0), 8)
    if not OPT['r1late']: vm.add(('x', 0, 1), 8)
    if not OPT['r2late']: vm.add(('x', 0, 2), 8)
```

```python
from asmlib import *
import mlpcore as C
from mlpcore import R, ACC, ACCreg, Hf, WFr, Core, BLK, NBLK, CFG
from k_prep2 import TBL_OFF, TBL_BYTES
import numpy as np
OS = 9744; CS = 1216; PLANE = 608
SB = 49152
TB = [SB + 8 * OS, SB + 8 * OS + 16384]
ZROW = TB[1] + 16384
XCH = 49152; XPS = 416
STATS = TB[1] + 1024
IDOFF = ZROW + 64
PFSCR = IDOFF + 2048
LDS_BYTES = PFSCR + 256
TREG = 73728
SAVEOFF = 0
assert XCH + 106736 <= IDOFF and LDS_BYTES <= 163840 and STATS + 8192 <= ZROW
V_LANE = 0
V_SW = [1, 2, 9]
V_TMP = 3
V_PX = [6, 7]
V_B = 8
V_T = 10
V_IDX = 11
V_XW = [12, 13]
V_XR = [14, 15]
V_GA = [24, 26, 30]; V_GB = [25, 27, 31]
AF = [32, 40]
XR = [48, 80]
XA2 = 96
PT = [32, 40]
def Darch(k, i):
    idx = 16 * k + i
    return 112 + 4 * idx if idx < 36 else 48 + 4 * (idx - 36)
def Dreg(k, i): return ('v', Darch(k, i))
BF = [48, 64, 80]
PARK = 160
S_ST = [78, 79, 80, 81]
def Xf(blk, s):
    r = 160 + 48 * blk + 4 * s; return f"a[{r}:{r+3}]"
S_X = 8; S_OUT = 12; S_TB = 16
S_W = 20; S_I = 21; S_T0 = 28; S_T1 = 29; S_PXO = 30; S_PXN = 31; S_G0 = 32; S_LO = 33; S_HI = 34
S_TX = 64; S_TY = 65; S_TM = 66; S_TG = 67; S_EPS = 68; S_INV = 69
NPX = 512 * 512
STAMP_OFF = 300 << 20
H_OFF = 1 << 20
OPT = dict(dumph=0, prof=0, pf=1, st=3, sbud=100, cbud=32, stc=20, nhi=1, stnt=0, xnt=0, pfn=1, nox=0, nopark=0, sst=11, spf=0, nhs=2, st3=1, hprog=1, samex=0, pfh=0, pfs=1, w1late=0, xg=2, pff=2, xf=0, bias=0, r2late=1, linfin=1, lin=0, skip2=1, wpf=0, cpf=0, cord=1, sord=2, jith=0, ststage=0, cbud2=0, wb=0, w0early=1, r1late=1, zlate=0, tabj=15, endbar=0)
COLS = [0, 1, 8, 9, 2, 3, 10, 11]
S_PXP = 74
S_PF = 75
V_PFA = 3
class VM:
    def __init__(self): self.ops = []
    def add(self, tag, n=1): self.ops += [tag] * n
    def after(self, tag):
        i = max(k for k, t in enumerate(self.ops) if t == tag)
        return len(self.ops) - 1 - i
vm = VM()
OOL = []
def stamp(a, force=False):
    if not OPT['prof']: return
    if OPT['prof'] == 3 and not force: return
    a(f"""  s_memtime s[42:43]
  s_memrealtime s[62:63]
  s_waitcnt lgkmcnt(0)
  v_mov_b32 v{V_TMP}, s42
  s_nop 0
  buffer_store_dword v{V_TMP}, off, s[44:47], s40
  s_nop 1
  v_mov_b32 v{V_TMP}, s62
  s_nop 0
  buffer_store_dword v{V_TMP}, off, s[44:47], s40 offset:256
  s_add_u32 s40, s40, 4""")
def tile_coords(a):
    a(f"""  s_and_b32 s{S_T0}, s2, 7
  s_lshl_b32 s{S_T0}, s{S_T0}, 3
  s_lshr_b32 s{S_T1}, s2, 3
  s_and_b32 s{S_TX}, s{S_T1}, 7
  s_add_u32 s{S_TX}, s{S_TX}, s{S_T0}
  s_lshr_b32 s{S_T1}, s{S_T1}, 3
  s_lshl_b32 s{S_TY}, s{S_I}, 2
  s_add_u32 s{S_TY}, s{S_TY}, s{S_T1}          ; ty = 4*i + (c>>3)
  s_lshl_b32 s{S_T0}, s{S_TY}, 14              ; y0*512 = ty*32*512
  s_lshl_b32 s{S_T1}, s{S_TX}, 3
  s_add_u32 s{S_T0}, s{S_T0}, s{S_T1}
  s_mul_i32 s{S_PXN}, s{S_T0}, 384""")
def global_bases_lines(t):
    L = []
    if OPT['samex']: L += [f"  s_mov_b32 s{S_TX}, 5", f"  s_mov_b32 s{S_TY}, 5"]
    L += f"""  s_lshl_b32 s88, s{S_TY}, 5
  s_sub_u32 s88, s88, 3
  s_lshl_b32 s89, s{S_TX}, 3
  s_sub_u32 s89, s89, 4
  s_lshl_b32 s90, s{S_W}, 2
  s_add_u32 s88, s88, s90
  s_movk_i32 s90, 384
  s_movk_i32 s91, 512
  v_lshrrev_b32 v{t}, 4, v{V_LANE}
  v_bfe_u32 v{t+1}, v{V_LANE}, 3, 1
  v_and_b32 v{t+2}, 7, v{V_LANE}
  v_lshl_add_u32 v{t+1}, v{t+1}, 2, s89
  v_add_u32 v{t}, s88, v{t}
  v_add_u32 v{t+3}, 8, v{t+1}
  v_cmp_gt_u32 s[70:71], s91, v{t+1}
  v_cmp_gt_u32 s[72:73], s91, v{t+3}
  v_lshl_add_u32 v{t+3}, v{t}, 9, v{t+1}
  v_mul_lo_u32 v{t+3}, v{t+3}, s90
  v_lshl_add_u32 v{t+3}, v{t+2}, 4, v{t+3}
  v_mov_b32 v{t+4}, 0x80000000""".split("\n")
    for r in range(3):
        if r > 0:
            L += [f"  v_add_u32 v{t}, 16, v{t}", f"  v_add_u32 v{t+3}, {16*512*384}, v{t+3}"]
        L += [f"  v_cmp_gt_u32 vcc, s91, v{t}"]
        if r == 2:
            L = L[:-1]
            L += [f"  v_lshrrev_b32 v{t+5}, 4, v{V_LANE}", f"  s_lshl_b32 s86, s{S_W}, 2", f"  v_add_u32 v{t+5}, s86, v{t+5}",
                  f"  v_cmp_gt_u32 vcc, 6, v{t+5}", f"  v_subrev_u32 v{t+6}, 2, v{t}", f"  v_subrev_u32 v{t+5}, {2*512*384}, v{t+3}", "  s_nop 0",
                  f"  v_cndmask_b32 v{t}, v{t+6}, v{t}, vcc", f"  v_cndmask_b32 v{t+3}, v{t+5}, v{t+3}, vcc",
                  f"  v_cmp_gt_u32 vcc, s91, v{t}", f"  s_cmp_lt_u32 s{S_W}, 2", "  s_cselect_b64 s[86:87], -1, 0", "  s_and_b64 vcc, vcc, s[86:87]"]
        L += [f"  v_add_u32 v{t+6}, {8*384}, v{t+3}",
              "  s_and_b64 s[92:93], s[70:71], vcc",
              "  s_and_b64 s[94:95], s[72:73], vcc",
              "  s_nop 1",
              f"  v_cndmask_b32 v{V_GA[r]}, v{t+4}, v{t+3}, s[92:93]",
              f"  v_cndmask_b32 v{V_GB[r]}, v{t+4}, v{t+6}, s[94:95]"]
    return L
def global_bases(a, t=128):
    for l in global_bases_lines(t): a(l)
def x_load_line(k, r, i):
    col = COLS[i]
    base = V_GA[r] if col < 8 else V_GB[r]
    off = (col & 7) * 384 + k * 128
    dst = vr(XR[r] + 4 * i, 4) if r < 2 else f"a[{XA2+4*i}:{XA2+4*i+3}]"
    return f"  buffer_load_dwordx4 {dst}, v{base}, s[{S_X}:{S_X+3}], 0 offen offset:{off}"
class Fill:
    def __init__(self, a): self.a = a; self.hi = []; self.lo = []
    def push(self, lines, cost, tag=None, hi=False): (self.hi if hi else self.lo).append((lines, cost, tag))
    def emit1(self, g):
        for l in g[0]: self.a(l)
        if g[2] is not None: vm.add(g[2])
    def pop(self, budget, nhi=1):
        n = 0
        while self.hi and n < nhi:
            g = self.hi.pop(0); self.emit1(g); budget -= g[1]; n += 1
        while self.lo and budget >= self.lo[0][1] * 0.6:
            g = self.lo.pop(0); self.emit1(g); budget -= g[1]
    def flush(self, hi=True, lo=True, n=None):
        if hi:
            while self.hi: self.emit1(self.hi.pop(0))
        if lo:
            c = 0
            while self.lo and (n is None or c < n): self.emit1(self.lo.pop(0)); c += 1
def x_loads(a, k, r):
    for i in range(8): a(x_load_line(k, r, i))
    vm.add(('x', k, r), 8)
def stage_round(a, k, r, hook=None):
    src = XR[r] if r < 2 else XR[0]
    if r == 2:
        for e in range(32): a(f"  v_accvgpr_read_b32 v{XR[0]+e}, a{XA2+e}")
    for d in range(4):
        if hook and OPT['sord'] != 2: hook(d)
        T = PT[d & 1]
        lo = [f"  v_perm_b32 v{T+p}, v{src + 4*(2*p+1) + d}, v{src + 4*(2*p) + d}, s{S_LO}" for p in range(4)]
        hi = [f"  v_perm_b32 v{T+4+p}, v{src + 4*(2*p+1) + d}, v{src + 4*(2*p) + d}, s{S_HI}" for p in range(4)]
        w0 = f"  ds_write_b128 v{V_SW[r]}, {vr(T,4)} offset:{(2*d)*CS}"
        w1 = f"  ds_write_b128 v{V_SW[r]}, {vr(T+4,4)} offset:{(2*d+1)*CS}"
        if OPT['sord'] == 0:
            for l in lo + hi + [w0, w1]: a(l)
        elif OPT['sord'] == 1:
            for l in lo + [w0] + hi + [w1]: a(l)
        else:
            for l in lo + [w0] + hi: a(l)
            if hook: hook(d)
            a(w1)
def table_dma_ops(k):
    d = lambda q: f"  buffer_load_dwordx4 v{R.V_L16}, s[{S_TB}:{S_TB+3}], s{S_TG} offen offset:{1024*q} lds"
    return [
        [f"  s_lshl_b32 s{S_TM}, s{S_W}, 12", f"  s_add_u32 s{S_TG}, s{S_TM}, {k*16384}", f"  s_add_u32 m0, s{S_TM}, {TB[k&1]}", "  s_nop 0", d(0)],
        [d(1)], [d(2)], [d(3)],
    ]
def table_dma(a, k):
    for g in table_dma_ops(k):
        for l in g: a(l)
    vm.add(('t', k), 4)
NCH = 16
def conv_chunk(a, k, hook=None):
    def chan_off(i): j, e = i >> 3, i & 7; return j * OS + e * CS
    def tab_off(i): j, e = i >> 3, i & 7; return TB[k & 1] - TB[0] + j * 2048 + e * 256
    def rdA(i):
        A = AF[i & 1]
        return [f"  ds_read_b32 v{A}, v{V_T} offset:{tab_off(i)}", f"  ds_read_b32 v{A+4}, v{V_T} offset:{tab_off(i)+128}"]
    def rdB(i):
        B = BF[i % 3]
        return [f"  ds_read_b128 a[{B+4*q}:{B+4*q+3}], v{V_B} offset:{chan_off(i)+32*q}" for q in range(4)]
    for t in rdA(0) + rdB(0) + rdB(1): a(t)
    if OPT['zlate']: zero_D(a, k)
    for i in range(NCH):
        A = AF[i & 1]; B = BF[i % 3]
        kind, D = Dreg(k, i)
        Dt = f"{kind}[{D}:{D+3}]"
        nxtA = rdA(i + 1) if i + 1 < NCH else []
        nxtB = rdB(i + 2) if i + 2 < NCH else []
        a(f"  s_waitcnt lgkmcnt({4 if i + 1 < NCH else 0})")
        sm = [f"  v_smfmac_f32_16x16x64_bf16 {Dt}, {vr(A+4*h,4)}, a[{B+8*h}:{B+8*h+7}], v{V_IDX}" for h in range(2)]
        dp = [[f"  v_mov_b32_dpp v{A+4*h+1+g}, v{A+4*h} row_ror:{4*(g+1)} row_mask:0xf bank_mask:0xf" for g in range(3)] for h in range(2)]
        if OPT['cord'] == 0:
            for t in nxtA: a(t)
            for h in range(2):
                for t in dp[h]: a(t)
                rb = nxtB[2*h:2*h+2]
                for t in rb: a(t)
                if len(rb) < 2: a("  s_nop 1")
                a(sm[h])
        elif OPT['cord'] == 1:
            for t in dp[0] + dp[1]: a(t)
            a(sm[0])
            for t in nxtA + nxtB[:2]: a(t)
            if not (nxtA + nxtB[:2]): a("  s_nop 1")
            a(sm[1])
            for t in nxtB[2:]: a(t)
        elif OPT['cord'] == 2:
            for t in nxtA[:1]: a(t)
            for t in dp[0]: a(t)
            for t in nxtA[1:]: a(t)
            for t in dp[1]: a(t)
            a(sm[0])
            for t in nxtB[:2]: a(t)
            if not nxtB[:2]: a("  s_nop 1")
            a(sm[1])
            for t in nxtB[2:]: a(t)
        if hook: hook(i)
def zero_D(a, k):
    L = [f"  v_mov_b32 v{r}, 0" for r in range(44, 48)] + ["  s_nop 1"]
    for q in range(4):
        base = Darch(k, 4 * q)
        L.append(f"  v_mfma_f32_32x32x16_bf16 v[{base}:{base+15}], v[44:47], v[44:47], 0")
    for l in L: a(l)
def stats_lines(k, i):
    D = Darch(k, i)
    return [f"  v_pk_add_f32 v[16:17], v[16:17], v[{D}:{D+1}]", f"  v_pk_add_f32 v[18:19], v[18:19], v[{D+2}:{D+3}]",
            f"  v_pk_fma_f32 v[20:21], v[{D}:{D+1}], v[{D}:{D+1}], v[20:21]", f"  v_pk_fma_f32 v[22:23], v[{D+2}:{D+3}], v[{D+2}:{D+3}], v[22:23]"]
def move_lines(k, i):
    D = Darch(k, i); A = Dreg(k, i)[1]
    return [f"  v_accvgpr_read_b32 v{D+e}, a{A+e}" for e in range(4)]
def ln_phase(a, wdma, done3):
    if OPT['lin']:
        a(f"""  s_lshl_b32 s{S_T0}, s{S_W}, 5
  s_mul_i32 s{S_T1}, s{S_W}, {8*8*XPS + 4*16}
  v_add_u32 v12, s{S_T0}, v12
  v_add_u32 v13, s{S_T0}, v13
  v_add_u32 v14, s{S_T1}, v14
  v_add_u32 v15, s{S_T1}, v15""")
    a("  s_nop 7")
    for i in range(done3, NCH):
        for l in stats_lines(2, i): a(l)
    a(f"""  s_lshl_b32 s{S_T0}, s{S_W}, 11
  s_add_u32 s{S_T0}, s{S_T0}, {STATS}
  v_add_u32 v24, s{S_T0}, v{R.V_L16}
  v_add_u32 v25, {STATS}, v{R.V_L16}
  ds_write_b128 v24, v[16:19]
  ds_write_b128 v24, v[20:23] offset:1024
  s_waitcnt lgkmcnt(0)
  s_barrier""")
    for w in range(4):
        a(f"  ds_read_b128 v[{96+4*w}:{99+4*w}], v25 offset:{2048*w}")
    for w in range(4):
        a(f"  ds_read_b128 v[{28+4*w}:{31+4*w}], v25 offset:{2048*w+1024}")
    wl = Asm(); wdma(wl); wl = [l for l in wl.L]
    for l in wl[:8]: a(l)
    wl = wl[8:]
    a("  s_waitcnt lgkmcnt(4)")
    a("""  v_pk_add_f32 v[96:97], v[96:97], v[100:101]
  v_pk_add_f32 v[98:99], v[98:99], v[102:103]
  v_pk_add_f32 v[104:105], v[104:105], v[108:109]
  v_pk_add_f32 v[106:107], v[106:107], v[110:111]
  v_pk_add_f32 v[96:97], v[96:97], v[104:105]
  v_pk_add_f32 v[98:99], v[98:99], v[106:107]
  s_waitcnt lgkmcnt(0)
  v_pk_add_f32 v[28:29], v[28:29], v[32:33]
  v_pk_add_f32 v[30:31], v[30:31], v[34:35]
  v_pk_add_f32 v[36:37], v[36:37], v[40:41]
  v_pk_add_f32 v[38:39], v[38:39], v[42:43]
  v_pk_add_f32 v[28:29], v[28:29], v[36:37]
  v_pk_add_f32 v[30:31], v[30:31], v[38:39]""")
    a("  s_barrier        ; everybody has read the statistics: the exchange buffer may overwrite them")
    for r in range(4):
        a(f"  v_mul_f32 v{16+r}, s{S_INV}, v{96+r}")
    for r in range(4):
        a(f"  v_mul_f32 v{28+r}, s{S_INV}, v{28+r}")
    for r in range(4):
        a(f"  v_fma_f32 v{28+r}, -v{16+r}, v{16+r}, v{28+r}")
    for r in range(4):
        a(f"  v_max_f32 v{28+r}, 0, v{28+r}")
    for r in range(4):
        a(f"  v_add_f32 v{28+r}, s{S_EPS}, v{28+r}")
    for r in range(4):
        a(f"  v_rsq_f32 v{20+r}, v{28+r}")
    a("  s_nop 0")
    for r in range(4):
        a(f"  v_mul_f32 v{20+r}, s{R.S_S}, v{20+r}")
    for r in range(4):
        a(f"  v_mul_f32 v{24+r}, -v{16+r}, v{20+r}" .replace("v_mul_f32 v", "v_mul_f32_e64 v"))
    groups = [(k, j) for k in range(3) for j in range(2)]
    def fmas(g):
        k, j = groups[g]; L = []
        for e in range(8):
            D = Darch(k, 8 * j + e)
            L.append(f"  v_pk_fma_f32 v[{D}:{D+1}], v[{D}:{D+1}], v[20:21], v[24:25]")
            L.append(f"  v_pk_fma_f32 v[{D+2}:{D+3}], v[{D+2}:{D+3}], v[22:23], v[26:27]")
        return L
    for l in fmas(0): a(l)
    cnt = 0
    for g, (k, j) in enumerate(groups):
        Ds = [Darch(k, 8 * j + e) for e in range(8)]
        nxt = fmas(g + 1) if g + 1 < len(groups) else []
        for r in range(4):
            T = 32 + 4 * (cnt % 4); cnt += 1
            for e in range(4):
                a(f"  v_cvt_pk_bf16_f32 v{T+e}, v{Ds[2*e]+r}, v{Ds[2*e+1]+r}")
            a(f"  ds_write_b128 v{V_XW[r>>1]}, v[{T}:{T+3}] offset:{(r&1)*8*XPS + 128*k + 16*j}")
            for l in nxt[4*r:4*r+4]: a(l)
            n = 0
            while wl and n < 1:
                l = wl.pop(0); a(l); n += 1
                while wl and l.startswith("  s_"): l = wl.pop(0); a(l)
    for l in wl: a(l)
def w_dma_block(a, blk):
    S_G0 = 32
    for half, cnt in ((0, 4), (1, 2)):
        a(f"  s_add_u32 s{R.S_G}, s{S_G0}, {blk*BLK + 4096*half}\n{C.m0_set(blk, half)}\n  s_nop 0")
        for p in range(cnt):
            a(f"  buffer_load_dwordx4 v{R.V_L16}, s[{R.S_WS}:{R.S_WS+3}], s{R.S_G} offen offset:{1024*p} lds")
    if blk == 1: a(f"  s_add_u32 s{R.S_G}, s{S_G0}, {2*BLK}\n  s_add_u32 s{R.S_G2}, s{S_G0}, {2*BLK+4096}")
def phase_c(a):
    F = Fill(a)
    if OPT['lin']:
        a(f"  v_add_u32 v16, {SAVEOFF}, v{R.V_L16}\n  ds_read_b128 v[12:15], v16")
    for g in range(24):
        L, c = park_group(g); F.push(L if not OPT['nopark'] else ["  s_nop 0 ; cvt"] * 8, c)
    if OPT['r1late']:
        for i in range(8): F.push([x_load_line(0, 1, i)], 12, ('x', 0, 1), hi=True)
    if OPT['r2late']:
        for i in range(8): F.push([x_load_line(0, 2, i)], 12, ('x', 0, 2), hi=True)
    need_by = [8, 16, 24]
    for k in range(3):
        if OPT['ststage'] and k >= 1:
            if k == 1: F.push([f"  v_mov_b32 v{r}, 0" for r in range(16, 24)], 32)
            for i in range(NCH): F.push(stats_lines(k - 1, i), 16)
        for r in range(3):
            late = OPT['r2late'] and k == 0
            if r == 0 and not late: F.flush(hi=True, lo=False)
            if r >= 1 and late:
                for g in [g for g in F.hi if g[2] == ('x', 0, r)]: F.emit1(g)
                F.hi = [g for g in F.hi if g[2] != ('x', 0, r)]
            if r == 2 and OPT['skip2']:
                lab = f"fused_kernel_sk{k}"
                a(f"  s_cmp_ge_u32 s{S_W}, 2\n  s_cbranch_scc1 {lab}")
                a(f"  s_waitcnt vmcnt({vm.after(('x', k, r))})")
                rec = []
                def hk(d):
                    n0 = len(a.L); F.pop(OPT['sbud'], OPT['nhs']); rec.extend(a.L[n0:])
                stage_round(a, k, r, hk)
                a(f"{lab}_j:")
                OOL.append([f"{lab}:"] + rec + [f"  s_branch {lab}_j"])
            else:
                a(f"  s_waitcnt vmcnt({vm.after(('x', k, r))})")
                stage_round(a, k, r, lambda d: F.pop(OPT['sbud'], OPT['nhs'] if (r == 2 or (late and (r == 0 or OPT['r1late']))) else 0))
            if k < 2 and OPT['nox']:
                vm.add(('x', k + 1, r))
            if k < 2 and not OPT['nox']:
                if r == 1:
                    for i in range(8): F.push([x_load_line(k + 1, 1, i)], 12, ('x', k + 1, 1), hi=True)
                if r == 2:
                    F.hi = [([x_load_line(k + 1, 0, i)], 12, ('x', k + 1, 0)) for i in range(8)] + F.hi
                    for i in range(8): F.push([x_load_line(k + 1, 2, i)], 12, ('x', k + 1, 2), hi=True)
        parked = 24 - sum(1 for g in F.lo if 'cvt' in ''.join(g[0]))
        need = need_by[k] - parked
        while need > 0:
            g = F.lo.pop(0); F.emit1(g)
            if 'cvt' in ''.join(g[0]): need -= 1
        if not OPT['zlate']: zero_D(a, k)
        a(f"  s_waitcnt vmcnt({vm.after(('t', k))}) lgkmcnt(0)")
        a("  s_barrier")
        if k == 1: table_dma(a, 2)
        if k == 2 and OPT['w0early']:
            wl = Asm(); w_dma_block(wl, 0); w_dma_block(wl, 1)
            grp = []
            for l in wl.L:
                grp.append(l)
                if 'buffer_load' in l:
                    F.push(grp, 12, ('w', 0), hi=True); grp = []
            if grp: F.push(grp, 8, None, hi=True)
        if not OPT['ststage']:
            if k == 1:
                F.flush(hi=False, lo=True)
                F.push([f"  v_mov_b32 v{r}, 0" for r in range(16, 24)], 32)
                for i in range(NCH): F.push(stats_lines(0, i), OPT['stc'])
            if k == 2:
                for i in range(NCH): F.push(stats_lines(1, i), OPT['stc'])
        stamp(a)
        def hook(i, k=k):
            if k == 2 and i >= 3 and OPT['st3']:
                for l in stats_lines(2, i - 3): a(l)
            F.pop(OPT['cbud'] if not OPT['ststage'] else OPT['cbud2'], OPT['nhi'])
        conv_chunk(a, k, hook)
        if k < 2: a("  s_barrier")
        stamp(a)
    F.flush()
    ln_phase(a, (lambda x: None) if OPT['w0early'] else (lambda x: w_dma_block(x, 0)), NCH - 3 if OPT['st3'] else 0)
    a(f"  s_waitcnt vmcnt({vm.after(('w', 0)) if False else 0}) lgkmcnt(0)\n  s_barrier")
    if OPT['jith']:
        for i in range(CFG['D']):
            a(C.ds_text(i, 0, i))
            for blk in range(2): a(f"  ds_read_b128 {Hf(blk,i)}, v{V_XR[blk]} offset:{32*i}")
        a(f"  s_waitcnt lgkmcnt({3*(CFG['D']-1)})")
        return
    for i in range(CFG['D']): a(C.ds_text(i, 0, i))
    for s in range(12):
        for blk in range(2):
            a(f"  ds_read_b128 {Hf(blk,s)}, v{V_XR[blk]} offset:{32*s}")
    a(f"  s_waitcnt lgkmcnt({15 if OPT['hprog'] else 0})")
EPI_ORDER = [(0, s_) for s_ in range(12)] + [(1, s_) for s_ in range(12)]
def quad(blk, sI): return PARK + 4 * (blk * 12 + sI)
def epi_cvt(blk, sI, p, bounce):
    b = sI >> 1
    kind, r0 = ACCreg(blk, b); r0 += 8 * (sI & 1)
    L = []
    if kind == 'a':
        for e in range(8): L.append(f"  v_accvgpr_read_b32 v{bounce+e}, a{r0+e}")
        r0 = bounce
    L += [f"  v_cvt_pk_bf16_f32 v{p}, v{r0}, v{r0+1}", f"  v_cvt_pk_bf16_f32 v{p+1}, v{r0+2}, v{r0+3}",
          f"  v_cvt_pk_bf16_f32 v{p+2}, v{r0+4}, v{r0+5}", f"  v_cvt_pk_bf16_f32 v{p+3}, v{r0+6}, v{r0+7}"]
    return L
def park_group(g):
    blk, sI = EPI_ORDER[g]
    kind, _ = ACCreg(blk, sI >> 1)
    p = 16 if kind == 'a' else 16 + 4 * (g & 1)
    L = epi_cvt(blk, sI, p, 16)
    q = quad(blk, sI)
    L += [f"  v_accvgpr_write_b32 a{q+e}, v{p+e}" for e in range(4)]
    return L, (32 + (32 if kind == 'a' else 0))
def store_parked(i, spx):
    blk, sI = i // 12, i % 12
    q = quad(blk, sI)
    return f"  buffer_store_dwordx4 a[{q}:{q+3}], v{V_PX[blk]}, s[{S_OUT}:{S_OUT+3}], s{spx} offen offset:{32*sI}{['', ' nt', ' sc1', ' sc0 sc1'][OPT['stnt']]}"
class Epi:
    def __init__(self, a): self.a = a; self.g = 0
    def emit(self, n=1):
        pass
def epilogue(a):
    if not OPT['linfin']:
        for g in range(24):
            blk, sI = g // 12, g % 12
            p = 16 + 4 * (g & 1)
            for t in epi_cvt(blk, sI, p, 40): a(t)
            a(f"  buffer_store_dwordx4 {vr(p,4)}, v{V_PX[blk]}, s[{S_OUT}:{S_OUT+3}], s{S_PXO} offen offset:{32*sI}")
        return
    REG = 73728
    a("  s_waitcnt vmcnt(0)")
    a(f"""  s_mul_i32 s{S_T0}, s{S_W}, 12800
  s_add_u32 s{S_T0}, s{S_T0}, {REG}
  v_and_b32 v24, 31, v{V_LANE}
  v_mul_u32_u24 v24, 400, v24
  v_lshrrev_b32 v25, 5, v{V_LANE}
  v_lshl_add_u32 v24, v25, 4, v24
  v_add_u32 v24, s{S_T0}, v24
  s_mov_b32 s{S_T1}, {(2**32 + 23)//24}""")
    for q in range(3):
        a(f"""  v_add_u32 v28, {64*q}, v{V_LANE}
  v_mul_hi_u32 v29, v28, s{S_T1}
  v_add_lshl_u32 v28, v28, v29, 4
  v_add_u32 v{25+q}, s{S_T0}, v28""")
    a(f"""  s_lshl_b32 s86, s{S_W}, 3
  s_mul_i32 s86, s86, {512*384}
  s_add_u32 s86, s86, s{S_PXO}""")
    for blk in range(2):
        for sI in range(12):
            p = 32 + 4 * (sI & 3)
            for t in epi_cvt(blk, sI, p, 16): a(t)
            a(f"  ds_write_b128 v24, {vr(p,4)} offset:{32*sI}")
        a("  s_waitcnt lgkmcnt(0)")
        for q in range(12):
            a(f"  ds_read_b128 {vr(48+4*q+48*(blk&0),4)}, v{25+q%3} offset:{3200*(q//3)}")
        for q in range(12):
            a(f"  s_waitcnt lgkmcnt({11-q})")
            if q % 3 == 0 and (q or blk): a(f"  s_add_u32 s86, s86, {512*384}")
            a(f"  buffer_store_dwordx4 {vr(48+4*q,4)}, v{R.V_L16}, s[{S_OUT}:{S_OUT+3}], s86 offen offset:{1024*(q%3)}")
        if blk == 0: a("  s_nop 1")
def gen_fused(a, name="fused_kernel", nwg=256):
    CFG['accinit'] = 1
    a(kstart(name))
    h16 = lambda x: int(np.float16(x).view(np.uint16))
    a(f"""
  s_cmp_ge_u32 s2, {nwg}
  s_cbranch_scc1 {name}_done
  s_load_dwordx2 s[48:49], s[0:1], 0       ; x
  s_load_dwordx2 s[50:51], s[0:1], 32      ; out
  s_load_dwordx2 s[38:39], s[0:1], 48      ; ws
  v_lshrrev_b32 v1, 6, v0
  v_and_b32 v{V_LANE}, 63, v0
  s_nop 0
  v_readfirstlane_b32 s{S_W}, v1
  v_lshlrev_b32 v{R.V_L16}, 4, v{V_LANE}
""")
    a(f"""
  s_waitcnt lgkmcnt(0)
  s_mov_b32 s{R.S_WS}, s38
  s_and_b32 s{R.S_WS+1}, s39, 0xffff
  s_mov_b32 s{R.S_WS+2}, {NBLK*BLK}
  s_mov_b32 s{R.S_WS+3}, 0x20000
  s_add_u32 s{S_TB}, s38, {TBL_OFF}
  s_addc_u32 s{S_TB+1}, s39, 0
  s_and_b32 s{S_TB+1}, s{S_TB+1}, 0xffff
  s_mov_b32 s{S_TB+2}, {TBL_BYTES}
  s_mov_b32 s{S_TB+3}, 0x20000
  s_mov_b32 s{S_X}, s48
  s_and_b32 s{S_X+1}, s49, 0xffff
  s_mov_b32 s{S_X+2}, {NPX*384}
  s_mov_b32 s{S_X+3}, 0x20000
  s_mov_b32 s{S_OUT}, s50
  s_and_b32 s{S_OUT+1}, s51, 0xffff
  s_mov_b32 s{S_OUT+2}, {NPX*384}
  s_mov_b32 s{S_OUT+3}, 0x20000
  s_mov_b32 s{R.S_NA}, {hex(f2u(-GA))}
  s_mov_b32 s{R.S_S}, {hex(f2u(GS))}
  s_mov_b32 s85, {hex(f2u(GS * (1.0 - OPT['bias'] / 1000.0)))}
  s_mov_b32 s{R.S_NAH}, {hex(h16(-GA) | (h16(-GA) << 16))}
  s_mov_b32 s{R.S_SH}, {hex(h16(GS) | (h16(GS) << 16))}
  s_mov_b32 s{S_LO}, 0x05040100
  s_mov_b32 s{S_HI}, 0x07060302
  s_mov_b32 s{S_EPS}, {hex(f2u(1e-5))}
  s_mov_b32 s{S_INV}, {hex(f2u(1.0/192))}
  s_mul_i32 s{S_G0}, s{S_W}, 6144
""")
    for s in range(3):
        a(f"  s_add_u32 s{R.S_M[2*s]}, s{S_G0}, {s*BLK}")
        a(f"  s_add_u32 s{R.S_M[2*s+1]}, s{S_G0}, {s*BLK + 4096}")
    if OPT['prof'] or OPT['dumph']:
        a(f"""  s_add_u32 s44, s38, {STAMP_OFF}
  s_addc_u32 s45, s39, 0
  s_and_b32 s45, s45, 0xffff
  s_mov_b32 s46, {256*4*512}
  s_mov_b32 s47, 0x20000
  s_lshl_b32 s40, s2, 2
  s_add_u32 s40, s40, s{S_W}
  s_lshl_b32 s40, s40, 9
  s_add_u32 s52, s38, {H_OFF}
  s_addc_u32 s53, s39, 0
  s_and_b32 s53, s53, 0xffff
  s_mov_b32 s54, {NPX*384}
  s_mov_b32 s55, 0x20000""")
    stamp(a, True)
    a(f"  s_mov_b32 s{S_I}, 0")
    tile_coords(a)
    global_bases(a)
    table_dma(a, 0); table_dma(a, 1)
    x_loads(a, 0, 0)
    if not OPT['r1late']: x_loads(a, 0, 1)
    if not OPT['r2late']: x_loads(a, 0, 2)
    npf = 0
    if OPT['spf']:
        a(f"""  s_lshl_b32 s{S_T0}, s{S_TY}, 5
  s_sub_u32 s{S_T0}, s{S_T0}, 3
  s_max_i32 s{S_T0}, s{S_T0}, 0
  s_add_u32 s{S_T0}, s{S_T0}, s{S_W}
  s_lshl_b32 s{S_T0}, s{S_T0}, 9
  s_lshl_b32 s{S_T1}, s{S_TX}, 3
  s_sub_u32 s{S_T1}, s{S_T1}, 4
  s_max_i32 s{S_T1}, s{S_T1}, 0
  s_add_u32 s{S_T0}, s{S_T0}, s{S_T1}
  s_mul_i32 s{S_PF}, s{S_T0}, 384
  v_min_u32 v{V_TMP}, 47, v{V_LANE}
  v_lshlrev_b32 v{V_TMP}, 7, v{V_TMP}
  s_mov_b32 m0, {PFSCR}
  s_lshr_b32 s{S_T0}, s2, 3
  s_lshl_b32 s{S_T0}, s{S_T0}, 2
  s_add_u32 s{S_T0}, s{S_T0}, s{S_W}
  s_mul_i32 s{S_T0}, s{S_T0}, 5120
  v_lshlrev_b32 v16, 6, v{V_LANE}
  buffer_load_dword v16, s[{R.S_WS}:{R.S_WS+3}], s{S_T0} offen lds
  buffer_load_dword v16, s[{R.S_WS}:{R.S_WS+3}], s{S_T0} offen offset:1024 lds""")
        npf = 2
        for idx in range(20):
            a(f"  buffer_load_dword v{V_TMP}, s[{S_X}:{S_X+3}], s{S_PF} offen offset:{64*(idx&1)} lds")
            if idx & 1: a(f"  s_add_u32 s{S_PF}, s{S_PF}, {4*512*384}")
            npf += 1
    if OPT['wpf']:
        a(f"""  s_mov_b32 m0, {PFSCR}
  s_lshr_b32 s{S_T0}, s2, 3
  s_lshl_b32 s{S_T0}, s{S_T0}, 2
  s_add_u32 s{S_T0}, s{S_T0}, s{S_W}
  s_mul_i32 s{S_T0}, s{S_T0}, 5120
  v_lshlrev_b32 v16, 6, v{V_LANE}
  buffer_load_dword v16, s[{R.S_WS}:{R.S_WS+3}], s{S_T0} offen lds
  buffer_load_dword v16, s[{R.S_WS}:{R.S_WS+3}], s{S_T0} offen offset:1024 lds""")
        npf += 2
    if OPT['cpf']:
        a(f"""  s_getpc_b64 s[88:89]
{{CODEBASE}}:
  v_lshlrev_b32 v17, 7, v{V_LANE}
  s_lshl_b32 s{S_T0}, s{S_W}, 13
  v_add_u32 v17, s{S_T0}, v17""".replace("{CODEBASE}", "fused_kernel_pc"))
        for q in range(3):
            a(f"  v_min_u32 v18, fused_kernel_done-fused_kernel_pc, v17")
            a(f"  global_load_dword v{120+q}, v18, s[88:89]")
            a(f"  v_add_u32 v17, {4*8192}, v17")
            npf += 1
    a(f"""
  v_add_u32 v{R.V_L16B}, {C.RB if CFG['ring5'] else 2*BLK}, v{R.V_L16}
  v_and_b32 v16, 31, v{V_LANE}             ; n
  v_lshrrev_b32 v17, 5, v{V_LANE}          ; hf
  v_lshrrev_b32 v18, 3, v16
  v_and_b32 v19, 7, v16
  s_lshl_b32 s{S_T0}, s{S_W}, 3
  v_add_u32 v18, s{S_T0}, v18
  v_lshl_add_u32 v20, v18, 9, v19
  s_movk_i32 s{S_T1}, 384
  v_mul_lo_u32 v20, v20, s{S_T1}
  v_lshl_add_u32 v{V_PX[0]}, v17, 4, v20
  v_add_u32 v{V_PX[1]}, {4*512*384}, v{V_PX[0]}
  v_lshl_add_u32 v20, v18, 3, v19
  s_movk_i32 s{S_T1}, {XPS}
  v_mul_lo_u32 v20, v20, s{S_T1}
  v_lshrrev_b32 v21, 1, v18                ; row>>1
  v_add_u32 v21, v21, v17                  ; + hf
  v_lshl_add_u32 v20, v21, 4, v20
  v_add_u32 v{V_XR[0]}, {XCH}, v20
  v_add_u32 v{V_XR[1]}, {XCH + 32*XPS + 32}, v20
  v_and_b32 v18, 0x13, v16
  v_bfe_u32 v19, v16, 2, 1
  v_lshl_or_b32 v18, v19, 3, v18
  v_bfe_u32 v19, v16, 3, 1
  v_lshl_or_b32 v18, v19, 2, v18
  v_lshlrev_b32 v19, 3, v17
  v_sub_u32 v18, v18, v19                  ; c(m) - 8hf
""")
    for d in range(4):
        for (base, reg) in ((0, 112), (16, 116)):
            a(f"""  v_cmp_eq_u32 vcc, {base+2*d}, v18
  v_mov_b32 v19, 0x3f80
  s_nop 1
  v_cndmask_b32 v20, 0, v19, vcc
  v_cmp_eq_u32 vcc, {base+2*d+1}, v18
  v_mov_b32 v19, 0x3f800000
  s_nop 1
  v_cndmask_b32 v21, 0, v19, vcc
  v_or_b32 v{reg+d}, v20, v21""")
    a(f"""  v_add_u32 v20, {IDOFF}, v{R.V_L16}
  ds_write_b128 v20, v[112:115]
  ds_write_b128 v20, v[116:119] offset:1024
  v_and_b32 v16, 15, v{V_LANE}             ; nh
  v_lshrrev_b32 v17, 4, v{V_LANE}          ; q
  v_lshrrev_b32 v18, 1, v17
  v_mul_u32_u24 v18, {PLANE}, v18
  v_lshl_add_u32 v18, v16, 5, v18
  v_and_b32 v19, 1, v17
  v_lshl_add_u32 v18, v19, 4, v18
  s_mul_i32 s{S_T0}, s{S_W}, {2*OS}
  s_add_u32 s{S_T0}, s{S_T0}, {SB}
  v_add_u32 v{V_B}, s{S_T0}, v18
  v_and_b32 v18, 1, v16                    ; mh
  v_bfe_u32 v19, v16, 1, 1                 ; par
  v_lshrrev_b32 v20, 2, v16                ; k'
  v_sub_u32 v21, v17, v18
  v_add_u32 v21, 1, v21
  v_lshlrev_b32 v21, 5, v21
  v_lshl_add_u32 v21, v19, 4, v21
  v_sub_u32 v22, 0, v20
  v_and_b32 v22, 3, v22
  v_lshl_add_u32 v21, v22, 2, v21
  s_lshl_b32 s{S_T0}, s{S_W}, 12
  s_add_u32 s{S_T0}, s{S_T0}, {TB[0]}
  v_add_u32 v{V_T}, s{S_T0}, v21
  v_lshlrev_b32 v21, 1, v20                ; 2k'
  v_add_u32 v22, 1, v21                    ; O: 2k'+1
  v_cmp_eq_u32 vcc, 0, v20
  v_mov_b32 v23, 8
  s_nop 1
  v_cndmask_b32 v21, v21, v23, vcc         ; E
  v_cmp_eq_u32 vcc, 1, v19
  s_nop 1
  v_cndmask_b32 v21, v22, v21, vcc         ; s
  v_mov_b32 v{V_IDX}, 0x4444
""")
    for g in range(4):
        a(f"""  v_cmp_le_u32 vcc, {2*g+2}, v21
  v_mov_b32 v22, {0xA << (4*g)}
  s_nop 1
  v_cndmask_b32 v22, 0, v22, vcc
  v_or_b32 v{V_IDX}, v{V_IDX}, v22""")
    a(f"""
  v_lshlrev_b32 v18, 4, v16                ; 2nh*8
  v_lshlrev_b32 v19, 1, v17                ; 2q'
  v_lshlrev_b32 v20, 4, v16
  s_lshl_b32 s{S_T0}, s{S_W}, 5
  s_add_u32 s{S_T0}, s{S_T0}, {XCH}
  v_add_u32 v20, s{S_T0}, v20
  s_movk_i32 s{S_T1}, {XPS}
  v_add_u32 v21, v18, v19
  v_mul_lo_u32 v21, v21, s{S_T1}
  v_add_u32 v{V_XW[0]}, v21, v20
  v_add_u32 v19, 7, v19
  v_and_b32 v19, 7, v19
  v_add_u32 v21, v18, v19
  v_mul_lo_u32 v21, v21, s{S_T1}
  v_add_u32 v{V_XW[1]}, v21, v20
""")
    a(f"  v_mov_b32 v20, 0\n  v_mov_b32 v21, {ZROW}\n  v_lshl_add_u32 v21, v{V_LANE}, 0, v21\n  v_and_b32 v22, 15, v{V_LANE}\n  v_lshlrev_b32 v22, 2, v22\n  v_add_u32 v22, {ZROW}, v22\n  ds_write_b32 v22, v20")
    for r in range(3):
        a(f"""  s_lshl_b32 s{S_T0}, s{S_W}, 6
  s_add_u32 s{S_T0}, s{S_T0}, {256*r}
  v_add_u32 v16, s{S_T0}, v{V_LANE}
  s_movk_i32 s{S_T1}, 608
  v_cmp_gt_u32 vcc, s{S_T1}, v16
  v_subrev_u32 v17, 32, v16
  s_nop 1
  v_cndmask_b32 v16, v17, v16, vcc
  v_and_b32 v18, 7, v16                        ; o
  v_lshrrev_b32 v19, 4, v16                    ; row
  v_bfe_u32 v20, v16, 3, 1                     ; u
  v_mul_u32_u24 v18, {OS}, v18
  v_and_b32 v21, 1, v19
  v_mul_u32_u24 v21, {PLANE}, v21
  v_lshrrev_b32 v19, 1, v19
  v_lshl_add_u32 v21, v19, 5, v21
  v_lshl_add_u32 v21, v20, 4, v21
  v_add_u32 v21, v21, v18
  v_add_u32 v{V_SW[r]}, {SB}, v21""")
    a(f"  s_waitcnt vmcnt({npf})")
    a(f"  s_mov_b32 s{S_PXP}, 0x80000000")
    a(f"{name}_tile:")
    a(f"  s_mov_b32 s{S_PXO}, s{S_PXN}")
    stamp(a, True)
    phase_c(a)
    stamp(a)
    if OPT['dumph']:
        for blk in range(2):
            for s in range(12):
                a(f"  buffer_store_dwordx4 {Hf(blk,s)}, v{V_PX[blk]}, s[52:55], s{S_PXO} offen offset:{32*s}")
        a("  s_waitcnt vmcnt(6)" if False else "  s_waitcnt vmcnt(0)")
    core = Core(a)
    if OPT['jith']: core.jit_reads = lambda t: [f"  ds_read_b128 {Hf(blk,t)}, v{V_XR[blk]} offset:{32*t}" for blk in range(2)]
    tc = Asm()
    tc(f"  s_add_u32 s{S_I}, s{S_I}, 1")
    tile_coords(tc)
    tc(f"""  s_lshl_b32 s{S_T0}, s{S_TY}, 5
  s_sub_u32 s{S_T0}, s{S_T0}, 3
  s_max_i32 s{S_T0}, s{S_T0}, 0
  s_add_u32 s{S_T0}, s{S_T0}, s{S_W}
  s_lshl_b32 s{S_T0}, s{S_T0}, 9
  s_lshl_b32 s{S_T1}, s{S_TX}, 3
  s_sub_u32 s{S_T1}, s{S_T1}, 4
  s_max_i32 s{S_T1}, s{S_T1}, 0
  s_add_u32 s{S_T0}, s{S_T0}, s{S_T1}
  s_mul_i32 s{S_PF}, s{S_T0}, 384
  s_cmp_ge_u32 s{S_I}, 4
  s_cselect_b32 s{S_PF}, 0x80000000, s{S_PF}""")
    tcl = [(l, 4) for l in tc.L]
    ex0 = [(f"  v_min_u32 v{V_TMP}, 47, v{V_LANE}", 4), (f"  v_lshlrev_b32 v{V_TMP}, 7, v{V_TMP}", 4)]
    if OPT['w1late']:
        wl = Asm(); w_dma_block(wl, 1)
        ex0 = [(l, 10 if 'buffer' in l else 4) for l in wl.L] + ex0
    ex0 = ex0 + tcl[:-2] + [(tcl[-2][0] + "\n" + tcl[-1][0], 8)]
    core.extra[0] = ex0
    core.fast_flush = {0}
    core.vmwait[0] = 0
    core.vmwait[1] = 0
    stplan = {}; xplan = {}
    xg = OPT['xg']
    lin = OPT['lin']
    S_SR = 76; S_SX = 77
    linops = {}
    if lin:
        ex0b = f"""  s_mul_i32 s86, s{S_W}, 12800
  s_add_u32 s86, s86, {TREG}
  v_and_b32 v12, 31, v{V_LANE}
  v_mul_u32_u24 v12, 400, v12
  v_lshrrev_b32 v16, 5, v{V_LANE}
  v_lshl_add_u32 v12, v16, 4, v12
  v_add_u32 v12, s86, v12
  s_mov_b32 s87, {(2**32 + 23)//24}""".split("\n")
        for q in range(3):
            ex0b += [f"  v_add_u32 v16, {64*q}, v{V_LANE}", f"  v_mul_hi_u32 v17, v16, s87", f"  v_add_lshl_u32 v16, v16, v17, 4", f"  v_add_u32 v{13+q}, s86, v16"]
        ex0b += [f"  s_lshl_b32 s{S_SR}, s{S_W}, 3", f"  s_mul_i32 s{S_SR}, s{S_SR}, {512*384}", f"  s_add_u32 s{S_SX}, s{S_SR}, s{S_PXO}", f"  s_add_u32 s{S_SR}, s{S_SR}, s{S_PXP}"]
        core.extra[0] = core.extra[0] + [(l, 4) for l in ex0b]
        def AQ(blk, q): r = quad(blk, q); return f"a[{r}:{r+3}]"
        for blk in range(2):
            core.lds_extra[1 + 3 * blk] = [f"  ds_write_b128 v12, {AQ(blk,q)} offset:{32*q}" for q in range(12)]
            core.lds_extra[2 + 3 * blk] = [f"  ds_read_b128 {AQ(blk,q)}, v{13+q%3} offset:{3200*(q//3)}" for q in range(12)]
            if lin == 1:
                core.lds_extra[10 + 4 * blk] = [f"  ds_write_b128 v{13+q%3}, {AQ(blk,q)} offset:{3200*(q//3)}" for q in range(12)]
                core.lds_extra[11 + 4 * blk] = [f"  ds_read_b128 {AQ(blk,q)}, v12 offset:{32*q}" for q in range(12)]
        def st(blk, q):
            L = [f"  buffer_store_dwordx4 {AQ(blk,q)}, v{R.V_L16}, s[{S_OUT}:{S_OUT+3}], s{S_SR} offen offset:{1024*(q%3)}"]
            if q % 3 == 2: L.append(f"  s_add_u32 s{S_SR}, s{S_SR}, {512*384}")
            return (L, 6)
        def xl(blk, q):
            L = [f"  buffer_load_dwordx4 {AQ(blk,q)}, v{R.V_L16}, s[{S_X}:{S_X+3}], s{S_SX} offen offset:{1024*(q%3)}"]
            if q % 3 == 2: L.append(f"  s_add_u32 s{S_SX}, s{S_SX}, {512*384}")
            return (L, 6)
        linops = {2: [st(0, q) for q in range(6)], 3: [st(0, q) for q in range(6, 12)], 4: [xl(0, q) for q in range(6)],
                  5: [st(1, q) for q in range(6)], 6: [st(1, q) for q in range(6, 12)], 7: [xl(0, q) for q in range(6, 12)],
                  10: [xl(1, q) for q in range(6)], 11: [xl(1, q) for q in range(6, 12)]}
        if lin == 2:
            for j_ in (4, 7, 10, 11): del linops[j_]
            for g, j_ in enumerate([4, 7, 8, 9, 10, 11, 12, 14, 16, 18, 20, 22]): xplan[j_] = [2 * g, 2 * g + 1]
        if lin == 3:
            core.lds_extra.pop(1); core.lds_extra.pop(2); core.lds_extra.pop(4); core.lds_extra.pop(5)
            for blk in range(2):
                core.lds_extra[10 + 4 * blk] = [f"  ds_write_b128 v{13+q%3}, {AQ(blk,q)} offset:{3200*(q//3)}" for q in range(12)]
                core.lds_extra[11 + 4 * blk] = [f"  ds_read_b128 {AQ(blk,q)}, v12 offset:{32*q}" for q in range(12)]
            linops = {7: [xl(0, q) for q in range(6)], 8: [xl(0, q) for q in range(6, 12)] , 12: [xl(1, q) for q in range(6)], 13: [xl(1, q) for q in range(6, 12)]}
            core.lds_extra[11] = core.lds_extra.pop(10); core.lds_extra[12] = [f"  ds_read_b128 {AQ(0,q)}, v12 offset:{32*q}" for q in range(12)]
            core.lds_extra[16] = core.lds_extra.pop(14); core.lds_extra[17] = [f"  ds_read_b128 {AQ(1,q)}, v12 offset:{32*q}" for q in range(12)]
            core.lds_extra.pop(15, None)
            for g in range(12): stplan[1 + g] = [2 * g, 2 * g + 1]
    elif xg == 4:
        for g in range(6):
            stplan[1 + 4 * g] = [4 * g + e for e in range(4)]
            xplan[2 + 4 * g] = [4 * g + e for e in range(4)]
    elif xg == 2:
        for g in range(12): stplan[1 + g] = [2 * g, 2 * g + 1]
        for g in range(12): xplan[[2, 4, 6, 8, 10, 12, 14, 16, 18, 20, 21, 22][g]] = [2 * g, 2 * g + 1]
    elif xg == 1:
        for g in range(12): stplan[1 + g] = [2 * g, 2 * g + 1]
        for q in range(24): xplan.setdefault(2 + (q * 21) // 24, []).append(q)
    perj = {}
    for j in range(1, 24):
        ops = []; nv = 0
        for g in linops.get(j, []):
            ops.append(g); nv += 1
        for q in stplan.get(j, []):
            ops.append(([store_parked(q, S_PXP)], 6)); nv += 1
        for q in xplan.get(j, []):
            blk, sI = q // 12, q % 12
            ops.append(([f"  buffer_load_dwordx4 {Xf(blk,sI)}, v{V_PX[blk]}, s[{S_X}:{S_X+3}], s{S_PXO} offen offset:{32*sI} {['', 'nt', 'sc1', 'sc0 sc1'][OPT['xf']]}"], 6)); nv += 1
        if j in (OPT['tabj'], OPT['tabj'] + 2):
            for gi_, g in enumerate(table_dma_ops(0 if j == OPT['tabj'] else 1)):
                ops.append((g, 6 + 4 * (len(g) - 1))); nv += 1
        if OPT['pf'] and j < 23:
            npf_ = 20 if OPT['pfh'] else 10
            step = OPT['pfs']; first = 23 - npf_ * step
            if j >= first and (j - first) % step == 0:
                idx = (j - first) // step
                t = [f"  s_mov_b32 m0, {PFSCR}", "  s_nop 0", f"  buffer_load_dword v{V_TMP}, s[{S_X}:{S_X+3}], s{S_PF} offen offset:{64 * (idx & 1) if OPT['pfh'] else 0} {['', 'nt', 'sc1', 'sc0 sc1'][OPT['pff']]} lds"]
                if (idx & 1) or not OPT['pfh']: t.append(f"  s_add_u32 s{S_PF}, s{S_PF}, {4*512*384}")
                ops.append((t, 14)); nv += 1
        perj[j] = (ops, nv)
    if CFG['ring5']:
        for j in range(1, 24, 2):
            o1, n1 = perj.get(j, ([], 0)); o2, n2 = perj.get(j + 1, ([], 0))
            core.pend_extra[j] = (o1, o2)
            core.vmwait[j + 2] = n2
    else:
        for j in range(1, 24):
            core.pend_extra[j] = perj[j][0]; core.vmwait[j + 1] = perj[j][1]
    core.extra[23] = []
    core.extra[24] = [(f"  v_add_u32 v56, {IDOFF}, v{R.V_L16}", 4), (f"  ds_read_b128 v[48:51], v56", 8), (f"  ds_read_b128 v[52:55], v56 offset:1024", 8)]
    ps = []
    for blk in range(2):
        for sI in range(12):
            ps.append((f"  v_mfma_f32_32x32x16_bf16 {ACC(blk,sI>>1)}, {vr(52 if sI&1 else 48,4)}, {Xf(blk,sI)}, {ACC(blk,sI>>1)}", []))
    if CFG['ring5']: ps[0] = (ps[0][0], ["  s_waitcnt vmcnt(0)"])
    core.pseudo[24] = ps
    core.extra_first.add(24)
    core.no_barrier.add(25)
    if not CFG['ring5']: core.vmwait[24] = 0
    core.emit(0, 1); core.emit(1, 2)
    if OPT['prof'] >= 2:
        a(f"  v_mov_b32 v47, v{V_TMP}"); stamp(a); a(f"  v_mov_b32 v{V_TMP}, v47")
    for j in range(2, 24): core.emit(j, j + 1)
    if OPT['prof'] >= 2: stamp(a)
    core.emit(24, 25)
    if OPT['prof'] >= 2: stamp(a)
    if OPT['wb']:
        a(f"""  s_cmp_lt_u32 s{S_I}, 4
  s_cbranch_scc1 {name}_nowb
  s_cmp_ge_u32 s2, {8 if OPT['wb'] == 1 else 256}
  s_cbranch_scc1 {name}_nowb
  s_cmp_lg_u32 s{S_W}, 0
  s_cbranch_scc1 {name}_nowb
  buffer_wbl2 sc1
{name}_nowb:""")
    emit_tail(a, core)
    stamp(a)
    a(f"""  s_cmp_ge_u32 s{S_I}, 4
  s_cbranch_scc1 {name}_last""")
    if OPT['endbar']: a("  s_barrier")
    a(f"  s_mov_b32 s{S_PXP}, s{S_PXO}")
    stamp(a)
    a(f"  s_branch {name}_tile")
    a(f"{name}_last:")
    a("  s_nop 15")
    epilogue(a)
    stamp(a)
    a("  s_waitcnt vmcnt(0)")
    stamp(a, True)
    a(f"""  s_waitcnt vmcnt(0)
{name}_done:
  s_endpgm
""")
    for blk in OOL:
        for l in blk: a(l)
    a(kdesc(name, 512, 100, 256))
def emit_loop(a, self, name):
    for j in range(2, 25): self.emit(j, j + 1)
def emit_tail(a, core):
    ch, Pf = core.plan(25, None)
    main = [l for c in ch for l in c]
    for tx, c in core.pending: main += tx
    core.pending = []
    f = []
    f += global_bases_lines(96)
    f += [x_load_line(0, 0, i) for i in range(8)]
    if not OPT['r1late']: f += [x_load_line(0, 1, i) for i in range(8)]
    if not OPT['r2late']: f += [x_load_line(0, 2, i) for i in range(8)]
    fi = 0
    nm = sum(1 for l in main if "v_mfma" in l); per = -(-len(f) // nm)
    for l in main:
        a(l)
        if "v_mfma" in l:
            for _ in range(per):
                if fi < len(f): a(f[fi]); fi += 1
    while fi < len(f): a(f[fi]); fi += 1
    vm.ops.clear(); vm.add(('t', 0), 4); vm.add(('t', 1), 4); vm.add(('x', 0, 0), 8)
    if not OPT['r1late']: vm.add(('x', 0, 1), 8)
    if not OPT['r2late']: vm.add(('x', 0, 2), 8)
```

```python
from asmlib import *
import mlpcore as C
from mlpcore import R, ACC, ACCreg, Hf, WFr, Core, BLK, NBLK, CFG
from k_prep2 import TBL_OFF, TBL_BYTES
import numpy as np
OS = 9744; CS = 1216; PLANE = 608
SB = 49152
TB = [SB + 8 * OS, SB + 8 * OS + 16384]
ZROW = TB[1] + 16384
XCH = 49152; XPS = 416
STATS = TB[1] + 1024
IDOFF = ZROW + 64
PFSCR = IDOFF + 2048
LDS_BYTES = PFSCR + 256
TREG = 73728
SAVEOFF = 0
assert XCH + 106736 <= IDOFF and LDS_BYTES <= 163840 and STATS + 8192 <= ZROW
V_LANE = 0
V_SW = [1, 2, 9]
V_TMP = 3
V_PX = [6, 7]
V_B = 8
V_T = 10
V_IDX = 11
V_XW = [12, 13]
V_XR = [14, 15]
V_GA = [24, 26, 30]; V_GB = [25, 27, 31]
AF = [32, 40]
XR = [48, 80]
XA2 = 96
PT = [32, 40]
def Darch(k, i):
    idx = 16 * k + i
    return 112 + 4 * idx if idx < 36 else 48 + 4 * (idx - 36)
def Dreg(k, i): return ('v', Darch(k, i))
BF = [48, 64, 80]
PARK = 160
S_ST = [78, 79, 80, 81]
def Xf(blk, s):
    r = 160 + 48 * blk + 4 * s; return f"a[{r}:{r+3}]"
S_X = 8; S_OUT = 12; S_TB = 16
S_W = 20; S_I = 21; S_T0 = 28; S_T1 = 29; S_PXO = 30; S_PXN = 31; S_G0 = 32; S_LO = 33; S_HI = 34
S_TX = 64; S_TY = 65; S_TM = 66; S_TG = 67; S_EPS = 68; S_INV = 69
NPX = 512 * 512
STAMP_OFF = 300 << 20
H_OFF = 1 << 20
OPT = dict(dumph=0, prof=0, pf=1, st=3, sbud=100, cbud=32, stc=20, nhi=1, stnt=0, xnt=0, pfn=1, nox=0, nopark=0, sst=11, spf=0, nhs=2, st3=1, hprog=1, samex=0, pfh=0, pfs=1, w1late=0, xg=2, pff=2, xf=0, bias=0, r2late=1, linfin=1, lin=0, skip2=1, wpf=0, cpf=0, cord=1, sord=2, jith=0, ststage=0, cbud2=0, wb=0, w0early=1, r1late=1, zlate=0, tabj=15, endbar=1, hpos=0)
COLS = [0, 1, 8, 9, 2, 3, 10, 11]
S_PXP = 74
S_PF = 75
V_PFA = 3
class VM:
    def __init__(self): self.ops = []
    def add(self, tag, n=1): self.ops += [tag] * n
    def after(self, tag):
        i = max(k for k, t in enumerate(self.ops) if t == tag)
        return len(self.ops) - 1 - i
vm = VM()
OOL = []
def stamp(a, force=False):
    if not OPT['prof']: return
    if OPT['prof'] == 3 and not force: return
    a(f"""  s_memtime s[42:43]
  s_memrealtime s[62:63]
  s_waitcnt lgkmcnt(0)
  v_mov_b32 v{V_TMP}, s42
  s_nop 0
  buffer_store_dword v{V_TMP}, off, s[44:47], s40
  s_nop 1
  v_mov_b32 v{V_TMP}, s62
  s_nop 0
  buffer_store_dword v{V_TMP}, off, s[44:47], s40 offset:256
  s_add_u32 s40, s40, 4""")
def tile_coords(a):
    a(f"""  s_and_b32 s{S_T0}, s2, 7
  s_lshl_b32 s{S_T0}, s{S_T0}, 3
  s_lshr_b32 s{S_T1}, s2, 3
  s_and_b32 s{S_TX}, s{S_T1}, 7
  s_add_u32 s{S_TX}, s{S_TX}, s{S_T0}
  s_lshr_b32 s{S_T1}, s{S_T1}, 3
  s_lshl_b32 s{S_TY}, s{S_I}, 2
  s_add_u32 s{S_TY}, s{S_TY}, s{S_T1}          ; ty = 4*i + (c>>3)
  s_lshl_b32 s{S_T0}, s{S_TY}, 14              ; y0*512 = ty*32*512
  s_lshl_b32 s{S_T1}, s{S_TX}, 3
  s_add_u32 s{S_T0}, s{S_T0}, s{S_T1}
  s_mul_i32 s{S_PXN}, s{S_T0}, 384""")
def global_bases_lines(t):
    L = []
    if OPT['samex']: L += [f"  s_mov_b32 s{S_TX}, 5", f"  s_mov_b32 s{S_TY}, 5"]
    L += f"""  s_lshl_b32 s88, s{S_TY}, 5
  s_sub_u32 s88, s88, 3
  s_lshl_b32 s89, s{S_TX}, 3
  s_sub_u32 s89, s89, 4
  s_lshl_b32 s90, s{S_W}, 2
  s_add_u32 s88, s88, s90
  s_movk_i32 s90, 384
  s_movk_i32 s91, 512
  v_lshrrev_b32 v{t}, 4, v{V_LANE}
  v_bfe_u32 v{t+1}, v{V_LANE}, 3, 1
  v_and_b32 v{t+2}, 7, v{V_LANE}
  v_lshl_add_u32 v{t+1}, v{t+1}, 2, s89
  v_add_u32 v{t}, s88, v{t}
  v_add_u32 v{t+3}, 8, v{t+1}
  v_cmp_gt_u32 s[70:71], s91, v{t+1}
  v_cmp_gt_u32 s[72:73], s91, v{t+3}
  v_lshl_add_u32 v{t+3}, v{t}, 9, v{t+1}
  v_mul_lo_u32 v{t+3}, v{t+3}, s90
  v_lshl_add_u32 v{t+3}, v{t+2}, 4, v{t+3}
  v_mov_b32 v{t+4}, 0x80000000""".split("\n")
    for r in range(3):
        if r > 0:
            L += [f"  v_add_u32 v{t}, 16, v{t}", f"  v_add_u32 v{t+3}, {16*512*384}, v{t+3}"]
        L += [f"  v_cmp_gt_u32 vcc, s91, v{t}"]
        if r == 2:
            L = L[:-1]
            L += [f"  v_lshrrev_b32 v{t+5}, 4, v{V_LANE}", f"  s_lshl_b32 s86, s{S_W}, 2", f"  v_add_u32 v{t+5}, s86, v{t+5}",
                  f"  v_cmp_gt_u32 vcc, 6, v{t+5}", f"  v_subrev_u32 v{t+6}, 2, v{t}", f"  v_subrev_u32 v{t+5}, {2*512*384}, v{t+3}", "  s_nop 0",
                  f"  v_cndmask_b32 v{t}, v{t+6}, v{t}, vcc", f"  v_cndmask_b32 v{t+3}, v{t+5}, v{t+3}, vcc",
                  f"  v_cmp_gt_u32 vcc, s91, v{t}", f"  s_cmp_lt_u32 s{S_W}, 2", "  s_cselect_b64 s[86:87], -1, 0", "  s_and_b64 vcc, vcc, s[86:87]"]
        L += [f"  v_add_u32 v{t+6}, {8*384}, v{t+3}",
              "  s_and_b64 s[92:93], s[70:71], vcc",
              "  s_and_b64 s[94:95], s[72:73], vcc",
              "  s_nop 1",
              f"  v_cndmask_b32 v{V_GA[r]}, v{t+4}, v{t+3}, s[92:93]",
              f"  v_cndmask_b32 v{V_GB[r]}, v{t+4}, v{t+6}, s[94:95]"]
    return L
def global_bases(a, t=128):
    for l in global_bases_lines(t): a(l)
def x_load_line(k, r, i):
    col = COLS[i]
    base = V_GA[r] if col < 8 else V_GB[r]
    off = (col & 7) * 384 + k * 128
    dst = vr(XR[r] + 4 * i, 4) if r < 2 else f"a[{XA2+4*i}:{XA2+4*i+3}]"
    return f"  buffer_load_dwordx4 {dst}, v{base}, s[{S_X}:{S_X+3}], 0 offen offset:{off}"
class Fill:
    def __init__(self, a): self.a = a; self.hi = []; self.lo = []
    def push(self, lines, cost, tag=None, hi=False): (self.hi if hi else self.lo).append((lines, cost, tag))
    def emit1(self, g):
        for l in g[0]: self.a(l)
        if g[2] is not None: vm.add(g[2])
    def pop(self, budget, nhi=1):
        n = 0
        while self.hi and n < nhi:
            g = self.hi.pop(0); self.emit1(g); budget -= g[1]; n += 1
        while self.lo and budget >= self.lo[0][1] * 0.6:
            g = self.lo.pop(0); self.emit1(g); budget -= g[1]
    def flush(self, hi=True, lo=True, n=None):
        if hi:
            while self.hi: self.emit1(self.hi.pop(0))
        if lo:
            c = 0
            while self.lo and (n is None or c < n): self.emit1(self.lo.pop(0)); c += 1
def x_loads(a, k, r):
    for i in range(8): a(x_load_line(k, r, i))
    vm.add(('x', k, r), 8)
def stage_round(a, k, r, hook=None):
    src = XR[r] if r < 2 else XR[0]
    if r == 2:
        for e in range(32): a(f"  v_accvgpr_read_b32 v{XR[0]+e}, a{XA2+e}")
    for d in range(4):
        if hook and OPT['sord'] != 2: hook(d)
        T = PT[d & 1]
        lo = [f"  v_perm_b32 v{T+p}, v{src + 4*(2*p+1) + d}, v{src + 4*(2*p) + d}, s{S_LO}" for p in range(4)]
        hi = [f"  v_perm_b32 v{T+4+p}, v{src + 4*(2*p+1) + d}, v{src + 4*(2*p) + d}, s{S_HI}" for p in range(4)]
        w0 = f"  ds_write_b128 v{V_SW[r]}, {vr(T,4)} offset:{(2*d)*CS}"
        w1 = f"  ds_write_b128 v{V_SW[r]}, {vr(T+4,4)} offset:{(2*d+1)*CS}"
        if OPT['sord'] == 0:
            for l in lo + hi + [w0, w1]: a(l)
        elif OPT['sord'] == 1:
            for l in lo + [w0] + hi + [w1]: a(l)
        else:
            for l in lo + [w0] + hi: a(l)
            if hook: hook(d)
            a(w1)
def table_dma_ops(k):
    d = lambda q: f"  buffer_load_dwordx4 v{R.V_L16}, s[{S_TB}:{S_TB+3}], s{S_TG} offen offset:{1024*q} lds"
    return [
        [f"  s_lshl_b32 s{S_TM}, s{S_W}, 12", f"  s_add_u32 s{S_TG}, s{S_TM}, {k*16384}", f"  s_add_u32 m0, s{S_TM}, {TB[k&1]}", "  s_nop 0", d(0)],
        [d(1)], [d(2)], [d(3)],
    ]
def table_dma(a, k):
    for g in table_dma_ops(k):
        for l in g: a(l)
    vm.add(('t', k), 4)
NCH = 16
def conv_chunk(a, k, hook=None):
    def chan_off(i): j, e = i >> 3, i & 7; return j * OS + e * CS
    def tab_off(i): j, e = i >> 3, i & 7; return TB[k & 1] - TB[0] + j * 2048 + e * 256
    def rdA(i):
        A = AF[i & 1]
        return [f"  ds_read_b32 v{A}, v{V_T} offset:{tab_off(i)}", f"  ds_read_b32 v{A+4}, v{V_T} offset:{tab_off(i)+128}"]
    def rdB(i):
        B = BF[i % 3]
        return [f"  ds_read_b128 a[{B+4*q}:{B+4*q+3}], v{V_B} offset:{chan_off(i)+32*q}" for q in range(4)]
    deep = OPT['cord'] == 6
    if deep:
        for t in rdA(0) + rdB(0) + rdA(1) + rdB(1): a(t)
    else:
        for t in rdA(0) + rdB(0) + rdB(1): a(t)
    if OPT['zlate']: zero_D(a, k)
    for i in range(NCH):
        A = AF[i & 1]; B = BF[i % 3]
        kind, D = Dreg(k, i)
        Dt = f"{kind}[{D}:{D+3}]"
        nxtA = rdA(i + 1) if i + 1 < NCH else []
        nxtB = rdB(i + 2) if i + 2 < NCH else []
        if deep:
            a(f"  s_waitcnt lgkmcnt({6 if i + 1 < NCH else 0})")
        else:
            a(f"  s_waitcnt lgkmcnt({4 if i + 1 < NCH else 0})")
        sm = [f"  v_smfmac_f32_16x16x64_bf16 {Dt}, {vr(A+4*h,4)}, a[{B+8*h}:{B+8*h+7}], v{V_IDX}" for h in range(2)]
        dp = [[f"  v_mov_b32_dpp v{A+4*h+1+g}, v{A+4*h} row_ror:{4*(g+1)} row_mask:0xf bank_mask:0xf" for g in range(3)] for h in range(2)]
        if OPT['cord'] == 0:
            for t in nxtA: a(t)
            for h in range(2):
                for t in dp[h]: a(t)
                rb = nxtB[2*h:2*h+2]
                for t in rb: a(t)
                if len(rb) < 2: a("  s_nop 1")
                a(sm[h])
        elif OPT['cord'] == 1:
            for t in dp[0] + dp[1]: a(t)
            a(sm[0])
            for t in nxtA + nxtB[:2]: a(t)
            if not (nxtA + nxtB[:2]): a("  s_nop 1")
            a(sm[1])
            if hook and OPT['hpos'] == 1: hook(i)
            for t in nxtB[2:]: a(t)
        elif OPT['cord'] == 6:
            A2 = rdA(i + 2) if i + 2 < NCH else []
            for t in dp[0] + dp[1]: a(t)
            a(sm[0])
            for t in A2[:1] + nxtB[:2]: a(t)
            if not (A2[:1] + nxtB[:2]): a("  s_nop 1")
            a(sm[1])
            for t in A2[1:] + nxtB[2:]: a(t)
        elif OPT['cord'] == 3:
            for t in nxtA: a(t)
            for t in dp[0] + dp[1]: a(t)
            a(sm[0])
            for t in nxtB[:2]: a(t)
            if not nxtB[:2]: a("  s_nop 1")
            a(sm[1])
            for t in nxtB[2:]: a(t)
        elif OPT['cord'] == 4:
            for t in dp[0] + dp[1]: a(t)
            a(sm[0])
            for t in nxtA + nxtB[:1]: a(t)
            if not (nxtA + nxtB[:1]): a("  s_nop 1")
            a(sm[1])
            for t in nxtB[1:]: a(t)
        elif OPT['cord'] == 5:
            for t in dp[0] + dp[1]: a(t)
            a(sm[0])
            for t in nxtA[:1]: a(t)
            if not nxtA[:1]: a("  s_nop 1")
            a(sm[1])
            for t in nxtA[1:] + nxtB: a(t)
        elif OPT['cord'] == 2:
            for t in nxtA[:1]: a(t)
            for t in dp[0]: a(t)
            for t in nxtA[1:]: a(t)
            for t in dp[1]: a(t)
            a(sm[0])
            for t in nxtB[:2]: a(t)
            if not nxtB[:2]: a("  s_nop 1")
            a(sm[1])
            for t in nxtB[2:]: a(t)
        if hook and (OPT['hpos'] == 0 or OPT['cord'] != 1): hook(i)
def zero_D(a, k):
    L = [f"  v_mov_b32 v{r}, 0" for r in range(44, 48)] + ["  s_nop 1"]
    for q in range(4):
        base = Darch(k, 4 * q)
        L.append(f"  v_mfma_f32_32x32x16_bf16 v[{base}:{base+15}], v[44:47], v[44:47], 0")
    for l in L: a(l)
def stats_lines(k, i):
    D = Darch(k, i)
    return [f"  v_pk_add_f32 v[16:17], v[16:17], v[{D}:{D+1}]", f"  v_pk_add_f32 v[18:19], v[18:19], v[{D+2}:{D+3}]",
            f"  v_pk_fma_f32 v[20:21], v[{D}:{D+1}], v[{D}:{D+1}], v[20:21]", f"  v_pk_fma_f32 v[22:23], v[{D+2}:{D+3}], v[{D+2}:{D+3}], v[22:23]"]
def move_lines(k, i):
    D = Darch(k, i); A = Dreg(k, i)[1]
    return [f"  v_accvgpr_read_b32 v{D+e}, a{A+e}" for e in range(4)]
def ln_phase(a, wdma, done3):
    if OPT['lin']:
        a(f"""  s_lshl_b32 s{S_T0}, s{S_W}, 5
  s_mul_i32 s{S_T1}, s{S_W}, {8*8*XPS + 4*16}
  v_add_u32 v12, s{S_T0}, v12
  v_add_u32 v13, s{S_T0}, v13
  v_add_u32 v14, s{S_T1}, v14
  v_add_u32 v15, s{S_T1}, v15""")
    a("  s_nop 7")
    for i in range(done3, NCH):
        for l in stats_lines(2, i): a(l)
    a(f"""  s_lshl_b32 s{S_T0}, s{S_W}, 11
  s_add_u32 s{S_T0}, s{S_T0}, {STATS}
  v_add_u32 v24, s{S_T0}, v{R.V_L16}
  v_add_u32 v25, {STATS}, v{R.V_L16}
  ds_write_b128 v24, v[16:19]
  ds_write_b128 v24, v[20:23] offset:1024
  s_waitcnt lgkmcnt(0)
  s_barrier""")
    for w in range(4):
        a(f"  ds_read_b128 v[{96+4*w}:{99+4*w}], v25 offset:{2048*w}")
    for w in range(4):
        a(f"  ds_read_b128 v[{28+4*w}:{31+4*w}], v25 offset:{2048*w+1024}")
    wl = Asm(); wdma(wl); wl = [l for l in wl.L]
    for l in wl[:8]: a(l)
    wl = wl[8:]
    a("  s_waitcnt lgkmcnt(4)")
    a("""  v_pk_add_f32 v[96:97], v[96:97], v[100:101]
  v_pk_add_f32 v[98:99], v[98:99], v[102:103]
  v_pk_add_f32 v[104:105], v[104:105], v[108:109]
  v_pk_add_f32 v[106:107], v[106:107], v[110:111]
  v_pk_add_f32 v[96:97], v[96:97], v[104:105]
  v_pk_add_f32 v[98:99], v[98:99], v[106:107]
  s_waitcnt lgkmcnt(0)
  v_pk_add_f32 v[28:29], v[28:29], v[32:33]
  v_pk_add_f32 v[30:31], v[30:31], v[34:35]
  v_pk_add_f32 v[36:37], v[36:37], v[40:41]
  v_pk_add_f32 v[38:39], v[38:39], v[42:43]
  v_pk_add_f32 v[28:29], v[28:29], v[36:37]
  v_pk_add_f32 v[30:31], v[30:31], v[38:39]""")
    a("  s_barrier        ; everybody has read the statistics: the exchange buffer may overwrite them")
    for r in range(4):
        a(f"  v_mul_f32 v{16+r}, s{S_INV}, v{96+r}")
    for r in range(4):
        a(f"  v_mul_f32 v{28+r}, s{S_INV}, v{28+r}")
    for r in range(4):
        a(f"  v_fma_f32 v{28+r}, -v{16+r}, v{16+r}, v{28+r}")
    for r in range(4):
        a(f"  v_max_f32 v{28+r}, 0, v{28+r}")
    for r in range(4):
        a(f"  v_add_f32 v{28+r}, s{S_EPS}, v{28+r}")
    for r in range(4):
        a(f"  v_rsq_f32 v{20+r}, v{28+r}")
    a("  s_nop 0")
    for r in range(4):
        a(f"  v_mul_f32 v{20+r}, s{R.S_S}, v{20+r}")
    for r in range(4):
        a(f"  v_mul_f32 v{24+r}, -v{16+r}, v{20+r}" .replace("v_mul_f32 v", "v_mul_f32_e64 v"))
    groups = [(k, j) for k in range(3) for j in range(2)]
    def fmas(g):
        k, j = groups[g]; L = []
        for e in range(8):
            D = Darch(k, 8 * j + e)
            L.append(f"  v_pk_fma_f32 v[{D}:{D+1}], v[{D}:{D+1}], v[20:21], v[24:25]")
            L.append(f"  v_pk_fma_f32 v[{D+2}:{D+3}], v[{D+2}:{D+3}], v[22:23], v[26:27]")
        return L
    for l in fmas(0): a(l)
    cnt = 0
    for g, (k, j) in enumerate(groups):
        Ds = [Darch(k, 8 * j + e) for e in range(8)]
        nxt = fmas(g + 1) if g + 1 < len(groups) else []
        for r in range(4):
            T = 32 + 4 * (cnt % 4); cnt += 1
            for e in range(4):
                a(f"  v_cvt_pk_bf16_f32 v{T+e}, v{Ds[2*e]+r}, v{Ds[2*e+1]+r}")
            a(f"  ds_write_b128 v{V_XW[r>>1]}, v[{T}:{T+3}] offset:{(r&1)*8*XPS + 128*k + 16*j}")
            for l in nxt[4*r:4*r+4]: a(l)
            n = 0
            while wl and n < 1:
                l = wl.pop(0); a(l); n += 1
                while wl and l.startswith("  s_"): l = wl.pop(0); a(l)
    for l in wl: a(l)
def w_dma_block(a, blk):
    S_G0 = 32
    for half, cnt in ((0, 4), (1, 2)):
        a(f"  s_add_u32 s{R.S_G}, s{S_G0}, {blk*BLK + 4096*half}\n{C.m0_set(blk, half)}\n  s_nop 0")
        for p in range(cnt):
            a(f"  buffer_load_dwordx4 v{R.V_L16}, s[{R.S_WS}:{R.S_WS+3}], s{R.S_G} offen offset:{1024*p} lds")
    if blk == 1: a(f"  s_add_u32 s{R.S_G}, s{S_G0}, {2*BLK}\n  s_add_u32 s{R.S_G2}, s{S_G0}, {2*BLK+4096}")
def phase_c(a):
    F = Fill(a)
    if OPT['lin']:
        a(f"  v_add_u32 v16, {SAVEOFF}, v{R.V_L16}\n  ds_read_b128 v[12:15], v16")
    for g in range(24):
        L, c = park_group(g); F.push(L if not OPT['nopark'] else ["  s_nop 0 ; cvt"] * 8, c)
    if OPT['r1late']:
        for i in range(8): F.push([x_load_line(0, 1, i)], 12, ('x', 0, 1), hi=True)
    if OPT['r2late']:
        for i in range(8): F.push([x_load_line(0, 2, i)], 12, ('x', 0, 2), hi=True)
    need_by = [8, 16, 24]
    for k in range(3):
        if OPT['ststage'] and k >= 1:
            if k == 1: F.push([f"  v_mov_b32 v{r}, 0" for r in range(16, 24)], 32)
            for i in range(NCH): F.push(stats_lines(k - 1, i), 16)
        for r in range(3):
            late = OPT['r2late'] and k == 0
            if r == 0 and not late: F.flush(hi=True, lo=False)
            if r >= 1 and late:
                for g in [g for g in F.hi if g[2] == ('x', 0, r)]: F.emit1(g)
                F.hi = [g for g in F.hi if g[2] != ('x', 0, r)]
            if r == 2 and OPT['skip2']:
                lab = f"fused_kernel_sk{k}"
                a(f"  s_cmp_ge_u32 s{S_W}, 2\n  s_cbranch_scc1 {lab}")
                a(f"  s_waitcnt vmcnt({vm.after(('x', k, r))})")
                rec = []
                def hk(d):
                    n0 = len(a.L); F.pop(OPT['sbud'], OPT['nhs']); rec.extend(a.L[n0:])
                stage_round(a, k, r, hk)
                a(f"{lab}_j:")
                OOL.append([f"{lab}:"] + rec + [f"  s_branch {lab}_j"])
            else:
                a(f"  s_waitcnt vmcnt({vm.after(('x', k, r))})")
                stage_round(a, k, r, lambda d: F.pop(OPT['sbud'], OPT['nhs'] if (r == 2 or (late and (r == 0 or OPT['r1late']))) else 0))
            if k < 2 and OPT['nox']:
                vm.add(('x', k + 1, r))
            if k < 2 and not OPT['nox']:
                if r == 1:
                    for i in range(8): F.push([x_load_line(k + 1, 1, i)], 12, ('x', k + 1, 1), hi=True)
                if r == 2:
                    F.hi = [([x_load_line(k + 1, 0, i)], 12, ('x', k + 1, 0)) for i in range(8)] + F.hi
                    for i in range(8): F.push([x_load_line(k + 1, 2, i)], 12, ('x', k + 1, 2), hi=True)
        parked = 24 - sum(1 for g in F.lo if 'cvt' in ''.join(g[0]))
        need = need_by[k] - parked
        while need > 0:
            g = F.lo.pop(0); F.emit1(g)
            if 'cvt' in ''.join(g[0]): need -= 1
        if not OPT['zlate']: zero_D(a, k)
        a(f"  s_waitcnt vmcnt({vm.after(('t', k))}) lgkmcnt(0)")
        a("  s_barrier")
        if k == 1: table_dma(a, 2)
        if k == 2 and OPT['w0early']:
            wl = Asm(); w_dma_block(wl, 0); w_dma_block(wl, 1)
            grp = []
            for l in wl.L:
                grp.append(l)
                if 'buffer_load' in l:
                    F.push(grp, 12, ('w', 0), hi=True); grp = []
            if grp: F.push(grp, 8, None, hi=True)
        if not OPT['ststage']:
            if k == 1:
                F.flush(hi=False, lo=True)
                F.push([f"  v_mov_b32 v{r}, 0" for r in range(16, 24)], 32)
                for i in range(NCH): F.push(stats_lines(0, i), OPT['stc'])
            if k == 2:
                for i in range(NCH): F.push(stats_lines(1, i), OPT['stc'])
        stamp(a)
        def hook(i, k=k):
            if k == 2 and i >= 3 and OPT['st3']:
                for l in stats_lines(2, i - 3): a(l)
            F.pop(OPT['cbud'] if not OPT['ststage'] else OPT['cbud2'], OPT['nhi'])
        conv_chunk(a, k, hook)
        if k < 2: a("  s_barrier")
        stamp(a)
    F.flush()
    ln_phase(a, (lambda x: None) if OPT['w0early'] else (lambda x: w_dma_block(x, 0)), NCH - 3 if OPT['st3'] else 0)
    a(f"  s_waitcnt vmcnt({vm.after(('w', 0)) if False else 0}) lgkmcnt(0)\n  s_barrier")
    if OPT['jith']:
        for i in range(CFG['D']):
            a(C.ds_text(i, 0, i))
            for blk in range(2): a(f"  ds_read_b128 {Hf(blk,i)}, v{V_XR[blk]} offset:{32*i}")
        a(f"  s_waitcnt lgkmcnt({3*(CFG['D']-1)})")
        return
    for i in range(CFG['D']): a(C.ds_text(i, 0, i))
    for s in range(12):
        for blk in range(2):
            a(f"  ds_read_b128 {Hf(blk,s)}, v{V_XR[blk]} offset:{32*s}")
    a(f"  s_waitcnt lgkmcnt({15 if OPT['hprog'] else 0})")
EPI_ORDER = [(0, s_) for s_ in range(12)] + [(1, s_) for s_ in range(12)]
def quad(blk, sI): return PARK + 4 * (blk * 12 + sI)
def epi_cvt(blk, sI, p, bounce):
    b = sI >> 1
    kind, r0 = ACCreg(blk, b); r0 += 8 * (sI & 1)
    L = []
    if kind == 'a':
        for e in range(8): L.append(f"  v_accvgpr_read_b32 v{bounce+e}, a{r0+e}")
        r0 = bounce
    L += [f"  v_cvt_pk_bf16_f32 v{p}, v{r0}, v{r0+1}", f"  v_cvt_pk_bf16_f32 v{p+1}, v{r0+2}, v{r0+3}",
          f"  v_cvt_pk_bf16_f32 v{p+2}, v{r0+4}, v{r0+5}", f"  v_cvt_pk_bf16_f32 v{p+3}, v{r0+6}, v{r0+7}"]
    return L
def park_group(g):
    blk, sI = EPI_ORDER[g]
    kind, _ = ACCreg(blk, sI >> 1)
    p = 16 if kind == 'a' else 16 + 4 * (g & 1)
    L = epi_cvt(blk, sI, p, 16)
    q = quad(blk, sI)
    L += [f"  v_accvgpr_write_b32 a{q+e}, v{p+e}" for e in range(4)]
    return L, (32 + (32 if kind == 'a' else 0))
def store_parked(i, spx):
    blk, sI = i // 12, i % 12
    q = quad(blk, sI)
    return f"  buffer_store_dwordx4 a[{q}:{q+3}], v{V_PX[blk]}, s[{S_OUT}:{S_OUT+3}], s{spx} offen offset:{32*sI}{['', ' nt', ' sc1', ' sc0 sc1'][OPT['stnt']]}"
class Epi:
    def __init__(self, a): self.a = a; self.g = 0
    def emit(self, n=1):
        pass
def epilogue(a):
    if not OPT['linfin']:
        for g in range(24):
            blk, sI = g // 12, g % 12
            p = 16 + 4 * (g & 1)
            for t in epi_cvt(blk, sI, p, 40): a(t)
            a(f"  buffer_store_dwordx4 {vr(p,4)}, v{V_PX[blk]}, s[{S_OUT}:{S_OUT+3}], s{S_PXO} offen offset:{32*sI}")
        return
    REG = 73728
    a("  s_waitcnt vmcnt(0)")
    a(f"""  s_mul_i32 s{S_T0}, s{S_W}, 12800
  s_add_u32 s{S_T0}, s{S_T0}, {REG}
  v_and_b32 v24, 31, v{V_LANE}
  v_mul_u32_u24 v24, 400, v24
  v_lshrrev_b32 v25, 5, v{V_LANE}
  v_lshl_add_u32 v24, v25, 4, v24
  v_add_u32 v24, s{S_T0}, v24
  s_mov_b32 s{S_T1}, {(2**32 + 23)//24}""")
    for q in range(3):
        a(f"""  v_add_u32 v28, {64*q}, v{V_LANE}
  v_mul_hi_u32 v29, v28, s{S_T1}
  v_add_lshl_u32 v28, v28, v29, 4
  v_add_u32 v{25+q}, s{S_T0}, v28""")
    a(f"""  s_lshl_b32 s86, s{S_W}, 3
  s_mul_i32 s86, s86, {512*384}
  s_add_u32 s86, s86, s{S_PXO}""")
    for blk in range(2):
        for sI in range(12):
            p = 32 + 4 * (sI & 3)
            for t in epi_cvt(blk, sI, p, 16): a(t)
            a(f"  ds_write_b128 v24, {vr(p,4)} offset:{32*sI}")
        a("  s_waitcnt lgkmcnt(0)")
        for q in range(12):
            a(f"  ds_read_b128 {vr(48+4*q+48*(blk&0),4)}, v{25+q%3} offset:{3200*(q//3)}")
        for q in range(12):
            a(f"  s_waitcnt lgkmcnt({11-q})")
            if q % 3 == 0 and (q or blk): a(f"  s_add_u32 s86, s86, {512*384}")
            a(f"  buffer_store_dwordx4 {vr(48+4*q,4)}, v{R.V_L16}, s[{S_OUT}:{S_OUT+3}], s86 offen offset:{1024*(q%3)}")
        if blk == 0: a("  s_nop 1")
def gen_fused(a, name="fused_kernel", nwg=256):
    CFG['accinit'] = 1
    a(kstart(name))
    h16 = lambda x: int(np.float16(x).view(np.uint16))
    a(f"""
  s_cmp_ge_u32 s2, {nwg}
  s_cbranch_scc1 {name}_done
  s_load_dwordx2 s[48:49], s[0:1], 0       ; x
  s_load_dwordx2 s[50:51], s[0:1], 32      ; out
  s_load_dwordx2 s[38:39], s[0:1], 48      ; ws
  v_lshrrev_b32 v1, 6, v0
  v_and_b32 v{V_LANE}, 63, v0
  s_nop 0
  v_readfirstlane_b32 s{S_W}, v1
  v_lshlrev_b32 v{R.V_L16}, 4, v{V_LANE}
""")
    a(f"""
  s_waitcnt lgkmcnt(0)
  s_mov_b32 s{R.S_WS}, s38
  s_and_b32 s{R.S_WS+1}, s39, 0xffff
  s_mov_b32 s{R.S_WS+2}, {NBLK*BLK}
  s_mov_b32 s{R.S_WS+3}, 0x20000
  s_add_u32 s{S_TB}, s38, {TBL_OFF}
  s_addc_u32 s{S_TB+1}, s39, 0
  s_and_b32 s{S_TB+1}, s{S_TB+1}, 0xffff
  s_mov_b32 s{S_TB+2}, {TBL_BYTES}
  s_mov_b32 s{S_TB+3}, 0x20000
  s_mov_b32 s{S_X}, s48
  s_and_b32 s{S_X+1}, s49, 0xffff
  s_mov_b32 s{S_X+2}, {NPX*384}
  s_mov_b32 s{S_X+3}, 0x20000
  s_mov_b32 s{S_OUT}, s50
  s_and_b32 s{S_OUT+1}, s51, 0xffff
  s_mov_b32 s{S_OUT+2}, {NPX*384}
  s_mov_b32 s{S_OUT+3}, 0x20000
  s_mov_b32 s{R.S_NA}, {hex(f2u(-GA))}
  s_mov_b32 s{R.S_S}, {hex(f2u(GS))}
  s_mov_b32 s85, {hex(f2u(GS * (1.0 - OPT['bias'] / 1000.0)))}
  s_mov_b32 s{R.S_NAH}, {hex(h16(-GA) | (h16(-GA) << 16))}
  s_mov_b32 s{R.S_SH}, {hex(h16(GS) | (h16(GS) << 16))}
  s_mov_b32 s{S_LO}, 0x05040100
  s_mov_b32 s{S_HI}, 0x07060302
  s_mov_b32 s{S_EPS}, {hex(f2u(1e-5))}
  s_mov_b32 s{S_INV}, {hex(f2u(1.0/192))}
  s_mul_i32 s{S_G0}, s{S_W}, 6144
""")
    for s in range(3):
        a(f"  s_add_u32 s{R.S_M[2*s]}, s{S_G0}, {s*BLK}")
        a(f"  s_add_u32 s{R.S_M[2*s+1]}, s{S_G0}, {s*BLK + 4096}")
    if OPT['prof'] or OPT['dumph']:
        a(f"""  s_add_u32 s44, s38, {STAMP_OFF}
  s_addc_u32 s45, s39, 0
  s_and_b32 s45, s45, 0xffff
  s_mov_b32 s46, {256*4*512}
  s_mov_b32 s47, 0x20000
  s_lshl_b32 s40, s2, 2
  s_add_u32 s40, s40, s{S_W}
  s_lshl_b32 s40, s40, 9
  s_add_u32 s52, s38, {H_OFF}
  s_addc_u32 s53, s39, 0
  s_and_b32 s53, s53, 0xffff
  s_mov_b32 s54, {NPX*384}
  s_mov_b32 s55, 0x20000""")
    stamp(a, True)
    a(f"  s_mov_b32 s{S_I}, 0")
    tile_coords(a)
    global_bases(a)
    table_dma(a, 0); table_dma(a, 1)
    x_loads(a, 0, 0)
    if not OPT['r1late']: x_loads(a, 0, 1)
    if not OPT['r2late']: x_loads(a, 0, 2)
    npf = 0
    if OPT['spf']:
        a(f"""  s_lshl_b32 s{S_T0}, s{S_TY}, 5
  s_sub_u32 s{S_T0}, s{S_T0}, 3
  s_max_i32 s{S_T0}, s{S_T0}, 0
  s_add_u32 s{S_T0}, s{S_T0}, s{S_W}
  s_lshl_b32 s{S_T0}, s{S_T0}, 9
  s_lshl_b32 s{S_T1}, s{S_TX}, 3
  s_sub_u32 s{S_T1}, s{S_T1}, 4
  s_max_i32 s{S_T1}, s{S_T1}, 0
  s_add_u32 s{S_T0}, s{S_T0}, s{S_T1}
  s_mul_i32 s{S_PF}, s{S_T0}, 384
  v_min_u32 v{V_TMP}, 47, v{V_LANE}
  v_lshlrev_b32 v{V_TMP}, 7, v{V_TMP}
  s_mov_b32 m0, {PFSCR}
  s_lshr_b32 s{S_T0}, s2, 3
  s_lshl_b32 s{S_T0}, s{S_T0}, 2
  s_add_u32 s{S_T0}, s{S_T0}, s{S_W}
  s_mul_i32 s{S_T0}, s{S_T0}, 5120
  v_lshlrev_b32 v16, 6, v{V_LANE}
  buffer_load_dword v16, s[{R.S_WS}:{R.S_WS+3}], s{S_T0} offen lds
  buffer_load_dword v16, s[{R.S_WS}:{R.S_WS+3}], s{S_T0} offen offset:1024 lds""")
        npf = 2
        for idx in range(20):
            a(f"  buffer_load_dword v{V_TMP}, s[{S_X}:{S_X+3}], s{S_PF} offen offset:{64*(idx&1)} lds")
            if idx & 1: a(f"  s_add_u32 s{S_PF}, s{S_PF}, {4*512*384}")
            npf += 1
    if OPT['wpf']:
        a(f"""  s_mov_b32 m0, {PFSCR}
  s_lshr_b32 s{S_T0}, s2, 3
  s_lshl_b32 s{S_T0}, s{S_T0}, 2
  s_add_u32 s{S_T0}, s{S_T0}, s{S_W}
  s_mul_i32 s{S_T0}, s{S_T0}, 5120
  v_lshlrev_b32 v16, 6, v{V_LANE}
  buffer_load_dword v16, s[{R.S_WS}:{R.S_WS+3}], s{S_T0} offen lds
  buffer_load_dword v16, s[{R.S_WS}:{R.S_WS+3}], s{S_T0} offen offset:1024 lds""")
        npf += 2
    if OPT['cpf']:
        a(f"""  s_getpc_b64 s[88:89]
{{CODEBASE}}:
  v_lshlrev_b32 v17, 7, v{V_LANE}
  s_lshl_b32 s{S_T0}, s{S_W}, 13
  v_add_u32 v17, s{S_T0}, v17""".replace("{CODEBASE}", "fused_kernel_pc"))
        for q in range(3):
            a(f"  v_min_u32 v18, fused_kernel_done-fused_kernel_pc, v17")
            a(f"  global_load_dword v{120+q}, v18, s[88:89]")
            a(f"  v_add_u32 v17, {4*8192}, v17")
            npf += 1
    a(f"""
  v_add_u32 v{R.V_L16B}, {C.RB if CFG['ring5'] else 2*BLK}, v{R.V_L16}
  v_and_b32 v16, 31, v{V_LANE}             ; n
  v_lshrrev_b32 v17, 5, v{V_LANE}          ; hf
  v_lshrrev_b32 v18, 3, v16
  v_and_b32 v19, 7, v16
  s_lshl_b32 s{S_T0}, s{S_W}, 3
  v_add_u32 v18, s{S_T0}, v18
  v_lshl_add_u32 v20, v18, 9, v19
  s_movk_i32 s{S_T1}, 384
  v_mul_lo_u32 v20, v20, s{S_T1}
  v_lshl_add_u32 v{V_PX[0]}, v17, 4, v20
  v_add_u32 v{V_PX[1]}, {4*512*384}, v{V_PX[0]}
  v_lshl_add_u32 v20, v18, 3, v19
  s_movk_i32 s{S_T1}, {XPS}
  v_mul_lo_u32 v20, v20, s{S_T1}
  v_lshrrev_b32 v21, 1, v18                ; row>>1
  v_add_u32 v21, v21, v17                  ; + hf
  v_lshl_add_u32 v20, v21, 4, v20
  v_add_u32 v{V_XR[0]}, {XCH}, v20
  v_add_u32 v{V_XR[1]}, {XCH + 32*XPS + 32}, v20
  v_and_b32 v18, 0x13, v16
  v_bfe_u32 v19, v16, 2, 1
  v_lshl_or_b32 v18, v19, 3, v18
  v_bfe_u32 v19, v16, 3, 1
  v_lshl_or_b32 v18, v19, 2, v18
  v_lshlrev_b32 v19, 3, v17
  v_sub_u32 v18, v18, v19                  ; c(m) - 8hf
""")
    for d in range(4):
        for (base, reg) in ((0, 112), (16, 116)):
            a(f"""  v_cmp_eq_u32 vcc, {base+2*d}, v18
  v_mov_b32 v19, 0x3f80
  s_nop 1
  v_cndmask_b32 v20, 0, v19, vcc
  v_cmp_eq_u32 vcc, {base+2*d+1}, v18
  v_mov_b32 v19, 0x3f800000
  s_nop 1
  v_cndmask_b32 v21, 0, v19, vcc
  v_or_b32 v{reg+d}, v20, v21""")
    a(f"""  v_add_u32 v20, {IDOFF}, v{R.V_L16}
  ds_write_b128 v20, v[112:115]
  ds_write_b128 v20, v[116:119] offset:1024
  v_and_b32 v16, 15, v{V_LANE}             ; nh
  v_lshrrev_b32 v17, 4, v{V_LANE}          ; q
  v_lshrrev_b32 v18, 1, v17
  v_mul_u32_u24 v18, {PLANE}, v18
  v_lshl_add_u32 v18, v16, 5, v18
  v_and_b32 v19, 1, v17
  v_lshl_add_u32 v18, v19, 4, v18
  s_mul_i32 s{S_T0}, s{S_W}, {2*OS}
  s_add_u32 s{S_T0}, s{S_T0}, {SB}
  v_add_u32 v{V_B}, s{S_T0}, v18
  v_and_b32 v18, 1, v16                    ; mh
  v_bfe_u32 v19, v16, 1, 1                 ; par
  v_lshrrev_b32 v20, 2, v16                ; k'
  v_sub_u32 v21, v17, v18
  v_add_u32 v21, 1, v21
  v_lshlrev_b32 v21, 5, v21
  v_lshl_add_u32 v21, v19, 4, v21
  v_sub_u32 v22, 0, v20
  v_and_b32 v22, 3, v22
  v_lshl_add_u32 v21, v22, 2, v21
  s_lshl_b32 s{S_T0}, s{S_W}, 12
  s_add_u32 s{S_T0}, s{S_T0}, {TB[0]}
  v_add_u32 v{V_T}, s{S_T0}, v21
  v_lshlrev_b32 v21, 1, v20                ; 2k'
  v_add_u32 v22, 1, v21                    ; O: 2k'+1
  v_cmp_eq_u32 vcc, 0, v20
  v_mov_b32 v23, 8
  s_nop 1
  v_cndmask_b32 v21, v21, v23, vcc         ; E
  v_cmp_eq_u32 vcc, 1, v19
  s_nop 1
  v_cndmask_b32 v21, v22, v21, vcc         ; s
  v_mov_b32 v{V_IDX}, 0x4444
""")
    for g in range(4):
        a(f"""  v_cmp_le_u32 vcc, {2*g+2}, v21
  v_mov_b32 v22, {0xA << (4*g)}
  s_nop 1
  v_cndmask_b32 v22, 0, v22, vcc
  v_or_b32 v{V_IDX}, v{V_IDX}, v22""")
    a(f"""
  v_lshlrev_b32 v18, 4, v16                ; 2nh*8
  v_lshlrev_b32 v19, 1, v17                ; 2q'
  v_lshlrev_b32 v20, 4, v16
  s_lshl_b32 s{S_T0}, s{S_W}, 5
  s_add_u32 s{S_T0}, s{S_T0}, {XCH}
  v_add_u32 v20, s{S_T0}, v20
  s_movk_i32 s{S_T1}, {XPS}
  v_add_u32 v21, v18, v19
  v_mul_lo_u32 v21, v21, s{S_T1}
  v_add_u32 v{V_XW[0]}, v21, v20
  v_add_u32 v19, 7, v19
  v_and_b32 v19, 7, v19
  v_add_u32 v21, v18, v19
  v_mul_lo_u32 v21, v21, s{S_T1}
  v_add_u32 v{V_XW[1]}, v21, v20
""")
    a(f"  v_mov_b32 v20, 0\n  v_mov_b32 v21, {ZROW}\n  v_lshl_add_u32 v21, v{V_LANE}, 0, v21\n  v_and_b32 v22, 15, v{V_LANE}\n  v_lshlrev_b32 v22, 2, v22\n  v_add_u32 v22, {ZROW}, v22\n  ds_write_b32 v22, v20")
    for r in range(3):
        a(f"""  s_lshl_b32 s{S_T0}, s{S_W}, 6
  s_add_u32 s{S_T0}, s{S_T0}, {256*r}
  v_add_u32 v16, s{S_T0}, v{V_LANE}
  s_movk_i32 s{S_T1}, 608
  v_cmp_gt_u32 vcc, s{S_T1}, v16
  v_subrev_u32 v17, 32, v16
  s_nop 1
  v_cndmask_b32 v16, v17, v16, vcc
  v_and_b32 v18, 7, v16                        ; o
  v_lshrrev_b32 v19, 4, v16                    ; row
  v_bfe_u32 v20, v16, 3, 1                     ; u
  v_mul_u32_u24 v18, {OS}, v18
  v_and_b32 v21, 1, v19
  v_mul_u32_u24 v21, {PLANE}, v21
  v_lshrrev_b32 v19, 1, v19
  v_lshl_add_u32 v21, v19, 5, v21
  v_lshl_add_u32 v21, v20, 4, v21
  v_add_u32 v21, v21, v18
  v_add_u32 v{V_SW[r]}, {SB}, v21""")
    a(f"  s_waitcnt vmcnt({npf})")
    a(f"  s_mov_b32 s{S_PXP}, 0x80000000")
    a(f"{name}_tile:")
    a(f"  s_mov_b32 s{S_PXO}, s{S_PXN}")
    stamp(a, True)
    phase_c(a)
    stamp(a)
    if OPT['dumph']:
        for blk in range(2):
            for s in range(12):
                a(f"  buffer_store_dwordx4 {Hf(blk,s)}, v{V_PX[blk]}, s[52:55], s{S_PXO} offen offset:{32*s}")
        a("  s_waitcnt vmcnt(6)" if False else "  s_waitcnt vmcnt(0)")
    core = Core(a)
    if OPT['jith']: core.jit_reads = lambda t: [f"  ds_read_b128 {Hf(blk,t)}, v{V_XR[blk]} offset:{32*t}" for blk in range(2)]
    tc = Asm()
    tc(f"  s_add_u32 s{S_I}, s{S_I}, 1")
    tile_coords(tc)
    tc(f"""  s_lshl_b32 s{S_T0}, s{S_TY}, 5
  s_sub_u32 s{S_T0}, s{S_T0}, 3
  s_max_i32 s{S_T0}, s{S_T0}, 0
  s_add_u32 s{S_T0}, s{S_T0}, s{S_W}
  s_lshl_b32 s{S_T0}, s{S_T0}, 9
  s_lshl_b32 s{S_T1}, s{S_TX}, 3
  s_sub_u32 s{S_T1}, s{S_T1}, 4
  s_max_i32 s{S_T1}, s{S_T1}, 0
  s_add_u32 s{S_T0}, s{S_T0}, s{S_T1}
  s_mul_i32 s{S_PF}, s{S_T0}, 384
  s_cmp_ge_u32 s{S_I}, 4
  s_cselect_b32 s{S_PF}, 0x80000000, s{S_PF}""")
    tcl = [(l, 4) for l in tc.L]
    ex0 = [(f"  v_min_u32 v{V_TMP}, 47, v{V_LANE}", 4), (f"  v_lshlrev_b32 v{V_TMP}, 7, v{V_TMP}", 4)]
    if OPT['w1late']:
        wl = Asm(); w_dma_block(wl, 1)
        ex0 = [(l, 10 if 'buffer' in l else 4) for l in wl.L] + ex0
    ex0 = ex0 + tcl[:-2] + [(tcl[-2][0] + "\n" + tcl[-1][0], 8)]
    core.extra[0] = ex0
    core.fast_flush = {0}
    core.vmwait[0] = 0
    core.vmwait[1] = 0
    stplan = {}; xplan = {}
    xg = OPT['xg']
    lin = OPT['lin']
    S_SR = 76; S_SX = 77
    linops = {}
    if lin:
        ex0b = f"""  s_mul_i32 s86, s{S_W}, 12800
  s_add_u32 s86, s86, {TREG}
  v_and_b32 v12, 31, v{V_LANE}
  v_mul_u32_u24 v12, 400, v12
  v_lshrrev_b32 v16, 5, v{V_LANE}
  v_lshl_add_u32 v12, v16, 4, v12
  v_add_u32 v12, s86, v12
  s_mov_b32 s87, {(2**32 + 23)//24}""".split("\n")
        for q in range(3):
            ex0b += [f"  v_add_u32 v16, {64*q}, v{V_LANE}", f"  v_mul_hi_u32 v17, v16, s87", f"  v_add_lshl_u32 v16, v16, v17, 4", f"  v_add_u32 v{13+q}, s86, v16"]
        ex0b += [f"  s_lshl_b32 s{S_SR}, s{S_W}, 3", f"  s_mul_i32 s{S_SR}, s{S_SR}, {512*384}", f"  s_add_u32 s{S_SX}, s{S_SR}, s{S_PXO}", f"  s_add_u32 s{S_SR}, s{S_SR}, s{S_PXP}"]
        core.extra[0] = core.extra[0] + [(l, 4) for l in ex0b]
        def AQ(blk, q): r = quad(blk, q); return f"a[{r}:{r+3}]"
        for blk in range(2):
            core.lds_extra[1 + 3 * blk] = [f"  ds_write_b128 v12, {AQ(blk,q)} offset:{32*q}" for q in range(12)]
            core.lds_extra[2 + 3 * blk] = [f"  ds_read_b128 {AQ(blk,q)}, v{13+q%3} offset:{3200*(q//3)}" for q in range(12)]
            if lin == 1:
                core.lds_extra[10 + 4 * blk] = [f"  ds_write_b128 v{13+q%3}, {AQ(blk,q)} offset:{3200*(q//3)}" for q in range(12)]
                core.lds_extra[11 + 4 * blk] = [f"  ds_read_b128 {AQ(blk,q)}, v12 offset:{32*q}" for q in range(12)]
        def st(blk, q):
            L = [f"  buffer_store_dwordx4 {AQ(blk,q)}, v{R.V_L16}, s[{S_OUT}:{S_OUT+3}], s{S_SR} offen offset:{1024*(q%3)}"]
            if q % 3 == 2: L.append(f"  s_add_u32 s{S_SR}, s{S_SR}, {512*384}")
            return (L, 6)
        def xl(blk, q):
            L = [f"  buffer_load_dwordx4 {AQ(blk,q)}, v{R.V_L16}, s[{S_X}:{S_X+3}], s{S_SX} offen offset:{1024*(q%3)}"]
            if q % 3 == 2: L.append(f"  s_add_u32 s{S_SX}, s{S_SX}, {512*384}")
            return (L, 6)
        linops = {2: [st(0, q) for q in range(6)], 3: [st(0, q) for q in range(6, 12)], 4: [xl(0, q) for q in range(6)],
                  5: [st(1, q) for q in range(6)], 6: [st(1, q) for q in range(6, 12)], 7: [xl(0, q) for q in range(6, 12)],
                  10: [xl(1, q) for q in range(6)], 11: [xl(1, q) for q in range(6, 12)]}
        if lin == 2:
            for j_ in (4, 7, 10, 11): del linops[j_]
            for g, j_ in enumerate([4, 7, 8, 9, 10, 11, 12, 14, 16, 18, 20, 22]): xplan[j_] = [2 * g, 2 * g + 1]
        if lin == 3:
            core.lds_extra.pop(1); core.lds_extra.pop(2); core.lds_extra.pop(4); core.lds_extra.pop(5)
            for blk in range(2):
                core.lds_extra[10 + 4 * blk] = [f"  ds_write_b128 v{13+q%3}, {AQ(blk,q)} offset:{3200*(q//3)}" for q in range(12)]
                core.lds_extra[11 + 4 * blk] = [f"  ds_read_b128 {AQ(blk,q)}, v12 offset:{32*q}" for q in range(12)]
            linops = {7: [xl(0, q) for q in range(6)], 8: [xl(0, q) for q in range(6, 12)] , 12: [xl(1, q) for q in range(6)], 13: [xl(1, q) for q in range(6, 12)]}
            core.lds_extra[11] = core.lds_extra.pop(10); core.lds_extra[12] = [f"  ds_read_b128 {AQ(0,q)}, v12 offset:{32*q}" for q in range(12)]
            core.lds_extra[16] = core.lds_extra.pop(14); core.lds_extra[17] = [f"  ds_read_b128 {AQ(1,q)}, v12 offset:{32*q}" for q in range(12)]
            core.lds_extra.pop(15, None)
            for g in range(12): stplan[1 + g] = [2 * g, 2 * g + 1]
    elif xg == 4:
        for g in range(6):
            stplan[1 + 4 * g] = [4 * g + e for e in range(4)]
            xplan[2 + 4 * g] = [4 * g + e for e in range(4)]
    elif xg == 2:
        for g in range(12): stplan[1 + g] = [2 * g, 2 * g + 1]
        for g in range(12): xplan[[2, 4, 6, 8, 10, 12, 14, 16, 18, 20, 21, 22][g]] = [2 * g, 2 * g + 1]
    elif xg == 1:
        for g in range(12): stplan[1 + g] = [2 * g, 2 * g + 1]
        for q in range(24): xplan.setdefault(2 + (q * 21) // 24, []).append(q)
    perj = {}
    for j in range(1, 24):
        ops = []; nv = 0
        for g in linops.get(j, []):
            ops.append(g); nv += 1
        for q in stplan.get(j, []):
            ops.append(([store_parked(q, S_PXP)], 6)); nv += 1
        for q in xplan.get(j, []):
            blk, sI = q // 12, q % 12
            ops.append(([f"  buffer_load_dwordx4 {Xf(blk,sI)}, v{V_PX[blk]}, s[{S_X}:{S_X+3}], s{S_PXO} offen offset:{32*sI} {['', 'nt', 'sc1', 'sc0 sc1'][OPT['xf']]}"], 6)); nv += 1
        if j in (OPT['tabj'], OPT['tabj'] + 2):
            for gi_, g in enumerate(table_dma_ops(0 if j == OPT['tabj'] else 1)):
                ops.append((g, 6 + 4 * (len(g) - 1))); nv += 1
        if OPT['pf'] and j < 23:
            npf_ = 20 if OPT['pfh'] else 10
            step = OPT['pfs']; first = 23 - npf_ * step
            if j >= first and (j - first) % step == 0:
                idx = (j - first) // step
                t = [f"  s_mov_b32 m0, {PFSCR}", "  s_nop 0", f"  buffer_load_dword v{V_TMP}, s[{S_X}:{S_X+3}], s{S_PF} offen offset:{64 * (idx & 1) if OPT['pfh'] else 0} {['', 'nt', 'sc1', 'sc0 sc1'][OPT['pff']]} lds"]
                if (idx & 1) or not OPT['pfh']: t.append(f"  s_add_u32 s{S_PF}, s{S_PF}, {4*512*384}")
                ops.append((t, 14)); nv += 1
        perj[j] = (ops, nv)
    if CFG['ring5']:
        for j in range(1, 24, 2):
            o1, n1 = perj.get(j, ([], 0)); o2, n2 = perj.get(j + 1, ([], 0))
            core.pend_extra[j] = (o1, o2)
            core.vmwait[j + 2] = n2
    else:
        for j in range(1, 24):
            core.pend_extra[j] = perj[j][0]; core.vmwait[j + 1] = perj[j][1]
    core.extra[23] = []
    core.extra[24] = [(f"  v_add_u32 v56, {IDOFF}, v{R.V_L16}", 4), (f"  ds_read_b128 v[48:51], v56", 8), (f"  ds_read_b128 v[52:55], v56 offset:1024", 8)]
    ps = []
    for blk in range(2):
        for sI in range(12):
            ps.append((f"  v_mfma_f32_32x32x16_bf16 {ACC(blk,sI>>1)}, {vr(52 if sI&1 else 48,4)}, {Xf(blk,sI)}, {ACC(blk,sI>>1)}", []))
    if CFG['ring5']: ps[0] = (ps[0][0], ["  s_waitcnt vmcnt(0)"])
    core.pseudo[24] = ps
    core.extra_first.add(24)
    core.no_barrier.add(25)
    if not CFG['ring5']: core.vmwait[24] = 0
    core.emit(0, 1); core.emit(1, 2)
    if OPT['prof'] >= 2:
        a(f"  v_mov_b32 v47, v{V_TMP}"); stamp(a); a(f"  v_mov_b32 v{V_TMP}, v47")
    for j in range(2, 24): core.emit(j, j + 1)
    if OPT['prof'] >= 2: stamp(a)
    core.emit(24, 25)
    if OPT['prof'] >= 2: stamp(a)
    if OPT['wb']:
        a(f"""  s_cmp_lt_u32 s{S_I}, 4
  s_cbranch_scc1 {name}_nowb
  s_cmp_ge_u32 s2, {8 if OPT['wb'] == 1 else 256}
  s_cbranch_scc1 {name}_nowb
  s_cmp_lg_u32 s{S_W}, 0
  s_cbranch_scc1 {name}_nowb
  buffer_wbl2 sc1
{name}_nowb:""")
    emit_tail(a, core)
    stamp(a)
    a(f"""  s_cmp_ge_u32 s{S_I}, 4
  s_cbranch_scc1 {name}_last""")
    if OPT['endbar']: a("  s_barrier")
    a(f"  s_mov_b32 s{S_PXP}, s{S_PXO}")
    stamp(a)
    a(f"  s_branch {name}_tile")
    a(f"{name}_last:")
    if CFG['ring5']: a("  s_barrier        ; the transposition buffers overlap ring slots that slower waves may still read")
    a("  s_nop 15")
    epilogue(a)
    stamp(a)
    a("  s_waitcnt vmcnt(0)")
    stamp(a, True)
    a(f"""  s_waitcnt vmcnt(0)
{name}_done:
  s_endpgm
""")
    for blk in OOL:
        for l in blk: a(l)
    a(kdesc(name, 512, 100, 256))
def emit_loop(a, self, name):
    for j in range(2, 25): self.emit(j, j + 1)
def emit_tail(a, core):
    ch, Pf = core.plan(25, None)
    main = [l for c in ch for l in c]
    for tx, c in core.pending: main += tx
    core.pending = []
    f = []
    f += global_bases_lines(96)
    f += [x_load_line(0, 0, i) for i in range(8)]
    if not OPT['r1late']: f += [x_load_line(0, 1, i) for i in range(8)]
    if not OPT['r2late']: f += [x_load_line(0, 2, i) for i in range(8)]
    fi = 0
    nm = sum(1 for l in main if "v_mfma" in l); per = -(-len(f) // nm)
    for l in main:
        a(l)
        if "v_mfma" in l:
            for _ in range(per):
                if fi < len(f): a(f[fi]); fi += 1
    while fi < len(f): a(f[fi]); fi += 1
    vm.ops.clear(); vm.add(('t', 0), 4); vm.add(('t', 1), 4); vm.add(('x', 0, 0), 8)
    if not OPT['r1late']: vm.add(('x', 0, 1), 8)
    if not OPT['r2late']: vm.add(('x', 0, 2), 8)
```

```python
import sys
from asmlib import *
from k_prep2 import gen_prep
import mlpcore, k_fused
for arg in sys.argv[2:]:
    if '=' in arg:
        k, v = arg.split('=')
        if k in mlpcore.CFG: mlpcore.CFG[k] = v if k in ('gelu',) else int(v)
        else: k_fused.OPT[k] = int(v)
body = Asm()
n0 = gen_prep(body)
k_fused.gen_fused(body)
out = f"""; ConvNeXt block (depthwise 7x7 conv -> LayerNorm -> Linear/GELU(tanh)/Linear -> residual), gfx950, hand-scheduled (own generator scripts).
; prep_kernel : re-lays out w1/w2 as a stream of MFMA A-fragments (26 blocks x 24 KiB) and builds the sparse conv weight table in d_ws.
; fused_kernel: one workgroup (4 waves, 512 registers each) per CU, 4 tiles of 8x32 pixels each.
;   phase C: x window -> LDS (transposed, 64 channels at a time) -> depthwise conv as 2:4-sparse MFMA (Toeplitz weights) -> LayerNorm -> LDS exchange
;   phase M: flash-style MLP, weights streamed L2 -> LDS ring (LDS-DMA), GELU = x / (s + s*2^(-x(x^2+a))) with the sigmoid factor in packed f16,
;            residual added with identity MFMAs, outputs of a tile are stored during the next tile's MLP phase.
; @launch kernel=prep_kernel grid=({n0},1,1) block=(256,1,1) lds=0
; @launch kernel=fused_kernel grid=(256,1,1) block=(256,1,1) lds={k_fused.LDS_BYTES}
.amdgcn_target "amdgcn-amd-amdhsa--gfx950"
""" + body.text()
open(sys.argv[1], "w").write(out)
```

```python
from asmlib import *
import mlpcore as C
from mlpcore import R, ACC, ACCreg, Hf, WFr, Core, BLK, NBLK, CFG
from k_prep2 import TBL_OFF, TBL_BYTES
import numpy as np
OS = 9744; CS = 1216; PLANE = 608
SB = 49152
TB = [SB + 8 * OS, SB + 8 * OS + 16384]
ZROW = TB[1] + 16384
XCH = 49152; XPS = 416
STATS = TB[1] + 1024
IDOFF = ZROW + 64
PFSCR = IDOFF + 2048
LDS_BYTES = PFSCR + 256
TREG = 73728
SAVEOFF = 0
assert XCH + 106736 <= IDOFF and LDS_BYTES <= 163840 and STATS + 8192 <= ZROW
V_LANE = 0
V_SW = [1, 2, 9]
V_TMP = 3
V_PX = [6, 7]
V_B = 8
V_T = 10
V_IDX = 11
V_XW = [12, 13]
V_XR = [14, 15]
V_GA = [24, 26, 30]; V_GB = [25, 27, 31]
AF = [32, 40]
XR = [48, 80]
XA2 = 96
PT = [32, 40]
def Darch(k, i):
    idx = 16 * k + i
    return 112 + 4 * idx if idx < 36 else 48 + 4 * (idx - 36)
def Dreg(k, i): return ('v', Darch(k, i))
BF = [48, 64, 80]
PARK = 160
S_ST = [78, 79, 80, 81]
def Xf(blk, s):
    r = 160 + 48 * blk + 4 * s; return f"a[{r}:{r+3}]"
S_X = 8; S_OUT = 12; S_TB = 16
S_W = 20; S_I = 21; S_T0 = 28; S_T1 = 29; S_PXO = 30; S_PXN = 31; S_G0 = 32; S_LO = 33; S_HI = 34
S_TX = 64; S_TY = 65; S_TM = 66; S_TG = 67; S_EPS = 68; S_INV = 69
NPX = 512 * 512
STAMP_OFF = 300 << 20
H_OFF = 1 << 20
OPT = dict(dumph=0, prof=0, pf=1, st=3, sbud=100, cbud=32, stc=20, nhi=1, stnt=0, xnt=0, pfn=1, nox=0, nopark=0, sst=11, spf=0, nhs=2, st3=1, hprog=1, samex=0, pfh=0, pfs=1, w1late=0, xg=2, pff=2, xf=0, bias=0, r2late=1, linfin=1, lin=0, skip2=1, wpf=0, cpf=0, cord=1, sord=2, jith=0, ststage=0, cbud2=0, wb=0, w0early=1, r1late=1, zlate=0, tabj=15, endbar=1, hpos=0, prepark=0, k2=0, hj=25, finf=3)
COLS = [0, 1, 8, 9, 2, 3, 10, 11]
S_HN = 83
S_PXP = 74
S_PF = 75
V_PFA = 3
class VM:
    def __init__(self): self.ops = []
    def add(self, tag, n=1): self.ops += [tag] * n
    def after(self, tag):
        i = max(k for k, t in enumerate(self.ops) if t == tag)
        return len(self.ops) - 1 - i
vm = VM()
OOL = []
def stamp(a, force=False):
    if not OPT['prof']: return
    if OPT['prof'] == 3 and not force: return
    a(f"""  s_memtime s[42:43]
  s_memrealtime s[62:63]
  s_waitcnt lgkmcnt(0)
  v_mov_b32 v{V_TMP}, s42
  s_nop 0
  buffer_store_dword v{V_TMP}, off, s[44:47], s40
  s_nop 1
  v_mov_b32 v{V_TMP}, s62
  s_nop 0
  buffer_store_dword v{V_TMP}, off, s[44:47], s40 offset:256
  s_add_u32 s40, s40, 4""")
def tile_coords(a):
    a(f"""  s_and_b32 s{S_T0}, s2, 7
  s_lshl_b32 s{S_T0}, s{S_T0}, 3
  s_lshr_b32 s{S_T1}, s2, 3
  s_and_b32 s{S_TX}, s{S_T1}, 7
  s_add_u32 s{S_TX}, s{S_TX}, s{S_T0}
  s_lshr_b32 s{S_T1}, s{S_T1}, 3
  s_lshl_b32 s{S_TY}, s{S_I}, 2
  s_add_u32 s{S_TY}, s{S_TY}, s{S_T1}          ; ty = 4*i + (c>>3)
  s_lshl_b32 s{S_T0}, s{S_TY}, 14              ; y0*512 = ty*32*512
  s_lshl_b32 s{S_T1}, s{S_TX}, 3
  s_add_u32 s{S_T0}, s{S_T0}, s{S_T1}
  s_mul_i32 s{S_PXN}, s{S_T0}, 384""")
    if OPT['k2']:
        a(f"""  s_lshl_b32 s{S_T0}, s{S_TY}, 6
  s_add_u32 s{S_T0}, s{S_T0}, s{S_TX}
  s_mul_i32 s{S_T0}, s{S_T0}, 98304
  s_mul_i32 s{S_T1}, s{S_W}, 24576
  s_add_u32 s{S_HN}, s{S_T0}, s{S_T1}""")
def global_bases_lines(t):
    L = []
    if OPT['samex']: L += [f"  s_mov_b32 s{S_TX}, 5", f"  s_mov_b32 s{S_TY}, 5"]
    L += f"""  s_lshl_b32 s88, s{S_TY}, 5
  s_sub_u32 s88, s88, 3
  s_lshl_b32 s89, s{S_TX}, 3
  s_sub_u32 s89, s89, 4
  s_lshl_b32 s90, s{S_W}, 2
  s_add_u32 s88, s88, s90
  s_movk_i32 s90, 384
  s_movk_i32 s91, 512
  v_lshrrev_b32 v{t}, 4, v{V_LANE}
  v_bfe_u32 v{t+1}, v{V_LANE}, 3, 1
  v_and_b32 v{t+2}, 7, v{V_LANE}
  v_lshl_add_u32 v{t+1}, v{t+1}, 2, s89
  v_add_u32 v{t}, s88, v{t}
  v_add_u32 v{t+3}, 8, v{t+1}
  v_cmp_gt_u32 s[70:71], s91, v{t+1}
  v_cmp_gt_u32 s[72:73], s91, v{t+3}
  v_lshl_add_u32 v{t+3}, v{t}, 9, v{t+1}
  v_mul_lo_u32 v{t+3}, v{t+3}, s90
  v_lshl_add_u32 v{t+3}, v{t+2}, 4, v{t+3}
  v_mov_b32 v{t+4}, 0x80000000""".split("\n")
    for r in range(3):
        if r > 0:
            L += [f"  v_add_u32 v{t}, 16, v{t}", f"  v_add_u32 v{t+3}, {16*512*384}, v{t+3}"]
        L += [f"  v_cmp_gt_u32 vcc, s91, v{t}"]
        if r == 2:
            L = L[:-1]
            L += [f"  v_lshrrev_b32 v{t+5}, 4, v{V_LANE}", f"  s_lshl_b32 s86, s{S_W}, 2", f"  v_add_u32 v{t+5}, s86, v{t+5}",
                  f"  v_cmp_gt_u32 vcc, 6, v{t+5}", f"  v_subrev_u32 v{t+6}, 2, v{t}", f"  v_subrev_u32 v{t+5}, {2*512*384}, v{t+3}", "  s_nop 0",
                  f"  v_cndmask_b32 v{t}, v{t+6}, v{t}, vcc", f"  v_cndmask_b32 v{t+3}, v{t+5}, v{t+3}, vcc",
                  f"  v_cmp_gt_u32 vcc, s91, v{t}", f"  s_cmp_lt_u32 s{S_W}, 2", "  s_cselect_b64 s[86:87], -1, 0", "  s_and_b64 vcc, vcc, s[86:87]"]
        L += [f"  v_add_u32 v{t+6}, {8*384}, v{t+3}",
              "  s_and_b64 s[92:93], s[70:71], vcc",
              "  s_and_b64 s[94:95], s[72:73], vcc",
              "  s_nop 1",
              f"  v_cndmask_b32 v{V_GA[r]}, v{t+4}, v{t+3}, s[92:93]",
              f"  v_cndmask_b32 v{V_GB[r]}, v{t+4}, v{t+6}, s[94:95]"]
    return L
def global_bases(a, t=128):
    for l in global_bases_lines(t): a(l)
def x_load_line(k, r, i):
    col = COLS[i]
    base = V_GA[r] if col < 8 else V_GB[r]
    off = (col & 7) * 384 + k * 128
    dst = vr(XR[r] + 4 * i, 4) if r < 2 else f"a[{XA2+4*i}:{XA2+4*i+3}]"
    return f"  buffer_load_dwordx4 {dst}, v{base}, s[{S_X}:{S_X+3}], 0 offen offset:{off}"
class Fill:
    def __init__(self, a): self.a = a; self.hi = []; self.lo = []
    def push(self, lines, cost, tag=None, hi=False): (self.hi if hi else self.lo).append((lines, cost, tag))
    def emit1(self, g):
        for l in g[0]: self.a(l)
        if g[2] is not None: vm.add(g[2])
    def pop(self, budget, nhi=1):
        n = 0
        while self.hi and n < nhi:
            g = self.hi.pop(0); self.emit1(g); budget -= g[1]; n += 1
        while self.lo and budget >= self.lo[0][1] * 0.6:
            g = self.lo.pop(0); self.emit1(g); budget -= g[1]
    def flush(self, hi=True, lo=True, n=None):
        if hi:
            while self.hi: self.emit1(self.hi.pop(0))
        if lo:
            c = 0
            while self.lo and (n is None or c < n): self.emit1(self.lo.pop(0)); c += 1
def x_loads(a, k, r):
    for i in range(8): a(x_load_line(k, r, i))
    vm.add(('x', k, r), 8)
def stage_round(a, k, r, hook=None):
    src = XR[r] if r < 2 else XR[0]
    if r == 2:
        for e in range(32): a(f"  v_accvgpr_read_b32 v{XR[0]+e}, a{XA2+e}")
    for d in range(4):
        if hook and OPT['sord'] != 2: hook(d)
        T = PT[d & 1]
        lo = [f"  v_perm_b32 v{T+p}, v{src + 4*(2*p+1) + d}, v{src + 4*(2*p) + d}, s{S_LO}" for p in range(4)]
        hi = [f"  v_perm_b32 v{T+4+p}, v{src + 4*(2*p+1) + d}, v{src + 4*(2*p) + d}, s{S_HI}" for p in range(4)]
        w0 = f"  ds_write_b128 v{V_SW[r]}, {vr(T,4)} offset:{(2*d)*CS}"
        w1 = f"  ds_write_b128 v{V_SW[r]}, {vr(T+4,4)} offset:{(2*d+1)*CS}"
        if OPT['sord'] == 0:
            for l in lo + hi + [w0, w1]: a(l)
        elif OPT['sord'] == 1:
            for l in lo + [w0] + hi + [w1]: a(l)
        else:
            for l in lo + [w0] + hi: a(l)
            if hook: hook(d)
            a(w1)
def table_dma_ops(k):
    d = lambda q: f"  buffer_load_dwordx4 v{R.V_L16}, s[{S_TB}:{S_TB+3}], s{S_TG} offen offset:{1024*q} lds"
    return [
        [f"  s_lshl_b32 s{S_TM}, s{S_W}, 12", f"  s_add_u32 s{S_TG}, s{S_TM}, {k*16384}", f"  s_add_u32 m0, s{S_TM}, {TB[k&1]}", "  s_nop 0", d(0)],
        [d(1)], [d(2)], [d(3)],
    ]
def table_dma(a, k):
    for g in table_dma_ops(k):
        for l in g: a(l)
    vm.add(('t', k), 4)
NCH = 16
def conv_chunk(a, k, hook=None):
    def chan_off(i): j, e = i >> 3, i & 7; return j * OS + e * CS
    def tab_off(i): j, e = i >> 3, i & 7; return TB[k & 1] - TB[0] + j * 2048 + e * 256
    def rdA(i):
        A = AF[i & 1]
        return [f"  ds_read_b32 v{A}, v{V_T} offset:{tab_off(i)}", f"  ds_read_b32 v{A+4}, v{V_T} offset:{tab_off(i)+128}"]
    def rdB(i):
        B = BF[i % 3]
        return [f"  ds_read_b128 a[{B+4*q}:{B+4*q+3}], v{V_B} offset:{chan_off(i)+32*q}" for q in range(4)]
    deep = OPT['cord'] == 6
    if deep:
        for t in rdA(0) + rdB(0) + rdA(1) + rdB(1): a(t)
    else:
        for t in rdA(0) + rdB(0) + rdB(1): a(t)
    if OPT['zlate']: zero_D(a, k)
    for i in range(NCH):
        A = AF[i & 1]; B = BF[i % 3]
        kind, D = Dreg(k, i)
        Dt = f"{kind}[{D}:{D+3}]"
        nxtA = rdA(i + 1) if i + 1 < NCH else []
        nxtB = rdB(i + 2) if i + 2 < NCH else []
        if deep:
            a(f"  s_waitcnt lgkmcnt({6 if i + 1 < NCH else 0})")
        else:
            a(f"  s_waitcnt lgkmcnt({4 if i + 1 < NCH else 0})")
        sm = [f"  v_smfmac_f32_16x16x64_bf16 {Dt}, {vr(A+4*h,4)}, a[{B+8*h}:{B+8*h+7}], v{V_IDX}" for h in range(2)]
        dp = [[f"  v_mov_b32_dpp v{A+4*h+1+g}, v{A+4*h} row_ror:{4*(g+1)} row_mask:0xf bank_mask:0xf" for g in range(3)] for h in range(2)]
        if OPT['cord'] == 0:
            for t in nxtA: a(t)
            for h in range(2):
                for t in dp[h]: a(t)
                rb = nxtB[2*h:2*h+2]
                for t in rb: a(t)
                if len(rb) < 2: a("  s_nop 1")
                a(sm[h])
        elif OPT['cord'] == 1:
            for t in dp[0] + dp[1]: a(t)
            a(sm[0])
            for t in nxtA + nxtB[:2]: a(t)
            if not (nxtA + nxtB[:2]): a("  s_nop 1")
            a(sm[1])
            if hook and OPT['hpos'] == 1: hook(i)
            for t in nxtB[2:]: a(t)
        elif OPT['cord'] == 6:
            A2 = rdA(i + 2) if i + 2 < NCH else []
            for t in dp[0] + dp[1]: a(t)
            a(sm[0])
            for t in A2[:1] + nxtB[:2]: a(t)
            if not (A2[:1] + nxtB[:2]): a("  s_nop 1")
            a(sm[1])
            for t in A2[1:] + nxtB[2:]: a(t)
        elif OPT['cord'] == 3:
            for t in nxtA: a(t)
            for t in dp[0] + dp[1]: a(t)
            a(sm[0])
            for t in nxtB[:2]: a(t)
            if not nxtB[:2]: a("  s_nop 1")
            a(sm[1])
            for t in nxtB[2:]: a(t)
        elif OPT['cord'] == 4:
            for t in dp[0] + dp[1]: a(t)
            a(sm[0])
            for t in nxtA + nxtB[:1]: a(t)
            if not (nxtA + nxtB[:1]): a("  s_nop 1")
            a(sm[1])
            for t in nxtB[1:]: a(t)
        elif OPT['cord'] == 5:
            for t in dp[0] + dp[1]: a(t)
            a(sm[0])
            for t in nxtA[:1]: a(t)
            if not nxtA[:1]: a("  s_nop 1")
            a(sm[1])
            for t in nxtA[1:] + nxtB: a(t)
        elif OPT['cord'] == 2:
            for t in nxtA[:1]: a(t)
            for t in dp[0]: a(t)
            for t in nxtA[1:]: a(t)
            for t in dp[1]: a(t)
            a(sm[0])
            for t in nxtB[:2]: a(t)
            if not nxtB[:2]: a("  s_nop 1")
            a(sm[1])
            for t in nxtB[2:]: a(t)
        if hook and (OPT['hpos'] == 0 or OPT['cord'] != 1): hook(i)
def zero_D(a, k):
    L = [f"  v_mov_b32 v{r}, 0" for r in range(44, 48)] + ["  s_nop 1"]
    for q in range(4):
        base = Darch(k, 4 * q)
        L.append(f"  v_mfma_f32_32x32x16_bf16 v[{base}:{base+15}], v[44:47], v[44:47], 0")
    for l in L: a(l)
def stats_lines(k, i):
    D = Darch(k, i)
    return [f"  v_pk_add_f32 v[16:17], v[16:17], v[{D}:{D+1}]", f"  v_pk_add_f32 v[18:19], v[18:19], v[{D+2}:{D+3}]",
            f"  v_pk_fma_f32 v[20:21], v[{D}:{D+1}], v[{D}:{D+1}], v[20:21]", f"  v_pk_fma_f32 v[22:23], v[{D+2}:{D+3}], v[{D+2}:{D+3}], v[22:23]"]
def move_lines(k, i):
    D = Darch(k, i); A = Dreg(k, i)[1]
    return [f"  v_accvgpr_read_b32 v{D+e}, a{A+e}" for e in range(4)]
def ln_phase(a, wdma, done3):
    if OPT['lin']:
        a(f"""  s_lshl_b32 s{S_T0}, s{S_W}, 5
  s_mul_i32 s{S_T1}, s{S_W}, {8*8*XPS + 4*16}
  v_add_u32 v12, s{S_T0}, v12
  v_add_u32 v13, s{S_T0}, v13
  v_add_u32 v14, s{S_T1}, v14
  v_add_u32 v15, s{S_T1}, v15""")
    a("  s_nop 7")
    for i in range(done3, NCH):
        for l in stats_lines(2, i): a(l)
    a(f"""  s_lshl_b32 s{S_T0}, s{S_W}, 11
  s_add_u32 s{S_T0}, s{S_T0}, {STATS}
  v_add_u32 v24, s{S_T0}, v{R.V_L16}
  v_add_u32 v25, {STATS}, v{R.V_L16}
  ds_write_b128 v24, v[16:19]
  ds_write_b128 v24, v[20:23] offset:1024
  s_waitcnt lgkmcnt(0)
  s_barrier""")
    for w in range(4):
        a(f"  ds_read_b128 v[{96+4*w}:{99+4*w}], v25 offset:{2048*w}")
    for w in range(4):
        a(f"  ds_read_b128 v[{28+4*w}:{31+4*w}], v25 offset:{2048*w+1024}")
    wl = Asm(); wdma(wl); wl = [l for l in wl.L]
    for l in wl[:8]: a(l)
    wl = wl[8:]
    a("  s_waitcnt lgkmcnt(4)")
    a("""  v_pk_add_f32 v[96:97], v[96:97], v[100:101]
  v_pk_add_f32 v[98:99], v[98:99], v[102:103]
  v_pk_add_f32 v[104:105], v[104:105], v[108:109]
  v_pk_add_f32 v[106:107], v[106:107], v[110:111]
  v_pk_add_f32 v[96:97], v[96:97], v[104:105]
  v_pk_add_f32 v[98:99], v[98:99], v[106:107]
  s_waitcnt lgkmcnt(0)
  v_pk_add_f32 v[28:29], v[28:29], v[32:33]
  v_pk_add_f32 v[30:31], v[30:31], v[34:35]
  v_pk_add_f32 v[36:37], v[36:37], v[40:41]
  v_pk_add_f32 v[38:39], v[38:39], v[42:43]
  v_pk_add_f32 v[28:29], v[28:29], v[36:37]
  v_pk_add_f32 v[30:31], v[30:31], v[38:39]""")
    a("  s_barrier        ; everybody has read the statistics: the exchange buffer may overwrite them")
    for r in range(4):
        a(f"  v_mul_f32 v{16+r}, s{S_INV}, v{96+r}")
    for r in range(4):
        a(f"  v_mul_f32 v{28+r}, s{S_INV}, v{28+r}")
    for r in range(4):
        a(f"  v_fma_f32 v{28+r}, -v{16+r}, v{16+r}, v{28+r}")
    for r in range(4):
        a(f"  v_max_f32 v{28+r}, 0, v{28+r}")
    for r in range(4):
        a(f"  v_add_f32 v{28+r}, s{S_EPS}, v{28+r}")
    for r in range(4):
        a(f"  v_rsq_f32 v{20+r}, v{28+r}")
    a("  s_nop 0")
    for r in range(4):
        a(f"  v_mul_f32 v{20+r}, s{R.S_S}, v{20+r}")
    for r in range(4):
        a(f"  v_mul_f32 v{24+r}, -v{16+r}, v{20+r}" .replace("v_mul_f32 v", "v_mul_f32_e64 v"))
    groups = [(k, j) for k in range(3) for j in range(2)]
    def fmas(g):
        k, j = groups[g]; L = []
        for e in range(8):
            D = Darch(k, 8 * j + e)
            L.append(f"  v_pk_fma_f32 v[{D}:{D+1}], v[{D}:{D+1}], v[20:21], v[24:25]")
            L.append(f"  v_pk_fma_f32 v[{D+2}:{D+3}], v[{D+2}:{D+3}], v[22:23], v[26:27]")
        return L
    for l in fmas(0): a(l)
    cnt = 0
    for g, (k, j) in enumerate(groups):
        Ds = [Darch(k, 8 * j + e) for e in range(8)]
        nxt = fmas(g + 1) if g + 1 < len(groups) else []
        for r in range(4):
            T = 32 + 4 * (cnt % 4); cnt += 1
            for e in range(4):
                a(f"  v_cvt_pk_bf16_f32 v{T+e}, v{Ds[2*e]+r}, v{Ds[2*e+1]+r}")
            a(f"  ds_write_b128 v{V_XW[r>>1]}, v[{T}:{T+3}] offset:{(r&1)*8*XPS + 128*k + 16*j}")
            for l in nxt[4*r:4*r+4]: a(l)
            n = 0
            while wl and n < 1:
                l = wl.pop(0); a(l); n += 1
                while wl and l.startswith("  s_"): l = wl.pop(0); a(l)
    for l in wl: a(l)
def w_dma_block(a, blk):
    S_G0 = 32
    for half, cnt in ((0, 4), (1, 2)):
        a(f"  s_add_u32 s{R.S_G}, s{S_G0}, {blk*BLK + 4096*half}\n{C.m0_set(blk, half)}\n  s_nop 0")
        for p in range(cnt):
            a(f"  buffer_load_dwordx4 v{R.V_L16}, s[{R.S_WS}:{R.S_WS+3}], s{R.S_G} offen offset:{1024*p} lds")
    if blk == 1: a(f"  s_add_u32 s{R.S_G}, s{S_G0}, {2*BLK}\n  s_add_u32 s{R.S_G2}, s{S_G0}, {2*BLK+4096}")
def h_load_lines():
    L = []
    for q in range(24):
        blk, sI = q // 12, q % 12
        if q % 4 == 0: L.append(f"  s_add_u32 s84, s{S_HN}, {1024*q}")
        L.append(f"  buffer_load_dwordx4 {Hf(blk,sI)}, v{R.V_L16}, s[52:55], s84 offen offset:{1024*(q%4)}")
    return L
def phase_k2(a):
    wl = Asm(); w_dma_block(wl, 0); w_dma_block(wl, 1); wl = list(wl.L)
    for g in range(24):
        n = 0
        while wl and n < 1:
            l = wl.pop(0); a(l)
            if 'buffer_load' in l: n += 1
        if g == 12:
            for l in wl: a(l)
            wl = []
        for l in park_group(g)[0]: a(l)
    for l in wl: a(l)
    a("  s_waitcnt vmcnt(6)\n  s_barrier")
    for i in range(CFG['D']): a(C.ds_text(i, 0, i))
    a("  s_waitcnt lgkmcnt(0)")
def phase_c(a):
    if OPT['k2']: return phase_k2(a)
    F = Fill(a)
    if OPT['lin']:
        a(f"  v_add_u32 v16, {SAVEOFF}, v{R.V_L16}\n  ds_read_b128 v[12:15], v16")
    for g in range(24):
        L, c = park_group(g); F.push(L if not OPT['nopark'] else ["  s_nop 0 ; cvt"] * 8, c)
    if OPT['r1late']:
        for i in range(8): F.push([x_load_line(0, 1, i)], 12, ('x', 0, 1), hi=True)
    if OPT['r2late']:
        for i in range(8): F.push([x_load_line(0, 2, i)], 12, ('x', 0, 2), hi=True)
    F.flush(hi=False, lo=True, n=OPT['prepark'])
    need_by = [8, 16, 24]
    for k in range(3):
        if OPT['ststage'] and k >= 1:
            if k == 1: F.push([f"  v_mov_b32 v{r}, 0" for r in range(16, 24)], 32)
            for i in range(NCH): F.push(stats_lines(k - 1, i), 16)
        for r in range(3):
            late = OPT['r2late'] and k == 0
            if r == 0 and not late: F.flush(hi=True, lo=False)
            if r >= 1 and late:
                for g in [g for g in F.hi if g[2] == ('x', 0, r)]: F.emit1(g)
                F.hi = [g for g in F.hi if g[2] != ('x', 0, r)]
            if r == 2 and OPT['skip2']:
                lab = f"fused_kernel_sk{k}"
                a(f"  s_cmp_ge_u32 s{S_W}, 2\n  s_cbranch_scc1 {lab}")
                a(f"  s_waitcnt vmcnt({vm.after(('x', k, r))})")
                rec = []
                def hk(d):
                    n0 = len(a.L); F.pop(OPT['sbud'], OPT['nhs']); rec.extend(a.L[n0:])
                stage_round(a, k, r, hk)
                a(f"{lab}_j:")
                OOL.append([f"{lab}:"] + rec + [f"  s_branch {lab}_j"])
            else:
                a(f"  s_waitcnt vmcnt({vm.after(('x', k, r))})")
                stage_round(a, k, r, lambda d: F.pop(OPT['sbud'], OPT['nhs'] if (r == 2 or (late and (r == 0 or OPT['r1late']))) else 0))
            if k < 2 and OPT['nox']:
                vm.add(('x', k + 1, r))
            if k < 2 and not OPT['nox']:
                if r == 1:
                    for i in range(8): F.push([x_load_line(k + 1, 1, i)], 12, ('x', k + 1, 1), hi=True)
                if r == 2:
                    F.hi = [([x_load_line(k + 1, 0, i)], 12, ('x', k + 1, 0)) for i in range(8)] + F.hi
                    for i in range(8): F.push([x_load_line(k + 1, 2, i)], 12, ('x', k + 1, 2), hi=True)
        parked = 24 - sum(1 for g in F.lo if 'cvt' in ''.join(g[0]))
        need = need_by[k] - parked
        while need > 0:
            g = F.lo.pop(0); F.emit1(g)
            if 'cvt' in ''.join(g[0]): need -= 1
        if not OPT['zlate']: zero_D(a, k)
        a(f"  s_waitcnt vmcnt({vm.after(('t', k))}) lgkmcnt(0)")
        a("  s_barrier")
        if k == 1: table_dma(a, 2)
        if k == 2 and OPT['w0early']:
            wl = Asm(); w_dma_block(wl, 0); w_dma_block(wl, 1)
            grp = []
            for l in wl.L:
                grp.append(l)
                if 'buffer_load' in l:
                    F.push(grp, 12, ('w', 0), hi=True); grp = []
            if grp: F.push(grp, 8, None, hi=True)
        if not OPT['ststage']:
            if k == 1:
                F.flush(hi=False, lo=True)
                F.push([f"  v_mov_b32 v{r}, 0" for r in range(16, 24)], 32)
                for i in range(NCH): F.push(stats_lines(0, i), OPT['stc'])
            if k == 2:
                for i in range(NCH): F.push(stats_lines(1, i), OPT['stc'])
        stamp(a)
        def hook(i, k=k):
            if k == 2 and i >= 3 and OPT['st3']:
                for l in stats_lines(2, i - 3): a(l)
            F.pop(OPT['cbud'] if not OPT['ststage'] else OPT['cbud2'], OPT['nhi'])
        conv_chunk(a, k, hook)
        if k < 2: a("  s_barrier")
        stamp(a)
    F.flush()
    ln_phase(a, (lambda x: None) if OPT['w0early'] else (lambda x: w_dma_block(x, 0)), NCH - 3 if OPT['st3'] else 0)
    a(f"  s_waitcnt vmcnt({vm.after(('w', 0)) if False else 0}) lgkmcnt(0)\n  s_barrier")
    if OPT['jith']:
        for i in range(CFG['D']):
            a(C.ds_text(i, 0, i))
            for blk in range(2): a(f"  ds_read_b128 {Hf(blk,i)}, v{V_XR[blk]} offset:{32*i}")
        a(f"  s_waitcnt lgkmcnt({3*(CFG['D']-1)})")
        return
    for i in range(CFG['D']): a(C.ds_text(i, 0, i))
    for s in range(12):
        for blk in range(2):
            a(f"  ds_read_b128 {Hf(blk,s)}, v{V_XR[blk]} offset:{32*s}")
    a(f"  s_waitcnt lgkmcnt({15 if OPT['hprog'] else 0})")
EPI_ORDER = [(0, s_) for s_ in range(12)] + [(1, s_) for s_ in range(12)]
def quad(blk, sI): return PARK + 4 * (blk * 12 + sI)
def epi_cvt(blk, sI, p, bounce):
    b = sI >> 1
    kind, r0 = ACCreg(blk, b); r0 += 8 * (sI & 1)
    L = []
    if kind == 'a':
        for e in range(8): L.append(f"  v_accvgpr_read_b32 v{bounce+e}, a{r0+e}")
        r0 = bounce
    L += [f"  v_cvt_pk_bf16_f32 v{p}, v{r0}, v{r0+1}", f"  v_cvt_pk_bf16_f32 v{p+1}, v{r0+2}, v{r0+3}",
          f"  v_cvt_pk_bf16_f32 v{p+2}, v{r0+4}, v{r0+5}", f"  v_cvt_pk_bf16_f32 v{p+3}, v{r0+6}, v{r0+7}"]
    return L
def park_group(g):
    blk, sI = EPI_ORDER[g]
    kind, _ = ACCreg(blk, sI >> 1)
    p = 16 if kind == 'a' else 16 + 4 * (g & 1)
    L = epi_cvt(blk, sI, p, 16)
    q = quad(blk, sI)
    L += [f"  v_accvgpr_write_b32 a{q+e}, v{p+e}" for e in range(4)]
    return L, (32 + (32 if kind == 'a' else 0))
def store_parked(i, spx):
    blk, sI = i // 12, i % 12
    q = quad(blk, sI)
    return f"  buffer_store_dwordx4 a[{q}:{q+3}], v{V_PX[blk]}, s[{S_OUT}:{S_OUT+3}], s{spx} offen offset:{32*sI}{['', ' nt', ' sc1', ' sc0 sc1'][OPT['stnt']]}"
class Epi:
    def __init__(self, a): self.a = a; self.g = 0
    def emit(self, n=1):
        pass
def epilogue(a):
    if not OPT['linfin']:
        for g in range(24):
            blk, sI = g // 12, g % 12
            p = 16 + 4 * (g & 1)
            for t in epi_cvt(blk, sI, p, 40): a(t)
            a(f"  buffer_store_dwordx4 {vr(p,4)}, v{V_PX[blk]}, s[{S_OUT}:{S_OUT+3}], s{S_PXO} offen offset:{32*sI}")
        return
    REG = 73728
    a("  s_waitcnt vmcnt(0)")
    a(f"""  s_mul_i32 s{S_T0}, s{S_W}, 12800
  s_add_u32 s{S_T0}, s{S_T0}, {REG}
  v_and_b32 v24, 31, v{V_LANE}
  v_mul_u32_u24 v24, 400, v24
  v_lshrrev_b32 v25, 5, v{V_LANE}
  v_lshl_add_u32 v24, v25, 4, v24
  v_add_u32 v24, s{S_T0}, v24
  s_mov_b32 s{S_T1}, {(2**32 + 23)//24}""")
    for q in range(3):
        a(f"""  v_add_u32 v28, {64*q}, v{V_LANE}
  v_mul_hi_u32 v29, v28, s{S_T1}
  v_add_lshl_u32 v28, v28, v29, 4
  v_add_u32 v{25+q}, s{S_T0}, v28""")
    a(f"""  s_lshl_b32 s86, s{S_W}, 3
  s_mul_i32 s86, s86, {512*384}
  s_add_u32 s86, s86, s{S_PXO}""")
    for blk in range(2):
        for sI in range(12):
            p = 32 + 4 * (sI & 3)
            for t in epi_cvt(blk, sI, p, 16): a(t)
            a(f"  ds_write_b128 v24, {vr(p,4)} offset:{32*sI}")
        a("  s_waitcnt lgkmcnt(0)")
        for q in range(12):
            a(f"  ds_read_b128 {vr(48+4*q+48*(blk&0),4)}, v{25+q%3} offset:{3200*(q//3)}")
        for q in range(12):
            a(f"  s_waitcnt lgkmcnt({11-q})")
            if q % 3 == 0 and (q or blk): a(f"  s_add_u32 s86, s86, {512*384}")
            a(f"  buffer_store_dwordx4 {vr(48+4*q,4)}, v{R.V_L16}, s[{S_OUT}:{S_OUT+3}], s86 offen offset:{1024*(q%3)} {['', 'nt', 'sc1', 'sc0 sc1'][OPT['finf']]}")
        if blk == 0: a("  s_nop 1")
def gen_fused(a, name="fused_kernel", nwg=256):
    CFG['accinit'] = 1
    a(kstart(name))
    h16 = lambda x: int(np.float16(x).view(np.uint16))
    a(f"""
  s_cmp_ge_u32 s2, {nwg}
  s_cbranch_scc1 {name}_done
  s_load_dwordx2 s[48:49], s[0:1], 0       ; x
  s_load_dwordx2 s[50:51], s[0:1], 32      ; out
  s_load_dwordx2 s[38:39], s[0:1], 48      ; ws
  v_lshrrev_b32 v1, 6, v0
  v_and_b32 v{V_LANE}, 63, v0
  s_nop 0
  v_readfirstlane_b32 s{S_W}, v1
  v_lshlrev_b32 v{R.V_L16}, 4, v{V_LANE}
""")
    a(f"""
  s_waitcnt lgkmcnt(0)
  s_mov_b32 s{R.S_WS}, s38
  s_and_b32 s{R.S_WS+1}, s39, 0xffff
  s_mov_b32 s{R.S_WS+2}, {NBLK*BLK}
  s_mov_b32 s{R.S_WS+3}, 0x20000
  s_add_u32 s{S_TB}, s38, {TBL_OFF}
  s_addc_u32 s{S_TB+1}, s39, 0
  s_and_b32 s{S_TB+1}, s{S_TB+1}, 0xffff
  s_mov_b32 s{S_TB+2}, {TBL_BYTES}
  s_mov_b32 s{S_TB+3}, 0x20000
  s_mov_b32 s{S_X}, s48
  s_and_b32 s{S_X+1}, s49, 0xffff
  s_mov_b32 s{S_X+2}, {NPX*384}
  s_mov_b32 s{S_X+3}, 0x20000
  s_mov_b32 s{S_OUT}, s50
  s_and_b32 s{S_OUT+1}, s51, 0xffff
  s_mov_b32 s{S_OUT+2}, {NPX*384}
  s_mov_b32 s{S_OUT+3}, 0x20000
  s_mov_b32 s{R.S_NA}, {hex(f2u(-GA))}
  s_mov_b32 s{R.S_S}, {hex(f2u(GS))}
  s_mov_b32 s85, {hex(f2u(GS * (1.0 - OPT['bias'] / 1000.0)))}
  s_mov_b32 s{R.S_NAH}, {hex(h16(-GA) | (h16(-GA) << 16))}
  s_mov_b32 s{R.S_SH}, {hex(h16(GS) | (h16(GS) << 16))}
  s_mov_b32 s{S_LO}, 0x05040100
  s_mov_b32 s{S_HI}, 0x07060302
  s_mov_b32 s{S_EPS}, {hex(f2u(1e-5))}
  s_mov_b32 s{S_INV}, {hex(f2u(1.0/192))}
  s_mul_i32 s{S_G0}, s{S_W}, 6144
""")
    for s in range(3):
        a(f"  s_add_u32 s{R.S_M[2*s]}, s{S_G0}, {s*BLK}")
        a(f"  s_add_u32 s{R.S_M[2*s+1]}, s{S_G0}, {s*BLK + 4096}")
    if OPT['prof'] or OPT['dumph']:
        a(f"""  s_add_u32 s44, s38, {STAMP_OFF}
  s_addc_u32 s45, s39, 0
  s_and_b32 s45, s45, 0xffff
  s_mov_b32 s46, {256*4*512}
  s_mov_b32 s47, 0x20000
  s_lshl_b32 s40, s2, 2
  s_add_u32 s40, s40, s{S_W}
  s_lshl_b32 s40, s40, 9
  s_add_u32 s52, s38, {H_OFF}
  s_addc_u32 s53, s39, 0
  s_and_b32 s53, s53, 0xffff
  s_mov_b32 s54, {NPX*384}
  s_mov_b32 s55, 0x20000""")
    stamp(a, True)
    a(f"  s_mov_b32 s{S_I}, 0")
    tile_coords(a)
    if OPT['k2']:
        a(f"""  s_add_u32 s52, s38, {H_OFF}
  s_addc_u32 s53, s39, 0
  s_and_b32 s53, s53, 0xffff
  s_mov_b32 s54, {NPX*384}
  s_mov_b32 s55, 0x20000""")
        for l in h_load_lines(): a(l)
    else:
        global_bases(a)
        table_dma(a, 0); table_dma(a, 1)
        x_loads(a, 0, 0)
        if not OPT['r1late']: x_loads(a, 0, 1)
        if not OPT['r2late']: x_loads(a, 0, 2)
    npf = 0
    if OPT['spf']:
        a(f"""  s_lshl_b32 s{S_T0}, s{S_TY}, 5
  s_sub_u32 s{S_T0}, s{S_T0}, 3
  s_max_i32 s{S_T0}, s{S_T0}, 0
  s_add_u32 s{S_T0}, s{S_T0}, s{S_W}
  s_lshl_b32 s{S_T0}, s{S_T0}, 9
  s_lshl_b32 s{S_T1}, s{S_TX}, 3
  s_sub_u32 s{S_T1}, s{S_T1}, 4
  s_max_i32 s{S_T1}, s{S_T1}, 0
  s_add_u32 s{S_T0}, s{S_T0}, s{S_T1}
  s_mul_i32 s{S_PF}, s{S_T0}, 384
  v_min_u32 v{V_TMP}, 47, v{V_LANE}
  v_lshlrev_b32 v{V_TMP}, 7, v{V_TMP}
  s_mov_b32 m0, {PFSCR}
  s_lshr_b32 s{S_T0}, s2, 3
  s_lshl_b32 s{S_T0}, s{S_T0}, 2
  s_add_u32 s{S_T0}, s{S_T0}, s{S_W}
  s_mul_i32 s{S_T0}, s{S_T0}, 5120
  v_lshlrev_b32 v16, 6, v{V_LANE}
  buffer_load_dword v16, s[{R.S_WS}:{R.S_WS+3}], s{S_T0} offen lds
  buffer_load_dword v16, s[{R.S_WS}:{R.S_WS+3}], s{S_T0} offen offset:1024 lds""")
        npf = 2
        for idx in range(20):
            a(f"  buffer_load_dword v{V_TMP}, s[{S_X}:{S_X+3}], s{S_PF} offen offset:{64*(idx&1)} lds")
            if idx & 1: a(f"  s_add_u32 s{S_PF}, s{S_PF}, {4*512*384}")
            npf += 1
    if OPT['wpf']:
        a(f"""  s_mov_b32 m0, {PFSCR}
  s_lshr_b32 s{S_T0}, s2, 3
  s_lshl_b32 s{S_T0}, s{S_T0}, 2
  s_add_u32 s{S_T0}, s{S_T0}, s{S_W}
  s_mul_i32 s{S_T0}, s{S_T0}, 5120
  v_lshlrev_b32 v16, 6, v{V_LANE}
  buffer_load_dword v16, s[{R.S_WS}:{R.S_WS+3}], s{S_T0} offen lds
  buffer_load_dword v16, s[{R.S_WS}:{R.S_WS+3}], s{S_T0} offen offset:1024 lds""")
        npf += 2
    if OPT['cpf']:
        a(f"""  s_getpc_b64 s[88:89]
{{CODEBASE}}:
  v_lshlrev_b32 v17, 7, v{V_LANE}
  s_lshl_b32 s{S_T0}, s{S_W}, 13
  v_add_u32 v17, s{S_T0}, v17""".replace("{CODEBASE}", "fused_kernel_pc"))
        for q in range(3):
            a(f"  v_min_u32 v18, fused_kernel_done-fused_kernel_pc, v17")
            a(f"  global_load_dword v{120+q}, v18, s[88:89]")
            a(f"  v_add_u32 v17, {4*8192}, v17")
            npf += 1
    a(f"""
  v_add_u32 v{R.V_L16B}, {C.RB if CFG['ring5'] else 2*BLK}, v{R.V_L16}
  v_and_b32 v16, 31, v{V_LANE}             ; n
  v_lshrrev_b32 v17, 5, v{V_LANE}          ; hf
  v_lshrrev_b32 v18, 3, v16
  v_and_b32 v19, 7, v16
  s_lshl_b32 s{S_T0}, s{S_W}, 3
  v_add_u32 v18, s{S_T0}, v18
  v_lshl_add_u32 v20, v18, 9, v19
  s_movk_i32 s{S_T1}, 384
  v_mul_lo_u32 v20, v20, s{S_T1}
  v_lshl_add_u32 v{V_PX[0]}, v17, 4, v20
  v_add_u32 v{V_PX[1]}, {4*512*384}, v{V_PX[0]}
  v_lshl_add_u32 v20, v18, 3, v19
  s_movk_i32 s{S_T1}, {XPS}
  v_mul_lo_u32 v20, v20, s{S_T1}
  v_lshrrev_b32 v21, 1, v18                ; row>>1
  v_add_u32 v21, v21, v17                  ; + hf
  v_lshl_add_u32 v20, v21, 4, v20
  v_add_u32 v{V_XR[0]}, {XCH}, v20
  v_add_u32 v{V_XR[1]}, {XCH + 32*XPS + 32}, v20
  v_and_b32 v18, 0x13, v16
  v_bfe_u32 v19, v16, 2, 1
  v_lshl_or_b32 v18, v19, 3, v18
  v_bfe_u32 v19, v16, 3, 1
  v_lshl_or_b32 v18, v19, 2, v18
  v_lshlrev_b32 v19, 3, v17
  v_sub_u32 v18, v18, v19                  ; c(m) - 8hf
""")
    for d in range(4):
        for (base, reg) in ((0, 112), (16, 116)):
            a(f"""  v_cmp_eq_u32 vcc, {base+2*d}, v18
  v_mov_b32 v19, 0x3f80
  s_nop 1
  v_cndmask_b32 v20, 0, v19, vcc
  v_cmp_eq_u32 vcc, {base+2*d+1}, v18
  v_mov_b32 v19, 0x3f800000
  s_nop 1
  v_cndmask_b32 v21, 0, v19, vcc
  v_or_b32 v{reg+d}, v20, v21""")
    a(f"""  v_add_u32 v20, {IDOFF}, v{R.V_L16}
  ds_write_b128 v20, v[112:115]
  ds_write_b128 v20, v[116:119] offset:1024
  v_and_b32 v16, 15, v{V_LANE}             ; nh
  v_lshrrev_b32 v17, 4, v{V_LANE}          ; q
  v_lshrrev_b32 v18, 1, v17
  v_mul_u32_u24 v18, {PLANE}, v18
  v_lshl_add_u32 v18, v16, 5, v18
  v_and_b32 v19, 1, v17
  v_lshl_add_u32 v18, v19, 4, v18
  s_mul_i32 s{S_T0}, s{S_W}, {2*OS}
  s_add_u32 s{S_T0}, s{S_T0}, {SB}
  v_add_u32 v{V_B}, s{S_T0}, v18
  v_and_b32 v18, 1, v16                    ; mh
  v_bfe_u32 v19, v16, 1, 1                 ; par
  v_lshrrev_b32 v20, 2, v16                ; k'
  v_sub_u32 v21, v17, v18
  v_add_u32 v21, 1, v21
  v_lshlrev_b32 v21, 5, v21
  v_lshl_add_u32 v21, v19, 4, v21
  v_sub_u32 v22, 0, v20
  v_and_b32 v22, 3, v22
  v_lshl_add_u32 v21, v22, 2, v21
  s_lshl_b32 s{S_T0}, s{S_W}, 12
  s_add_u32 s{S_T0}, s{S_T0}, {TB[0]}
  v_add_u32 v{V_T}, s{S_T0}, v21
  v_lshlrev_b32 v21, 1, v20                ; 2k'
  v_add_u32 v22, 1, v21                    ; O: 2k'+1
  v_cmp_eq_u32 vcc, 0, v20
  v_mov_b32 v23, 8
  s_nop 1
  v_cndmask_b32 v21, v21, v23, vcc         ; E
  v_cmp_eq_u32 vcc, 1, v19
  s_nop 1
  v_cndmask_b32 v21, v22, v21, vcc         ; s
  v_mov_b32 v{V_IDX}, 0x4444
""")
    for g in range(4):
        a(f"""  v_cmp_le_u32 vcc, {2*g+2}, v21
  v_mov_b32 v22, {0xA << (4*g)}
  s_nop 1
  v_cndmask_b32 v22, 0, v22, vcc
  v_or_b32 v{V_IDX}, v{V_IDX}, v22""")
    a(f"""
  v_lshlrev_b32 v18, 4, v16                ; 2nh*8
  v_lshlrev_b32 v19, 1, v17                ; 2q'
  v_lshlrev_b32 v20, 4, v16
  s_lshl_b32 s{S_T0}, s{S_W}, 5
  s_add_u32 s{S_T0}, s{S_T0}, {XCH}
  v_add_u32 v20, s{S_T0}, v20
  s_movk_i32 s{S_T1}, {XPS}
  v_add_u32 v21, v18, v19
  v_mul_lo_u32 v21, v21, s{S_T1}
  v_add_u32 v{V_XW[0]}, v21, v20
  v_add_u32 v19, 7, v19
  v_and_b32 v19, 7, v19
  v_add_u32 v21, v18, v19
  v_mul_lo_u32 v21, v21, s{S_T1}
  v_add_u32 v{V_XW[1]}, v21, v20
""")
    a(f"  v_mov_b32 v20, 0\n  v_mov_b32 v21, {ZROW}\n  v_lshl_add_u32 v21, v{V_LANE}, 0, v21\n  v_and_b32 v22, 15, v{V_LANE}\n  v_lshlrev_b32 v22, 2, v22\n  v_add_u32 v22, {ZROW}, v22\n  ds_write_b32 v22, v20")
    for r in range(3):
        a(f"""  s_lshl_b32 s{S_T0}, s{S_W}, 6
  s_add_u32 s{S_T0}, s{S_T0}, {256*r}
  v_add_u32 v16, s{S_T0}, v{V_LANE}
  s_movk_i32 s{S_T1}, 608
  v_cmp_gt_u32 vcc, s{S_T1}, v16
  v_subrev_u32 v17, 32, v16
  s_nop 1
  v_cndmask_b32 v16, v17, v16, vcc
  v_and_b32 v18, 7, v16                        ; o
  v_lshrrev_b32 v19, 4, v16                    ; row
  v_bfe_u32 v20, v16, 3, 1                     ; u
  v_mul_u32_u24 v18, {OS}, v18
  v_and_b32 v21, 1, v19
  v_mul_u32_u24 v21, {PLANE}, v21
  v_lshrrev_b32 v19, 1, v19
  v_lshl_add_u32 v21, v19, 5, v21
  v_lshl_add_u32 v21, v20, 4, v21
  v_add_u32 v21, v21, v18
  v_add_u32 v{V_SW[r]}, {SB}, v21""")
    if not OPT['k2']: a(f"  s_waitcnt vmcnt({npf})")
    a(f"  s_mov_b32 s{S_PXP}, 0x80000000")
    a(f"{name}_tile:")
    a(f"  s_mov_b32 s{S_PXO}, s{S_PXN}")
    stamp(a, True)
    phase_c(a)
    stamp(a)
    if OPT['dumph']:
        for blk in range(2):
            for s in range(12):
                a(f"  buffer_store_dwordx4 {Hf(blk,s)}, v{V_PX[blk]}, s[52:55], s{S_PXO} offen offset:{32*s}")
        a("  s_waitcnt vmcnt(6)" if False else "  s_waitcnt vmcnt(0)")
    core = Core(a)
    if OPT['jith']: core.jit_reads = lambda t: [f"  ds_read_b128 {Hf(blk,t)}, v{V_XR[blk]} offset:{32*t}" for blk in range(2)]
    tc = Asm()
    tc(f"  s_add_u32 s{S_I}, s{S_I}, 1")
    tile_coords(tc)
    tc(f"""  s_lshl_b32 s{S_T0}, s{S_TY}, 5
  s_sub_u32 s{S_T0}, s{S_T0}, 3
  s_max_i32 s{S_T0}, s{S_T0}, 0
  s_add_u32 s{S_T0}, s{S_T0}, s{S_W}
  s_lshl_b32 s{S_T0}, s{S_T0}, 9
  s_lshl_b32 s{S_T1}, s{S_TX}, 3
  s_sub_u32 s{S_T1}, s{S_T1}, 4
  s_max_i32 s{S_T1}, s{S_T1}, 0
  s_add_u32 s{S_T0}, s{S_T0}, s{S_T1}
  s_mul_i32 s{S_PF}, s{S_T0}, 384
  s_cmp_ge_u32 s{S_I}, 4
  s_cselect_b32 s{S_PF}, 0x80000000, s{S_PF}""")
    tcl = [(l, 4) for l in tc.L]
    ex0 = [(f"  v_min_u32 v{V_TMP}, 47, v{V_LANE}", 4), (f"  v_lshlrev_b32 v{V_TMP}, 7, v{V_TMP}", 4)]
    if OPT['w1late']:
        wl = Asm(); w_dma_block(wl, 1)
        ex0 = [(l, 10 if 'buffer' in l else 4) for l in wl.L] + ex0
    ex0 = ex0 + tcl[:-2] + [(tcl[-2][0] + "\n" + tcl[-1][0], 8)]
    core.extra[0] = ex0
    core.fast_flush = {0}
    core.vmwait[0] = 0
    core.vmwait[1] = 0
    stplan = {}; xplan = {}
    xg = OPT['xg']
    lin = OPT['lin']
    S_SR = 76; S_SX = 77
    linops = {}
    if lin:
        ex0b = f"""  s_mul_i32 s86, s{S_W}, 12800
  s_add_u32 s86, s86, {TREG}
  v_and_b32 v12, 31, v{V_LANE}
  v_mul_u32_u24 v12, 400, v12
  v_lshrrev_b32 v16, 5, v{V_LANE}
  v_lshl_add_u32 v12, v16, 4, v12
  v_add_u32 v12, s86, v12
  s_mov_b32 s87, {(2**32 + 23)//24}""".split("\n")
        for q in range(3):
            ex0b += [f"  v_add_u32 v16, {64*q}, v{V_LANE}", f"  v_mul_hi_u32 v17, v16, s87", f"  v_add_lshl_u32 v16, v16, v17, 4", f"  v_add_u32 v{13+q}, s86, v16"]
        ex0b += [f"  s_lshl_b32 s{S_SR}, s{S_W}, 3", f"  s_mul_i32 s{S_SR}, s{S_SR}, {512*384}", f"  s_add_u32 s{S_SX}, s{S_SR}, s{S_PXO}", f"  s_add_u32 s{S_SR}, s{S_SR}, s{S_PXP}"]
        core.extra[0] = core.extra[0] + [(l, 4) for l in ex0b]
        def AQ(blk, q): r = quad(blk, q); return f"a[{r}:{r+3}]"
        for blk in range(2):
            core.lds_extra[1 + 3 * blk] = [f"  ds_write_b128 v12, {AQ(blk,q)} offset:{32*q}" for q in range(12)]
            core.lds_extra[2 + 3 * blk] = [f"  ds_read_b128 {AQ(blk,q)}, v{13+q%3} offset:{3200*(q//3)}" for q in range(12)]
            if lin == 1:
                core.lds_extra[10 + 4 * blk] = [f"  ds_write_b128 v{13+q%3}, {AQ(blk,q)} offset:{3200*(q//3)}" for q in range(12)]
                core.lds_extra[11 + 4 * blk] = [f"  ds_read_b128 {AQ(blk,q)}, v12 offset:{32*q}" for q in range(12)]
        def st(blk, q):
            L = [f"  buffer_store_dwordx4 {AQ(blk,q)}, v{R.V_L16}, s[{S_OUT}:{S_OUT+3}], s{S_SR} offen offset:{1024*(q%3)}"]
            if q % 3 == 2: L.append(f"  s_add_u32 s{S_SR}, s{S_SR}, {512*384}")
            return (L, 6)
        def xl(blk, q):
            L = [f"  buffer_load_dwordx4 {AQ(blk,q)}, v{R.V_L16}, s[{S_X}:{S_X+3}], s{S_SX} offen offset:{1024*(q%3)}"]
            if q % 3 == 2: L.append(f"  s_add_u32 s{S_SX}, s{S_SX}, {512*384}")
            return (L, 6)
        linops = {2: [st(0, q) for q in range(6)], 3: [st(0, q) for q in range(6, 12)], 4: [xl(0, q) for q in range(6)],
                  5: [st(1, q) for q in range(6)], 6: [st(1, q) for q in range(6, 12)], 7: [xl(0, q) for q in range(6, 12)],
                  10: [xl(1, q) for q in range(6)], 11: [xl(1, q) for q in range(6, 12)]}
        if lin == 2:
            for j_ in (4, 7, 10, 11): del linops[j_]
            for g, j_ in enumerate([4, 7, 8, 9, 10, 11, 12, 14, 16, 18, 20, 22]): xplan[j_] = [2 * g, 2 * g + 1]
        if lin == 3:
            core.lds_extra.pop(1); core.lds_extra.pop(2); core.lds_extra.pop(4); core.lds_extra.pop(5)
            for blk in range(2):
                core.lds_extra[10 + 4 * blk] = [f"  ds_write_b128 v{13+q%3}, {AQ(blk,q)} offset:{3200*(q//3)}" for q in range(12)]
                core.lds_extra[11 + 4 * blk] = [f"  ds_read_b128 {AQ(blk,q)}, v12 offset:{32*q}" for q in range(12)]
            linops = {7: [xl(0, q) for q in range(6)], 8: [xl(0, q) for q in range(6, 12)] , 12: [xl(1, q) for q in range(6)], 13: [xl(1, q) for q in range(6, 12)]}
            core.lds_extra[11] = core.lds_extra.pop(10); core.lds_extra[12] = [f"  ds_read_b128 {AQ(0,q)}, v12 offset:{32*q}" for q in range(12)]
            core.lds_extra[16] = core.lds_extra.pop(14); core.lds_extra[17] = [f"  ds_read_b128 {AQ(1,q)}, v12 offset:{32*q}" for q in range(12)]
            core.lds_extra.pop(15, None)
            for g in range(12): stplan[1 + g] = [2 * g, 2 * g + 1]
    elif xg == 4:
        for g in range(6):
            stplan[1 + 4 * g] = [4 * g + e for e in range(4)]
            xplan[2 + 4 * g] = [4 * g + e for e in range(4)]
    elif xg == 2:
        for g in range(12): stplan[1 + g] = [2 * g, 2 * g + 1]
        for g in range(12): xplan[[2, 4, 6, 8, 10, 12, 14, 16, 18, 20, 21, 22][g]] = [2 * g, 2 * g + 1]
    elif xg == 1:
        for g in range(12): stplan[1 + g] = [2 * g, 2 * g + 1]
        for q in range(24): xplan.setdefault(2 + (q * 21) // 24, []).append(q)
    perj = {}
    for j in range(1, 24):
        ops = []; nv = 0
        for g in linops.get(j, []):
            ops.append(g); nv += 1
        for q in stplan.get(j, []):
            ops.append(([store_parked(q, S_PXP)], 6)); nv += 1
        for q in xplan.get(j, []):
            blk, sI = q // 12, q % 12
            ops.append(([f"  buffer_load_dwordx4 {Xf(blk,sI)}, v{V_PX[blk]}, s[{S_X}:{S_X+3}], s{S_PXO} offen offset:{32*sI} {['', 'nt', 'sc1', 'sc0 sc1'][OPT['xf']]}"], 6)); nv += 1
        if j in (OPT['tabj'], OPT['tabj'] + 2) and not OPT['k2']:
            for gi_, g in enumerate(table_dma_ops(0 if j == OPT['tabj'] else 1)):
                ops.append((g, 6 + 4 * (len(g) - 1))); nv += 1
        if OPT['pf'] and j < 23 and not OPT['k2']:
            npf_ = 20 if OPT['pfh'] else 10
            step = OPT['pfs']; first = 23 - npf_ * step
            if j >= first and (j - first) % step == 0:
                idx = (j - first) // step
                t = [f"  s_mov_b32 m0, {PFSCR}", "  s_nop 0", f"  buffer_load_dword v{V_TMP}, s[{S_X}:{S_X+3}], s{S_PF} offen offset:{64 * (idx & 1) if OPT['pfh'] else 0} {['', 'nt', 'sc1', 'sc0 sc1'][OPT['pff']]} lds"]
                if (idx & 1) or not OPT['pfh']: t.append(f"  s_add_u32 s{S_PF}, s{S_PF}, {4*512*384}")
                ops.append((t, 14)); nv += 1
        perj[j] = (ops, nv)
    if CFG['ring5']:
        for j in range(1, 24, 2):
            o1, n1 = perj.get(j, ([], 0)); o2, n2 = perj.get(j + 1, ([], 0))
            core.pend_extra[j] = (o1, o2)
            core.vmwait[j + 2] = n2
    else:
        for j in range(1, 24):
            core.pend_extra[j] = perj[j][0]; core.vmwait[j + 1] = perj[j][1]
    core.extra[23] = []
    core.extra[24] = [(f"  v_add_u32 v56, {IDOFF}, v{R.V_L16}", 4), (f"  ds_read_b128 v[48:51], v56", 8), (f"  ds_read_b128 v[52:55], v56 offset:1024", 8)]
    ps = []
    for blk in range(2):
        for sI in range(12):
            ps.append((f"  v_mfma_f32_32x32x16_bf16 {ACC(blk,sI>>1)}, {vr(52 if sI&1 else 48,4)}, {Xf(blk,sI)}, {ACC(blk,sI>>1)}", []))
    if CFG['ring5']: ps[0] = (ps[0][0], ["  s_waitcnt vmcnt(0)"])
    core.pseudo[24] = ps
    core.extra_first.add(24)
    core.no_barrier.add(25)
    if not CFG['ring5']: core.vmwait[24] = 0
    core.emit(0, 1); core.emit(1, 2)
    if OPT['prof'] >= 2:
        a(f"  v_mov_b32 v47, v{V_TMP}"); stamp(a); a(f"  v_mov_b32 v{V_TMP}, v47")
    for j in range(2, 24): core.emit(j, j + 1)
    if OPT['prof'] >= 2: stamp(a)
    core.emit(24, 25)
    if OPT['prof'] >= 2: stamp(a)
    if OPT['wb']:
        a(f"""  s_cmp_lt_u32 s{S_I}, 4
  s_cbranch_scc1 {name}_nowb
  s_cmp_ge_u32 s2, {8 if OPT['wb'] == 1 else 256}
  s_cbranch_scc1 {name}_nowb
  s_cmp_lg_u32 s{S_W}, 0
  s_cbranch_scc1 {name}_nowb
  buffer_wbl2 sc1
{name}_nowb:""")
    emit_tail(a, core)
    stamp(a)
    a(f"""  s_cmp_ge_u32 s{S_I}, 4
  s_cbranch_scc1 {name}_last""")
    if OPT['endbar']: a("  s_barrier")
    a(f"  s_mov_b32 s{S_PXP}, s{S_PXO}")
    stamp(a)
    a(f"  s_branch {name}_tile")
    a(f"{name}_last:")
    if CFG['ring5']: a("  s_barrier        ; the transposition buffers overlap ring slots that slower waves may still read")
    a("  s_nop 15")
    epilogue(a)
    stamp(a)
    a("  s_waitcnt vmcnt(0)")
    stamp(a, True)
    a(f"""  s_waitcnt vmcnt(0)
{name}_done:
  s_endpgm
""")
    for blk in OOL:
        for l in blk: a(l)
    a(kdesc(name, 512, 100, 256))
def emit_loop(a, self, name):
    for j in range(2, 25): self.emit(j, j + 1)
def emit_tail(a, core):
    ch, Pf = core.plan(25, None)
    main = [l for c in ch for l in c]
    for tx, c in core.pending: main += tx
    core.pending = []
    f = []
    if OPT['k2']:
        f += h_load_lines()
    else:
        f += global_bases_lines(96)
        f += [x_load_line(0, 0, i) for i in range(8)]
        if not OPT['r1late']: f += [x_load_line(0, 1, i) for i in range(8)]
        if not OPT['r2late']: f += [x_load_line(0, 2, i) for i in range(8)]
    fi = 0
    nm = sum(1 for l in main if "v_mfma" in l); per = -(-len(f) // nm)
    for l in main:
        a(l)
        if "v_mfma" in l:
            for _ in range(per):
                if fi < len(f): a(f[fi]); fi += 1
    while fi < len(f): a(f[fi]); fi += 1
    vm.ops.clear(); vm.add(('t', 0), 4); vm.add(('t', 1), 4); vm.add(('x', 0, 0), 8)
    if not OPT['r1late']: vm.add(('x', 0, 1), 8)
    if not OPT['r2late']: vm.add(('x', 0, 2), 8)
```

```python
from asmlib import *
import mlpcore as C
from mlpcore import R, ACC, ACCreg, Hf, WFr, Core, BLK, NBLK, CFG
from k_prep2 import TBL_OFF, TBL_BYTES
import numpy as np
OS = 9744; CS = 1216; PLANE = 608
SB = 49152
TB = [SB + 8 * OS, SB + 8 * OS + 16384]
ZROW = TB[1] + 16384
XCH = 49152; XPS = 416
STATS = TB[1] + 1024
IDOFF = ZROW + 64
PFSCR = IDOFF + 2048
LDS_BYTES = PFSCR + 256
TREG = 73728
SAVEOFF = 0
assert XCH + 106736 <= IDOFF and LDS_BYTES <= 163840 and STATS + 8192 <= ZROW
V_LANE = 0
V_SW = [1, 2, 9]
V_TMP = 3
V_PX = [6, 7]
V_B = 8
V_T = 10
V_IDX = 11
V_XW = [12, 13]
V_XR = [14, 15]
V_GA = [24, 26, 30]; V_GB = [25, 27, 31]
AF = [32, 40]
XR = [48, 80]
XA2 = 96
PT = [32, 40]
def Darch(k, i):
    idx = 16 * k + i
    return 112 + 4 * idx if idx < 36 else 48 + 4 * (idx - 36)
def Dreg(k, i): return ('v', Darch(k, i))
BF = [48, 64, 80]
PARK = 160
S_ST = [78, 79, 80, 81]
def Xf(blk, s):
    r = 160 + 48 * blk + 4 * s; return f"a[{r}:{r+3}]"
S_X = 8; S_OUT = 12; S_TB = 16
S_W = 20; S_I = 21; S_T0 = 28; S_T1 = 29; S_PXO = 30; S_PXN = 31; S_G0 = 32; S_LO = 33; S_HI = 34
S_TX = 64; S_TY = 65; S_TM = 66; S_TG = 67; S_EPS = 68; S_INV = 69
NPX = 512 * 512
STAMP_OFF = 300 << 20
H_OFF = 1 << 20
OPT = dict(dumph=0, prof=0, pf=1, st=3, sbud=100, cbud=32, stc=20, nhi=1, stnt=0, xnt=0, pfn=1, nox=0, nopark=0, sst=11, spf=0, nhs=2, st3=1, hprog=1, samex=0, pfh=0, pfs=1, w1late=0, xg=5, pff=2, xf=0, bias=0, r2late=1, linfin=1, lin=0, skip2=1, wpf=0, cpf=0, cord=1, sord=2, jith=0, ststage=0, cbud2=0, wb=0, w0early=1, r1late=1, zlate=0, tabj=15, endbar=1, hpos=0, prepark=0, k2=0, hj=25, finf=3, nost=0, noxl=0)
COLS = [0, 1, 8, 9, 2, 3, 10, 11]
S_HN = 83
S_PXP = 74
S_PF = 75
V_PFA = 3
class VM:
    def __init__(self): self.ops = []
    def add(self, tag, n=1): self.ops += [tag] * n
    def after(self, tag):
        i = max(k for k, t in enumerate(self.ops) if t == tag)
        return len(self.ops) - 1 - i
vm = VM()
OOL = []
def stamp(a, force=False):
    if not OPT['prof']: return
    if OPT['prof'] == 3 and not force: return
    a(f"""  s_memtime s[42:43]
  s_memrealtime s[62:63]
  s_waitcnt lgkmcnt(0)
  v_mov_b32 v{V_TMP}, s42
  s_nop 0
  buffer_store_dword v{V_TMP}, off, s[44:47], s40
  s_nop 1
  v_mov_b32 v{V_TMP}, s62
  s_nop 0
  buffer_store_dword v{V_TMP}, off, s[44:47], s40 offset:256
  s_add_u32 s40, s40, 4""")
def tile_coords(a):
    a(f"""  s_and_b32 s{S_T0}, s2, 7
  s_lshl_b32 s{S_T0}, s{S_T0}, 3
  s_lshr_b32 s{S_T1}, s2, 3
  s_and_b32 s{S_TX}, s{S_T1}, 7
  s_add_u32 s{S_TX}, s{S_TX}, s{S_T0}
  s_lshr_b32 s{S_T1}, s{S_T1}, 3
  s_lshl_b32 s{S_TY}, s{S_I}, 2
  s_add_u32 s{S_TY}, s{S_TY}, s{S_T1}          ; ty = 4*i + (c>>3)
  s_lshl_b32 s{S_T0}, s{S_TY}, 14              ; y0*512 = ty*32*512
  s_lshl_b32 s{S_T1}, s{S_TX}, 3
  s_add_u32 s{S_T0}, s{S_T0}, s{S_T1}
  s_mul_i32 s{S_PXN}, s{S_T0}, 384""")
    if OPT['k2']:
        a(f"""  s_lshl_b32 s{S_T0}, s{S_TY}, 6
  s_add_u32 s{S_T0}, s{S_T0}, s{S_TX}
  s_mul_i32 s{S_T0}, s{S_T0}, 98304
  s_mul_i32 s{S_T1}, s{S_W}, 24576
  s_add_u32 s{S_HN}, s{S_T0}, s{S_T1}""")
def global_bases_lines(t):
    L = []
    if OPT['samex']: L += [f"  s_mov_b32 s{S_TX}, 5", f"  s_mov_b32 s{S_TY}, 5"]
    L += f"""  s_lshl_b32 s88, s{S_TY}, 5
  s_sub_u32 s88, s88, 3
  s_lshl_b32 s89, s{S_TX}, 3
  s_sub_u32 s89, s89, 4
  s_lshl_b32 s90, s{S_W}, 2
  s_add_u32 s88, s88, s90
  s_movk_i32 s90, 384
  s_movk_i32 s91, 512
  v_lshrrev_b32 v{t}, 4, v{V_LANE}
  v_bfe_u32 v{t+1}, v{V_LANE}, 3, 1
  v_and_b32 v{t+2}, 7, v{V_LANE}
  v_lshl_add_u32 v{t+1}, v{t+1}, 2, s89
  v_add_u32 v{t}, s88, v{t}
  v_add_u32 v{t+3}, 8, v{t+1}
  v_cmp_gt_u32 s[70:71], s91, v{t+1}
  v_cmp_gt_u32 s[72:73], s91, v{t+3}
  v_lshl_add_u32 v{t+3}, v{t}, 9, v{t+1}
  v_mul_lo_u32 v{t+3}, v{t+3}, s90
  v_lshl_add_u32 v{t+3}, v{t+2}, 4, v{t+3}
  v_mov_b32 v{t+4}, 0x80000000""".split("\n")
    for r in range(3):
        if r > 0:
            L += [f"  v_add_u32 v{t}, 16, v{t}", f"  v_add_u32 v{t+3}, {16*512*384}, v{t+3}"]
        L += [f"  v_cmp_gt_u32 vcc, s91, v{t}"]
        if r == 2:
            L = L[:-1]
            L += [f"  v_lshrrev_b32 v{t+5}, 4, v{V_LANE}", f"  s_lshl_b32 s86, s{S_W}, 2", f"  v_add_u32 v{t+5}, s86, v{t+5}",
                  f"  v_cmp_gt_u32 vcc, 6, v{t+5}", f"  v_subrev_u32 v{t+6}, 2, v{t}", f"  v_subrev_u32 v{t+5}, {2*512*384}, v{t+3}", "  s_nop 0",
                  f"  v_cndmask_b32 v{t}, v{t+6}, v{t}, vcc", f"  v_cndmask_b32 v{t+3}, v{t+5}, v{t+3}, vcc",
                  f"  v_cmp_gt_u32 vcc, s91, v{t}", f"  s_cmp_lt_u32 s{S_W}, 2", "  s_cselect_b64 s[86:87], -1, 0", "  s_and_b64 vcc, vcc, s[86:87]"]
        L += [f"  v_add_u32 v{t+6}, {8*384}, v{t+3}",
              "  s_and_b64 s[92:93], s[70:71], vcc",
              "  s_and_b64 s[94:95], s[72:73], vcc",
              "  s_nop 1",
              f"  v_cndmask_b32 v{V_GA[r]}, v{t+4}, v{t+3}, s[92:93]",
              f"  v_cndmask_b32 v{V_GB[r]}, v{t+4}, v{t+6}, s[94:95]"]
    return L
def global_bases(a, t=128):
    for l in global_bases_lines(t): a(l)
def x_load_line(k, r, i):
    col = COLS[i]
    base = V_GA[r] if col < 8 else V_GB[r]
    off = (col & 7) * 384 + k * 128
    dst = vr(XR[r] + 4 * i, 4) if r < 2 else f"a[{XA2+4*i}:{XA2+4*i+3}]"
    return f"  buffer_load_dwordx4 {dst}, v{base}, s[{S_X}:{S_X+3}], 0 offen offset:{off}"
class Fill:
    def __init__(self, a): self.a = a; self.hi = []; self.lo = []
    def push(self, lines, cost, tag=None, hi=False): (self.hi if hi else self.lo).append((lines, cost, tag))
    def emit1(self, g):
        for l in g[0]: self.a(l)
        if g[2] is not None: vm.add(g[2])
    def pop(self, budget, nhi=1):
        n = 0
        while self.hi and n < nhi:
            g = self.hi.pop(0); self.emit1(g); budget -= g[1]; n += 1
        while self.lo and budget >= self.lo[0][1] * 0.6:
            g = self.lo.pop(0); self.emit1(g); budget -= g[1]
    def flush(self, hi=True, lo=True, n=None):
        if hi:
            while self.hi: self.emit1(self.hi.pop(0))
        if lo:
            c = 0
            while self.lo and (n is None or c < n): self.emit1(self.lo.pop(0)); c += 1
def x_loads(a, k, r):
    for i in range(8): a(x_load_line(k, r, i))
    vm.add(('x', k, r), 8)
def stage_round(a, k, r, hook=None):
    src = XR[r] if r < 2 else XR[0]
    if r == 2:
        for e in range(32): a(f"  v_accvgpr_read_b32 v{XR[0]+e}, a{XA2+e}")
    for d in range(4):
        if hook and OPT['sord'] != 2: hook(d)
        T = PT[d & 1]
        lo = [f"  v_perm_b32 v{T+p}, v{src + 4*(2*p+1) + d}, v{src + 4*(2*p) + d}, s{S_LO}" for p in range(4)]
        hi = [f"  v_perm_b32 v{T+4+p}, v{src + 4*(2*p+1) + d}, v{src + 4*(2*p) + d}, s{S_HI}" for p in range(4)]
        w0 = f"  ds_write_b128 v{V_SW[r]}, {vr(T,4)} offset:{(2*d)*CS}"
        w1 = f"  ds_write_b128 v{V_SW[r]}, {vr(T+4,4)} offset:{(2*d+1)*CS}"
        if OPT['sord'] == 0:
            for l in lo + hi + [w0, w1]: a(l)
        elif OPT['sord'] == 1:
            for l in lo + [w0] + hi + [w1]: a(l)
        else:
            for l in lo + [w0] + hi: a(l)
            if hook: hook(d)
            a(w1)
def table_dma_ops(k):
    d = lambda q: f"  buffer_load_dwordx4 v{R.V_L16}, s[{S_TB}:{S_TB+3}], s{S_TG} offen offset:{1024*q} lds"
    return [
        [f"  s_lshl_b32 s{S_TM}, s{S_W}, 12", f"  s_add_u32 s{S_TG}, s{S_TM}, {k*16384}", f"  s_add_u32 m0, s{S_TM}, {TB[k&1]}", "  s_nop 0", d(0)],
        [d(1)], [d(2)], [d(3)],
    ]
def table_dma(a, k):
    for g in table_dma_ops(k):
        for l in g: a(l)
    vm.add(('t', k), 4)
NCH = 16
def conv_chunk(a, k, hook=None):
    def chan_off(i): j, e = i >> 3, i & 7; return j * OS + e * CS
    def tab_off(i): j, e = i >> 3, i & 7; return TB[k & 1] - TB[0] + j * 2048 + e * 256
    def rdA(i):
        A = AF[i & 1]
        return [f"  ds_read_b32 v{A}, v{V_T} offset:{tab_off(i)}", f"  ds_read_b32 v{A+4}, v{V_T} offset:{tab_off(i)+128}"]
    def rdB(i):
        B = BF[i % 3]
        return [f"  ds_read_b128 a[{B+4*q}:{B+4*q+3}], v{V_B} offset:{chan_off(i)+32*q}" for q in range(4)]
    deep = OPT['cord'] == 6
    if deep:
        for t in rdA(0) + rdB(0) + rdA(1) + rdB(1): a(t)
    else:
        for t in rdA(0) + rdB(0) + rdB(1): a(t)
    if OPT['zlate']: zero_D(a, k)
    for i in range(NCH):
        A = AF[i & 1]; B = BF[i % 3]
        kind, D = Dreg(k, i)
        Dt = f"{kind}[{D}:{D+3}]"
        nxtA = rdA(i + 1) if i + 1 < NCH else []
        nxtB = rdB(i + 2) if i + 2 < NCH else []
        if deep:
            a(f"  s_waitcnt lgkmcnt({6 if i + 1 < NCH else 0})")
        else:
            a(f"  s_waitcnt lgkmcnt({4 if i + 1 < NCH else 0})")
        sm = [f"  v_smfmac_f32_16x16x64_bf16 {Dt}, {vr(A+4*h,4)}, a[{B+8*h}:{B+8*h+7}], v{V_IDX}" for h in range(2)]
        dp = [[f"  v_mov_b32_dpp v{A+4*h+1+g}, v{A+4*h} row_ror:{4*(g+1)} row_mask:0xf bank_mask:0xf" for g in range(3)] for h in range(2)]
        if OPT['cord'] == 0:
            for t in nxtA: a(t)
            for h in range(2):
                for t in dp[h]: a(t)
                rb = nxtB[2*h:2*h+2]
                for t in rb: a(t)
                if len(rb) < 2: a("  s_nop 1")
                a(sm[h])
        elif OPT['cord'] == 1:
            for t in dp[0] + dp[1]: a(t)
            a(sm[0])
            for t in nxtA + nxtB[:2]: a(t)
            if not (nxtA + nxtB[:2]): a("  s_nop 1")
            a(sm[1])
            if hook and OPT['hpos'] == 1: hook(i)
            for t in nxtB[2:]: a(t)
        elif OPT['cord'] == 6:
            A2 = rdA(i + 2) if i + 2 < NCH else []
            for t in dp[0] + dp[1]: a(t)
            a(sm[0])
            for t in A2[:1] + nxtB[:2]: a(t)
            if not (A2[:1] + nxtB[:2]): a("  s_nop 1")
            a(sm[1])
            for t in A2[1:] + nxtB[2:]: a(t)
        elif OPT['cord'] == 3:
            for t in nxtA: a(t)
            for t in dp[0] + dp[1]: a(t)
            a(sm[0])
            for t in nxtB[:2]: a(t)
            if not nxtB[:2]: a("  s_nop 1")
            a(sm[1])
            for t in nxtB[2:]: a(t)
        elif OPT['cord'] == 4:
            for t in dp[0] + dp[1]: a(t)
            a(sm[0])
            for t in nxtA + nxtB[:1]: a(t)
            if not (nxtA + nxtB[:1]): a("  s_nop 1")
            a(sm[1])
            for t in nxtB[1:]: a(t)
        elif OPT['cord'] == 5:
            for t in dp[0] + dp[1]: a(t)
            a(sm[0])
            for t in nxtA[:1]: a(t)
            if not nxtA[:1]: a("  s_nop 1")
            a(sm[1])
            for t in nxtA[1:] + nxtB: a(t)
        elif OPT['cord'] == 2:
            for t in nxtA[:1]: a(t)
            for t in dp[0]: a(t)
            for t in nxtA[1:]: a(t)
            for t in dp[1]: a(t)
            a(sm[0])
            for t in nxtB[:2]: a(t)
            if not nxtB[:2]: a("  s_nop 1")
            a(sm[1])
            for t in nxtB[2:]: a(t)
        if hook and (OPT['hpos'] == 0 or OPT['cord'] != 1): hook(i)
def zero_D(a, k):
    L = [f"  v_mov_b32 v{r}, 0" for r in range(44, 48)] + ["  s_nop 1"]
    for q in range(4):
        base = Darch(k, 4 * q)
        L.append(f"  v_mfma_f32_32x32x16_bf16 v[{base}:{base+15}], v[44:47], v[44:47], 0")
    for l in L: a(l)
def stats_lines(k, i):
    D = Darch(k, i)
    return [f"  v_pk_add_f32 v[16:17], v[16:17], v[{D}:{D+1}]", f"  v_pk_add_f32 v[18:19], v[18:19], v[{D+2}:{D+3}]",
            f"  v_pk_fma_f32 v[20:21], v[{D}:{D+1}], v[{D}:{D+1}], v[20:21]", f"  v_pk_fma_f32 v[22:23], v[{D+2}:{D+3}], v[{D+2}:{D+3}], v[22:23]"]
def move_lines(k, i):
    D = Darch(k, i); A = Dreg(k, i)[1]
    return [f"  v_accvgpr_read_b32 v{D+e}, a{A+e}" for e in range(4)]
def ln_phase(a, wdma, done3):
    if OPT['lin']:
        a(f"""  s_lshl_b32 s{S_T0}, s{S_W}, 5
  s_mul_i32 s{S_T1}, s{S_W}, {8*8*XPS + 4*16}
  v_add_u32 v12, s{S_T0}, v12
  v_add_u32 v13, s{S_T0}, v13
  v_add_u32 v14, s{S_T1}, v14
  v_add_u32 v15, s{S_T1}, v15""")
    a("  s_nop 7")
    for i in range(done3, NCH):
        for l in stats_lines(2, i): a(l)
    a(f"""  s_lshl_b32 s{S_T0}, s{S_W}, 11
  s_add_u32 s{S_T0}, s{S_T0}, {STATS}
  v_add_u32 v24, s{S_T0}, v{R.V_L16}
  v_add_u32 v25, {STATS}, v{R.V_L16}
  ds_write_b128 v24, v[16:19]
  ds_write_b128 v24, v[20:23] offset:1024
  s_waitcnt lgkmcnt(0)
  s_barrier""")
    for w in range(4):
        a(f"  ds_read_b128 v[{96+4*w}:{99+4*w}], v25 offset:{2048*w}")
    for w in range(4):
        a(f"  ds_read_b128 v[{28+4*w}:{31+4*w}], v25 offset:{2048*w+1024}")
    wl = Asm(); wdma(wl); wl = [l for l in wl.L]
    for l in wl[:8]: a(l)
    wl = wl[8:]
    a("  s_waitcnt lgkmcnt(4)")
    a("""  v_pk_add_f32 v[96:97], v[96:97], v[100:101]
  v_pk_add_f32 v[98:99], v[98:99], v[102:103]
  v_pk_add_f32 v[104:105], v[104:105], v[108:109]
  v_pk_add_f32 v[106:107], v[106:107], v[110:111]
  v_pk_add_f32 v[96:97], v[96:97], v[104:105]
  v_pk_add_f32 v[98:99], v[98:99], v[106:107]
  s_waitcnt lgkmcnt(0)
  v_pk_add_f32 v[28:29], v[28:29], v[32:33]
  v_pk_add_f32 v[30:31], v[30:31], v[34:35]
  v_pk_add_f32 v[36:37], v[36:37], v[40:41]
  v_pk_add_f32 v[38:39], v[38:39], v[42:43]
  v_pk_add_f32 v[28:29], v[28:29], v[36:37]
  v_pk_add_f32 v[30:31], v[30:31], v[38:39]""")
    a("  s_barrier        ; everybody has read the statistics: the exchange buffer may overwrite them")
    for r in range(4):
        a(f"  v_mul_f32 v{16+r}, s{S_INV}, v{96+r}")
    for r in range(4):
        a(f"  v_mul_f32 v{28+r}, s{S_INV}, v{28+r}")
    for r in range(4):
        a(f"  v_fma_f32 v{28+r}, -v{16+r}, v{16+r}, v{28+r}")
    for r in range(4):
        a(f"  v_max_f32 v{28+r}, 0, v{28+r}")
    for r in range(4):
        a(f"  v_add_f32 v{28+r}, s{S_EPS}, v{28+r}")
    for r in range(4):
        a(f"  v_rsq_f32 v{20+r}, v{28+r}")
    a("  s_nop 0")
    for r in range(4):
        a(f"  v_mul_f32 v{20+r}, s{R.S_S}, v{20+r}")
    for r in range(4):
        a(f"  v_mul_f32 v{24+r}, -v{16+r}, v{20+r}" .replace("v_mul_f32 v", "v_mul_f32_e64 v"))
    groups = [(k, j) for k in range(3) for j in range(2)]
    def fmas(g):
        k, j = groups[g]; L = []
        for e in range(8):
            D = Darch(k, 8 * j + e)
            L.append(f"  v_pk_fma_f32 v[{D}:{D+1}], v[{D}:{D+1}], v[20:21], v[24:25]")
            L.append(f"  v_pk_fma_f32 v[{D+2}:{D+3}], v[{D+2}:{D+3}], v[22:23], v[26:27]")
        return L
    for l in fmas(0): a(l)
    cnt = 0
    for g, (k, j) in enumerate(groups):
        Ds = [Darch(k, 8 * j + e) for e in range(8)]
        nxt = fmas(g + 1) if g + 1 < len(groups) else []
        for r in range(4):
            T = 32 + 4 * (cnt % 4); cnt += 1
            for e in range(4):
                a(f"  v_cvt_pk_bf16_f32 v{T+e}, v{Ds[2*e]+r}, v{Ds[2*e+1]+r}")
            a(f"  ds_write_b128 v{V_XW[r>>1]}, v[{T}:{T+3}] offset:{(r&1)*8*XPS + 128*k + 16*j}")
            for l in nxt[4*r:4*r+4]: a(l)
            n = 0
            while wl and n < 1:
                l = wl.pop(0); a(l); n += 1
                while wl and l.startswith("  s_"): l = wl.pop(0); a(l)
    for l in wl: a(l)
def w_dma_block(a, blk):
    S_G0 = 32
    for half, cnt in ((0, 4), (1, 2)):
        a(f"  s_add_u32 s{R.S_G}, s{S_G0}, {blk*BLK + 4096*half}\n{C.m0_set(blk, half)}\n  s_nop 0")
        for p in range(cnt):
            a(f"  buffer_load_dwordx4 v{R.V_L16}, s[{R.S_WS}:{R.S_WS+3}], s{R.S_G} offen offset:{1024*p} lds")
    if blk == 1: a(f"  s_add_u32 s{R.S_G}, s{S_G0}, {2*BLK}\n  s_add_u32 s{R.S_G2}, s{S_G0}, {2*BLK+4096}")
def h_load_lines():
    L = []
    for q in range(24):
        blk, sI = q // 12, q % 12
        if q % 4 == 0: L.append(f"  s_add_u32 s84, s{S_HN}, {1024*q}")
        L.append(f"  buffer_load_dwordx4 {Hf(blk,sI)}, v{R.V_L16}, s[52:55], s84 offen offset:{1024*(q%4)}")
    return L
def phase_k2(a):
    wl = Asm(); w_dma_block(wl, 0); w_dma_block(wl, 1); wl = list(wl.L)
    for g in range(24):
        n = 0
        while wl and n < 1:
            l = wl.pop(0); a(l)
            if 'buffer_load' in l: n += 1
        if g == 12:
            for l in wl: a(l)
            wl = []
        for l in park_group(g)[0]: a(l)
    for l in wl: a(l)
    a("  s_waitcnt vmcnt(6)\n  s_barrier")
    for i in range(CFG['D']): a(C.ds_text(i, 0, i))
    a("  s_waitcnt lgkmcnt(0)")
def phase_c(a):
    if OPT['k2']: return phase_k2(a)
    F = Fill(a)
    if OPT['lin']:
        a(f"  v_add_u32 v16, {SAVEOFF}, v{R.V_L16}\n  ds_read_b128 v[12:15], v16")
    for g in range(24):
        L, c = park_group(g); F.push(L if not OPT['nopark'] else ["  s_nop 0 ; cvt"] * 8, c)
    if OPT['r1late']:
        for i in range(8): F.push([x_load_line(0, 1, i)], 12, ('x', 0, 1), hi=True)
    if OPT['r2late']:
        for i in range(8): F.push([x_load_line(0, 2, i)], 12, ('x', 0, 2), hi=True)
    F.flush(hi=False, lo=True, n=OPT['prepark'])
    need_by = [8, 16, 24]
    for k in range(3):
        if OPT['ststage'] and k >= 1:
            if k == 1: F.push([f"  v_mov_b32 v{r}, 0" for r in range(16, 24)], 32)
            for i in range(NCH): F.push(stats_lines(k - 1, i), 16)
        for r in range(3):
            late = OPT['r2late'] and k == 0
            if r == 0 and not late: F.flush(hi=True, lo=False)
            if r >= 1 and late:
                for g in [g for g in F.hi if g[2] == ('x', 0, r)]: F.emit1(g)
                F.hi = [g for g in F.hi if g[2] != ('x', 0, r)]
            if r == 2 and OPT['skip2']:
                lab = f"fused_kernel_sk{k}"
                a(f"  s_cmp_ge_u32 s{S_W}, 2\n  s_cbranch_scc1 {lab}")
                a(f"  s_waitcnt vmcnt({vm.after(('x', k, r))})")
                rec = []
                def hk(d):
                    n0 = len(a.L); F.pop(OPT['sbud'], OPT['nhs']); rec.extend(a.L[n0:])
                stage_round(a, k, r, hk)
                a(f"{lab}_j:")
                OOL.append([f"{lab}:"] + rec + [f"  s_branch {lab}_j"])
            else:
                a(f"  s_waitcnt vmcnt({vm.after(('x', k, r))})")
                stage_round(a, k, r, lambda d: F.pop(OPT['sbud'], OPT['nhs'] if (r == 2 or (late and (r == 0 or OPT['r1late']))) else 0))
            if k < 2 and OPT['nox']:
                vm.add(('x', k + 1, r))
            if k < 2 and not OPT['nox']:
                if r == 1:
                    for i in range(8): F.push([x_load_line(k + 1, 1, i)], 12, ('x', k + 1, 1), hi=True)
                if r == 2:
                    F.hi = [([x_load_line(k + 1, 0, i)], 12, ('x', k + 1, 0)) for i in range(8)] + F.hi
                    for i in range(8): F.push([x_load_line(k + 1, 2, i)], 12, ('x', k + 1, 2), hi=True)
        parked = 24 - sum(1 for g in F.lo if 'cvt' in ''.join(g[0]))
        need = need_by[k] - parked
        while need > 0:
            g = F.lo.pop(0); F.emit1(g)
            if 'cvt' in ''.join(g[0]): need -= 1
        if not OPT['zlate']: zero_D(a, k)
        a(f"  s_waitcnt vmcnt({vm.after(('t', k))}) lgkmcnt(0)")
        a("  s_barrier")
        if k == 1: table_dma(a, 2)
        if k == 2 and OPT['w0early']:
            wl = Asm(); w_dma_block(wl, 0); w_dma_block(wl, 1)
            grp = []
            for l in wl.L:
                grp.append(l)
                if 'buffer_load' in l:
                    F.push(grp, 12, ('w', 0), hi=True); grp = []
            if grp: F.push(grp, 8, None, hi=True)
        if not OPT['ststage']:
            if k == 1:
                F.flush(hi=False, lo=True)
                F.push([f"  v_mov_b32 v{r}, 0" for r in range(16, 24)], 32)
                for i in range(NCH): F.push(stats_lines(0, i), OPT['stc'])
            if k == 2:
                for i in range(NCH): F.push(stats_lines(1, i), OPT['stc'])
        stamp(a)
        def hook(i, k=k):
            if k == 2 and i >= 3 and OPT['st3']:
                for l in stats_lines(2, i - 3): a(l)
            F.pop(OPT['cbud'] if not OPT['ststage'] else OPT['cbud2'], OPT['nhi'])
        conv_chunk(a, k, hook)
        if k < 2: a("  s_barrier")
        stamp(a)
    F.flush()
    ln_phase(a, (lambda x: None) if OPT['w0early'] else (lambda x: w_dma_block(x, 0)), NCH - 3 if OPT['st3'] else 0)
    a(f"  s_waitcnt vmcnt({vm.after(('w', 0)) if False else 0}) lgkmcnt(0)\n  s_barrier")
    if OPT['jith']:
        for i in range(CFG['D']):
            a(C.ds_text(i, 0, i))
            for blk in range(2): a(f"  ds_read_b128 {Hf(blk,i)}, v{V_XR[blk]} offset:{32*i}")
        a(f"  s_waitcnt lgkmcnt({3*(CFG['D']-1)})")
        return
    for i in range(CFG['D']): a(C.ds_text(i, 0, i))
    for s in range(12):
        for blk in range(2):
            a(f"  ds_read_b128 {Hf(blk,s)}, v{V_XR[blk]} offset:{32*s}")
    a(f"  s_waitcnt lgkmcnt({15 if OPT['hprog'] else 0})")
EPI_ORDER = [(0, s_) for s_ in range(12)] + [(1, s_) for s_ in range(12)]
def quad(blk, sI): return PARK + 4 * (blk * 12 + sI)
def epi_cvt(blk, sI, p, bounce):
    b = sI >> 1
    kind, r0 = ACCreg(blk, b); r0 += 8 * (sI & 1)
    L = []
    if kind == 'a':
        for e in range(8): L.append(f"  v_accvgpr_read_b32 v{bounce+e}, a{r0+e}")
        r0 = bounce
    L += [f"  v_cvt_pk_bf16_f32 v{p}, v{r0}, v{r0+1}", f"  v_cvt_pk_bf16_f32 v{p+1}, v{r0+2}, v{r0+3}",
          f"  v_cvt_pk_bf16_f32 v{p+2}, v{r0+4}, v{r0+5}", f"  v_cvt_pk_bf16_f32 v{p+3}, v{r0+6}, v{r0+7}"]
    return L
def park_group(g):
    blk, sI = EPI_ORDER[g]
    kind, _ = ACCreg(blk, sI >> 1)
    p = 16 if kind == 'a' else 16 + 4 * (g & 1)
    L = epi_cvt(blk, sI, p, 16)
    q = quad(blk, sI)
    L += [f"  v_accvgpr_write_b32 a{q+e}, v{p+e}" for e in range(4)]
    return L, (32 + (32 if kind == 'a' else 0))
def store_parked(i, spx):
    blk, sI = i // 12, i % 12
    q = quad(blk, sI)
    return f"  buffer_store_dwordx4 a[{q}:{q+3}], v{V_PX[blk]}, s[{S_OUT}:{S_OUT+3}], s{spx} offen offset:{32*sI}{['', ' nt', ' sc1', ' sc0 sc1'][OPT['stnt']]}"
class Epi:
    def __init__(self, a): self.a = a; self.g = 0
    def emit(self, n=1):
        pass
def epilogue(a):
    if not OPT['linfin']:
        for g in range(24):
            blk, sI = g // 12, g % 12
            p = 16 + 4 * (g & 1)
            for t in epi_cvt(blk, sI, p, 40): a(t)
            a(f"  buffer_store_dwordx4 {vr(p,4)}, v{V_PX[blk]}, s[{S_OUT}:{S_OUT+3}], s{S_PXO} offen offset:{32*sI}")
        return
    REG = 73728
    a("  s_waitcnt vmcnt(0)")
    a(f"""  s_mul_i32 s{S_T0}, s{S_W}, 12800
  s_add_u32 s{S_T0}, s{S_T0}, {REG}
  v_and_b32 v24, 31, v{V_LANE}
  v_mul_u32_u24 v24, 400, v24
  v_lshrrev_b32 v25, 5, v{V_LANE}
  v_lshl_add_u32 v24, v25, 4, v24
  v_add_u32 v24, s{S_T0}, v24
  s_mov_b32 s{S_T1}, {(2**32 + 23)//24}""")
    for q in range(3):
        a(f"""  v_add_u32 v28, {64*q}, v{V_LANE}
  v_mul_hi_u32 v29, v28, s{S_T1}
  v_add_lshl_u32 v28, v28, v29, 4
  v_add_u32 v{25+q}, s{S_T0}, v28""")
    a(f"""  s_lshl_b32 s86, s{S_W}, 3
  s_mul_i32 s86, s86, {512*384}
  s_add_u32 s86, s86, s{S_PXO}""")
    for blk in range(2):
        for sI in range(12):
            p = 32 + 4 * (sI & 3)
            for t in epi_cvt(blk, sI, p, 16): a(t)
            a(f"  ds_write_b128 v24, {vr(p,4)} offset:{32*sI}")
        a("  s_waitcnt lgkmcnt(0)")
        for q in range(12):
            a(f"  ds_read_b128 {vr(48+4*q+48*(blk&0),4)}, v{25+q%3} offset:{3200*(q//3)}")
        for q in range(12):
            a(f"  s_waitcnt lgkmcnt({11-q})")
            if q % 3 == 0 and (q or blk): a(f"  s_add_u32 s86, s86, {512*384}")
            a(f"  buffer_store_dwordx4 {vr(48+4*q,4)}, v{R.V_L16}, s[{S_OUT}:{S_OUT+3}], s86 offen offset:{1024*(q%3)} {['', 'nt', 'sc1', 'sc0 sc1'][OPT['finf']]}")
        if blk == 0: a("  s_nop 1")
def gen_fused(a, name="fused_kernel", nwg=256):
    CFG['accinit'] = 1
    a(kstart(name))
    h16 = lambda x: int(np.float16(x).view(np.uint16))
    a(f"""
  s_cmp_ge_u32 s2, {nwg}
  s_cbranch_scc1 {name}_done
  s_load_dwordx2 s[48:49], s[0:1], 0       ; x
  s_load_dwordx2 s[50:51], s[0:1], 32      ; out
  s_load_dwordx2 s[38:39], s[0:1], 48      ; ws
  v_lshrrev_b32 v1, 6, v0
  v_and_b32 v{V_LANE}, 63, v0
  s_nop 0
  v_readfirstlane_b32 s{S_W}, v1
  v_lshlrev_b32 v{R.V_L16}, 4, v{V_LANE}
""")
    a(f"""
  s_waitcnt lgkmcnt(0)
  s_mov_b32 s{R.S_WS}, s38
  s_and_b32 s{R.S_WS+1}, s39, 0xffff
  s_mov_b32 s{R.S_WS+2}, {NBLK*BLK}
  s_mov_b32 s{R.S_WS+3}, 0x20000
  s_add_u32 s{S_TB}, s38, {TBL_OFF}
  s_addc_u32 s{S_TB+1}, s39, 0
  s_and_b32 s{S_TB+1}, s{S_TB+1}, 0xffff
  s_mov_b32 s{S_TB+2}, {TBL_BYTES}
  s_mov_b32 s{S_TB+3}, 0x20000
  s_mov_b32 s{S_X}, s48
  s_and_b32 s{S_X+1}, s49, 0xffff
  s_mov_b32 s{S_X+2}, {NPX*384}
  s_mov_b32 s{S_X+3}, 0x20000
  s_mov_b32 s{S_OUT}, s50
  s_and_b32 s{S_OUT+1}, s51, 0xffff
  s_mov_b32 s{S_OUT+2}, {NPX*384}
  s_mov_b32 s{S_OUT+3}, 0x20000
  s_mov_b32 s{R.S_NA}, {hex(f2u(-GA))}
  s_mov_b32 s{R.S_S}, {hex(f2u(GS))}
  s_mov_b32 s85, {hex(f2u(GS * (1.0 - OPT['bias'] / 1000.0)))}
  s_mov_b32 s{R.S_NAH}, {hex(h16(-GA) | (h16(-GA) << 16))}
  s_mov_b32 s{R.S_SH}, {hex(h16(GS) | (h16(GS) << 16))}
  s_mov_b32 s{S_LO}, 0x05040100
  s_mov_b32 s{S_HI}, 0x07060302
  s_mov_b32 s{S_EPS}, {hex(f2u(1e-5))}
  s_mov_b32 s{S_INV}, {hex(f2u(1.0/192))}
  s_mul_i32 s{S_G0}, s{S_W}, 6144
""")
    for s in range(3):
        a(f"  s_add_u32 s{R.S_M[2*s]}, s{S_G0}, {s*BLK}")
        a(f"  s_add_u32 s{R.S_M[2*s+1]}, s{S_G0}, {s*BLK + 4096}")
    if OPT['prof'] or OPT['dumph']:
        a(f"""  s_add_u32 s44, s38, {STAMP_OFF}
  s_addc_u32 s45, s39, 0
  s_and_b32 s45, s45, 0xffff
  s_mov_b32 s46, {256*4*512}
  s_mov_b32 s47, 0x20000
  s_lshl_b32 s40, s2, 2
  s_add_u32 s40, s40, s{S_W}
  s_lshl_b32 s40, s40, 9
  s_add_u32 s52, s38, {H_OFF}
  s_addc_u32 s53, s39, 0
  s_and_b32 s53, s53, 0xffff
  s_mov_b32 s54, {NPX*384}
  s_mov_b32 s55, 0x20000""")
    stamp(a, True)
    a(f"  s_mov_b32 s{S_I}, 0")
    tile_coords(a)
    if OPT['k2']:
        a(f"""  s_add_u32 s52, s38, {H_OFF}
  s_addc_u32 s53, s39, 0
  s_and_b32 s53, s53, 0xffff
  s_mov_b32 s54, {NPX*384}
  s_mov_b32 s55, 0x20000""")
        for l in h_load_lines(): a(l)
    else:
        global_bases(a)
        table_dma(a, 0); table_dma(a, 1)
        x_loads(a, 0, 0)
        if not OPT['r1late']: x_loads(a, 0, 1)
        if not OPT['r2late']: x_loads(a, 0, 2)
    npf = 0
    if OPT['spf']:
        a(f"""  s_lshl_b32 s{S_T0}, s{S_TY}, 5
  s_sub_u32 s{S_T0}, s{S_T0}, 3
  s_max_i32 s{S_T0}, s{S_T0}, 0
  s_add_u32 s{S_T0}, s{S_T0}, s{S_W}
  s_lshl_b32 s{S_T0}, s{S_T0}, 9
  s_lshl_b32 s{S_T1}, s{S_TX}, 3
  s_sub_u32 s{S_T1}, s{S_T1}, 4
  s_max_i32 s{S_T1}, s{S_T1}, 0
  s_add_u32 s{S_T0}, s{S_T0}, s{S_T1}
  s_mul_i32 s{S_PF}, s{S_T0}, 384
  v_min_u32 v{V_TMP}, 47, v{V_LANE}
  v_lshlrev_b32 v{V_TMP}, 7, v{V_TMP}
  s_mov_b32 m0, {PFSCR}
  s_lshr_b32 s{S_T0}, s2, 3
  s_lshl_b32 s{S_T0}, s{S_T0}, 2
  s_add_u32 s{S_T0}, s{S_T0}, s{S_W}
  s_mul_i32 s{S_T0}, s{S_T0}, 5120
  v_lshlrev_b32 v16, 6, v{V_LANE}
  buffer_load_dword v16, s[{R.S_WS}:{R.S_WS+3}], s{S_T0} offen lds
  buffer_load_dword v16, s[{R.S_WS}:{R.S_WS+3}], s{S_T0} offen offset:1024 lds""")
        npf = 2
        for idx in range(20):
            a(f"  buffer_load_dword v{V_TMP}, s[{S_X}:{S_X+3}], s{S_PF} offen offset:{64*(idx&1)} lds")
            if idx & 1: a(f"  s_add_u32 s{S_PF}, s{S_PF}, {4*512*384}")
            npf += 1
    if OPT['wpf']:
        a(f"""  s_mov_b32 m0, {PFSCR}
  s_lshr_b32 s{S_T0}, s2, 3
  s_lshl_b32 s{S_T0}, s{S_T0}, 2
  s_add_u32 s{S_T0}, s{S_T0}, s{S_W}
  s_mul_i32 s{S_T0}, s{S_T0}, 5120
  v_lshlrev_b32 v16, 6, v{V_LANE}
  buffer_load_dword v16, s[{R.S_WS}:{R.S_WS+3}], s{S_T0} offen lds
  buffer_load_dword v16, s[{R.S_WS}:{R.S_WS+3}], s{S_T0} offen offset:1024 lds""")
        npf += 2
    if OPT['cpf']:
        a(f"""  s_getpc_b64 s[88:89]
{{CODEBASE}}:
  v_lshlrev_b32 v17, 7, v{V_LANE}
  s_lshl_b32 s{S_T0}, s{S_W}, 13
  v_add_u32 v17, s{S_T0}, v17""".replace("{CODEBASE}", "fused_kernel_pc"))
        for q in range(3):
            a(f"  v_min_u32 v18, fused_kernel_done-fused_kernel_pc, v17")
            a(f"  global_load_dword v{120+q}, v18, s[88:89]")
            a(f"  v_add_u32 v17, {4*8192}, v17")
            npf += 1
    a(f"""
  v_add_u32 v{R.V_L16B}, {C.RB if CFG['ring5'] else 2*BLK}, v{R.V_L16}
  v_and_b32 v16, 31, v{V_LANE}             ; n
  v_lshrrev_b32 v17, 5, v{V_LANE}          ; hf
  v_lshrrev_b32 v18, 3, v16
  v_and_b32 v19, 7, v16
  s_lshl_b32 s{S_T0}, s{S_W}, 3
  v_add_u32 v18, s{S_T0}, v18
  v_lshl_add_u32 v20, v18, 9, v19
  s_movk_i32 s{S_T1}, 384
  v_mul_lo_u32 v20, v20, s{S_T1}
  v_lshl_add_u32 v{V_PX[0]}, v17, 4, v20
  v_add_u32 v{V_PX[1]}, {4*512*384}, v{V_PX[0]}
  v_lshl_add_u32 v20, v18, 3, v19
  s_movk_i32 s{S_T1}, {XPS}
  v_mul_lo_u32 v20, v20, s{S_T1}
  v_lshrrev_b32 v21, 1, v18                ; row>>1
  v_add_u32 v21, v21, v17                  ; + hf
  v_lshl_add_u32 v20, v21, 4, v20
  v_add_u32 v{V_XR[0]}, {XCH}, v20
  v_add_u32 v{V_XR[1]}, {XCH + 32*XPS + 32}, v20
  v_and_b32 v18, 0x13, v16
  v_bfe_u32 v19, v16, 2, 1
  v_lshl_or_b32 v18, v19, 3, v18
  v_bfe_u32 v19, v16, 3, 1
  v_lshl_or_b32 v18, v19, 2, v18
  v_lshlrev_b32 v19, 3, v17
  v_sub_u32 v18, v18, v19                  ; c(m) - 8hf
""")
    for d in range(4):
        for (base, reg) in ((0, 112), (16, 116)):
            a(f"""  v_cmp_eq_u32 vcc, {base+2*d}, v18
  v_mov_b32 v19, 0x3f80
  s_nop 1
  v_cndmask_b32 v20, 0, v19, vcc
  v_cmp_eq_u32 vcc, {base+2*d+1}, v18
  v_mov_b32 v19, 0x3f800000
  s_nop 1
  v_cndmask_b32 v21, 0, v19, vcc
  v_or_b32 v{reg+d}, v20, v21""")
    a(f"""  v_add_u32 v20, {IDOFF}, v{R.V_L16}
  ds_write_b128 v20, v[112:115]
  ds_write_b128 v20, v[116:119] offset:1024
  v_and_b32 v16, 15, v{V_LANE}             ; nh
  v_lshrrev_b32 v17, 4, v{V_LANE}          ; q
  v_lshrrev_b32 v18, 1, v17
  v_mul_u32_u24 v18, {PLANE}, v18
  v_lshl_add_u32 v18, v16, 5, v18
  v_and_b32 v19, 1, v17
  v_lshl_add_u32 v18, v19, 4, v18
  s_mul_i32 s{S_T0}, s{S_W}, {2*OS}
  s_add_u32 s{S_T0}, s{S_T0}, {SB}
  v_add_u32 v{V_B}, s{S_T0}, v18
  v_and_b32 v18, 1, v16                    ; mh
  v_bfe_u32 v19, v16, 1, 1                 ; par
  v_lshrrev_b32 v20, 2, v16                ; k'
  v_sub_u32 v21, v17, v18
  v_add_u32 v21, 1, v21
  v_lshlrev_b32 v21, 5, v21
  v_lshl_add_u32 v21, v19, 4, v21
  v_sub_u32 v22, 0, v20
  v_and_b32 v22, 3, v22
  v_lshl_add_u32 v21, v22, 2, v21
  s_lshl_b32 s{S_T0}, s{S_W}, 12
  s_add_u32 s{S_T0}, s{S_T0}, {TB[0]}
  v_add_u32 v{V_T}, s{S_T0}, v21
  v_lshlrev_b32 v21, 1, v20                ; 2k'
  v_add_u32 v22, 1, v21                    ; O: 2k'+1
  v_cmp_eq_u32 vcc, 0, v20
  v_mov_b32 v23, 8
  s_nop 1
  v_cndmask_b32 v21, v21, v23, vcc         ; E
  v_cmp_eq_u32 vcc, 1, v19
  s_nop 1
  v_cndmask_b32 v21, v22, v21, vcc         ; s
  v_mov_b32 v{V_IDX}, 0x4444
""")
    for g in range(4):
        a(f"""  v_cmp_le_u32 vcc, {2*g+2}, v21
  v_mov_b32 v22, {0xA << (4*g)}
  s_nop 1
  v_cndmask_b32 v22, 0, v22, vcc
  v_or_b32 v{V_IDX}, v{V_IDX}, v22""")
    a(f"""
  v_lshlrev_b32 v18, 4, v16                ; 2nh*8
  v_lshlrev_b32 v19, 1, v17                ; 2q'
  v_lshlrev_b32 v20, 4, v16
  s_lshl_b32 s{S_T0}, s{S_W}, 5
  s_add_u32 s{S_T0}, s{S_T0}, {XCH}
  v_add_u32 v20, s{S_T0}, v20
  s_movk_i32 s{S_T1}, {XPS}
  v_add_u32 v21, v18, v19
  v_mul_lo_u32 v21, v21, s{S_T1}
  v_add_u32 v{V_XW[0]}, v21, v20
  v_add_u32 v19, 7, v19
  v_and_b32 v19, 7, v19
  v_add_u32 v21, v18, v19
  v_mul_lo_u32 v21, v21, s{S_T1}
  v_add_u32 v{V_XW[1]}, v21, v20
""")
    a(f"  v_mov_b32 v20, 0\n  v_mov_b32 v21, {ZROW}\n  v_lshl_add_u32 v21, v{V_LANE}, 0, v21\n  v_and_b32 v22, 15, v{V_LANE}\n  v_lshlrev_b32 v22, 2, v22\n  v_add_u32 v22, {ZROW}, v22\n  ds_write_b32 v22, v20")
    for r in range(3):
        a(f"""  s_lshl_b32 s{S_T0}, s{S_W}, 6
  s_add_u32 s{S_T0}, s{S_T0}, {256*r}
  v_add_u32 v16, s{S_T0}, v{V_LANE}
  s_movk_i32 s{S_T1}, 608
  v_cmp_gt_u32 vcc, s{S_T1}, v16
  v_subrev_u32 v17, 32, v16
  s_nop 1
  v_cndmask_b32 v16, v17, v16, vcc
  v_and_b32 v18, 7, v16                        ; o
  v_lshrrev_b32 v19, 4, v16                    ; row
  v_bfe_u32 v20, v16, 3, 1                     ; u
  v_mul_u32_u24 v18, {OS}, v18
  v_and_b32 v21, 1, v19
  v_mul_u32_u24 v21, {PLANE}, v21
  v_lshrrev_b32 v19, 1, v19
  v_lshl_add_u32 v21, v19, 5, v21
  v_lshl_add_u32 v21, v20, 4, v21
  v_add_u32 v21, v21, v18
  v_add_u32 v{V_SW[r]}, {SB}, v21""")
    if not OPT['k2']: a(f"  s_waitcnt vmcnt({npf})")
    a(f"  s_mov_b32 s{S_PXP}, 0x80000000")
    a(f"{name}_tile:")
    a(f"  s_mov_b32 s{S_PXO}, s{S_PXN}")
    stamp(a, True)
    phase_c(a)
    stamp(a)
    if OPT['dumph']:
        for blk in range(2):
            for s in range(12):
                a(f"  buffer_store_dwordx4 {Hf(blk,s)}, v{V_PX[blk]}, s[52:55], s{S_PXO} offen offset:{32*s}")
        a("  s_waitcnt vmcnt(6)" if False else "  s_waitcnt vmcnt(0)")
    core = Core(a)
    if OPT['jith']: core.jit_reads = lambda t: [f"  ds_read_b128 {Hf(blk,t)}, v{V_XR[blk]} offset:{32*t}" for blk in range(2)]
    tc = Asm()
    tc(f"  s_add_u32 s{S_I}, s{S_I}, 1")
    tile_coords(tc)
    tc(f"""  s_lshl_b32 s{S_T0}, s{S_TY}, 5
  s_sub_u32 s{S_T0}, s{S_T0}, 3
  s_max_i32 s{S_T0}, s{S_T0}, 0
  s_add_u32 s{S_T0}, s{S_T0}, s{S_W}
  s_lshl_b32 s{S_T0}, s{S_T0}, 9
  s_lshl_b32 s{S_T1}, s{S_TX}, 3
  s_sub_u32 s{S_T1}, s{S_T1}, 4
  s_max_i32 s{S_T1}, s{S_T1}, 0
  s_add_u32 s{S_T0}, s{S_T0}, s{S_T1}
  s_mul_i32 s{S_PF}, s{S_T0}, 384
  s_cmp_ge_u32 s{S_I}, 4
  s_cselect_b32 s{S_PF}, 0x80000000, s{S_PF}""")
    tcl = [(l, 4) for l in tc.L]
    ex0 = [(f"  v_min_u32 v{V_TMP}, 47, v{V_LANE}", 4), (f"  v_lshlrev_b32 v{V_TMP}, 7, v{V_TMP}", 4)]
    if OPT['w1late']:
        wl = Asm(); w_dma_block(wl, 1)
        ex0 = [(l, 10 if 'buffer' in l else 4) for l in wl.L] + ex0
    ex0 = ex0 + tcl[:-2] + [(tcl[-2][0] + "\n" + tcl[-1][0], 8)]
    core.extra[0] = ex0
    core.fast_flush = {0}
    core.vmwait[0] = 0
    core.vmwait[1] = 0
    stplan = {}; xplan = {}
    xg = OPT['xg']
    lin = OPT['lin']
    S_SR = 76; S_SX = 77
    linops = {}
    if lin:
        ex0b = f"""  s_mul_i32 s86, s{S_W}, 12800
  s_add_u32 s86, s86, {TREG}
  v_and_b32 v12, 31, v{V_LANE}
  v_mul_u32_u24 v12, 400, v12
  v_lshrrev_b32 v16, 5, v{V_LANE}
  v_lshl_add_u32 v12, v16, 4, v12
  v_add_u32 v12, s86, v12
  s_mov_b32 s87, {(2**32 + 23)//24}""".split("\n")
        for q in range(3):
            ex0b += [f"  v_add_u32 v16, {64*q}, v{V_LANE}", f"  v_mul_hi_u32 v17, v16, s87", f"  v_add_lshl_u32 v16, v16, v17, 4", f"  v_add_u32 v{13+q}, s86, v16"]
        ex0b += [f"  s_lshl_b32 s{S_SR}, s{S_W}, 3", f"  s_mul_i32 s{S_SR}, s{S_SR}, {512*384}", f"  s_add_u32 s{S_SX}, s{S_SR}, s{S_PXO}", f"  s_add_u32 s{S_SR}, s{S_SR}, s{S_PXP}"]
        core.extra[0] = core.extra[0] + [(l, 4) for l in ex0b]
        def AQ(blk, q): r = quad(blk, q); return f"a[{r}:{r+3}]"
        for blk in range(2):
            core.lds_extra[1 + 3 * blk] = [f"  ds_write_b128 v12, {AQ(blk,q)} offset:{32*q}" for q in range(12)]
            core.lds_extra[2 + 3 * blk] = [f"  ds_read_b128 {AQ(blk,q)}, v{13+q%3} offset:{3200*(q//3)}" for q in range(12)]
            if lin == 1:
                core.lds_extra[10 + 4 * blk] = [f"  ds_write_b128 v{13+q%3}, {AQ(blk,q)} offset:{3200*(q//3)}" for q in range(12)]
                core.lds_extra[11 + 4 * blk] = [f"  ds_read_b128 {AQ(blk,q)}, v12 offset:{32*q}" for q in range(12)]
        def st(blk, q):
            L = [f"  buffer_store_dwordx4 {AQ(blk,q)}, v{R.V_L16}, s[{S_OUT}:{S_OUT+3}], s{S_SR} offen offset:{1024*(q%3)}"]
            if q % 3 == 2: L.append(f"  s_add_u32 s{S_SR}, s{S_SR}, {512*384}")
            return (L, 6)
        def xl(blk, q):
            L = [f"  buffer_load_dwordx4 {AQ(blk,q)}, v{R.V_L16}, s[{S_X}:{S_X+3}], s{S_SX} offen offset:{1024*(q%3)}"]
            if q % 3 == 2: L.append(f"  s_add_u32 s{S_SX}, s{S_SX}, {512*384}")
            return (L, 6)
        linops = {2: [st(0, q) for q in range(6)], 3: [st(0, q) for q in range(6, 12)], 4: [xl(0, q) for q in range(6)],
                  5: [st(1, q) for q in range(6)], 6: [st(1, q) for q in range(6, 12)], 7: [xl(0, q) for q in range(6, 12)],
                  10: [xl(1, q) for q in range(6)], 11: [xl(1, q) for q in range(6, 12)]}
        if lin == 2:
            for j_ in (4, 7, 10, 11): del linops[j_]
            for g, j_ in enumerate([4, 7, 8, 9, 10, 11, 12, 14, 16, 18, 20, 22]): xplan[j_] = [2 * g, 2 * g + 1]
        if lin == 3:
            core.lds_extra.pop(1); core.lds_extra.pop(2); core.lds_extra.pop(4); core.lds_extra.pop(5)
            for blk in range(2):
                core.lds_extra[10 + 4 * blk] = [f"  ds_write_b128 v{13+q%3}, {AQ(blk,q)} offset:{3200*(q//3)}" for q in range(12)]
                core.lds_extra[11 + 4 * blk] = [f"  ds_read_b128 {AQ(blk,q)}, v12 offset:{32*q}" for q in range(12)]
            linops = {7: [xl(0, q) for q in range(6)], 8: [xl(0, q) for q in range(6, 12)] , 12: [xl(1, q) for q in range(6)], 13: [xl(1, q) for q in range(6, 12)]}
            core.lds_extra[11] = core.lds_extra.pop(10); core.lds_extra[12] = [f"  ds_read_b128 {AQ(0,q)}, v12 offset:{32*q}" for q in range(12)]
            core.lds_extra[16] = core.lds_extra.pop(14); core.lds_extra[17] = [f"  ds_read_b128 {AQ(1,q)}, v12 offset:{32*q}" for q in range(12)]
            core.lds_extra.pop(15, None)
            for g in range(12): stplan[1 + g] = [2 * g, 2 * g + 1]
    elif xg == 4:
        for g in range(6):
            stplan[1 + 4 * g] = [4 * g + e for e in range(4)]
            xplan[2 + 4 * g] = [4 * g + e for e in range(4)]
    elif xg == 2:
        for g in range(12): stplan[1 + g] = [2 * g, 2 * g + 1]
        for g in range(12): xplan[[2, 4, 6, 8, 10, 12, 14, 16, 18, 20, 21, 22][g]] = [2 * g, 2 * g + 1]
    elif xg == 5:
        order = [12 * b + s_ for line in (2, 1, 0) for b in range(2) for s_ in range(4 * line, 4 * line + 4)]
        for g in range(12):
            stplan[1 + g] = order[2 * g:2 * g + 2]
            xplan[2 + g] = order[2 * g:2 * g + 2]
    elif xg == 6:
        order = [12 * b + s_ for line in (2, 1, 0) for b in range(2) for s_ in range(4 * line, 4 * line + 4)]
        for g in range(8):
            stplan[1 + g] = order[3 * g:3 * g + 3]
            xplan[2 + g] = order[3 * g:3 * g + 3]
    elif xg == 1:
        for g in range(12): stplan[1 + g] = [2 * g, 2 * g + 1]
        for q in range(24): xplan.setdefault(2 + (q * 21) // 24, []).append(q)
    perj = {}
    for j in range(1, 24):
        ops = []; nv = 0
        for g in linops.get(j, []):
            ops.append(g); nv += 1
        for q in (stplan.get(j, []) if not OPT['nost'] else []):
            ops.append(([store_parked(q, S_PXP)], 6)); nv += 1
        for q in (xplan.get(j, []) if not OPT['noxl'] else []):
            blk, sI = q // 12, q % 12
            ops.append(([f"  buffer_load_dwordx4 {Xf(blk,sI)}, v{V_PX[blk]}, s[{S_X}:{S_X+3}], s{S_PXO} offen offset:{32*sI} {['', 'nt', 'sc1', 'sc0 sc1'][OPT['xf']]}"], 6)); nv += 1
        if j in (OPT['tabj'], OPT['tabj'] + 2) and not OPT['k2']:
            for gi_, g in enumerate(table_dma_ops(0 if j == OPT['tabj'] else 1)):
                ops.append((g, 6 + 4 * (len(g) - 1))); nv += 1
        if OPT['pf'] and j < 23 and not OPT['k2']:
            npf_ = 20 if OPT['pfh'] else 10
            step = OPT['pfs']; first = 23 - npf_ * step
            if j >= first and (j - first) % step == 0:
                idx = (j - first) // step
                t = [f"  s_mov_b32 m0, {PFSCR}", "  s_nop 0", f"  buffer_load_dword v{V_TMP}, s[{S_X}:{S_X+3}], s{S_PF} offen offset:{64 * (idx & 1) if OPT['pfh'] else 0} {['', 'nt', 'sc1', 'sc0 sc1'][OPT['pff']]} lds"]
                if (idx & 1) or not OPT['pfh']: t.append(f"  s_add_u32 s{S_PF}, s{S_PF}, {4*512*384}")
                ops.append((t, 14)); nv += 1
        perj[j] = (ops, nv)
    if CFG['ring5']:
        for j in range(1, 24, 2):
            o1, n1 = perj.get(j, ([], 0)); o2, n2 = perj.get(j + 1, ([], 0))
            core.pend_extra[j] = (o1, o2)
            core.vmwait[j + 2] = n2
    else:
        for j in range(1, 24):
            core.pend_extra[j] = perj[j][0]; core.vmwait[j + 1] = perj[j][1]
    core.extra[23] = []
    core.extra[24] = [(f"  v_add_u32 v56, {IDOFF}, v{R.V_L16}", 4), (f"  ds_read_b128 v[48:51], v56", 8), (f"  ds_read_b128 v[52:55], v56 offset:1024", 8)]
    ps = []
    for blk in range(2):
        for sI in range(12):
            ps.append((f"  v_mfma_f32_32x32x16_bf16 {ACC(blk,sI>>1)}, {vr(52 if sI&1 else 48,4)}, {Xf(blk,sI)}, {ACC(blk,sI>>1)}", []))
    if CFG['ring5']: ps[0] = (ps[0][0], ["  s_waitcnt vmcnt(0)"])
    core.pseudo[24] = ps
    core.extra_first.add(24)
    core.no_barrier.add(25)
    if not CFG['ring5']: core.vmwait[24] = 0
    core.emit(0, 1); core.emit(1, 2)
    if OPT['prof'] >= 2:
        a(f"  v_mov_b32 v47, v{V_TMP}"); stamp(a); a(f"  v_mov_b32 v{V_TMP}, v47")
    for j in range(2, 24): core.emit(j, j + 1)
    if OPT['prof'] >= 2: stamp(a)
    core.emit(24, 25)
    if OPT['prof'] >= 2: stamp(a)
    if OPT['wb']:
        a(f"""  s_cmp_lt_u32 s{S_I}, 4
  s_cbranch_scc1 {name}_nowb
  s_cmp_ge_u32 s2, {8 if OPT['wb'] == 1 else 256}
  s_cbranch_scc1 {name}_nowb
  s_cmp_lg_u32 s{S_W}, 0
  s_cbranch_scc1 {name}_nowb
  buffer_wbl2 sc1
{name}_nowb:""")
    emit_tail(a, core)
    stamp(a)
    a(f"""  s_cmp_ge_u32 s{S_I}, 4
  s_cbranch_scc1 {name}_last""")
    if OPT['endbar']: a("  s_barrier")
    a(f"  s_mov_b32 s{S_PXP}, s{S_PXO}")
    stamp(a)
    a(f"  s_branch {name}_tile")
    a(f"{name}_last:")
    if CFG['ring5']: a("  s_barrier        ; the transposition buffers overlap ring slots that slower waves may still read")
    a("  s_nop 15")
    epilogue(a)
    stamp(a)
    a("  s_waitcnt vmcnt(0)")
    stamp(a, True)
    a(f"""  s_waitcnt vmcnt(0)
{name}_done:
  s_endpgm
""")
    for blk in OOL:
        for l in blk: a(l)
    a(kdesc(name, 512, 100, 256))
def emit_loop(a, self, name):
    for j in range(2, 25): self.emit(j, j + 1)
def emit_tail(a, core):
    ch, Pf = core.plan(25, None)
    main = [l for c in ch for l in c]
    for tx, c in core.pending: main += tx
    core.pending = []
    f = []
    if OPT['k2']:
        f += h_load_lines()
    else:
        f += global_bases_lines(96)
        f += [x_load_line(0, 0, i) for i in range(8)]
        if not OPT['r1late']: f += [x_load_line(0, 1, i) for i in range(8)]
        if not OPT['r2late']: f += [x_load_line(0, 2, i) for i in range(8)]
    fi = 0
    nm = sum(1 for l in main if "v_mfma" in l); per = -(-len(f) // nm)
    for l in main:
        a(l)
        if "v_mfma" in l:
            for _ in range(per):
                if fi < len(f): a(f[fi]); fi += 1
    while fi < len(f): a(f[fi]); fi += 1
    vm.ops.clear(); vm.add(('t', 0), 4); vm.add(('t', 1), 4); vm.add(('x', 0, 0), 8)
    if not OPT['r1late']: vm.add(('x', 0, 1), 8)
    if not OPT['r2late']: vm.add(('x', 0, 2), 8)
```

```python
from asmlib import *
import mlpcore as C
from mlpcore import R, ACC, ACCreg, Hf, WFr, Core, BLK, NBLK, CFG
from k_prep2 import TBL_OFF, TBL_BYTES
import numpy as np
OS = 9744; CS = 1216; PLANE = 608
SB = 49152
TB = [SB + 8 * OS, SB + 8 * OS + 16384]
ZROW = TB[1] + 16384
XCH = 49152; XPS = 416
STATS = TB[1] + 1024
IDOFF = ZROW + 64
PFSCR = IDOFF + 2048
SAVEOFF = PFSCR + 256
LDS_BYTES = SAVEOFF + 1024
TREG = 73728
assert XCH + 106736 <= IDOFF and LDS_BYTES <= 163840 and STATS + 8192 <= ZROW
V_LANE = 0
V_SW = [1, 2, 9]
V_TMP = 3
V_PX = [6, 7]
V_B = 8
V_T = 10
V_IDX = 11
V_XW = [12, 13]
V_XR = [14, 15]
V_GA = [24, 26, 30]; V_GB = [25, 27, 31]
AF = [32, 40]
XR = [48, 80]
XA2 = 96
PT = [32, 40]
def Darch(k, i):
    idx = 16 * k + i
    return 112 + 4 * idx if idx < 36 else 48 + 4 * (idx - 36)
def Dreg(k, i): return ('v', Darch(k, i))
BF = [48, 64, 80]
PARK = 160
S_ST = [78, 79, 80, 81]
def Xf(blk, s):
    r = 160 + 48 * blk + 4 * s; return f"a[{r}:{r+3}]"
S_X = 8; S_OUT = 12; S_TB = 16
S_W = 20; S_I = 21; S_T0 = 28; S_T1 = 29; S_PXO = 30; S_PXN = 31; S_G0 = 32; S_LO = 33; S_HI = 34
S_TX = 64; S_TY = 65; S_TM = 66; S_TG = 67; S_EPS = 68; S_INV = 69
NPX = 512 * 512
STAMP_OFF = 300 << 20
H_OFF = 1 << 20
OPT = dict(dumph=0, prof=0, pf=1, st=3, sbud=100, cbud=32, stc=20, nhi=1, stnt=0, xnt=0, pfn=1, nox=0, nopark=0, sst=11, spf=0, nhs=2, st3=1, hprog=1, samex=0, pfh=0, pfs=1, w1late=0, xg=5, pff=0, xf=0, bias=0, r2late=1, linfin=1, lin=2, skip2=1, wpf=0, cpf=0, cord=1, sord=2, jith=0, ststage=0, cbud2=0, wb=0, w0early=1, r1late=1, zlate=0, tabj=15, endbar=1, hpos=0, prepark=0, k2=0, hj=25, finf=3, nost=0, noxl=0, linf=3, nxw=2, pfe=23)
COLS = [0, 1, 8, 9, 2, 3, 10, 11]
S_HN = 83
S_PXP = 74
S_PF = 75
V_PFA = 3
class VM:
    def __init__(self): self.ops = []
    def add(self, tag, n=1): self.ops += [tag] * n
    def after(self, tag):
        i = max(k for k, t in enumerate(self.ops) if t == tag)
        return len(self.ops) - 1 - i
vm = VM()
OOL = []
def stamp(a, force=False):
    if not OPT['prof']: return
    if OPT['prof'] == 3 and not force: return
    a(f"""  s_memtime s[42:43]
  s_memrealtime s[62:63]
  s_waitcnt lgkmcnt(0)
  v_mov_b32 v{V_TMP}, s42
  s_nop 0
  buffer_store_dword v{V_TMP}, off, s[44:47], s40
  s_nop 1
  v_mov_b32 v{V_TMP}, s62
  s_nop 0
  buffer_store_dword v{V_TMP}, off, s[44:47], s40 offset:256
  s_add_u32 s40, s40, 4""")
def tile_coords(a):
    a(f"""  s_and_b32 s{S_T0}, s2, 7
  s_lshl_b32 s{S_T0}, s{S_T0}, 3
  s_lshr_b32 s{S_T1}, s2, 3
  s_and_b32 s{S_TX}, s{S_T1}, 7
  s_add_u32 s{S_TX}, s{S_TX}, s{S_T0}
  s_lshr_b32 s{S_T1}, s{S_T1}, 3
  s_lshl_b32 s{S_TY}, s{S_I}, 2
  s_add_u32 s{S_TY}, s{S_TY}, s{S_T1}          ; ty = 4*i + (c>>3)
  s_lshl_b32 s{S_T0}, s{S_TY}, 14              ; y0*512 = ty*32*512
  s_lshl_b32 s{S_T1}, s{S_TX}, 3
  s_add_u32 s{S_T0}, s{S_T0}, s{S_T1}
  s_mul_i32 s{S_PXN}, s{S_T0}, 384""")
    if OPT['k2']:
        a(f"""  s_lshl_b32 s{S_T0}, s{S_TY}, 6
  s_add_u32 s{S_T0}, s{S_T0}, s{S_TX}
  s_mul_i32 s{S_T0}, s{S_T0}, 98304
  s_mul_i32 s{S_T1}, s{S_W}, 24576
  s_add_u32 s{S_HN}, s{S_T0}, s{S_T1}""")
def global_bases_lines(t):
    L = []
    if OPT['samex']: L += [f"  s_mov_b32 s{S_TX}, 5", f"  s_mov_b32 s{S_TY}, 5"]
    L += f"""  s_lshl_b32 s88, s{S_TY}, 5
  s_sub_u32 s88, s88, 3
  s_lshl_b32 s89, s{S_TX}, 3
  s_sub_u32 s89, s89, 4
  s_lshl_b32 s90, s{S_W}, 2
  s_add_u32 s88, s88, s90
  s_movk_i32 s90, 384
  s_movk_i32 s91, 512
  v_lshrrev_b32 v{t}, 4, v{V_LANE}
  v_bfe_u32 v{t+1}, v{V_LANE}, 3, 1
  v_and_b32 v{t+2}, 7, v{V_LANE}
  v_lshl_add_u32 v{t+1}, v{t+1}, 2, s89
  v_add_u32 v{t}, s88, v{t}
  v_add_u32 v{t+3}, 8, v{t+1}
  v_cmp_gt_u32 s[70:71], s91, v{t+1}
  v_cmp_gt_u32 s[72:73], s91, v{t+3}
  v_lshl_add_u32 v{t+3}, v{t}, 9, v{t+1}
  v_mul_lo_u32 v{t+3}, v{t+3}, s90
  v_lshl_add_u32 v{t+3}, v{t+2}, 4, v{t+3}
  v_mov_b32 v{t+4}, 0x80000000""".split("\n")
    for r in range(3):
        if r > 0:
            L += [f"  v_add_u32 v{t}, 16, v{t}", f"  v_add_u32 v{t+3}, {16*512*384}, v{t+3}"]
        L += [f"  v_cmp_gt_u32 vcc, s91, v{t}"]
        if r == 2:
            L = L[:-1]
            L += [f"  v_lshrrev_b32 v{t+5}, 4, v{V_LANE}", f"  s_lshl_b32 s86, s{S_W}, 2", f"  v_add_u32 v{t+5}, s86, v{t+5}",
                  f"  v_cmp_gt_u32 vcc, 6, v{t+5}", f"  v_subrev_u32 v{t+6}, 2, v{t}", f"  v_subrev_u32 v{t+5}, {2*512*384}, v{t+3}", "  s_nop 0",
                  f"  v_cndmask_b32 v{t}, v{t+6}, v{t}, vcc", f"  v_cndmask_b32 v{t+3}, v{t+5}, v{t+3}, vcc",
                  f"  v_cmp_gt_u32 vcc, s91, v{t}", f"  s_cmp_lt_u32 s{S_W}, 2", "  s_cselect_b64 s[86:87], -1, 0", "  s_and_b64 vcc, vcc, s[86:87]"]
        L += [f"  v_add_u32 v{t+6}, {8*384}, v{t+3}",
              "  s_and_b64 s[92:93], s[70:71], vcc",
              "  s_and_b64 s[94:95], s[72:73], vcc",
              "  s_nop 1",
              f"  v_cndmask_b32 v{V_GA[r]}, v{t+4}, v{t+3}, s[92:93]",
              f"  v_cndmask_b32 v{V_GB[r]}, v{t+4}, v{t+6}, s[94:95]"]
    return L
def global_bases(a, t=128):
    for l in global_bases_lines(t): a(l)
def x_load_line(k, r, i):
    col = COLS[i]
    base = V_GA[r] if col < 8 else V_GB[r]
    off = (col & 7) * 384 + k * 128
    dst = vr(XR[r] + 4 * i, 4) if r < 2 else f"a[{XA2+4*i}:{XA2+4*i+3}]"
    return f"  buffer_load_dwordx4 {dst}, v{base}, s[{S_X}:{S_X+3}], 0 offen offset:{off}"
class Fill:
    def __init__(self, a): self.a = a; self.hi = []; self.lo = []
    def push(self, lines, cost, tag=None, hi=False): (self.hi if hi else self.lo).append((lines, cost, tag))
    def emit1(self, g):
        for l in g[0]: self.a(l)
        if g[2] is not None: vm.add(g[2])
    def pop(self, budget, nhi=1):
        n = 0
        while self.hi and n < nhi:
            g = self.hi.pop(0); self.emit1(g); budget -= g[1]; n += 1
        while self.lo and budget >= self.lo[0][1] * 0.6:
            g = self.lo.pop(0); self.emit1(g); budget -= g[1]
    def flush(self, hi=True, lo=True, n=None):
        if hi:
            while self.hi: self.emit1(self.hi.pop(0))
        if lo:
            c = 0
            while self.lo and (n is None or c < n): self.emit1(self.lo.pop(0)); c += 1
def x_loads(a, k, r):
    for i in range(8): a(x_load_line(k, r, i))
    vm.add(('x', k, r), 8)
def stage_round(a, k, r, hook=None):
    src = XR[r] if r < 2 else XR[0]
    if r == 2:
        for e in range(32): a(f"  v_accvgpr_read_b32 v{XR[0]+e}, a{XA2+e}")
    for d in range(4):
        if hook and OPT['sord'] != 2: hook(d)
        T = PT[d & 1]
        lo = [f"  v_perm_b32 v{T+p}, v{src + 4*(2*p+1) + d}, v{src + 4*(2*p) + d}, s{S_LO}" for p in range(4)]
        hi = [f"  v_perm_b32 v{T+4+p}, v{src + 4*(2*p+1) + d}, v{src + 4*(2*p) + d}, s{S_HI}" for p in range(4)]
        w0 = f"  ds_write_b128 v{V_SW[r]}, {vr(T,4)} offset:{(2*d)*CS}"
        w1 = f"  ds_write_b128 v{V_SW[r]}, {vr(T+4,4)} offset:{(2*d+1)*CS}"
        if OPT['sord'] == 0:
            for l in lo + hi + [w0, w1]: a(l)
        elif OPT['sord'] == 1:
            for l in lo + [w0] + hi + [w1]: a(l)
        else:
            for l in lo + [w0] + hi: a(l)
            if hook: hook(d)
            a(w1)
def table_dma_ops(k):
    d = lambda q: f"  buffer_load_dwordx4 v{R.V_L16}, s[{S_TB}:{S_TB+3}], s{S_TG} offen offset:{1024*q} lds"
    return [
        [f"  s_lshl_b32 s{S_TM}, s{S_W}, 12", f"  s_add_u32 s{S_TG}, s{S_TM}, {k*16384}", f"  s_add_u32 m0, s{S_TM}, {TB[k&1]}", "  s_nop 0", d(0)],
        [d(1)], [d(2)], [d(3)],
    ]
def table_dma(a, k):
    for g in table_dma_ops(k):
        for l in g: a(l)
    vm.add(('t', k), 4)
NCH = 16
def conv_chunk(a, k, hook=None):
    def chan_off(i): j, e = i >> 3, i & 7; return j * OS + e * CS
    def tab_off(i): j, e = i >> 3, i & 7; return TB[k & 1] - TB[0] + j * 2048 + e * 256
    def rdA(i):
        A = AF[i & 1]
        return [f"  ds_read_b32 v{A}, v{V_T} offset:{tab_off(i)}", f"  ds_read_b32 v{A+4}, v{V_T} offset:{tab_off(i)+128}"]
    def rdB(i):
        B = BF[i % 3]
        return [f"  ds_read_b128 a[{B+4*q}:{B+4*q+3}], v{V_B} offset:{chan_off(i)+32*q}" for q in range(4)]
    deep = OPT['cord'] == 6
    if deep:
        for t in rdA(0) + rdB(0) + rdA(1) + rdB(1): a(t)
    else:
        for t in rdA(0) + rdB(0) + rdB(1): a(t)
    if OPT['zlate']: zero_D(a, k)
    for i in range(NCH):
        A = AF[i & 1]; B = BF[i % 3]
        kind, D = Dreg(k, i)
        Dt = f"{kind}[{D}:{D+3}]"
        nxtA = rdA(i + 1) if i + 1 < NCH else []
        nxtB = rdB(i + 2) if i + 2 < NCH else []
        if deep:
            a(f"  s_waitcnt lgkmcnt({6 if i + 1 < NCH else 0})")
        else:
            a(f"  s_waitcnt lgkmcnt({4 if i + 1 < NCH else 0})")
        sm = [f"  v_smfmac_f32_16x16x64_bf16 {Dt}, {vr(A+4*h,4)}, a[{B+8*h}:{B+8*h+7}], v{V_IDX}" for h in range(2)]
        dp = [[f"  v_mov_b32_dpp v{A+4*h+1+g}, v{A+4*h} row_ror:{4*(g+1)} row_mask:0xf bank_mask:0xf" for g in range(3)] for h in range(2)]
        if OPT['cord'] == 0:
            for t in nxtA: a(t)
            for h in range(2):
                for t in dp[h]: a(t)
                rb = nxtB[2*h:2*h+2]
                for t in rb: a(t)
                if len(rb) < 2: a("  s_nop 1")
                a(sm[h])
        elif OPT['cord'] == 1:
            for t in dp[0] + dp[1]: a(t)
            a(sm[0])
            for t in nxtA + nxtB[:2]: a(t)
            if not (nxtA + nxtB[:2]): a("  s_nop 1")
            a(sm[1])
            if hook and OPT['hpos'] == 1: hook(i)
            for t in nxtB[2:]: a(t)
        elif OPT['cord'] == 6:
            A2 = rdA(i + 2) if i + 2 < NCH else []
            for t in dp[0] + dp[1]: a(t)
            a(sm[0])
            for t in A2[:1] + nxtB[:2]: a(t)
            if not (A2[:1] + nxtB[:2]): a("  s_nop 1")
            a(sm[1])
            for t in A2[1:] + nxtB[2:]: a(t)
        elif OPT['cord'] == 3:
            for t in nxtA: a(t)
            for t in dp[0] + dp[1]: a(t)
            a(sm[0])
            for t in nxtB[:2]: a(t)
            if not nxtB[:2]: a("  s_nop 1")
            a(sm[1])
            for t in nxtB[2:]: a(t)
        elif OPT['cord'] == 4:
            for t in dp[0] + dp[1]: a(t)
            a(sm[0])
            for t in nxtA + nxtB[:1]: a(t)
            if not (nxtA + nxtB[:1]): a("  s_nop 1")
            a(sm[1])
            for t in nxtB[1:]: a(t)
        elif OPT['cord'] == 5:
            for t in dp[0] + dp[1]: a(t)
            a(sm[0])
            for t in nxtA[:1]: a(t)
            if not nxtA[:1]: a("  s_nop 1")
            a(sm[1])
            for t in nxtA[1:] + nxtB: a(t)
        elif OPT['cord'] == 2:
            for t in nxtA[:1]: a(t)
            for t in dp[0]: a(t)
            for t in nxtA[1:]: a(t)
            for t in dp[1]: a(t)
            a(sm[0])
            for t in nxtB[:2]: a(t)
            if not nxtB[:2]: a("  s_nop 1")
            a(sm[1])
            for t in nxtB[2:]: a(t)
        if hook and (OPT['hpos'] == 0 or OPT['cord'] != 1): hook(i)
def zero_D(a, k):
    L = [f"  v_mov_b32 v{r}, 0" for r in range(44, 48)] + ["  s_nop 1"]
    for q in range(4):
        base = Darch(k, 4 * q)
        L.append(f"  v_mfma_f32_32x32x16_bf16 v[{base}:{base+15}], v[44:47], v[44:47], 0")
    for l in L: a(l)
def stats_lines(k, i):
    D = Darch(k, i)
    return [f"  v_pk_add_f32 v[16:17], v[16:17], v[{D}:{D+1}]", f"  v_pk_add_f32 v[18:19], v[18:19], v[{D+2}:{D+3}]",
            f"  v_pk_fma_f32 v[20:21], v[{D}:{D+1}], v[{D}:{D+1}], v[20:21]", f"  v_pk_fma_f32 v[22:23], v[{D+2}:{D+3}], v[{D+2}:{D+3}], v[22:23]"]
def move_lines(k, i):
    D = Darch(k, i); A = Dreg(k, i)[1]
    return [f"  v_accvgpr_read_b32 v{D+e}, a{A+e}" for e in range(4)]
def ln_phase(a, wdma, done3):
    if OPT['lin']:
        a(f"""  s_lshl_b32 s{S_T0}, s{S_W}, 5
  s_mul_i32 s{S_T1}, s{S_W}, {8*8*XPS + 4*16}
  v_add_u32 v12, s{S_T0}, v12
  v_add_u32 v13, s{S_T0}, v13
  v_add_u32 v14, s{S_T1}, v14
  v_add_u32 v15, s{S_T1}, v15""")
    a("  s_nop 7")
    for i in range(done3, NCH):
        for l in stats_lines(2, i): a(l)
    a(f"""  s_lshl_b32 s{S_T0}, s{S_W}, 11
  s_add_u32 s{S_T0}, s{S_T0}, {STATS}
  v_add_u32 v24, s{S_T0}, v{R.V_L16}
  v_add_u32 v25, {STATS}, v{R.V_L16}
  ds_write_b128 v24, v[16:19]
  ds_write_b128 v24, v[20:23] offset:1024
  s_waitcnt lgkmcnt(0)
  s_barrier""")
    for w in range(4):
        a(f"  ds_read_b128 v[{96+4*w}:{99+4*w}], v25 offset:{2048*w}")
    for w in range(4):
        a(f"  ds_read_b128 v[{28+4*w}:{31+4*w}], v25 offset:{2048*w+1024}")
    wl = Asm(); wdma(wl); wl = [l for l in wl.L]
    for l in wl[:8]: a(l)
    wl = wl[8:]
    a("  s_waitcnt lgkmcnt(4)")
    a("""  v_pk_add_f32 v[96:97], v[96:97], v[100:101]
  v_pk_add_f32 v[98:99], v[98:99], v[102:103]
  v_pk_add_f32 v[104:105], v[104:105], v[108:109]
  v_pk_add_f32 v[106:107], v[106:107], v[110:111]
  v_pk_add_f32 v[96:97], v[96:97], v[104:105]
  v_pk_add_f32 v[98:99], v[98:99], v[106:107]
  s_waitcnt lgkmcnt(0)
  v_pk_add_f32 v[28:29], v[28:29], v[32:33]
  v_pk_add_f32 v[30:31], v[30:31], v[34:35]
  v_pk_add_f32 v[36:37], v[36:37], v[40:41]
  v_pk_add_f32 v[38:39], v[38:39], v[42:43]
  v_pk_add_f32 v[28:29], v[28:29], v[36:37]
  v_pk_add_f32 v[30:31], v[30:31], v[38:39]""")
    a("  s_barrier        ; everybody has read the statistics: the exchange buffer may overwrite them")
    for r in range(4):
        a(f"  v_mul_f32 v{16+r}, s{S_INV}, v{96+r}")
    for r in range(4):
        a(f"  v_mul_f32 v{28+r}, s{S_INV}, v{28+r}")
    for r in range(4):
        a(f"  v_fma_f32 v{28+r}, -v{16+r}, v{16+r}, v{28+r}")
    for r in range(4):
        a(f"  v_max_f32 v{28+r}, 0, v{28+r}")
    for r in range(4):
        a(f"  v_add_f32 v{28+r}, s{S_EPS}, v{28+r}")
    for r in range(4):
        a(f"  v_rsq_f32 v{20+r}, v{28+r}")
    a("  s_nop 0")
    for r in range(4):
        a(f"  v_mul_f32 v{20+r}, s{R.S_S}, v{20+r}")
    for r in range(4):
        a(f"  v_mul_f32 v{24+r}, -v{16+r}, v{20+r}" .replace("v_mul_f32 v", "v_mul_f32_e64 v"))
    groups = [(k, j) for k in range(3) for j in range(2)]
    def fmas(g):
        k, j = groups[g]; L = []
        for e in range(8):
            D = Darch(k, 8 * j + e)
            L.append(f"  v_pk_fma_f32 v[{D}:{D+1}], v[{D}:{D+1}], v[20:21], v[24:25]")
            L.append(f"  v_pk_fma_f32 v[{D+2}:{D+3}], v[{D+2}:{D+3}], v[22:23], v[26:27]")
        return L
    for l in fmas(0): a(l)
    cnt = 0
    for g, (k, j) in enumerate(groups):
        Ds = [Darch(k, 8 * j + e) for e in range(8)]
        nxt = fmas(g + 1) if g + 1 < len(groups) else []
        for r in range(4):
            T = 32 + 4 * (cnt % 4); cnt += 1
            for e in range(4):
                a(f"  v_cvt_pk_bf16_f32 v{T+e}, v{Ds[2*e]+r}, v{Ds[2*e+1]+r}")
            a(f"  ds_write_b128 v{V_XW[r>>1]}, v[{T}:{T+3}] offset:{(r&1)*8*XPS + 128*k + 16*j}")
            for l in nxt[4*r:4*r+4]: a(l)
            n = 0
            while wl and n < 1:
                l = wl.pop(0); a(l); n += 1
                while wl and l.startswith("  s_"): l = wl.pop(0); a(l)
    for l in wl: a(l)
def w_dma_block(a, blk):
    S_G0 = 32
    for half, cnt in ((0, 4), (1, 2)):
        a(f"  s_add_u32 s{R.S_G}, s{S_G0}, {blk*BLK + 4096*half}\n{C.m0_set(blk, half)}\n  s_nop 0")
        for p in range(cnt):
            a(f"  buffer_load_dwordx4 v{R.V_L16}, s[{R.S_WS}:{R.S_WS+3}], s{R.S_G} offen offset:{1024*p} lds")
    if blk == 1: a(f"  s_add_u32 s{R.S_G}, s{S_G0}, {2*BLK}\n  s_add_u32 s{R.S_G2}, s{S_G0}, {2*BLK+4096}")
def h_load_lines():
    L = []
    for q in range(24):
        blk, sI = q // 12, q % 12
        if q % 4 == 0: L.append(f"  s_add_u32 s84, s{S_HN}, {1024*q}")
        L.append(f"  buffer_load_dwordx4 {Hf(blk,sI)}, v{R.V_L16}, s[52:55], s84 offen offset:{1024*(q%4)}")
    return L
def phase_k2(a):
    wl = Asm(); w_dma_block(wl, 0); w_dma_block(wl, 1); wl = list(wl.L)
    for g in range(24):
        n = 0
        while wl and n < 1:
            l = wl.pop(0); a(l)
            if 'buffer_load' in l: n += 1
        if g == 12:
            for l in wl: a(l)
            wl = []
        for l in park_group(g)[0]: a(l)
    for l in wl: a(l)
    a("  s_waitcnt vmcnt(6)\n  s_barrier")
    for i in range(CFG['D']): a(C.ds_text(i, 0, i))
    a("  s_waitcnt lgkmcnt(0)")
def phase_c(a):
    if OPT['k2']: return phase_k2(a)
    F = Fill(a)
    if OPT['lin']:
        a(f"  v_add_u32 v16, {SAVEOFF}, v{R.V_L16}\n  ds_read_b128 v[12:15], v16")
    for g in range(24):
        L, c = park_group(g); F.push(L if not OPT['nopark'] else ["  s_nop 0 ; cvt"] * 8, c)
    if OPT['r1late']:
        for i in range(8): F.push([x_load_line(0, 1, i)], 12, ('x', 0, 1), hi=True)
    if OPT['r2late']:
        for i in range(8): F.push([x_load_line(0, 2, i)], 12, ('x', 0, 2), hi=True)
    F.flush(hi=False, lo=True, n=OPT['prepark'])
    need_by = [8, 16, 24]
    for k in range(3):
        if OPT['ststage'] and k >= 1:
            if k == 1: F.push([f"  v_mov_b32 v{r}, 0" for r in range(16, 24)], 32)
            for i in range(NCH): F.push(stats_lines(k - 1, i), 16)
        for r in range(3):
            late = OPT['r2late'] and k == 0
            if r == 0 and not late: F.flush(hi=True, lo=False)
            if r >= 1 and late:
                for g in [g for g in F.hi if g[2] == ('x', 0, r)]: F.emit1(g)
                F.hi = [g for g in F.hi if g[2] != ('x', 0, r)]
            if r == 2 and OPT['skip2']:
                lab = f"fused_kernel_sk{k}"
                a(f"  s_cmp_ge_u32 s{S_W}, 2\n  s_cbranch_scc1 {lab}")
                a(f"  s_waitcnt vmcnt({vm.after(('x', k, r))})")
                rec = []
                def hk(d):
                    n0 = len(a.L); F.pop(OPT['sbud'], OPT['nhs']); rec.extend(a.L[n0:])
                stage_round(a, k, r, hk)
                a(f"{lab}_j:")
                OOL.append([f"{lab}:"] + rec + [f"  s_branch {lab}_j"])
            else:
                a(f"  s_waitcnt vmcnt({vm.after(('x', k, r))})")
                stage_round(a, k, r, lambda d: F.pop(OPT['sbud'], OPT['nhs'] if (r == 2 or (late and (r == 0 or OPT['r1late']))) else 0))
            if k < 2 and OPT['nox']:
                vm.add(('x', k + 1, r))
            if k < 2 and not OPT['nox']:
                if r == 1:
                    for i in range(8): F.push([x_load_line(k + 1, 1, i)], 12, ('x', k + 1, 1), hi=True)
                if r == 2:
                    F.hi = [([x_load_line(k + 1, 0, i)], 12, ('x', k + 1, 0)) for i in range(8)] + F.hi
                    for i in range(8): F.push([x_load_line(k + 1, 2, i)], 12, ('x', k + 1, 2), hi=True)
        parked = 24 - sum(1 for g in F.lo if 'cvt' in ''.join(g[0]))
        need = need_by[k] - parked
        while need > 0:
            g = F.lo.pop(0); F.emit1(g)
            if 'cvt' in ''.join(g[0]): need -= 1
        if not OPT['zlate']: zero_D(a, k)
        a(f"  s_waitcnt vmcnt({vm.after(('t', k))}) lgkmcnt(0)")
        a("  s_barrier")
        if k == 1: table_dma(a, 2)
        if k == 2 and OPT['w0early']:
            wl = Asm(); w_dma_block(wl, 0); w_dma_block(wl, 1)
            grp = []
            for l in wl.L:
                grp.append(l)
                if 'buffer_load' in l:
                    F.push(grp, 12, ('w', 0), hi=True); grp = []
            if grp: F.push(grp, 8, None, hi=True)
        if not OPT['ststage']:
            if k == 1:
                F.flush(hi=False, lo=True)
                F.push([f"  v_mov_b32 v{r}, 0" for r in range(16, 24)], 32)
                for i in range(NCH): F.push(stats_lines(0, i), OPT['stc'])
            if k == 2:
                for i in range(NCH): F.push(stats_lines(1, i), OPT['stc'])
        stamp(a)
        def hook(i, k=k):
            if k == 2 and i >= 3 and OPT['st3']:
                for l in stats_lines(2, i - 3): a(l)
            F.pop(OPT['cbud'] if not OPT['ststage'] else OPT['cbud2'], OPT['nhi'])
        conv_chunk(a, k, hook)
        if k < 2: a("  s_barrier")
        stamp(a)
    F.flush()
    ln_phase(a, (lambda x: None) if OPT['w0early'] else (lambda x: w_dma_block(x, 0)), NCH - 3 if OPT['st3'] else 0)
    a(f"  s_waitcnt vmcnt({vm.after(('w', 0)) if False else 0}) lgkmcnt(0)\n  s_barrier")
    if OPT['jith']:
        for i in range(CFG['D']):
            a(C.ds_text(i, 0, i))
            for blk in range(2): a(f"  ds_read_b128 {Hf(blk,i)}, v{V_XR[blk]} offset:{32*i}")
        a(f"  s_waitcnt lgkmcnt({3*(CFG['D']-1)})")
        return
    for i in range(CFG['D']): a(C.ds_text(i, 0, i))
    for s in range(12):
        for blk in range(2):
            a(f"  ds_read_b128 {Hf(blk,s)}, v{V_XR[blk]} offset:{32*s}")
    a(f"  s_waitcnt lgkmcnt({15 if OPT['hprog'] else 0})")
EPI_ORDER = [(0, s_) for s_ in range(12)] + [(1, s_) for s_ in range(12)]
def quad(blk, sI): return PARK + 4 * (blk * 12 + sI)
def epi_cvt(blk, sI, p, bounce):
    b = sI >> 1
    kind, r0 = ACCreg(blk, b); r0 += 8 * (sI & 1)
    L = []
    if kind == 'a':
        for e in range(8): L.append(f"  v_accvgpr_read_b32 v{bounce+e}, a{r0+e}")
        r0 = bounce
    L += [f"  v_cvt_pk_bf16_f32 v{p}, v{r0}, v{r0+1}", f"  v_cvt_pk_bf16_f32 v{p+1}, v{r0+2}, v{r0+3}",
          f"  v_cvt_pk_bf16_f32 v{p+2}, v{r0+4}, v{r0+5}", f"  v_cvt_pk_bf16_f32 v{p+3}, v{r0+6}, v{r0+7}"]
    return L
def park_group(g):
    blk, sI = EPI_ORDER[g]
    kind, _ = ACCreg(blk, sI >> 1)
    p = 16 if kind == 'a' else 16 + 4 * (g & 1)
    L = epi_cvt(blk, sI, p, 16)
    q = quad(blk, sI)
    L += [f"  v_accvgpr_write_b32 a{q+e}, v{p+e}" for e in range(4)]
    return L, (32 + (32 if kind == 'a' else 0))
def store_parked(i, spx):
    blk, sI = i // 12, i % 12
    q = quad(blk, sI)
    return f"  buffer_store_dwordx4 a[{q}:{q+3}], v{V_PX[blk]}, s[{S_OUT}:{S_OUT+3}], s{spx} offen offset:{32*sI}{['', ' nt', ' sc1', ' sc0 sc1'][OPT['stnt']]}"
class Epi:
    def __init__(self, a): self.a = a; self.g = 0
    def emit(self, n=1):
        pass
def epilogue(a):
    if not OPT['linfin']:
        for g in range(24):
            blk, sI = g // 12, g % 12
            p = 16 + 4 * (g & 1)
            for t in epi_cvt(blk, sI, p, 40): a(t)
            a(f"  buffer_store_dwordx4 {vr(p,4)}, v{V_PX[blk]}, s[{S_OUT}:{S_OUT+3}], s{S_PXO} offen offset:{32*sI}")
        return
    REG = 73728
    a("  s_waitcnt vmcnt(0)")
    a(f"""  s_mul_i32 s{S_T0}, s{S_W}, 12800
  s_add_u32 s{S_T0}, s{S_T0}, {REG}
  v_and_b32 v24, 31, v{V_LANE}
  v_mul_u32_u24 v24, 400, v24
  v_lshrrev_b32 v25, 5, v{V_LANE}
  v_lshl_add_u32 v24, v25, 4, v24
  v_add_u32 v24, s{S_T0}, v24
  s_mov_b32 s{S_T1}, {(2**32 + 23)//24}""")
    for q in range(3):
        a(f"""  v_add_u32 v28, {64*q}, v{V_LANE}
  v_mul_hi_u32 v29, v28, s{S_T1}
  v_add_lshl_u32 v28, v28, v29, 4
  v_add_u32 v{25+q}, s{S_T0}, v28""")
    a(f"""  s_lshl_b32 s86, s{S_W}, 3
  s_mul_i32 s86, s86, {512*384}
  s_add_u32 s86, s86, s{S_PXO}""")
    for blk in range(2):
        for sI in range(12):
            p = 32 + 4 * (sI & 3)
            for t in epi_cvt(blk, sI, p, 16): a(t)
            a(f"  ds_write_b128 v24, {vr(p,4)} offset:{32*sI}")
        a("  s_waitcnt lgkmcnt(0)")
        for q in range(12):
            a(f"  ds_read_b128 {vr(48+4*q+48*(blk&0),4)}, v{25+q%3} offset:{3200*(q//3)}")
        for q in range(12):
            a(f"  s_waitcnt lgkmcnt({11-q})")
            if q % 3 == 0 and (q or blk): a(f"  s_add_u32 s86, s86, {512*384}")
            a(f"  buffer_store_dwordx4 {vr(48+4*q,4)}, v{R.V_L16}, s[{S_OUT}:{S_OUT+3}], s86 offen offset:{1024*(q%3)} {['', 'nt', 'sc1', 'sc0 sc1'][OPT['finf']]}")
        if blk == 0: a("  s_nop 1")
def gen_fused(a, name="fused_kernel", nwg=256):
    CFG['accinit'] = 1
    a(kstart(name))
    h16 = lambda x: int(np.float16(x).view(np.uint16))
    a(f"""
  s_cmp_ge_u32 s2, {nwg}
  s_cbranch_scc1 {name}_done
  s_load_dwordx2 s[48:49], s[0:1], 0       ; x
  s_load_dwordx2 s[50:51], s[0:1], 32      ; out
  s_load_dwordx2 s[38:39], s[0:1], 48      ; ws
  v_lshrrev_b32 v1, 6, v0
  v_and_b32 v{V_LANE}, 63, v0
  s_nop 0
  v_readfirstlane_b32 s{S_W}, v1
  v_lshlrev_b32 v{R.V_L16}, 4, v{V_LANE}
""")
    a(f"""
  s_waitcnt lgkmcnt(0)
  s_mov_b32 s{R.S_WS}, s38
  s_and_b32 s{R.S_WS+1}, s39, 0xffff
  s_mov_b32 s{R.S_WS+2}, {NBLK*BLK}
  s_mov_b32 s{R.S_WS+3}, 0x20000
  s_add_u32 s{S_TB}, s38, {TBL_OFF}
  s_addc_u32 s{S_TB+1}, s39, 0
  s_and_b32 s{S_TB+1}, s{S_TB+1}, 0xffff
  s_mov_b32 s{S_TB+2}, {TBL_BYTES}
  s_mov_b32 s{S_TB+3}, 0x20000
  s_mov_b32 s{S_X}, s48
  s_and_b32 s{S_X+1}, s49, 0xffff
  s_mov_b32 s{S_X+2}, {NPX*384}
  s_mov_b32 s{S_X+3}, 0x20000
  s_mov_b32 s{S_OUT}, s50
  s_and_b32 s{S_OUT+1}, s51, 0xffff
  s_mov_b32 s{S_OUT+2}, {NPX*384}
  s_mov_b32 s{S_OUT+3}, 0x20000
  s_mov_b32 s{R.S_NA}, {hex(f2u(-GA))}
  s_mov_b32 s{R.S_S}, {hex(f2u(GS))}
  s_mov_b32 s85, {hex(f2u(GS * (1.0 - OPT['bias'] / 1000.0)))}
  s_mov_b32 s{R.S_NAH}, {hex(h16(-GA) | (h16(-GA) << 16))}
  s_mov_b32 s{R.S_SH}, {hex(h16(GS) | (h16(GS) << 16))}
  s_mov_b32 s{S_LO}, 0x05040100
  s_mov_b32 s{S_HI}, 0x07060302
  s_mov_b32 s{S_EPS}, {hex(f2u(1e-5))}
  s_mov_b32 s{S_INV}, {hex(f2u(1.0/192))}
  s_mul_i32 s{S_G0}, s{S_W}, 6144
""")
    for s in range(3):
        a(f"  s_add_u32 s{R.S_M[2*s]}, s{S_G0}, {s*BLK}")
        a(f"  s_add_u32 s{R.S_M[2*s+1]}, s{S_G0}, {s*BLK + 4096}")
    if OPT['prof'] or OPT['dumph']:
        a(f"""  s_add_u32 s44, s38, {STAMP_OFF}
  s_addc_u32 s45, s39, 0
  s_and_b32 s45, s45, 0xffff
  s_mov_b32 s46, {256*4*512}
  s_mov_b32 s47, 0x20000
  s_lshl_b32 s40, s2, 2
  s_add_u32 s40, s40, s{S_W}
  s_lshl_b32 s40, s40, 9
  s_add_u32 s52, s38, {H_OFF}
  s_addc_u32 s53, s39, 0
  s_and_b32 s53, s53, 0xffff
  s_mov_b32 s54, {NPX*384}
  s_mov_b32 s55, 0x20000""")
    stamp(a, True)
    a(f"  s_mov_b32 s{S_I}, 0")
    tile_coords(a)
    if OPT['k2']:
        a(f"""  s_add_u32 s52, s38, {H_OFF}
  s_addc_u32 s53, s39, 0
  s_and_b32 s53, s53, 0xffff
  s_mov_b32 s54, {NPX*384}
  s_mov_b32 s55, 0x20000""")
        for l in h_load_lines(): a(l)
    else:
        global_bases(a)
        table_dma(a, 0); table_dma(a, 1)
        x_loads(a, 0, 0)
        if not OPT['r1late']: x_loads(a, 0, 1)
        if not OPT['r2late']: x_loads(a, 0, 2)
    npf = 0
    if OPT['spf']:
        a(f"""  s_lshl_b32 s{S_T0}, s{S_TY}, 5
  s_sub_u32 s{S_T0}, s{S_T0}, 3
  s_max_i32 s{S_T0}, s{S_T0}, 0
  s_add_u32 s{S_T0}, s{S_T0}, s{S_W}
  s_lshl_b32 s{S_T0}, s{S_T0}, 9
  s_lshl_b32 s{S_T1}, s{S_TX}, 3
  s_sub_u32 s{S_T1}, s{S_T1}, 4
  s_max_i32 s{S_T1}, s{S_T1}, 0
  s_add_u32 s{S_T0}, s{S_T0}, s{S_T1}
  s_mul_i32 s{S_PF}, s{S_T0}, 384
  v_min_u32 v{V_TMP}, 47, v{V_LANE}
  v_lshlrev_b32 v{V_TMP}, 7, v{V_TMP}
  s_mov_b32 m0, {PFSCR}
  s_lshr_b32 s{S_T0}, s2, 3
  s_lshl_b32 s{S_T0}, s{S_T0}, 2
  s_add_u32 s{S_T0}, s{S_T0}, s{S_W}
  s_mul_i32 s{S_T0}, s{S_T0}, 5120
  v_lshlrev_b32 v16, 6, v{V_LANE}
  buffer_load_dword v16, s[{R.S_WS}:{R.S_WS+3}], s{S_T0} offen lds
  buffer_load_dword v16, s[{R.S_WS}:{R.S_WS+3}], s{S_T0} offen offset:1024 lds""")
        npf = 2
        for idx in range(20):
            a(f"  buffer_load_dword v{V_TMP}, s[{S_X}:{S_X+3}], s{S_PF} offen offset:{64*(idx&1)} lds")
            if idx & 1: a(f"  s_add_u32 s{S_PF}, s{S_PF}, {4*512*384}")
            npf += 1
    if OPT['wpf']:
        a(f"""  s_mov_b32 m0, {PFSCR}
  s_lshr_b32 s{S_T0}, s2, 3
  s_lshl_b32 s{S_T0}, s{S_T0}, 2
  s_add_u32 s{S_T0}, s{S_T0}, s{S_W}
  s_mul_i32 s{S_T0}, s{S_T0}, 5120
  v_lshlrev_b32 v16, 6, v{V_LANE}
  buffer_load_dword v16, s[{R.S_WS}:{R.S_WS+3}], s{S_T0} offen lds
  buffer_load_dword v16, s[{R.S_WS}:{R.S_WS+3}], s{S_T0} offen offset:1024 lds""")
        npf += 2
    if OPT['cpf']:
        a(f"""  s_getpc_b64 s[88:89]
{{CODEBASE}}:
  v_lshlrev_b32 v17, 7, v{V_LANE}
  s_lshl_b32 s{S_T0}, s{S_W}, 13
  v_add_u32 v17, s{S_T0}, v17""".replace("{CODEBASE}", "fused_kernel_pc"))
        for q in range(3):
            a(f"  v_min_u32 v18, fused_kernel_done-fused_kernel_pc, v17")
            a(f"  global_load_dword v{120+q}, v18, s[88:89]")
            a(f"  v_add_u32 v17, {4*8192}, v17")
            npf += 1
    a(f"""
  v_add_u32 v{R.V_L16B}, {C.RB if CFG['ring5'] else 2*BLK}, v{R.V_L16}
  v_and_b32 v16, 31, v{V_LANE}             ; n
  v_lshrrev_b32 v17, 5, v{V_LANE}          ; hf
  v_lshrrev_b32 v18, 3, v16
  v_and_b32 v19, 7, v16
  s_lshl_b32 s{S_T0}, s{S_W}, 3
  v_add_u32 v18, s{S_T0}, v18
  v_lshl_add_u32 v20, v18, 9, v19
  s_movk_i32 s{S_T1}, 384
  v_mul_lo_u32 v20, v20, s{S_T1}
  v_lshl_add_u32 v{V_PX[0]}, v17, 4, v20
  v_add_u32 v{V_PX[1]}, {4*512*384}, v{V_PX[0]}
  v_lshl_add_u32 v20, v18, 3, v19
  s_movk_i32 s{S_T1}, {XPS}
  v_mul_lo_u32 v20, v20, s{S_T1}
  v_lshrrev_b32 v21, 1, v18                ; row>>1
  v_add_u32 v21, v21, v17                  ; + hf
  v_lshl_add_u32 v20, v21, 4, v20
  v_add_u32 v{V_XR[0]}, {XCH}, v20
  v_add_u32 v{V_XR[1]}, {XCH + 32*XPS + 32}, v20
  v_and_b32 v18, 0x13, v16
  v_bfe_u32 v19, v16, 2, 1
  v_lshl_or_b32 v18, v19, 3, v18
  v_bfe_u32 v19, v16, 3, 1
  v_lshl_or_b32 v18, v19, 2, v18
  v_lshlrev_b32 v19, 3, v17
  v_sub_u32 v18, v18, v19                  ; c(m) - 8hf
""")
    for d in range(4):
        for (base, reg) in ((0, 112), (16, 116)):
            a(f"""  v_cmp_eq_u32 vcc, {base+2*d}, v18
  v_mov_b32 v19, 0x3f80
  s_nop 1
  v_cndmask_b32 v20, 0, v19, vcc
  v_cmp_eq_u32 vcc, {base+2*d+1}, v18
  v_mov_b32 v19, 0x3f800000
  s_nop 1
  v_cndmask_b32 v21, 0, v19, vcc
  v_or_b32 v{reg+d}, v20, v21""")
    a(f"""  v_add_u32 v20, {IDOFF}, v{R.V_L16}
  ds_write_b128 v20, v[112:115]
  ds_write_b128 v20, v[116:119] offset:1024
  v_and_b32 v16, 15, v{V_LANE}             ; nh
  v_lshrrev_b32 v17, 4, v{V_LANE}          ; q
  v_lshrrev_b32 v18, 1, v17
  v_mul_u32_u24 v18, {PLANE}, v18
  v_lshl_add_u32 v18, v16, 5, v18
  v_and_b32 v19, 1, v17
  v_lshl_add_u32 v18, v19, 4, v18
  s_mul_i32 s{S_T0}, s{S_W}, {2*OS}
  s_add_u32 s{S_T0}, s{S_T0}, {SB}
  v_add_u32 v{V_B}, s{S_T0}, v18
  v_and_b32 v18, 1, v16                    ; mh
  v_bfe_u32 v19, v16, 1, 1                 ; par
  v_lshrrev_b32 v20, 2, v16                ; k'
  v_sub_u32 v21, v17, v18
  v_add_u32 v21, 1, v21
  v_lshlrev_b32 v21, 5, v21
  v_lshl_add_u32 v21, v19, 4, v21
  v_sub_u32 v22, 0, v20
  v_and_b32 v22, 3, v22
  v_lshl_add_u32 v21, v22, 2, v21
  s_lshl_b32 s{S_T0}, s{S_W}, 12
  s_add_u32 s{S_T0}, s{S_T0}, {TB[0]}
  v_add_u32 v{V_T}, s{S_T0}, v21
  v_lshlrev_b32 v21, 1, v20                ; 2k'
  v_add_u32 v22, 1, v21                    ; O: 2k'+1
  v_cmp_eq_u32 vcc, 0, v20
  v_mov_b32 v23, 8
  s_nop 1
  v_cndmask_b32 v21, v21, v23, vcc         ; E
  v_cmp_eq_u32 vcc, 1, v19
  s_nop 1
  v_cndmask_b32 v21, v22, v21, vcc         ; s
  v_mov_b32 v{V_IDX}, 0x4444
""")
    for g in range(4):
        a(f"""  v_cmp_le_u32 vcc, {2*g+2}, v21
  v_mov_b32 v22, {0xA << (4*g)}
  s_nop 1
  v_cndmask_b32 v22, 0, v22, vcc
  v_or_b32 v{V_IDX}, v{V_IDX}, v22""")
    a(f"""
  v_lshlrev_b32 v18, 4, v16                ; 2nh*8
  v_lshlrev_b32 v19, 1, v17                ; 2q'
  v_lshlrev_b32 v20, 4, v16
  s_lshl_b32 s{S_T0}, s{S_W}, 5
  s_add_u32 s{S_T0}, s{S_T0}, {XCH}
  v_add_u32 v20, s{S_T0}, v20
  s_movk_i32 s{S_T1}, {XPS}
  v_add_u32 v21, v18, v19
  v_mul_lo_u32 v21, v21, s{S_T1}
  v_add_u32 v{V_XW[0]}, v21, v20
  v_add_u32 v19, 7, v19
  v_and_b32 v19, 7, v19
  v_add_u32 v21, v18, v19
  v_mul_lo_u32 v21, v21, s{S_T1}
  v_add_u32 v{V_XW[1]}, v21, v20
""")
    a(f"  v_mov_b32 v20, 0\n  v_mov_b32 v21, {ZROW}\n  v_lshl_add_u32 v21, v{V_LANE}, 0, v21\n  v_and_b32 v22, 15, v{V_LANE}\n  v_lshlrev_b32 v22, 2, v22\n  v_add_u32 v22, {ZROW}, v22\n  ds_write_b32 v22, v20")
    a(f"""  v_mov_b32 v20, 0
  v_and_b32 v22, 15, v{V_LANE}
  v_lshlrev_b32 v22, 2, v22
  v_add_u32 v22, {ZROW}, v22
  ds_write_b32 v22, v20
  s_lshl_b32 s{S_T0}, s{S_W}, 5
  s_mul_i32 s{S_T1}, s{S_W}, {8*8*XPS + 4*16}
  v_subrev_u32 v20, s{S_T0}, v12
  v_subrev_u32 v21, s{S_T0}, v13
  v_subrev_u32 v22, s{S_T1}, v14
  v_subrev_u32 v23, s{S_T1}, v15
  v_add_u32 v16, {SAVEOFF}, v{R.V_L16}
  ds_write_b128 v16, v[20:23]""")
    for r in range(3):
        a(f"""  s_lshl_b32 s{S_T0}, s{S_W}, 6
  s_add_u32 s{S_T0}, s{S_T0}, {256*r}
  v_add_u32 v16, s{S_T0}, v{V_LANE}
  s_movk_i32 s{S_T1}, 608
  v_cmp_gt_u32 vcc, s{S_T1}, v16
  v_subrev_u32 v17, 32, v16
  s_nop 1
  v_cndmask_b32 v16, v17, v16, vcc
  v_and_b32 v18, 7, v16                        ; o
  v_lshrrev_b32 v19, 4, v16                    ; row
  v_bfe_u32 v20, v16, 3, 1                     ; u
  v_mul_u32_u24 v18, {OS}, v18
  v_and_b32 v21, 1, v19
  v_mul_u32_u24 v21, {PLANE}, v21
  v_lshrrev_b32 v19, 1, v19
  v_lshl_add_u32 v21, v19, 5, v21
  v_lshl_add_u32 v21, v20, 4, v21
  v_add_u32 v21, v21, v18
  v_add_u32 v{V_SW[r]}, {SB}, v21""")
    if not OPT['k2']: a(f"  s_waitcnt vmcnt({npf})")
    a(f"  s_mov_b32 s{S_PXP}, 0x80000000")
    a(f"{name}_tile:")
    a(f"  s_mov_b32 s{S_PXO}, s{S_PXN}")
    stamp(a, True)
    phase_c(a)
    stamp(a)
    if OPT['dumph']:
        for blk in range(2):
            for s in range(12):
                a(f"  buffer_store_dwordx4 {Hf(blk,s)}, v{V_PX[blk]}, s[52:55], s{S_PXO} offen offset:{32*s}")
        a("  s_waitcnt vmcnt(6)" if False else "  s_waitcnt vmcnt(0)")
    core = Core(a)
    if OPT['jith']: core.jit_reads = lambda t: [f"  ds_read_b128 {Hf(blk,t)}, v{V_XR[blk]} offset:{32*t}" for blk in range(2)]
    tc = Asm()
    tc(f"  s_add_u32 s{S_I}, s{S_I}, 1")
    tile_coords(tc)
    tc(f"""  s_lshl_b32 s{S_T0}, s{S_TY}, 5
  s_sub_u32 s{S_T0}, s{S_T0}, 3
  s_max_i32 s{S_T0}, s{S_T0}, 0
  s_add_u32 s{S_T0}, s{S_T0}, s{S_W}
  s_lshl_b32 s{S_T0}, s{S_T0}, 9
  s_lshl_b32 s{S_T1}, s{S_TX}, 3
  s_sub_u32 s{S_T1}, s{S_T1}, 4
  s_max_i32 s{S_T1}, s{S_T1}, 0
  s_add_u32 s{S_T0}, s{S_T0}, s{S_T1}
  s_mul_i32 s{S_PF}, s{S_T0}, 384
  s_cmp_ge_u32 s{S_I}, 4
  s_cselect_b32 s{S_PF}, 0x80000000, s{S_PF}""")
    tcl = [(l, 4) for l in tc.L]
    ex0 = [(f"  v_min_u32 v{V_TMP}, 47, v{V_LANE}", 4), (f"  v_lshlrev_b32 v{V_TMP}, 7, v{V_TMP}", 4)]
    if OPT['w1late']:
        wl = Asm(); w_dma_block(wl, 1)
        ex0 = [(l, 10 if 'buffer' in l else 4) for l in wl.L] + ex0
    ex0 = ex0 + tcl[:-2] + [(tcl[-2][0] + "\n" + tcl[-1][0], 8)]
    core.extra[0] = ex0
    core.fast_flush = {0}
    core.vmwait[0] = 0
    core.vmwait[1] = 0
    stplan = {}; xplan = {}
    xg = OPT['xg']
    lin = OPT['lin']
    S_SR = 76; S_SX = 77
    linops = {}
    if lin:
        ex0b = f"""  s_mul_i32 s86, s{S_W}, 12800
  s_add_u32 s86, s86, {TREG}
  v_and_b32 v12, 31, v{V_LANE}
  v_mul_u32_u24 v12, 400, v12
  v_lshrrev_b32 v16, 5, v{V_LANE}
  v_lshl_add_u32 v12, v16, 4, v12
  v_add_u32 v12, s86, v12
  s_mov_b32 s87, {(2**32 + 23)//24}""".split("\n")
        for q in range(3):
            ex0b += [f"  v_add_u32 v16, {64*q}, v{V_LANE}", f"  v_mul_hi_u32 v17, v16, s87", f"  v_add_lshl_u32 v16, v16, v17, 4", f"  v_add_u32 v{13+q}, s86, v16"]
        ex0b += [f"  s_lshl_b32 s{S_SR}, s{S_W}, 3", f"  s_mul_i32 s{S_SR}, s{S_SR}, {512*384}", f"  s_add_u32 s{S_SX}, s{S_SR}, s{S_PXO}", f"  s_add_u32 s{S_SR}, s{S_SR}, s{S_PXP}"]
        core.extra[0] = core.extra[0] + [(l, 4) for l in ex0b]
        def AQ(blk, q): r = quad(blk, q); return f"a[{r}:{r+3}]"
        for blk in range(2):
            core.lds_extra[1 + 3 * blk] = [f"  ds_write_b128 v12, {AQ(blk,q)} offset:{32*q}" for q in range(12)]
            core.lds_extra[2 + 3 * blk] = [f"  ds_read_b128 {AQ(blk,q)}, v{13+q%3} offset:{3200*(q//3)}" for q in range(12)]
            if lin == 1:
                core.lds_extra[10 + 4 * blk] = [f"  ds_write_b128 v{13+q%3}, {AQ(blk,q)} offset:{3200*(q//3)}" for q in range(12)]
                core.lds_extra[11 + 4 * blk] = [f"  ds_read_b128 {AQ(blk,q)}, v12 offset:{32*q}" for q in range(12)]
        def st(blk, q):
            L = [f"  buffer_store_dwordx4 {AQ(blk,q)}, v{R.V_L16}, s[{S_OUT}:{S_OUT+3}], s{S_SR} offen offset:{1024*(q%3)} {['', 'nt', 'sc1', 'sc0 sc1'][OPT['linf']]}"]
            if q % 3 == 2: L.append(f"  s_add_u32 s{S_SR}, s{S_SR}, {512*384}")
            return (L, 6)
        def xl(blk, q):
            L = [f"  buffer_load_dwordx4 {AQ(blk,q)}, v{R.V_L16}, s[{S_X}:{S_X+3}], s{S_SX} offen offset:{1024*(q%3)}"]
            if q % 3 == 2: L.append(f"  s_add_u32 s{S_SX}, s{S_SX}, {512*384}")
            return (L, 6)
        linops = {2: [st(0, q) for q in range(6)], 3: [st(0, q) for q in range(6, 12)], 4: [xl(0, q) for q in range(6)],
                  5: [st(1, q) for q in range(6)], 6: [st(1, q) for q in range(6, 12)], 7: [xl(0, q) for q in range(6, 12)],
                  10: [xl(1, q) for q in range(6)], 11: [xl(1, q) for q in range(6, 12)]}
        if lin == 2:
            for j_ in (4, 7, 10, 11): del linops[j_]
            xo = [(0,8),(0,9),(0,10),(0,11),(0,4),(0,5),(0,6),(0,7),(0,0),(1,8),(1,9),(1,10),(1,11),(1,4),(1,5),(1,6),(1,7),(0,1),(0,2),(0,3),(1,0),(1,1),(1,2),(1,3)]
            nx = OPT['nxw']
            for q_, (b_, s_) in enumerate(xo): xplan.setdefault(4 + q_ // nx if not (b_ == 1 and 4 + q_ // nx < 7) else 7, []).append(12 * b_ + s_)
        if lin == 3:
            core.lds_extra.pop(1); core.lds_extra.pop(2); core.lds_extra.pop(4); core.lds_extra.pop(5)
            for blk in range(2):
                core.lds_extra[10 + 4 * blk] = [f"  ds_write_b128 v{13+q%3}, {AQ(blk,q)} offset:{3200*(q//3)}" for q in range(12)]
                core.lds_extra[11 + 4 * blk] = [f"  ds_read_b128 {AQ(blk,q)}, v12 offset:{32*q}" for q in range(12)]
            linops = {7: [xl(0, q) for q in range(6)], 8: [xl(0, q) for q in range(6, 12)] , 12: [xl(1, q) for q in range(6)], 13: [xl(1, q) for q in range(6, 12)]}
            core.lds_extra[11] = core.lds_extra.pop(10); core.lds_extra[12] = [f"  ds_read_b128 {AQ(0,q)}, v12 offset:{32*q}" for q in range(12)]
            core.lds_extra[16] = core.lds_extra.pop(14); core.lds_extra[17] = [f"  ds_read_b128 {AQ(1,q)}, v12 offset:{32*q}" for q in range(12)]
            core.lds_extra.pop(15, None)
            for g in range(12): stplan[1 + g] = [2 * g, 2 * g + 1]
    elif xg == 4:
        for g in range(6):
            stplan[1 + 4 * g] = [4 * g + e for e in range(4)]
            xplan[2 + 4 * g] = [4 * g + e for e in range(4)]
    elif xg == 2:
        for g in range(12): stplan[1 + g] = [2 * g, 2 * g + 1]
        for g in range(12): xplan[[2, 4, 6, 8, 10, 12, 14, 16, 18, 20, 21, 22][g]] = [2 * g, 2 * g + 1]
    elif xg == 5:
        order = [12 * b + s_ for line in (2, 1, 0) for b in range(2) for s_ in range(4 * line, 4 * line + 4)]
        for g in range(12):
            stplan[1 + g] = order[2 * g:2 * g + 2]
            xplan[2 + g] = order[2 * g:2 * g + 2]
    elif xg == 7:
        order = [12 * b + s_ for line in (2, 1, 0) for b in range(2) for s_ in range(4 * line, 4 * line + 4)]
        for g in range(12):
            stplan[1 + g] = order[2 * g:2 * g + 2]
            xplan[1 + g] = order[2 * g:2 * g + 2]
    elif xg == 8:
        order = [12 * b + s_ for line in (2, 1, 0) for b in range(2) for s_ in range(4 * line, 4 * line + 4)]
        for g in range(6):
            stplan[1 + 2 * g] = order[4 * g:4 * g + 4]
            xplan[2 + 2 * g] = order[4 * g:4 * g + 4]
    elif xg == 6:
        order = [12 * b + s_ for line in (2, 1, 0) for b in range(2) for s_ in range(4 * line, 4 * line + 4)]
        for g in range(8):
            stplan[1 + g] = order[3 * g:3 * g + 3]
            xplan[2 + g] = order[3 * g:3 * g + 3]
    elif xg == 1:
        for g in range(12): stplan[1 + g] = [2 * g, 2 * g + 1]
        for q in range(24): xplan.setdefault(2 + (q * 21) // 24, []).append(q)
    perj = {}
    for j in range(1, 24):
        ops = []; nv = 0
        for g in linops.get(j, []):
            ops.append(g); nv += 1
        for q in (stplan.get(j, []) if not OPT['nost'] else []):
            ops.append(([store_parked(q, S_PXP)], 6)); nv += 1
        for q in (xplan.get(j, []) if not OPT['noxl'] else []):
            blk, sI = q // 12, q % 12
            ops.append(([f"  buffer_load_dwordx4 {Xf(blk,sI)}, v{V_PX[blk]}, s[{S_X}:{S_X+3}], s{S_PXO} offen offset:{32*sI} {['', 'nt', 'sc1', 'sc0 sc1'][OPT['xf']]}"], 6)); nv += 1
        if j in (OPT['tabj'], OPT['tabj'] + 2) and not OPT['k2']:
            for gi_, g in enumerate(table_dma_ops(0 if j == OPT['tabj'] else 1)):
                ops.append((g, 6 + 4 * (len(g) - 1))); nv += 1
        if OPT['pf'] and j < 23 and not OPT['k2']:
            npf_ = 20 if OPT['pfh'] else 10
            step = OPT['pfs']; first = OPT['pfe'] - npf_ * step
            if j >= first and (j - first) % step == 0 and (j - first) // step < npf_:
                idx = (j - first) // step
                t = [f"  s_mov_b32 m0, {PFSCR}", "  s_nop 0", f"  buffer_load_dword v{V_TMP}, s[{S_X}:{S_X+3}], s{S_PF} offen offset:{64 * (idx & 1) if OPT['pfh'] else 0} {['', 'nt', 'sc1', 'sc0 sc1'][OPT['pff']]} lds"]
                if (idx & 1) or not OPT['pfh']: t.append(f"  s_add_u32 s{S_PF}, s{S_PF}, {4*512*384}")
                ops.append((t, 14)); nv += 1
        perj[j] = (ops, nv)
    if CFG['ring5']:
        for j in range(1, 24, 2):
            o1, n1 = perj.get(j, ([], 0)); o2, n2 = perj.get(j + 1, ([], 0))
            core.pend_extra[j] = (o1, o2)
            core.vmwait[j + 2] = n2
    else:
        for j in range(1, 24):
            core.pend_extra[j] = perj[j][0]; core.vmwait[j + 1] = perj[j][1]
    core.extra[23] = []
    core.extra[24] = [(f"  v_add_u32 v56, {IDOFF}, v{R.V_L16}", 4), (f"  ds_read_b128 v[48:51], v56", 8), (f"  ds_read_b128 v[52:55], v56 offset:1024", 8)]
    ps = []
    for blk in range(2):
        for sI in range(12):
            ps.append((f"  v_mfma_f32_32x32x16_bf16 {ACC(blk,sI>>1)}, {vr(52 if sI&1 else 48,4)}, {Xf(blk,sI)}, {ACC(blk,sI>>1)}", []))
    if CFG['ring5']: ps[0] = (ps[0][0], ["  s_waitcnt vmcnt(0)"])
    core.pseudo[24] = ps
    core.extra_first.add(24)
    core.no_barrier.add(25)
    if not CFG['ring5']: core.vmwait[24] = 0
    core.emit(0, 1); core.emit(1, 2)
    if OPT['prof'] >= 2:
        a(f"  v_mov_b32 v47, v{V_TMP}"); stamp(a); a(f"  v_mov_b32 v{V_TMP}, v47")
    for j in range(2, 24): core.emit(j, j + 1)
    if OPT['prof'] >= 2: stamp(a)
    core.emit(24, 25)
    if OPT['prof'] >= 2: stamp(a)
    if OPT['wb']:
        a(f"""  s_cmp_lt_u32 s{S_I}, 4
  s_cbranch_scc1 {name}_nowb
  s_cmp_ge_u32 s2, {8 if OPT['wb'] == 1 else 256}
  s_cbranch_scc1 {name}_nowb
  s_cmp_lg_u32 s{S_W}, 0
  s_cbranch_scc1 {name}_nowb
  buffer_wbl2 sc1
{name}_nowb:""")
    emit_tail(a, core)
    stamp(a)
    a(f"""  s_cmp_ge_u32 s{S_I}, 4
  s_cbranch_scc1 {name}_last""")
    if OPT['endbar']: a("  s_barrier")
    a(f"  s_mov_b32 s{S_PXP}, s{S_PXO}")
    stamp(a)
    a(f"  s_branch {name}_tile")
    a(f"{name}_last:")
    if CFG['ring5']: a("  s_barrier        ; the transposition buffers overlap ring slots that slower waves may still read")
    a("  s_nop 15")
    epilogue(a)
    stamp(a)
    a("  s_waitcnt vmcnt(0)")
    stamp(a, True)
    a(f"""  s_waitcnt vmcnt(0)
{name}_done:
  s_endpgm
""")
    for blk in OOL:
        for l in blk: a(l)
    a(kdesc(name, 512, 100, 256))
def emit_loop(a, self, name):
    for j in range(2, 25): self.emit(j, j + 1)
def emit_tail(a, core):
    ch, Pf = core.plan(25, None)
    main = [l for c in ch for l in c]
    for tx, c in core.pending: main += tx
    core.pending = []
    f = []
    if OPT['k2']:
        f += h_load_lines()
    else:
        f += global_bases_lines(96)
        f += [x_load_line(0, 0, i) for i in range(8)]
        if not OPT['r1late']: f += [x_load_line(0, 1, i) for i in range(8)]
        if not OPT['r2late']: f += [x_load_line(0, 2, i) for i in range(8)]
    fi = 0
    nm = sum(1 for l in main if "v_mfma" in l); per = -(-len(f) // nm)
    for l in main:
        a(l)
        if "v_mfma" in l:
            for _ in range(per):
                if fi < len(f): a(f[fi]); fi += 1
    while fi < len(f): a(f[fi]); fi += 1
    vm.ops.clear(); vm.add(('t', 0), 4); vm.add(('t', 1), 4); vm.add(('x', 0, 0), 8)
    if not OPT['r1late']: vm.add(('x', 0, 1), 8)
    if not OPT['r2late']: vm.add(('x', 0, 2), 8)
```
